```python
import torch

def _softmax(x, axis=-1):
    return torch.softmax(x, dim=axis)
def _gelu(x):
    return torch.nn.functional.gelu(x, approximate="tanh")
def _silu(x):
    return torch.nn.functional.silu(x)
def _sigmoid(x):
    return torch.sigmoid(x)
def _layernorm(x, axis=-1, eps=1e-5):
    m = x.mean(dim=axis, keepdim=True)
    v = x.var(dim=axis, keepdim=True, unbiased=False)
    return (x - m) / torch.sqrt(v + eps)
def _scatter_add(tgt, idx, src, axis=0):
    return tgt.clone().index_add_(axis, idx, src)
def _segment_sum(src, seg, n):
    out = torch.zeros((n,) + src.shape[1:], dtype=src.dtype)
    return out.index_add_(0, seg, src)
def _pad(x, pw):
    flat = tuple(v for pair in reversed(pw) for v in pair)
    return torch.nn.functional.pad(x, flat)

kernel_name = 'parallel_sum__sliding_block__mixer_channel_mlp__prompt'

def setup_inputs():

    _w = (lambda a: (lambda t: t.to(torch.bfloat16) if t.is_floating_point() else t)(torch.as_tensor(a)))
    def _A_setup():
        B, S, D = 1, 2048, 640
        return {
            "x": _w((lambda *s: torch.randn(*s, dtype=torch.bfloat16) * 0.05)(B, S, D)),
            "wqkv": _w((lambda *s: torch.randn(*s, dtype=torch.bfloat16) * 0.05)(D, 3 * D)),
            "wo": _w((lambda *s: torch.randn(*s, dtype=torch.bfloat16) * 0.05)(D, D)),
        }
    _A_in = _A_setup()

    def _B_setup():
        B, S, D, F = 1, 2048, 640, 1536
        return {
            "x": _w((lambda *s: torch.randn(*s, dtype=torch.bfloat16) * 0.05)(B, S, D)),
            "w1": _w((lambda *s: torch.randn(*s, dtype=torch.bfloat16) * 0.8)(D, F) * (D ** -0.5)),
            "b1": _w((lambda *s: torch.randn(*s, dtype=torch.bfloat16) * 0.8)(F)),
            "w2": _w((lambda *s: torch.randn(*s, dtype=torch.bfloat16) * 0.8)(F, D) * (F ** -0.5)),
            "b2": _w((lambda *s: torch.randn(*s, dtype=torch.bfloat16) * 0.4)(D)),
        }
    _B_in = _B_setup()

    return {
        "A_x": _A_in["x"],
        "A_wqkv": _A_in["wqkv"],
        "A_wo": _A_in["wo"],
        "B_x": _B_in["x"],
        "B_w1": _B_in["w1"],
        "B_b1": _B_in["b1"],
        "B_w2": _B_in["w2"],
        "B_b2": _B_in["b2"],
    }

def reference(A_x, A_wqkv, A_wo, B_x, B_w1, B_b1, B_w2, B_b2):
    def _A_ref(x, wqkv, wo):
        B, S, D = x.shape
        H = 32; Dh = D // H; W = 256
        qkv = (lambda x, *d: x.permute(*d))((x @ wqkv).reshape(B, S, 3, H, Dh), 2, 0, 3, 1, 4)
        q, k, v = qkv[0], qkv[1], qkv[2]
        scores = torch.einsum("bhqd,bhkd->bhqk", q, k) * (Dh ** -0.5)
        idx = torch.arange(S)
        mask = (idx[:, None] - idx[None, :] >= 0) & (idx[:, None] - idx[None, :] < W)
        scores = torch.where(mask[None, None], scores, -1e9)
        p = _softmax(scores, axis=-1)
        o = torch.einsum("bhqk,bhkd->bhqd", p, v)
        return (lambda x, *d: x.permute(*d))(o, 0, 2, 1, 3).reshape(B, S, D) @ wo

    def _B_ref(x, w1, b1, w2, b2):
        y = _layernorm(x, axis=-1)
        h = _gelu(torch.einsum("bsd,df->bsf", y, w1) + b1)
        return torch.einsum("bsf,fd->bsd", h, w2) + b2

    x = A_x
    xn = _layernorm(x, axis=-1)
    return x + _A_ref(xn, A_wqkv, A_wo) + _B_ref(xn, B_w1, B_b1, B_w2, B_b2)
```

```python
class Asm:
    def __init__(self):
        self.lines = []
        self.uid = 0
    def __call__(self, s):
        for l in s.split("\n"):
            l = l.strip()
            if l: self.lines.append(("" if l.endswith(":") or l.startswith(".") else "  ") + l)
    def label(self, name): self.lines.append(name + ":")
    def newlabel(self, base="L"):
        self.uid += 1
        return f"{base}_{self.uid}"
    def text(self): return "\n".join(self.lines) + "\n"

def vr(a, n=1):
    return f"v{a}" if n == 1 else f"v[{a}:{a+n-1}]"
def sr(a, n=1):
    return f"s{a}" if n == 1 else f"s[{a}:{a+n-1}]"

def srd(A, d, base_lo, base_hi, size, off=0):
    if off:
        A(f"s_add_u32 s{d}, s{base_lo}, {off}")
        A(f"s_addc_u32 s{d+1}, s{base_hi}, 0")
    else:
        A(f"s_mov_b32 s{d}, s{base_lo}")
        A(f"s_mov_b32 s{d+1}, s{base_hi}")
    A(f"s_and_b32 s{d+1}, s{d+1}, 0xffff")
    A(f"s_mov_b32 s{d+2}, {size}")
    A(f"s_mov_b32 s{d+3}, 0x20000")

def kernel_header(name):
    return f".globl {name}\n.p2align 8\n.type {name},@function\n{name}:\n"

def kernel_desc(name, vgpr=256, sgpr=100, accum=256):
    return f""".p2align 6
.amdhsa_kernel {name}
  .amdhsa_next_free_vgpr {vgpr}
  .amdhsa_next_free_sgpr {sgpr}
  .amdhsa_accum_offset {accum}
  .amdhsa_group_segment_fixed_size 0
  .amdhsa_kernarg_size 88
  .amdhsa_user_sgpr_count 2
  .amdhsa_user_sgpr_kernarg_segment_ptr 1
  .amdhsa_system_sgpr_workgroup_id_x 1
.end_amdhsa_kernel
"""

def allreduce_add(A, v, t1, t2):
    for dpp in ("quad_perm:[1,0,3,2]", "quad_perm:[2,3,0,1]", "row_half_mirror", "row_mirror"):
        A("s_nop 1")
        A(f"v_add_f32_dpp v{v}, v{v}, v{v} {dpp} row_mask:0xf bank_mask:0xf")
    A(f"v_mov_b32 v{t1}, v{v}")
    A(f"v_mov_b32 v{t2}, v{v}")
    A("s_nop 1")
    A(f"v_permlane16_swap_b32 v{t1}, v{t2}")
    A("s_nop 1")
    A(f"v_add_f32 v{v}, v{t1}, v{t2}")
    A(f"v_mov_b32 v{t1}, v{v}")
    A(f"v_mov_b32 v{t2}, v{v}")
    A("s_nop 1")
    A(f"v_permlane32_swap_b32 v{t1}, v{t2}")
    A("s_nop 1")
    A(f"v_add_f32 v{v}, v{t1}, v{t2}")
```

```python
import math, sys
from asmlib import *

WS_STATS=0; WS_CS=0x8000; WS_W2T=0x10000; WS_Q=0x300000; QKV_SZ=0x280000; WS_HO=0xA80000; HO_SZ=0x880000
W2T_SZ=8*68*5*1024
LOG2E=1.4426950408889634
CQ = (20**-0.5)*LOG2E
import struct
def f2u(f): return struct.unpack("<I", struct.pack("<f", f))[0]
def fhex(f): return hex(f2u(f))

def load_ptrs(A):
    A("s_load_dwordx16 s[60:75], s[0:1], 0")
    A("s_load_dwordx4 s[76:79], s[0:1], 64")
    A("s_load_dwordx2 s[80:81], s[0:1], 80")
    A("s_waitcnt lgkmcnt(0)")
P_X,P_WQKV,P_WO,P_W1,P_B1,P_W2,P_B2,P_OUT,P_DBG,P_WS = 60,62,64,68,70,72,74,76,78,80

def gen_k0():
    A = Asm()
    A("s_cmp_ge_u32 s2, 256"); A("s_cbranch_scc1 K0_end")
    load_ptrs(A)
    srd(A, 4, P_X, P_X+1, 2621440)
    srd(A, 8, P_WS, P_WS+1, 0x10000)
    srd(A, 12, P_WQKV, P_WQKV+1, 640*3840)
    srd(A, 16, P_W1, P_W1+1, 640*3072)
    srd(A, 20, P_W2, P_W2+1, 1536*1280)
    srd(A, 24, P_WO, P_WO+1, 640*1280)
    srd(A, 28, P_WS, P_WS+1, W2T_SZ, off=WS_W2T)
    A("v_lshrrev_b32 v1, 6, v0"); A("s_nop 0"); A("v_readfirstlane_b32 s32, v1")
    A("v_and_b32 v2, 63, v0")
    A("s_lshl_b32 s33, s2, 3"); A("s_lshl_b32 s34, s32, 1"); A("s_add_u32 s33, s33, s34")
    A("v_lshlrev_b32 v3, 2, v2")
    for rr in range(2):
        A(f"s_add_u32 s35, s33, {rr}"); A("s_mul_i32 s35, s35, 1280")
        for i in range(5):
            A(f"buffer_load_dword v{10+5*rr+i}, v3, s[4:7], s35 offen offset:{256*i}")
    A("s_waitcnt vmcnt(0)")
    for rr in range(2):
        for i in range(5):
            A(f"v_lshlrev_b32 v{30+2*i}, 16, v{10+5*rr+i}")
            A(f"v_and_b32 v{31+2*i}, 0xffff0000, v{10+5*rr+i}")
        A("v_add_f32 v40, v30, v31")
        for i in range(2,10): A(f"v_add_f32 v40, v40, v{30+i}")
        allreduce_add(A, 40, 41, 42)
        A(f"v_mul_f32 v40, {fhex(1.0/640)}, v40")
        for i in range(10): A(f"v_sub_f32 v{30+i}, v{30+i}, v40")
        A("v_mul_f32 v43, v30, v30")
        for i in range(1,10): A(f"v_fmac_f32 v43, v{30+i}, v{30+i}")
        allreduce_add(A, 43, 41, 42)
        A(f"v_mul_f32 v43, {fhex(1.0/640)}, v43")
        A(f"v_add_f32 v44, {fhex(1e-5)}, v43")
        A("v_rsq_f32 v45, v44"); A("s_nop 0")
        A("v_mul_f32 v46, v45, v45"); A("v_mul_f32 v46, v46, v43")
        A(f"v_add_f32 v46, {fhex(1e-5)}, v46")
        A("v_rsq_f32 v46, v46"); A("s_nop 0")
        A("v_mov_b32 v48, v40"); A("v_mov_b32 v49, v45")
        A(f"v_mul_f32 v50, {fhex(CQ)}, v45")
        A("v_mul_f32 v51, v45, v46")
        A(f"s_add_u32 s35, s33, {rr}"); A("s_lshl_b32 s35, s35, 4")
        A("v_mov_b32 v47, 0")
        A("v_cmp_eq_u32 vcc, 0, v2")
        A("s_and_saveexec_b64 s[36:37], vcc")
        A("buffer_store_dwordx4 v[48:51], v47, s[8:11], s35 offen")
        A("s_mov_b64 exec, s[36:37]")
        A("s_nop 2")
    A("s_cmp_ge_u32 s2, 54"); A("s_cbranch_scc1 K0_taskC")
    A("v_and_b32 v3, 7, v0"); A("v_lshrrev_b32 v4, 3, v0")
    lab1, lab2 = "K0_b_w1", "K0_b_go"
    A("s_cmp_ge_u32 s2, 30"); A(f"s_cbranch_scc1 {lab1}")
    A("v_mul_u32_u24 v5, 3840, v4"); A("v_lshl_add_u32 v5, v3, 4, v5")
    A("s_lshl_b32 s35, s2, 7")
    for i in range(20):
        A(f"buffer_load_dwordx4 v[{60+4*i}:{63+4*i}], v5, s[12:15], s35 offen")
        A(f"s_add_u32 s35, s35, {32*3840}")
    A(f"s_branch {lab2}")
    A.label(lab1)
    A("v_mul_u32_u24 v5, 3072, v4"); A("v_lshl_add_u32 v5, v3, 4, v5")
    A("s_sub_u32 s35, s2, 30"); A("s_lshl_b32 s35, s35, 7")
    for i in range(20):
        A(f"buffer_load_dwordx4 v[{60+4*i}:{63+4*i}], v5, s[16:19], s35 offen")
        A(f"s_add_u32 s35, s35, {32*3072}")
    A.label(lab2)
    for c in range(8): A(f"v_mov_b32 v{10+c}, 0")
    A("s_waitcnt vmcnt(0)")
    for i in range(20):
        for d in range(4):
            A(f"v_lshlrev_b32 v20, 16, v{60+4*i+d}")
            A(f"v_and_b32 v21, 0xffff0000, v{60+4*i+d}")
            A(f"v_add_f32 v{10+2*d}, v{10+2*d}, v20")
            A(f"v_add_f32 v{11+2*d}, v{11+2*d}, v21")
    for c in range(8):
        v=10+c
        A("s_nop 1")
        A(f"v_add_f32_dpp v{v}, v{v}, v{v} row_ror:8 row_mask:0xf bank_mask:0xf")
        A(f"v_mov_b32 v20, v{v}"); A(f"v_mov_b32 v21, v{v}"); A("s_nop 1")
        A("v_permlane16_swap_b32 v20, v21"); A("s_nop 1")
        A(f"v_add_f32 v{v}, v20, v21")
        A(f"v_mov_b32 v20, v{v}"); A(f"v_mov_b32 v21, v{v}"); A("s_nop 1")
        A("v_permlane32_swap_b32 v20, v21"); A("s_nop 1")
        A(f"v_add_f32 v{v}, v20, v21")
    A("v_lshlrev_b32 v22, 5, v2"); A("s_lshl_b32 s36, s32, 8"); A("v_add_u32 v22, s36, v22")
    A("v_cmp_gt_u32 vcc, 8, v2"); A("s_and_saveexec_b64 s[36:37], vcc")
    A("ds_write_b128 v22, v[10:13]"); A("ds_write_b128 v22, v[14:17] offset:16")
    A("s_mov_b64 exec, s[36:37]")
    A("s_waitcnt lgkmcnt(0)"); A("s_barrier")
    A("v_lshlrev_b32 v22, 2, v0")
    A("v_cmp_gt_u32 vcc, 64, v0"); A("s_and_saveexec_b64 s[36:37], vcc")
    A("s_cbranch_execz K0_end")
    for w in range(4): A(f"ds_read_b32 v{24+w}, v22 offset:{256*w}")
    A("s_waitcnt lgkmcnt(0)")
    A("v_add_f32 v24, v24, v25"); A("v_add_f32 v26, v26, v27"); A("v_add_f32 v24, v24, v26")
    A("s_lshl_b32 s35, s2, 8"); A(f"s_add_u32 s35, s35, {WS_CS}")
    A("buffer_store_dword v24, v22, s[8:11], s35 offen")
    A("s_branch K0_end")
    A.label("K0_taskC")
    A("s_cmp_lt_u32 s2, 64"); A("s_cbranch_scc1 K0_end")
    A("s_cmp_ge_u32 s2, 132"); A("s_cbranch_scc1 K0_end")
    A("s_sub_u32 s33, s2, 64")
    A("v_lshrrev_b32 v3, 3, v0")
    A("v_and_b32 v4, 7, v0")
    A("s_cmp_ge_u32 s33, 48"); A("s_cbranch_scc1 K0_c_wo")
    A("s_lshl_b32 s34, s33, 5"); A("v_add_u32 v5, s34, v3")
    A("v_mul_u32_u24 v5, 1280, v5"); A("v_lshl_add_u32 v5, v4, 4, v5")
    for i in range(10): A(f"buffer_load_dwordx4 v[{60+4*i}:{63+4*i}], v5, s[20:23], 0 offen offset:{128*i}")
    A("s_branch K0_c_go")
    A.label("K0_c_wo")
    A("s_sub_u32 s34, s33, 48"); A("s_lshl_b32 s34, s34, 2")
    A("v_bfe_u32 v6, v3, 2, 2")
    A("v_add_u32 v6, s34, v6")
    A("v_mul_u32_u24 v7, 205, v6"); A("v_lshrrev_b32 v7, 10, v7")
    A("v_mul_u32_u24 v8, 5, v7"); A("v_sub_u32 v8, v6, v8")
    A("v_lshrrev_b32 v9, 4, v3")
    A("v_and_b32 v10, 3, v3")
    A("v_lshrrev_b32 v11, 1, v8"); A("v_and_b32 v12, 1, v8"); A("v_lshl_add_u32 v12, v9, 1, v12")
    A("v_cmp_eq_u32 vcc, 4, v8"); A("s_nop 1")
    A("v_cndmask_b32 v11, v11, v9, vcc")
    A("v_mov_b32 v13, 4"); A("v_cndmask_b32 v12, v12, v13, vcc")
    A("v_lshl_add_u32 v11, v7, 1, v11")
    A("v_mul_u32_u24 v11, 20, v11"); A("v_lshl_add_u32 v11, v12, 2, v11"); A("v_add_u32 v11, v11, v10")
    A("v_mul_u32_u24 v5, 1280, v11"); A("v_lshl_add_u32 v5, v4, 4, v5")
    for i in range(10): A(f"buffer_load_dwordx4 v[{60+4*i}:{63+4*i}], v5, s[24:27], 0 offen offset:{128*i}")
    A.label("K0_c_go")
    A("v_mul_u32_u24 v14, 1312, v3"); A("v_lshl_add_u32 v14, v4, 4, v14")
    A("s_waitcnt vmcnt(0)")
    for i in range(10): A(f"ds_write_b128 v14, v[{60+4*i}:{63+4*i}] offset:{128*i}")
    A("s_waitcnt lgkmcnt(0)"); A("s_barrier")
    A("v_lshrrev_b32 v15, 2, v2")
    A("v_mul_u32_u24 v15, 1312, v15")
    A("v_and_b32 v16, 3, v2"); A("v_lshl_add_u32 v15, v16, 3, v15")
    A("s_lshl_b32 s34, s32, 5"); A("v_add_u32 v15, s34, v15")
    A("v_lshlrev_b32 v17, 4, v2")
    for it in range(10):
        A(f"ds_read_b64_tr_b16 v[{60+4*it}:{61+4*it}], v15 offset:{128*it}")
        A(f"ds_read_b64_tr_b16 v[{62+4*it}:{63+4*it}], v15 offset:{128*it+16*1312}")
    A("s_waitcnt lgkmcnt(0)")
    for it in range(10):
        A(f"s_add_u32 s34, s32, {4*it}")
        A("s_mul_i32 s35, s34, 205"); A("s_lshr_b32 s35, s35, 10")
        A("s_mul_i32 s36, s35, 5"); A("s_sub_u32 s36, s34, s36")
        A("s_mul_i32 s35, s35, 68"); A("s_add_u32 s35, s35, s33"); A("s_mul_i32 s35, s35, 5"); A("s_add_u32 s35, s35, s36")
        A("s_lshl_b32 s35, s35, 10")
        A(f"buffer_store_dwordx4 v[{60+4*it}:{63+4*it}], v17, s[28:31], s35 offen")
    A.label("K0_end")
    A("s_endpgm")
    return A.text()

XB=0; WQB=49152; WFB=98304; K1_LDS=135168
GC0 = -2.0*LOG2E*math.sqrt(2.0/math.pi)
GC1 = GC0*0.044715

def gelu_ops(x, t, tmp):
    return [f"v_mul_f32 v{t}, v{x}, v{x}",
            f"v_fma_f32 v{t}, v{t}, s51, v{tmp}",
            f"v_mul_f32 v{t}, v{t}, v{x}",
            f"v_exp_f32 v{t}, v{t}",
            f"v_add_f32 v{t}, 1.0, v{t}",
            f"v_rcp_f32 v{t}, v{t}",
            f"v_mul_f32 v{x}, v{x}, v{t}"]

def gen_k1():
    A = Asm()
    A("s_cmp_ge_u32 s2, 256"); A("s_cbranch_scc1 K1_end")
    load_ptrs(A)
    srd(A, 4, P_X, P_X+1, 2621440)
    srd(A, 8, P_WQKV, P_WQKV+1, 640*3840)
    srd(A, 12, P_W1, P_W1+1, 640*3072)
    srd(A, 16, P_WS, P_WS+1, 0x10000)
    srd(A, 20, P_WS, P_WS+1, 3*QKV_SZ, off=WS_Q)
    srd(A, 24, P_WS, P_WS+1, HO_SZ, off=WS_HO)
    srd(A, 28, P_B1, P_B1+1, 3072)
    A("v_lshrrev_b32 v1, 6, v0"); A("s_nop 0"); A("v_readfirstlane_b32 s32, v1")
    A("v_and_b32 v2, 63, v0")
    A("s_and_b32 s37, s2, 7"); A("s_lshr_b32 s38, s2, 3")
    A("s_lshr_b32 s33, s37, 2"); A("s_lshl_b32 s33, s33, 3"); A("s_and_b32 s39, s38, 7"); A("s_add_u32 s33, s33, s39")
    A("s_and_b32 s34, s37, 3"); A("s_lshl_b32 s34, s34, 2"); A("s_lshr_b32 s39, s38, 3"); A("s_add_u32 s34, s34, s39")
    A("s_and_b32 s35, s32, 3")
    A("s_lshr_b32 s36, s32, 2")
    A("s_cmp_eq_u32 s34, 15"); A("s_cselect_b32 s10, 0, s10")
    A("v_lshrrev_b32 v3, 3, v2")
    A("s_lshl_b32 s39, s32, 4"); A("v_add_u32 v3, s39, v3")
    A("v_mul_u32_u24 v10, 1280, v3")
    A("v_and_b32 v4, 7, v2"); A("v_lshrrev_b32 v5, 4, v2")
    A("v_xor_b32 v6, v4, v5"); A("v_lshl_add_u32 v6, v6, 4, v10")
    A("v_or_b32 v5, 4, v5"); A("v_xor_b32 v7, v4, v5"); A("v_lshl_add_u32 v11, v7, 4, v10")
    A(f"v_add_u32 v11, {8*1280}, v11"); A("v_mov_b32 v10, v6")
    A("v_lshrrev_b32 v3, 4, v2"); A("s_lshl_b32 s39, s32, 3"); A("v_add_u32 v4, s39, v3")
    A("v_mul_u32_u24 v12, 3840, v4")
    A("v_and_b32 v4, 15, v2"); A("v_lshlrev_b32 v3, 2, v3"); A("v_xor_b32 v4, v4, v3"); A("v_lshl_add_u32 v12, v4, 4, v12")
    A("s_sub_u32 s39, s32, 4"); A("s_lshl_b32 s39, s39, 4")
    for t in range(3):
        A(f"v_add_u32 v3, {64*t}, v2")
        A("v_mul_u32_u24 v4, 171, v3"); A("v_lshrrev_b32 v4, 11, v4")
        A("v_mul_u32_u24 v5, 12, v4"); A("v_sub_u32 v5, v3, v5")
        A("v_add_u32 v4, s39, v4"); A("v_mul_u32_u24 v4, 3072, v4"); A(f"v_lshl_add_u32 v{13+t}, v5, 4, v4")
    A("s_mul_i32 s40, s33, 163840")
    A("s_lshl_b32 s41, s34, 8")
    A("s_mul_i32 s42, s34, 192")
    A("s_lshl_b32 s43, s32, 11")
    A("s_sub_u32 s44, s32, 4"); A("s_mul_i32 s44, s44, 3072")
    A("v_and_b32 v3, 31, v2"); A("s_lshl_b32 s39, s35, 5"); A("v_add_u32 v3, s39, v3")
    A("v_lshrrev_b32 v4, 5, v2")
    A("v_bfe_u32 v5, v3, 1, 3"); A("v_xor_b32 v5, v5, v4")
    A("v_lshlrev_b32 v3, 7, v3")
    for t in range(4):
        A(f"v_xor_b32 v6, {2*t}, v5"); A(f"v_lshl_add_u32 v{16+t}, v6, 4, v3")
    A("v_bfe_u32 v3, v2, 4, 1")
    A("v_lshrrev_b32 v4, 5, v2")
    A("v_bfe_u32 v5, v2, 2, 2")
    A("v_and_b32 v6, 3, v2")
    A("v_lshl_add_u32 v7, v4, 3, v5")
    A("v_lshlrev_b32 v8, 8, v7"); A(f"v_add_u32 v8, {WQB}, v8")
    A("v_lshrrev_b32 v9, 1, v6"); A("v_lshl_add_u32 v9, v3, 1, v9"); A("v_lshl_add_u32 v8, v9, 4, v8")
    A("v_and_b32 v9, 1, v6"); A("v_lshl_add_u32 v8, v9, 3, v8")
    for T in range(4):
        A(f"v_xor_b32 v9, {T}, v5"); A(f"v_lshl_add_u32 v{20+T}, v9, 6, v8")
    A("v_mul_u32_u24 v24, 192, v7"); A("v_lshl_add_u32 v24, v3, 5, v24"); A("v_lshl_add_u32 v24, v6, 3, v24"); A(f"v_add_u32 v24, {WFB}, v24")
    A("v_and_b32 v3, 31, v2"); A("s_lshl_b32 s39, s33, 7"); A("s_lshl_b32 s45, s35, 5"); A("s_add_u32 s39, s39, s45")
    A("v_add_u32 v3, s39, v3")
    A("v_lshlrev_b32 v25, 3, v3")
    A("v_lshlrev_b32 v3, 4, v3")
    A("buffer_load_dwordx4 v[28:31], v3, s[16:19], 0 offen")
    A("v_lshrrev_b32 v4, 5, v2"); A("v_lshlrev_b32 v26, 4, v4")
    A("s_cmp_eq_u32 s36, 0"); A("s_cbranch_scc0 K1_fc1")

    def dma(slab, ty):
        slot = slab % 3; k0 = 64*slab
        if ty == 0 or ty == 1:
            A(f"s_add_u32 s46, s40, {k0*2}")
            A(f"s_add_u32 m0, s43, {XB+slot*16384}"); A("s_nop 0")
            A("buffer_load_dwordx4 v10, s[4:7], s46 offen lds")
            A(f"s_add_u32 m0, s43, {XB+slot*16384+1024}"); A("s_nop 0")
            A("buffer_load_dwordx4 v11, s[4:7], s46 offen lds")
            A(f"s_add_u32 s46, s41, {k0*3840}")
            A(f"s_add_u32 m0, s43, {WQB+slot*16384}"); A("s_nop 0")
            A("buffer_load_dwordx4 v12, s[8:11], s46 offen lds")
            A(f"s_add_u32 s46, s41, {(k0+4)*3840}")
            A(f"s_add_u32 m0, s43, {WQB+slot*16384+1024}"); A("s_nop 0")
            A("buffer_load_dwordx4 v12, s[8:11], s46 offen lds")
        if ty == 1:
            A(f"s_add_u32 s46, s42, {k0*3072}")
            for t in range(3):
                A(f"s_add_u32 m0, s44, {WFB+slot*12288+1024*t}"); A("s_nop 0")
                A(f"buffer_load_dwordx4 v{13+t}, s[12:15], s46 offen lds")

    def reads(u, ty, fr):
        s, t = divmod(u, 4); slot = s % 3
        n = 0
        A(f"ds_read_b128 v[{fr}:{fr+3}], v{16+t} offset:{XB+slot*16384}"); n += 1
        nT = 4 if ty == 0 else 3
        for T in range(nT):
            for j in range(2):
                d = fr+4+4*T+2*j
                if ty == 0: A(f"ds_read_b64_tr_b16 v[{d}:{d+1}], v{20+T} offset:{slot*16384+(16*t+4*j)*256}")
                else:       A(f"ds_read_b64_tr_b16 v[{d}:{d+1}], v24 offset:{slot*12288+(16*t+4*j)*192+64*T}")
                n += 1
        return n

    ACC = 96
    FR = (40, 60)
    def mainloop(ty):
        nT = 4 if ty == 0 else 3
        nd = 4 if ty == 0 else 7
        for r in range(16*nT): A(f"v_mov_b32 v{ACC+r}, 0")
        dma(0, ty); dma(1, ty)
        A(f"s_waitcnt vmcnt({nd})"); A("s_barrier")
        dma(2, ty)
        nr = reads(0, ty, FR[0])
        for u in range(40):
            s, t = divmod(u, 4)
            fr = FR[u % 2]
            if u < 39:
                if t == 3:
                    A("s_waitcnt lgkmcnt(0)")
                    A(f"s_waitcnt vmcnt({nd if s < 8 else 0})"); A("s_barrier")
                    if s+3 < 10: dma(s+3, ty)
                    reads(u+1, ty, FR[(u+1) % 2])
                else:
                    n = reads(u+1, ty, FR[(u+1) % 2])
                    A(f"s_waitcnt lgkmcnt({n})")
            else:
                A("s_waitcnt lgkmcnt(0)")
            for T in range(nT):
                a = ACC+16*T
                A(f"v_mfma_f32_32x32x16_bf16 v[{a}:{a+15}], v[{fr+4+4*T}:{fr+7+4*T}], v[{fr}:{fr+3}], v[{a}:{a+15}]")
        A("s_nop 15")

    CS = 160
    A("s_lshl_b32 s39, s34, 9"); A(f"s_add_u32 s39, s39, {WS_CS}")
    for T in range(4):
        for a in range(4):
            A(f"buffer_load_dwordx4 v[{CS+16*T+4*a}:{CS+16*T+4*a+3}], v26, s[16:19], s39 offen offset:{128*T+32*a}")
    mainloop(0)
    A("s_cmp_eq_u32 s34, 15"); A("s_cbranch_scc1 K1_end")
    A("s_mul_i32 s45, s34, 205"); A("s_lshr_b32 s45, s45, 10")
    A("s_mul_i32 s46, s45, 5"); A("s_sub_u32 s46, s34, s46")
    A("s_cmp_eq_u32 s45, 0"); A("s_cselect_b64 vcc, -1, 0"); A("s_nop 1")
    A("v_cndmask_b32 v29, v29, v30, vcc")
    A("v_sub_f32 v28, 0, v28")
    A("v_lshrrev_b32 v4, 5, v2"); A("v_lshlrev_b32 v4, 14, v4"); A("v_add_u32 v25, v25, v4")
    A(f"s_mul_i32 s45, s45, {QKV_SZ}"); A("s_lshl_b32 s46, s46, 19"); A("s_add_u32 s45, s45, s46")
    k = 0
    for T in range(4):
        for a in range(4):
            b = ACC+16*T+4*a; c = CS+16*T+4*a
            for i in range(4): A(f"v_fma_f32 v{b+i}, v28, v{c+i}, v{b+i}")
            for i in range(4): A(f"v_mul_f32 v{b+i}, v{b+i}, v29")
            o = 40+2*(k % 8); k += 1
            A(f"v_cvt_pk_bf16_f32 v{o}, v{b}, v{b+1}"); A(f"v_cvt_pk_bf16_f32 v{o+1}, v{b+2}, v{b+3}")
            A(f"s_add_u32 s46, s45, {(8*T+2*a)*16384}")
            A(f"buffer_store_dwordx2 v[{o}:{o+1}], v25, s[20:23], s46 offen")
    A("s_endpgm")

    A.label("K1_fc1")
    B1 = 224
    A("s_mul_i32 s39, s34, 384"); A(f"s_add_u32 s39, s39, {WS_CS+1920*4}")
    for T in range(3):
        for a in range(4):
            A(f"buffer_load_dwordx4 v[{CS+16*T+4*a}:{CS+16*T+4*a+3}], v26, s[16:19], s39 offen offset:{128*T+32*a}")
    A("v_lshrrev_b32 v27, 1, v26")
    A("s_mul_i32 s39, s34, 192")
    for T in range(3):
        for a in range(4):
            A(f"buffer_load_dwordx2 v[{B1+8*T+2*a}:{B1+8*T+2*a+1}], v27, s[28:31], s39 offen offset:{64*T+16*a}")
    mainloop(1)
    A("v_sub_f32 v28, 0, v28")
    A(f"s_mov_b32 s51, {fhex(GC1)}"); A(f"v_mov_b32 v32, {fhex(GC0)}")
    A("v_bfe_u32 v3, v2, 4, 1"); A("v_lshlrev_b32 v33, 10, v3")
    A("v_lshrrev_b32 v3, 5, v2"); A("v_lshl_add_u32 v33, v3, 8, v33")
    A("v_and_b32 v3, 15, v2"); A("v_lshl_add_u32 v33, v3, 4, v33")
    A("s_lshl_b32 s45, s33, 1"); A("s_lshr_b32 s46, s35, 1"); A("s_add_u32 s45, s45, s46"); A("s_mul_i32 s45, s45, 68")
    A("s_mul_i32 s46, s34, 3"); A("s_add_u32 s45, s45, s46"); A("s_lshl_b32 s45, s45, 12")
    A("s_and_b32 s46, s35, 1"); A("s_lshl_b32 s46, s46, 11"); A("s_add_u32 s45, s45, s46")
    for T in range(3):
        for a in range(4):
            b = ACC+16*T+4*a; c = CS+16*T+4*a; bb = B1+8*T+2*a
            A(f"v_lshlrev_b32 v34, 16, v{bb}"); A(f"v_and_b32 v35, 0xffff0000, v{bb}")
            A(f"v_lshlrev_b32 v36, 16, v{bb+1}"); A(f"v_and_b32 v37, 0xffff0000, v{bb+1}")
            for i in range(4): A(f"v_fma_f32 v{b+i}, v28, v{c+i}, v{b+i}")
            for i in range(4): A(f"v_fma_f32 v{b+i}, v{b+i}, v31, v{34+i}")
            ops = [gelu_ops(b+i, 40+i, 32) for i in range(4)]
            for st in range(7):
                for i in range(4): A(ops[i][st])
            o = (48 if a % 2 == 0 else 52) + (2 if a >= 2 else 0) + 8*(T % 2)
            A(f"v_cvt_pk_bf16_f32 v{o}, v{b}, v{b+1}"); A(f"v_cvt_pk_bf16_f32 v{o+1}, v{b+2}, v{b+3}")
        o = 48+8*(T % 2)
        A(f"s_add_u32 s46, s45, {T*4096}")
        A(f"buffer_store_dwordx4 v[{o}:{o+3}], v33, s[24:27], s46 offen")
        A(f"buffer_store_dwordx4 v[{o+4}:{o+7}], v33, s[24:27], s46 offen offset:512")
    A.label("K1_end")
    A("s_endpgm")
    return A.text()

K3_LDS = 81920
def gen_k3():
    A = Asm()
    A("s_cmp_ge_u32 s2, 256"); A("s_cbranch_scc1 K3_end")
    load_ptrs(A)
    srd(A, 4, P_X, P_X+1, 2621440)
    srd(A, 8, P_WS, P_WS+1, W2T_SZ, off=WS_W2T)
    srd(A, 12, P_WS, P_WS+1, HO_SZ, off=WS_HO)
    srd(A, 16, P_B2, P_B2+1, 1280)
    srd(A, 20, P_OUT, P_OUT+1, 2621440)
    A("v_lshrrev_b32 v1, 6, v0"); A("s_nop 0"); A("v_readfirstlane_b32 s32, v1")
    A("v_and_b32 v2, 63, v0")
    A("s_and_b32 s37, s2, 7"); A("s_lshr_b32 s38, s2, 3")
    A("s_lshr_b32 s33, s37, 1"); A("s_lshl_b32 s33, s33, 3"); A("s_and_b32 s39, s38, 7"); A("s_add_u32 s33, s33, s39")
    A("s_and_b32 s34, s37, 1"); A("s_lshl_b32 s34, s34, 2"); A("s_lshr_b32 s39, s38, 3"); A("s_add_u32 s34, s34, s39")
    A("v_lshlrev_b32 v3, 4, v2"); A("v_add_u32 v4, 4096, v3")
    A("v_and_b32 v5, 15, v2"); A("s_lshl_b32 s39, s33, 6"); A("s_lshl_b32 s40, s32, 4"); A("s_add_u32 s39, s39, s40")
    A("v_add_u32 v5, s39, v5"); A("v_mul_u32_u24 v5, 1280, v5")
    A("v_lshrrev_b32 v6, 4, v2"); A("v_lshlrev_b32 v6, 3, v6")
    A("s_mul_i32 s39, s34, 160"); A("v_add_u32 v6, s39, v6")
    A("v_add_u32 v5, v5, v6")
    for nt in range(5):
        A(f"buffer_load_dwordx2 v[{90+2*nt}:{91+2*nt}], v5, s[4:7], 0 offen offset:{32*nt}")
    for nt in range(5):
        A(f"buffer_load_dwordx2 v[{244+2*nt}:{245+2*nt}], v6, s[16:19], 0 offen offset:{32*nt}")
    A("s_mul_i32 s40, s33, %d" % (68*4096)); A("s_mul_i32 s41, s34, %d" % (68*5120))
    A("s_mul_i32 s42, s32, 12"); A("s_mul_i32 s43, s32, 5"); A("s_add_u32 s43, s43, 48")
    A("s_lshl_b32 s44, s42, 12"); A("s_add_u32 s44, s44, s40")
    A("s_mul_i32 s45, s42, 5120"); A("s_add_u32 s45, s45, s41")
    A("s_lshl_b32 s46, s43, 12"); A("s_add_u32 s46, s46, s40")
    A("s_mul_i32 s47, s43, 5120"); A("s_add_u32 s47, s47, s41")
    ACC=10; RING=100
    def loads(i):
        b = RING+36*(i % 4)
        hs, ws_, ii = (44, 45, i) if i < 12 else (46, 47, i-12)
        A(f"s_add_u32 s48, s{hs}, {ii*4096}"); A(f"s_add_u32 s49, s{ws_}, {ii*5120}")
        for tt in range(4): A(f"buffer_load_dwordx4 v[{b+4*tt}:{b+4*tt+3}], v3, s[12:15], s48 offen offset:{1024*tt}")
        for nt in range(4): A(f"buffer_load_dwordx4 v[{b+16+4*nt}:{b+16+4*nt+3}], v3, s[8:11], s49 offen offset:{1024*nt}")
        A(f"buffer_load_dwordx4 v[{b+32}:{b+35}], v4, s[8:11], s49 offen")
    for r in range(80): A(f"v_mov_b32 v{ACC+r}, 0")
    for i in range(3): loads(i)
    for i in range(17):
        if i+3 < 17:
            loads(i+3); A("s_waitcnt vmcnt(27)")
        else:
            A(f"s_waitcnt vmcnt({9*(16-i)})")
        b = RING+36*(i % 4)
        for nt in range(5):
            for tt in range(4):
                a = ACC+16*nt+4*tt
                A(f"v_mfma_f32_16x16x32_bf16 v[{a}:{a+3}], v[{b+16+4*nt}:{b+16+4*nt+3}], v[{b+4*tt}:{b+4*tt+3}], v[{a}:{a+3}]")
    A("s_nop 15")
    A("s_mul_i32 s39, s32, 20480"); A("v_add_u32 v7, s39, v3")
    for nt in range(5):
        for tt in range(4):
            a = ACC+16*nt+4*tt
            A(f"ds_write_b128 v7, v[{a}:{a+3}] offset:{(nt*4+tt)*1024}")
    A("s_waitcnt lgkmcnt(0)"); A("s_barrier")
    A("s_lshl_b32 s39, s32, 10"); A("v_add_u32 v7, s39, v3")
    A("v_add_u32 v8, 40960, v7")
    for nt in range(5):
        for w in range(4):
            base = 7 if w < 2 else 8
            A(f"ds_read_b128 v[{RING+16*nt+4*w}:{RING+16*nt+4*w+3}], v{base} offset:{(w%2)*20480+nt*4096}")
    A("s_waitcnt lgkmcnt(0)")
    for nt in range(5):
        b = RING+16*nt
        for i in range(4):
            A(f"v_add_f32 v{b+i}, v{b+i}, v{b+4+i}"); A(f"v_add_f32 v{b+8+i}, v{b+8+i}, v{b+12+i}")
        for i in range(4): A(f"v_add_f32 v{b+i}, v{b+i}, v{b+8+i}")
        for (src, t0) in ((90+2*nt, 10), (244+2*nt, 14)):
            A(f"v_lshlrev_b32 v{t0}, 16, v{src}"); A(f"v_and_b32 v{t0+1}, 0xffff0000, v{src}")
            A(f"v_lshlrev_b32 v{t0+2}, 16, v{src+1}"); A(f"v_and_b32 v{t0+3}, 0xffff0000, v{src+1}")
        for i in range(4): A(f"v_add_f32 v{b+i}, v{b+i}, v{14+i}")
        for i in range(4): A(f"v_add_f32 v{b+i}, v{b+i}, v{10+i}")
        A(f"v_cvt_pk_bf16_f32 v{20+2*nt}, v{b}, v{b+1}"); A(f"v_cvt_pk_bf16_f32 v{21+2*nt}, v{b+2}, v{b+3}")
        A(f"buffer_store_dwordx2 v[{20+2*nt}:{21+2*nt}], v5, s[20:23], 0 offen offset:{32*nt}")
    A.label("K3_end")
    A("s_endpgm")
    return A.text()

GS=3104
KB=0; VB=10*GS
ONE0 = 2*10*GS + 160 - ((2*10*GS - VB) % 256)
def _ones_offsets():
    base = VB + 10*GS
    o0 = base + ((160 - (base - VB)) % 256)
    b2 = o0 + 3072
    o1 = b2 + ((64 - (b2 - VB)) % 256)
    return o0, o1, o1+3072
ONE0, ONE1, K2_LDS = _ones_offsets()

def gen_k2():
    A = Asm()
    A("s_cmp_ge_u32 s2, 256"); A("s_cbranch_scc1 K2_end")
    load_ptrs(A)
    srd(A, 4, P_WS, P_WS+1, 3*QKV_SZ, off=WS_Q)
    srd(A, 8, P_WS, P_WS+1, HO_SZ, off=WS_HO)
    A("v_lshrrev_b32 v1, 6, v0"); A("s_nop 0"); A("v_readfirstlane_b32 s32, v1")
    A("v_and_b32 v2, 63, v0")
    A("s_and_b32 s37, s2, 7"); A("s_lshr_b32 s38, s2, 3")
    A("s_lshl_b32 s33, s37, 1"); A("s_lshr_b32 s39, s38, 4"); A("s_add_u32 s33, s33, s39")
    A("s_and_b32 s34, s38, 15")
    A("s_and_b32 s35, s32, 3"); A("s_lshr_b32 s36, s32, 2")
    A("v_lshlrev_b32 v3, 4, v2")
    A("s_lshl_b32 s40, s33, 10"); A("s_sub_u32 s40, s40, 2048")
    A("s_mul_i32 s41, s34, %d" % (10*16384))
    A("s_add_u32 s40, s40, s41"); A(f"s_add_u32 s40, s40, {QKV_SZ}")
    for n in range(8):
        lab = A.newlabel("K2_skip")
        A(f"s_add_u32 s42, s32, {8*n}")
        if n == 7:
            A("s_cmp_ge_u32 s42, 60"); A(f"s_cbranch_scc1 {lab}")
        A("s_mul_i32 s43, s42, 171"); A("s_lshr_b32 s43, s43, 9")
        A("s_mul_i32 s44, s43, 3"); A("s_sub_u32 s44, s42, s44")
        A("s_cmp_ge_u32 s43, 10"); A(f"s_cselect_b32 s45, {QKV_SZ - 10*16384}, 0")
        A("s_lshl_b32 s46, s43, 14"); A("s_add_u32 s46, s46, s45"); A("s_lshl_b32 s47, s44, 10"); A("s_add_u32 s46, s46, s47"); A("s_add_u32 s46, s46, s40")
        A(f"s_mul_i32 s47, s43, {GS}"); A("s_lshl_b32 s48, s44, 10"); A("s_add_u32 m0, s47, s48"); A("s_nop 0")
        A("buffer_load_dwordx4 v3, s[4:7], s46 offen lds")
        A.label(lab)
    A("v_mov_b32 v10, 0x3f80"); A("v_mov_b32 v11, 0")
    A("v_lshlrev_b32 v4, 3, v0")
    A("v_cmp_gt_u32 vcc, 384, v0"); A("s_and_saveexec_b64 s[50:51], vcc")
    A(f"ds_write_b64 v4, v[10:11] offset:{ONE0}"); A(f"ds_write_b64 v4, v[10:11] offset:{ONE1}")
    A("s_mov_b64 exec, s[50:51]")
    QF=12
    A("v_and_b32 v5, 31, v2"); A("v_lshrrev_b32 v6, 5, v2")
    A("s_lshl_b32 s40, s33, 7"); A("s_lshl_b32 s41, s35, 5"); A("s_add_u32 s40, s40, s41")
    A("v_add_u32 v7, s40, v5"); A("v_lshlrev_b32 v7, 3, v7")
    A("s_mul_i32 s41, s34, 10"); A("s_mul_i32 s42, s36, 5"); A("s_add_u32 s41, s41, s42"); A("s_lshl_b32 s41, s41, 14")
    A("v_lshl_add_u32 v8, v6, 15, v7")
    A(f"buffer_load_dwordx2 v[{QF}:{QF+1}], v8, s[4:7], s41 offen")
    A("s_add_u32 s42, s41, 16384")
    A(f"buffer_load_dwordx2 v[{QF+2}:{QF+3}], v8, s[4:7], s42 offen")
    A("s_add_u32 s42, s41, 65536")
    A(f"buffer_load_dwordx2 v[{QF+4}:{QF+5}], v7, s[4:7], s42 offen")
    A(f"v_mov_b32 v{QF+6}, 0"); A(f"v_mov_b32 v{QF+7}, 0")
    A("s_mul_i32 s42, s36, %d" % (5*GS)); A("s_lshl_b32 s43, s35, 8"); A("s_add_u32 s42, s42, s43")
    A("v_lshlrev_b32 v9, 3, v5"); A("v_add_u32 v9, s42, v9")
    A(f"v_mul_u32_u24 v20, {2*GS}, v6"); A("v_add_u32 v20, v20, v9")
    A(f"v_add_u32 v21, {4*GS}, v9")
    A("v_bfe_u32 v22, v2, 4, 1"); A("v_and_b32 v23, 3, v2"); A("v_bfe_u32 v24, v2, 2, 2")
    A("v_lshl_add_u32 v24, v6, 2, v24"); A("v_lshlrev_b32 v24, 3, v24"); A("v_add_u32 v24, s43, v24")
    A("v_lshl_add_u32 v25, v22, 2, v23")
    A(f"v_mul_u32_u24 v26, {GS}, v25")
    A("s_mul_i32 s44, s36, %d" % (5*GS)); A(f"s_add_u32 s44, s44, {VB}"); A("v_add_u32 v26, s44, v26")
    A(f"s_mov_b32 s45, {ONE1}"); A("s_cmp_eq_u32 s36, 0"); A(f"s_cselect_b32 s45, {ONE0}, s45"); A("v_mov_b32 v27, s45")
    A("v_cmp_lt_u32 vcc, 4, v25"); A("s_nop 1"); A("v_cndmask_b32 v26, v26, v27, vcc")
    A("v_add_u32 v22, v26, v24")
    A("s_waitcnt vmcnt(0) lgkmcnt(0)")
    A("v_cmp_eq_u32 vcc, 0, v6"); A("s_nop 1")
    A(f"v_cndmask_b32 v{QF+4}, 0, v{QF+4}, vcc"); A(f"v_cndmask_b32 v{QF+5}, 0, v{QF+5}, vcc")
    A("s_barrier")
    A("s_lshl_b32 s46, s33, 2"); A("s_add_u32 s46, s46, s35"); A("s_sub_i32 s46, 8, s46"); A("s_max_i32 s46, s46, 0")
    S=32
    KF=176
    for st in range(2):
        A(f"v_mov_b32 v{KF+8*st+6}, 0"); A(f"v_mov_b32 v{KF+8*st+7}, 0")
    NEG = fhex(-1e30)
    A(f"v_mov_b32 v28, {NEG}")
    for t in range(9):
        kf = KF+8*(t % 2); d = S+16*t
        skip = A.newlabel("K2_ts"); done = A.newlabel("K2_td")
        A(f"s_cmp_gt_u32 s46, {t}"); A(f"s_cbranch_scc1 {skip}")
        A(f"ds_read_b64 v[{kf}:{kf+1}], v20 offset:{256*t}")
        A(f"ds_read_b64 v[{kf+2}:{kf+3}], v20 offset:{256*t+GS}")
        A(f"ds_read_b64 v[{kf+4}:{kf+5}], v21 offset:{256*t}")
        A("s_waitcnt lgkmcnt(0)")
        A(f"v_mfma_f32_32x32x16_bf16 v[{d}:{d+15}], v[{kf}:{kf+3}], v[{QF}:{QF+3}], 0")
        A(f"v_mfma_f32_32x32x16_bf16 v[{d}:{d+15}], v[{kf+4}:{kf+7}], v[{QF+4}:{QF+7}], v[{d}:{d+15}]")
        A(f"s_branch {done}")
        A.label(skip)
        for r in range(16): A(f"v_mov_b32 v{d+r}, v28")
        A.label(done)
    A("s_nop 15")
    A("v_lshlrev_b32 v29, 2, v6"); A("v_sub_u32 v29, v5, v29")
    for r in range(16):
        kk = 8*(r >> 2)+(r & 3)
        A(f"v_cmp_ge_i32 vcc, v29, {kk}" if False else f"v_cmp_le_i32 vcc, {kk}, v29")
        A("s_nop 1")
        A(f"v_cndmask_b32 v{S+128+r}, v28, v{S+128+r}, vcc")
        A(f"v_cndmask_b32 v{S+r}, v{S+r}, v28, vcc")
    A(f"v_max3_f32 v30, v{S}, v{S+1}, v{S+2}")
    r = 3
    while r < 144:
        if r+1 < 144: A(f"v_max3_f32 v30, v30, v{S+r}, v{S+r+1}"); r += 2
        else: A(f"v_max_f32 v30, v30, v{S+r}"); r += 1
    A("v_mov_b32 v31, v30"); A("v_mov_b32 v29, v30"); A("s_nop 1")
    A("v_permlane32_swap_b32 v31, v29"); A("s_nop 1")
    A("v_max_f32 v30, v31, v29")
    for t in range(9):
        d = S+16*t
        for r in range(16): A(f"v_sub_f32 v{d+r}, v{d+r}, v30")
        for r in range(16): A(f"v_exp_f32 v{d+r}, v{d+r}")
        A("s_nop 0")
        for r in range(8): A(f"v_cvt_pk_bf16_f32 v{d+r}, v{d+2*r}, v{d+2*r+1}")
    O=192; VF=208
    for r in range(16): A(f"v_mov_b32 v{O+r}, 0")
    for t in range(9):
        d = S+16*t; vf = VF+8*(t % 2)
        skip = A.newlabel("K2_ps")
        A(f"s_cmp_gt_u32 s46, {t}"); A(f"s_cbranch_scc1 {skip}")
        for m in range(2):
            A(f"ds_read_b64_tr_b16 v[{vf+4*m}:{vf+4*m+1}], v22 offset:{256*t+128*m}")
            A(f"ds_read_b64_tr_b16 v[{vf+4*m+2}:{vf+4*m+3}], v22 offset:{256*t+128*m+64}")
        A("s_waitcnt lgkmcnt(0)")
        for m in range(2):
            A(f"v_mfma_f32_32x32x16_bf16 v[{O}:{O+15}], v[{vf+4*m}:{vf+4*m+3}], v[{d+4*m}:{d+4*m+3}], v[{O}:{O+15}]")
        A.label(skip)
    A("s_nop 15")
    A(f"v_mov_b32 v30, v{O+8}"); A(f"v_mov_b32 v31, v{O+8}"); A("s_nop 1")
    A("v_permlane32_swap_b32 v30, v31"); A("s_nop 1")
    A("v_rcp_f32 v31, v31"); A("s_nop 0")
    for r in range(12): A(f"v_mul_f32 v{O+r}, v{O+r}, v31")
    for r in range(6): A(f"v_cvt_pk_bf16_f32 v{32+r}, v{O+2*r}, v{O+2*r+1}")
    A("s_mul_i32 s40, s34, 5"); A("s_lshl_b32 s41, s36, 1"); A("s_add_u32 s41, s41, s40")
    A("v_add_u32 v10, s41, v6")
    A("v_lshrrev_b32 v11, 2, v10"); A("v_lshlrev_b32 v11, 12, v11")
    A("v_and_b32 v10, 3, v10"); A("v_lshl_add_u32 v11, v10, 8, v11")
    A("v_bfe_u32 v12, v2, 4, 1"); A("v_lshlrev_b32 v12, 10, v12"); A("v_and_b32 v13, 15, v2"); A("v_lshl_add_u32 v12, v13, 4, v12")
    A("v_add_u32 v11, v11, v12")
    A("s_lshl_b32 s42, s33, 1"); A("s_lshr_b32 s43, s35, 1"); A("s_add_u32 s42, s42, s43"); A("s_mul_i32 s42, s42, 68"); A("s_add_u32 s42, s42, 48")
    A("s_lshl_b32 s42, s42, 12"); A("s_and_b32 s43, s35, 1"); A("s_lshl_b32 s43, s43, 11"); A("s_add_u32 s42, s42, s43")
    A("buffer_store_dwordx4 v[32:35], v11, s[8:11], s42 offen")
    A("s_add_u32 s40, s40, 4")
    A("s_lshr_b32 s44, s40, 2"); A("s_lshl_b32 s44, s44, 12"); A("s_and_b32 s45, s40, 3"); A("s_lshl_b32 s45, s45, 8"); A("s_add_u32 s44, s44, s45")
    A("s_lshl_b32 s45, s36, 3"); A("s_add_u32 s44, s44, s45"); A("s_add_u32 s44, s44, s42")
    A("v_cmp_eq_u32 vcc, 0, v6"); A("s_and_saveexec_b64 s[50:51], vcc")
    A("buffer_store_dwordx2 v[36:37], v12, s[8:11], s44 offen")
    A.label("K2_end")
    A("s_endpgm")
    return A.text()

def build(names=("k0","k1","k2","k3")):
    cfg = {"k0":(256,256,45056,gen_k0),"k1":(256,512,K1_LDS,gen_k1),"k2":(256,512,K2_LDS,gen_k2),"k3":(256,256,K3_LDS,gen_k3)}
    hdr = open("parallel_sum__sliding_block__mixer_channel_mlp__prompt.s.ref").read().split("; Override")[0]
    s = hdr
    for n in names:
        g,b,l,_ = cfg[n]
        s += f"; @launch kernel={n}_kernel grid=({g},1,1) block=({b},1,1) lds={l}\n"
    s += '.amdgcn_target "amdgcn-amd-amdhsa--gfx950"\n.text\n'
    for n in names:
        s += kernel_header(f"{n}_kernel") + cfg[n][3]()
    s += '.section .rodata,"a"\n'
    for n in names:
        s += kernel_desc(f"{n}_kernel")
    return s
if __name__ == "__main__":
    out = sys.argv[1] if len(sys.argv) > 1 else "parallel_sum__sliding_block__mixer_channel_mlp__prompt.s"
    open(out, "w").write(build())
    print("K2_LDS", K2_LDS, ONE0, ONE1)
```

```python
import math, sys, struct
from asmlib import *

KNAME = "parallel_sum__sliding_block__mixer_channel_mlp__prompt_kernel"
WS_STATS=0; WS_F0=0x8000; WS_FQ=0x9000; WS_FH=0xA000; WS_FO=0xB000; WS_FW=0xC000; WS_CSP=0x10000; SMALL_SZ=0x50000
WS_W2T=0x60000; W2T_SZ=8*68*5*1024
WS_Q=0x310000; QKV_SZ=0x280000
WS_HO=0xB00000; HO_SZ=0x880000
WS_STAMP=0x2000000
LOG2E=1.4426950408889634
CQ=(20**-0.5)*LOG2E
GC0=-2.0*LOG2E*math.sqrt(2.0/math.pi); GC1=GC0*0.044715
def f2u(f): return struct.unpack("<I", struct.pack("<f", f))[0]
def fhex(f): return hex(f2u(f))
P_X,P_WQKV,P_WO,P_W1,P_B1,P_W2,P_B2,P_OUT,P_DBG,P_WS = 60,62,64,68,70,72,74,76,78,80
XB=0; WQB=49152; WFB=98304; SCR=135168; XCH=SCR+15360; CSF=XCH+4096; NON=CSF+1024
GS=3104; KB=0; VB=10*GS
def _ones():
    base=VB+10*GS; o0=base+((160-(base-VB))%256); b2=o0+3072; o1=b2+((64-(b2-VB))%256); return o0,o1,o1+3072
ONE0,ONE1,ATT_END=_ones()
RED=69632
LDS_TOTAL=163840
assert ATT_END<=RED and RED+81920<=CSF and NON+16<=LDS_TOTAL
S_NONCE=82; S_TAU=83
INSTR=False; EXP=set()
POLL_MAX=100000

def stamp(A, idx):
    if INSTR: A(f"s_memrealtime s[{84+2*idx}:{85+2*idx}]")
def stamp_flush(A, n):
    if not INSTR: return
    A("s_waitcnt lgkmcnt(0)")
    A(f"s_add_u32 s52, s{P_WS}, {WS_STAMP}"); A(f"s_addc_u32 s53, s{P_WS+1}, 0"); A("s_and_b32 s53, s53, 0xffff")
    A("s_mov_b32 s54, 0x10000"); A("s_mov_b32 s55, 0x20000")
    A("s_lshl_b32 s56, s2, 3"); A("s_add_u32 s56, s56, s32"); A("s_lshl_b32 s56, s56, 5")
    A("s_mov_b64 exec, 1")
    for i in range(n):
        A(f"v_mov_b32 v250, s{84+2*i}"); A("v_mov_b32 v251, 0")
        A(f"buffer_store_dword v250, v251, s[52:55], s56 offen offset:{4*i}")
    A("s_mov_b64 exec, -1")

def poll(A, vaddr, vtmp, name):
    l0=A.newlabel("poll"); l1=A.newlabel("polld")
    A("s_mov_b32 s37, 0")
    A.label(l0)
    A(f"buffer_load_dword v{vtmp}, v{vaddr}, s[16:19], 0 offen sc1")
    A("s_waitcnt vmcnt(0)")
    A(f"v_cmp_ne_u32 vcc, s{S_NONCE}, v{vtmp}")
    A(f"s_cbranch_vccz {l1}")
    A("s_add_u32 s37, s37, 1"); A(f"s_cmp_lt_u32 s37, {POLL_MAX}"); A(f"s_cbranch_scc0 {l1}")
    A("s_sleep 1"); A(f"s_branch {l0}")
    A.label(l1)

def flag_store(A, soff_sgpr, vt0, vt1):
    A(f"v_mov_b32 v{vt0}, s{S_NONCE}"); A(f"v_mov_b32 v{vt1}, 0")
    A("s_mov_b64 exec, 1")
    A(f"buffer_store_dword v{vt0}, v{vt1}, s[16:19], s{soff_sgpr} offen sc1")
    A("s_mov_b64 exec, -1")

def gelu_ops(x, t, c0):
    return [f"v_mul_f32 v{t}, v{x}, v{x}", f"v_fma_f32 v{t}, v{t}, s51, v{c0}", f"v_mul_f32 v{t}, v{t}, v{x}",
            f"v_exp_f32 v{t}, v{t}", f"v_add_f32 v{t}, 1.0, v{t}", f"v_rcp_f32 v{t}, v{t}", f"v_mul_f32 v{x}, v{x}, v{t}"]

def gen():
    A=Asm()
    A("s_cmp_ge_u32 s2, 256"); A("s_cbranch_scc1 L_end")
    stamp(A,0)
    A("s_load_dwordx16 s[60:75], s[0:1], 0"); A("s_load_dwordx4 s[76:79], s[0:1], 64"); A("s_load_dwordx2 s[80:81], s[0:1], 80")
    A("v_lshrrev_b32 v1, 6, v0"); A("v_and_b32 v2, 63, v0"); A("v_readfirstlane_b32 s32, v1")
    A("s_and_b32 s37, s2, 7"); A("s_lshr_b32 s38, s2, 3")
    A("s_lshr_b32 s33, s37, 2"); A("s_lshl_b32 s33, s33, 3"); A("s_and_b32 s39, s38, 7"); A("s_add_u32 s33, s33, s39")
    A("s_and_b32 s34, s37, 3"); A("s_lshl_b32 s34, s34, 2"); A("s_lshr_b32 s39, s38, 3"); A("s_add_u32 s34, s34, s39")
    A("s_and_b32 s35, s32, 3"); A("s_lshr_b32 s36, s32, 2")
    A("v_lshrrev_b32 v3, 3, v2"); A("s_lshl_b32 s39, s32, 4"); A("v_add_u32 v3, s39, v3")
    A("v_mul_u32_u24 v10, 1280, v3")
    A("v_and_b32 v4, 7, v2"); A("v_lshrrev_b32 v5, 4, v2")
    A("v_xor_b32 v6, v4, v5"); A("v_lshl_add_u32 v6, v6, 4, v10")
    A("v_or_b32 v5, 4, v5"); A("v_xor_b32 v7, v4, v5"); A("v_lshl_add_u32 v11, v7, 4, v10")
    A(f"v_add_u32 v11, {8*1280}, v11"); A("v_mov_b32 v10, v6")
    A("v_lshrrev_b32 v3, 4, v2"); A("s_lshl_b32 s39, s32, 3"); A("v_add_u32 v4, s39, v3")
    A("v_mul_u32_u24 v12, 3840, v4")
    A("v_and_b32 v4, 15, v2"); A("v_lshlrev_b32 v3, 2, v3"); A("v_xor_b32 v4, v4, v3"); A("v_lshl_add_u32 v12, v4, 4, v12")
    A("s_sub_u32 s39, s32, 4"); A("s_lshl_b32 s39, s39, 4")
    for t in range(3):
        A(f"v_add_u32 v3, {64*t}, v2"); A("v_mul_u32_u24 v4, 171, v3"); A("v_lshrrev_b32 v4, 11, v4")
        A("v_mul_u32_u24 v5, 12, v4"); A("v_sub_u32 v5, v3, v5")
        A("v_add_u32 v4, s39, v4"); A("v_mul_u32_u24 v4, 3072, v4"); A(f"v_lshl_add_u32 v{13+t}, v5, 4, v4")
    A("s_and_b32 s37, s33, 7"); A("s_and_b32 s38, s34, 3"); A("s_lshl_b32 s38, s38, 1"); A("s_add_u32 s37, s37, s38")
    A("s_cmp_ge_u32 s37, 10"); A("s_cselect_b32 s38, 10, 0"); A("s_sub_u32 s37, s37, s38")
    if "norot" in EXP: A("s_mov_b32 s37, 0")
    A("s_lshl_b32 s45, s37, 6")
    A("s_mul_i32 s40, s33, 163840")
    A("s_lshl_b32 s41, s34, 8")
    A("s_mul_i32 s42, s34, 192")
    A("s_lshl_b32 s43, s32, 11")
    A("s_sub_u32 s44, s32, 4"); A("s_mul_i32 s44, s44, 3072")
    A("s_mov_b32 s46, 0")
    A("s_waitcnt lgkmcnt(0)")
    srd(A,4,P_X,P_X+1,2621440); srd(A,8,P_WQKV,P_WQKV+1,640*3840); srd(A,12,P_W1,P_W1+1,640*3072)
    A("s_cmp_eq_u32 s34, 15"); A("s_cselect_b32 s10, 0, s10")
    srd(A,16,P_WS,P_WS+1,SMALL_SZ)

    def dma_setup():
        A("s_lshl_b32 s56, s45, 1"); A("s_add_u32 s56, s56, s40")
        A("s_mul_i32 s57, s45, 3840"); A("s_add_u32 s57, s57, s41")
        A("s_mul_i32 s58, s45, 3072"); A("s_add_u32 s58, s58, s42")
        A("s_lshl_b32 s59, s46, 14"); A("s_add_u32 s59, s59, s43")
        A("s_mul_i32 s47, s46, 12288"); A("s_add_u32 s47, s47, s44")
    def dma_adv():
        A("s_add_u32 s45, s45, 64"); A("s_cmp_eq_u32 s45, 640"); A("s_cselect_b32 s45, 0, s45")
        A("s_add_u32 s46, s46, 1"); A("s_cmp_eq_u32 s46, 3"); A("s_cselect_b32 s46, 0, s46")
    def dma_i(k):
        if k==0: A(f"s_add_u32 m0, s59, {XB}"); A("s_nop 0"); A("buffer_load_dwordx4 v10, s[4:7], s56 offen lds")
        if k==1: A(f"s_add_u32 m0, s59, {XB+1024}"); A("s_nop 0"); A("buffer_load_dwordx4 v11, s[4:7], s56 offen lds")
        if k==2: A(f"s_add_u32 m0, s59, {WQB}"); A("s_nop 0"); A("buffer_load_dwordx4 v12, s[8:11], s57 offen lds")
        if k==3: A(f"s_add_u32 m0, s59, {WQB+1024}"); A(f"s_add_u32 s57, s57, {4*3840}"); A("buffer_load_dwordx4 v12, s[8:11], s57 offen lds")
        if k>=4: A(f"s_add_u32 m0, s47, {WFB+1024*(k-4)}"); A("s_nop 0"); A(f"buffer_load_dwordx4 v{13+k-4}, s[12:15], s58 offen lds")
    def dma_all(nd):
        dma_setup()
        for k in range(nd): dma_i(k)
        dma_adv()

    def dma_full():
        lab=A.newlabel("dmaf")
        dma_setup()
        for k in range(4): dma_i(k)
        A("s_cmp_eq_u32 s36, 0"); A(f"s_cbranch_scc1 {lab}")
        for k in range(4,7): dma_i(k)
        A.label(lab)
        dma_adv()
    dma_full()
    srd(A,48,P_DBG,P_DBG+1,256)
    lab=A.newlabel("non")
    A("s_or_b32 s37, s2, s32"); A("s_cmp_eq_u32 s37, 0"); A(f"s_cbranch_scc0 {lab}")
    A("s_memrealtime s[38:39]"); A("s_waitcnt lgkmcnt(0)"); A("s_or_b32 s38, s38, 1")
    A("v_mov_b32 v3, s38"); A("v_mov_b32 v4, 0"); A("s_mov_b64 exec, 1")
    A("buffer_store_dword v3, v4, s[48:51], 0 offen sc1"); A("s_mov_b64 exec, -1")
    A.label(lab)
    A("s_lshl_b32 s37, s33, 7"); A("s_lshl_b32 s38, s34, 3"); A("s_add_u32 s37, s37, s38"); A("s_add_u32 s37, s37, s32")
    A("s_lshl_b32 s39, s37, 4")
    A("s_mul_i32 s37, s37, 1280"); A("v_lshlrev_b32 v3, 2, v2")
    for i in range(5): A(f"buffer_load_dword v{20+i}, v3, s[4:7], s37 offen offset:{256*i}")
    A("s_mul_i32 s37, s33, 40"); A("s_mul_i32 s38, s35, 10"); A("s_add_u32 s37, s37, s38")
    lq=A.newlabel("csq"); lg=A.newlabel("csg")
    A("s_cmp_eq_u32 s36, 0"); A(f"s_cbranch_scc1 {lq}")
    A("s_mul_i32 s37, s37, 3072"); A("s_add_u32 s37, s37, s42")
    for i in range(10):
        A(f"buffer_load_dword v{26+i}, v3, s[12:15], s37 offen"); A("s_add_u32 s37, s37, 3072")
    A(f"s_branch {lg}")
    A.label(lq)
    A("s_mul_i32 s37, s37, 3840"); A("s_add_u32 s37, s37, s41")
    for i in range(10):
        A(f"buffer_load_dword v{26+i}, v3, s[8:11], s37 offen"); A("s_add_u32 s37, s37, 3840")
    A.label(lg)
    lc=A.newlabel("noC")
    A("s_mul_i32 s37, s2, 3"); A("s_add_u32 s37, s37, s32")
    A("s_cmp_lt_u32 s32, 3"); A("s_cselect_b32 s38, s37, 1000"); A("s_cmp_lt_u32 s38, 680"); A("s_cselect_b32 s38, s38, -1")
    A("s_mov_b32 s31, s38")
    A("s_cmp_eq_i32 s38, -1"); A(f"s_cbranch_scc1 {lc}")
    A("s_mul_i32 s37, s38, 6554"); A("s_lshr_b32 s37, s37, 16")
    A("s_mul_i32 s30, s37, 10"); A("s_sub_u32 s30, s38, s30")
    A("s_mov_b32 s29, s37")
    A("v_lshrrev_b32 v3, 3, v2"); A("v_and_b32 v4, 7, v2")
    A("s_lshl_b32 s28, s30, 7"); A("v_lshl_add_u32 v4, v4, 4, s28")
    lw=A.newlabel("cwo"); lgo=A.newlabel("cgo")
    A("s_cmp_ge_u32 s37, 48"); A(f"s_cbranch_scc1 {lw}")
    srd(A,52,P_W2,P_W2+1,1536*1280)
    A("s_lshl_b32 s37, s37, 5"); A("v_add_u32 v5, s37, v3"); A("v_mul_u32_u24 v5, 1280, v5"); A("v_add_u32 v5, v5, v4")
    for i in range(4):
        A(f"buffer_load_dwordx4 v[{40+4*i}:{43+4*i}], v5, s[52:55], 0 offen"); A(f"v_add_u32 v5, {8*1280}, v5")
    A(f"s_branch {lgo}")
    A.label(lw)
    srd(A,52,P_WO,P_WO+1,640*1280)
    A("s_sub_u32 s37, s37, 48"); A("s_lshl_b32 s37, s37, 2")
    A("v_lshrrev_b32 v6, 5, v2"); A("v_and_b32 v7, 3, v3")
    for i in range(4):
        half=i>>1
        A(f"v_add_u32 v8, {2*(i&1)}, v6"); A("v_add_u32 v8, s37, v8")
        A("v_mul_u32_u24 v9, 205, v8"); A("v_lshrrev_b32 v9, 10, v9")
        A("v_mul_u32_u24 v16, 5, v9"); A("v_sub_u32 v16, v8, v16")
        A("v_lshrrev_b32 v17, 1, v16"); A("v_and_b32 v18, 1, v16"); A(f"v_add_u32 v18, {2*half}, v18")
        A("v_cmp_eq_u32 vcc, 4, v16"); A(f"v_mov_b32 v19, {half}"); A("v_mov_b32 v8, 4")
        A("v_cndmask_b32 v17, v17, v19, vcc"); A("v_cndmask_b32 v18, v18, v8, vcc")
        A("v_lshl_add_u32 v17, v9, 1, v17"); A("v_mul_u32_u24 v17, 20, v17"); A("v_lshl_add_u32 v17, v18, 2, v17"); A("v_add_u32 v17, v17, v7")
        A("v_mul_u32_u24 v17, 1280, v17"); A("v_add_u32 v17, v17, v4")
        A(f"buffer_load_dwordx4 v[{40+4*i}:{43+4*i}], v17, s[52:55], 0 offen")
    A.label(lgo)
    A.label(lc)
    ln=A.newlabel("nonl")
    A("v_mov_b32 v4, 0")
    A("s_cmp_eq_u32 s32, 0"); A(f"s_cbranch_scc0 {ln}")
    A("buffer_load_dword v56, v4, s[48:51], 0 offen sc1")
    A.label(ln)
    dma_full()
    A("v_and_b32 v3, 31, v2"); A("s_lshl_b32 s37, s35, 5"); A("v_add_u32 v3, s37, v3")
    A("v_lshrrev_b32 v4, 5, v2"); A("v_bfe_u32 v5, v3, 1, 3"); A("v_xor_b32 v5, v5, v4"); A("v_lshlrev_b32 v3, 7, v3")
    for t in range(4): A(f"v_xor_b32 v6, {2*t}, v5"); A(f"v_lshl_add_u32 v{16+t}, v6, 4, v3")
    A("v_bfe_u32 v3, v2, 4, 1"); A("v_lshrrev_b32 v4, 5, v2"); A("v_bfe_u32 v5, v2, 2, 2"); A("v_and_b32 v6, 3, v2")
    A("v_lshl_add_u32 v7, v4, 3, v5")
    A("v_lshlrev_b32 v8, 8, v7"); A(f"v_add_u32 v8, {WQB}, v8")
    A("v_lshrrev_b32 v9, 1, v6"); A("v_lshl_add_u32 v9, v3, 1, v9"); A("v_lshl_add_u32 v8, v9, 4, v8")
    A("v_and_b32 v9, 1, v6"); A("v_lshl_add_u32 v8, v9, 3, v8")
    for T in range(4): A(f"v_xor_b32 v9, {T}, v5"); A(f"v_lshl_add_u32 v{60+T}, v9, 6, v8")
    A("v_mul_u32_u24 v64, 192, v7"); A("v_lshl_add_u32 v64, v3, 5, v64"); A("v_lshl_add_u32 v64, v6, 3, v64"); A(f"v_add_u32 v64, {WFB}, v64")
    A(f"v_mov_b32 v57, {WS_F0}")
    stamp(A,1)
    l4=A.newlabel("w4"); l5=A.newlabel("w5")
    A("s_cmp_eq_u32 s36, 0"); A(f"s_cbranch_scc1 {l4}"); A("s_waitcnt vmcnt(7)"); A(f"s_branch {l5}")
    A.label(l4); A("s_waitcnt vmcnt(4)"); A.label(l5)
    for i in range(5):
        A(f"v_lshlrev_b32 v{66+2*i}, 16, v{20+i}"); A(f"v_and_b32 v{67+2*i}, 0xffff0000, v{20+i}")
    A("v_add_f32 v76, v66, v67")
    for i in range(2,10): A(f"v_add_f32 v76, v76, v{66+i}")
    allreduce_add(A,76,77,78)
    A(f"v_mul_f32 v76, {fhex(1.0/640)}, v76")
    for i in range(10): A(f"v_sub_f32 v{66+i}, v{66+i}, v76")
    A("v_mul_f32 v79, v66, v66")
    for i in range(1,10): A(f"v_fmac_f32 v79, v{66+i}, v{66+i}")
    allreduce_add(A,79,77,78)
    A(f"v_mul_f32 v79, {fhex(1.0/640)}, v79"); A(f"v_add_f32 v80, {fhex(1e-5)}, v79")
    A("v_rsq_f32 v81, v80"); A("s_nop 0")
    A("v_mul_f32 v82, v81, v81"); A("v_mul_f32 v82, v82, v79"); A(f"v_add_f32 v82, {fhex(1e-5)}, v82")
    A("v_rsq_f32 v82, v82"); A("v_mov_b32 v84, v76"); A("v_mov_b32 v85, v81")
    A(f"v_mul_f32 v86, {fhex(CQ)}, v81"); A("v_mul_f32 v87, v81, v82")
    A("v_mov_b32 v4, 0"); A("s_mov_b64 exec, 1")
    A("buffer_store_dwordx4 v[84:87], v4, s[16:19], s39 offen sc1"); A("s_mov_b64 exec, -1")
    A("v_lshlrev_b32 v66, 16, v26"); A("v_and_b32 v67, 0xffff0000, v26")
    for i in range(1,10):
        A(f"v_lshlrev_b32 v68, 16, v{26+i}"); A(f"v_and_b32 v69, 0xffff0000, v{26+i}")
        A("v_add_f32 v66, v66, v68"); A("v_add_f32 v67, v67, v69")
    A("s_lshl_b32 s37, s32, 9"); A("v_lshlrev_b32 v3, 3, v2"); A("v_add_u32 v3, s37, v3")
    A(f"ds_write_b64 v3, v[66:67] offset:{XCH}") if XCH<65536 else (A(f"v_add_u32 v3, {XCH}, v3"), A("ds_write_b64 v3, v[66:67]"))
    lc2=A.newlabel("noC2")
    A("s_cmp_eq_i32 s31, -1"); A(f"s_cbranch_scc1 {lc2}")
    srd(A,52,P_WS,P_WS+1,W2T_SZ,off=WS_W2T)
    A("s_mul_i32 s37, s32, 5120"); A(f"s_add_u32 s37, s37, {SCR}")
    A("v_lshrrev_b32 v3, 3, v2"); A("v_mul_u32_u24 v3, 160, v3"); A("v_and_b32 v4, 7, v2"); A("v_lshl_add_u32 v3, v4, 4, v3"); A("v_add_u32 v3, s37, v3")
    for i in range(4): A(f"ds_write_b128 v3, v[{40+4*i}:{43+4*i}] offset:{8*160*i}")
    A("v_lshrrev_b32 v4, 2, v2"); A("v_mul_u32_u24 v4, 160, v4"); A("v_and_b32 v5, 3, v2"); A("v_lshl_add_u32 v4, v5, 3, v4"); A("v_add_u32 v4, s37, v4")
    A("s_waitcnt lgkmcnt(0)")
    for i in range(4):
        A(f"ds_read_b64_tr_b16 v[{40+4*i}:{41+4*i}], v4 offset:{32*i}")
        A(f"ds_read_b64_tr_b16 v[{42+4*i}:{43+4*i}], v4 offset:{32*i+16*160}")
    A("v_lshlrev_b32 v5, 4, v2")
    A("s_waitcnt lgkmcnt(0)")
    for i in range(4):
        A("s_lshl_b32 s37, s30, 2"); A(f"s_add_u32 s37, s37, {i}")
        A("s_mul_i32 s38, s37, 205"); A("s_lshr_b32 s38, s38, 10")
        A("s_mul_i32 s39, s38, 5"); A("s_sub_u32 s39, s37, s39")
        A("s_mul_i32 s38, s38, 68"); A("s_add_u32 s38, s38, s29"); A("s_mul_i32 s38, s38, 5"); A("s_add_u32 s38, s38, s39"); A("s_lshl_b32 s38, s38, 10")
        A(f"buffer_store_dwordx4 v[{40+4*i}:{43+4*i}], v5, s[52:55], s38 offen sc1")
    A.label(lc2)
    ln2=A.newlabel("non2"); ln3=A.newlabel("non3"); ln4=A.newlabel("non4")
    A("s_cmp_eq_u32 s32, 0"); A(f"s_cbranch_scc0 {ln2}")
    A("s_mov_b32 s37, 0")
    A.label(ln3)
    A(f"v_readfirstlane_b32 s{S_NONCE}, v56"); A("s_nop 3")
    A(f"s_cmp_lg_u32 s{S_NONCE}, 0"); A(f"s_cbranch_scc1 {ln4}")
    A("s_add_u32 s37, s37, 1"); A(f"s_cmp_lt_u32 s37, {POLL_MAX}"); A(f"s_cbranch_scc0 {ln4}")
    A("s_sleep 1"); A("v_mov_b32 v4, 0"); A("buffer_load_dword v56, v4, s[48:51], 0 offen sc1"); A("s_waitcnt vmcnt(0)"); A(f"s_branch {ln3}")
    A.label(ln4)
    A(f"v_mov_b32 v4, {NON}"); A("ds_write_b32 v4, v56")
    A.label(ln2)
    A("s_cmp_eq_u32 s36, 0"); A("s_cbranch_scc0 L_fc1")

    ACC=96; FR=(66,86)
    FR=(160,180)
    def reads_list(t, ty, fr):
        L=[f"ds_read_b128 v[{fr}:{fr+3}], v{16+t} offset:{XB}"]
        nT=4 if ty==0 else 3
        for T in range(nT):
            for jj in range(2):
                d=fr+4+4*T+2*jj
                if ty==0: L.append(f"ds_read_b64_tr_b16 v[{d}:{d+1}], v{60+T} offset:{(16*t+4*jj)*256}")
                else:     L.append(f"ds_read_b64_tr_b16 v[{d}:{d+1}], v64 offset:{(16*t+4*jj)*192+64*T}")
        return L
    def adv_read_addrs(ty):
        A("s_add_u32 s29, s29, 1"); A("s_cmp_eq_u32 s29, 3")
        A("s_cselect_b32 s37, -49152, 0"); A("s_cselect_b32 s38, -36864, 0"); A("s_cselect_b32 s29, 0, s29")
        A("s_add_u32 s37, s37, 16384"); A("s_add_u32 s38, s38, 12288")
        for t in range(4): A(f"v_add_u32 v{16+t}, s37, v{16+t}")
        if ty==0:
            for T in range(4): A(f"v_add_u32 v{60+T}, s37, v{60+T}")
        else: A("v_add_u32 v64, s38, v64")

    def mainloop(ty, hook_top, hook_bar):
        nT=4 if ty==0 else 3; nd=4 if ty==0 else 7
        tag="q" if ty==0 else "f"
        parts = {3:[0],0:[1],1:[2],2:[3]} if ty==0 else {3:[0,1],0:[2,3],1:[4,5],2:[6]}
        for r in range(16*nT): A(f"v_mov_b32 v{ACC+r}, 0")
        A("s_mov_b32 s29, 0")
        A(f"s_waitcnt vmcnt({nd})"); A("s_waitcnt lgkmcnt(0)"); A("s_barrier")
        stamp(A,2)
        A(f"v_mov_b32 v4, {NON}"); A("ds_read_b32 v5, v4")
        lx=A.newlabel("csx")
        A("s_cmp_eq_u32 s35, 0"); A(f"s_cbranch_scc0 {lx}")
        A("v_lshlrev_b32 v3, 3, v2"); A(f"v_add_u32 v3, {XCH+ty*2048}, v3")
        for w in range(4): A(f"ds_read_b64 v[{66+2*w}:{67+2*w}], v3 offset:{512*w}")
        A("s_waitcnt lgkmcnt(0)")
        A("v_add_f32 v66, v66, v68"); A("v_add_f32 v67, v67, v69"); A("v_add_f32 v70, v70, v72"); A("v_add_f32 v71, v71, v73")
        A("v_add_f32 v66, v66, v70"); A("v_add_f32 v67, v67, v71")
        A("s_lshl_b32 s37, s34, 4"); A("s_add_u32 s37, s37, s33"); A("s_lshl_b32 s37, s37, 10"); A(f"s_add_u32 s37, s37, {WS_CSP+ty*512}")
        A("v_lshlrev_b32 v3, 3, v2")
        A("buffer_store_dwordx2 v[66:67], v3, s[16:19], s37 offen sc1")
        A.label(lx)
        A("s_waitcnt lgkmcnt(0)"); A(f"v_readfirstlane_b32 s{S_NONCE}, v5")
        dma_setup()
        for k in parts[3]: dma_i(k)
        for r in reads_list(0,ty,FR[0]): A(r)
        A(f"s_mov_b32 s{S_TAU}, 0")
        A(".p2align 6" if False else "")
        A.label(f"L_loop_{tag}")
        hook_top()
        for t in range(4):
            fr=FR[t%2]; nf=FR[(t+1)%2]
            A("s_waitcnt lgkmcnt(0)")
            if t==3:
                l1=A.newlabel("vm"); l2=A.newlabel("vm")
                A(f"s_cmp_lt_u32 s{S_TAU}, 8"); A(f"s_cbranch_scc1 {l1}"); A("s_waitcnt vmcnt(0)"); A.label(l1)
                A(f"s_waitcnt vmcnt({nd})"); A("s_barrier")
                hook_bar()
                adv_read_addrs(ty)
                rl=reads_list(0,ty,nf)
            else:
                rl=reads_list(t+1,ty,nf)
            dm=[]
            lim = 7 if t==3 else 8
            per=-(-len(rl)//nT)
            for T in range(nT):
                a=ACC+16*T
                if "nomfma" not in EXP:
                    A(f"v_mfma_f32_32x32x16_bf16 v[{a}:{a+15}], v[{fr+4+4*T}:{fr+7+4*T}], v[{fr}:{fr+3}], v[{a}:{a+15}]")
                for r in rl[T*per:(T+1)*per]: A(r)
                if T==1:
                    ls=A.newlabel("nod")
                    A(f"s_cmp_lt_u32 s{S_TAU}, {lim}"); A(f"s_cbranch_scc0 {ls}")
                    if t==3: dma_adv(); dma_setup()
                    for k in parts[t]: dma_i(k)
                    A.label(ls)
        A(f"s_add_u32 s{S_TAU}, s{S_TAU}, 1"); A(f"s_cmp_lt_u32 s{S_TAU}, 10"); A(f"s_cbranch_scc1 L_loop_{tag}")
        A("s_waitcnt lgkmcnt(0)")
        A("s_nop 15")
        stamp(A,3)

    def make_hooks(ty):
        def hook_bar():
            l=A.newlabel("hb")
            A(f"s_cmp_eq_u32 s{S_TAU}, 1"); A(f"s_cbranch_scc0 {l}")
            if ty==0:
                l2=A.newlabel("hb")
                A("s_cmp_eq_u32 s32, 0"); A(f"s_cbranch_scc0 {l2}")
                A("s_lshl_b32 s37, s33, 4"); A("s_add_u32 s37, s37, s34"); A("s_lshl_b32 s37, s37, 2"); A(f"s_add_u32 s37, s37, {WS_F0}")
                flag_store(A,37,3,4)
                A.label(l2)
                A("s_cmp_eq_i32 s31, -1"); A(f"s_cbranch_scc1 {l}")
                A("s_lshl_b32 s37, s31, 2"); A(f"s_add_u32 s37, s37, {WS_FW}")
                flag_store(A,37,3,4)
            A.label(l)
        def hook_top():
            l5=A.newlabel("ht"); l7=A.newlabel("ht"); l9=A.newlabel("ht")
            A(f"s_cmp_eq_u32 s{S_TAU}, 5"); A(f"s_cbranch_scc0 {l5}")
            A("v_and_b32 v3, 15, v2"); A("s_lshl_b32 s37, s33, 4"); A("v_add_u32 v4, s37, v3")
            A("v_lshlrev_b32 v5, 4, v3"); A("v_add_u32 v5, s34, v5")
            A("v_and_b32 v6, 16, v2"); A("v_cmp_eq_u32 vcc, 0, v6"); A("s_nop 1"); A("v_cndmask_b32 v4, v5, v4, vcc")
            A("v_lshlrev_b32 v57, 2, v4"); A(f"v_add_u32 v57, {WS_F0}, v57")
            A("buffer_load_dword v58, v57, s[16:19], 0 offen sc1")
            A.label(l5)
            A(f"s_cmp_eq_u32 s{S_TAU}, 7"); A(f"s_cbranch_scc0 {l7}")
            lok=A.newlabel("ok")
            A(f"v_cmp_ne_u32 vcc, s{S_NONCE}, v58"); A(f"s_cbranch_vccz {lok}")
            poll(A,57,58,"f0")
            A.label(lok)
            A("v_and_b32 v3, 31, v2"); A("s_lshl_b32 s37, s33, 7"); A("s_lshl_b32 s38, s35, 5"); A("s_add_u32 s37, s37, s38")
            A("v_add_u32 v3, s37, v3"); A("v_lshlrev_b32 v25, 3, v3"); A("v_lshlrev_b32 v3, 4, v3")
            A("buffer_load_dwordx4 v[28:31], v3, s[16:19], 0 offen sc1")
            lnc=A.newlabel("nc")
            A("s_cmp_lt_u32 s35, 2"); A(f"s_cbranch_scc0 {lnc}")
            A("s_lshl_b32 s37, s35, 8"); A("v_lshlrev_b32 v3, 2, v2"); A("v_add_u32 v3, s37, v3")
            A("s_lshl_b32 s37, s34, 14"); A(f"s_add_u32 s37, s37, {WS_CSP+ty*512}")
            for r in range(16):
                A(f"buffer_load_dword v{40+r}, v3, s[16:19], s37 offen sc1"); A("s_add_u32 s37, s37, 1024")
            A.label(lnc)
            if ty==1:
                srd(A,48,P_B1,P_B1+1,3072)
                A("v_lshrrev_b32 v3, 5, v2"); A("v_lshlrev_b32 v3, 3, v3"); A("s_mul_i32 s37, s34, 192")
                for T in range(3):
                    for a in range(4):
                        A(f"buffer_load_dwordx2 v[{224+8*T+2*a}:{225+8*T+2*a}], v3, s[48:51], s37 offen offset:{64*T+16*a}")
            A.label(l7)
            A(f"s_cmp_eq_u32 s{S_TAU}, 9"); A(f"s_cbranch_scc0 {l9}")
            A("s_cmp_lt_u32 s35, 2"); A(f"s_cbranch_scc0 {l9}")
            for st in (8,4,2,1):
                for r in range(st): A(f"v_add_f32 v{40+r}, v{40+r}, v{40+r+st}")
            A("s_lshl_b32 s37, s35, 8"); A(f"s_add_u32 s37, s37, {CSF+ty*512}"); A("v_lshlrev_b32 v3, 2, v2"); A("v_add_u32 v3, s37, v3")
            A("ds_write_b32 v3, v40")
            A.label(l9)
        return hook_top, hook_bar

    ht,hb=make_hooks(0)
    mainloop(0,ht,hb)
    lskip=A.newlabel("noqkv")
    A("s_cmp_eq_u32 s34, 15"); A(f"s_cbranch_scc1 {lskip}")
    srd(A,20,P_WS,P_WS+1,3*QKV_SZ,off=WS_Q)
    A("s_mul_i32 s45, s34, 205"); A("s_lshr_b32 s45, s45, 10"); A("s_mul_i32 s46, s45, 5"); A("s_sub_u32 s46, s34, s46")
    A("s_cmp_eq_u32 s45, 0"); A("s_cselect_b64 vcc, -1, 0"); A("s_nop 1"); A("v_cndmask_b32 v29, v29, v30, vcc")
    A("v_sub_f32 v28, 0, v28")
    A("v_lshrrev_b32 v4, 5, v2"); A("v_lshlrev_b32 v26, 4, v4"); A(f"v_add_u32 v26, {CSF}, v26")
    A("v_lshlrev_b32 v4, 14, v4"); A("v_add_u32 v25, v25, v4")
    A(f"s_mul_i32 s45, s45, {QKV_SZ}"); A("s_lshl_b32 s46, s46, 19"); A("s_add_u32 s45, s45, s46")
    for T in range(4):
        for a in range(4): A(f"ds_read_b128 v[{160+16*(T%2)+4*a}:{163+16*(T%2)+4*a}], v26 offset:{128*T+32*a}")
        A("s_waitcnt lgkmcnt(0)")
        for a in range(4):
            b=ACC+16*T+4*a; c=160+16*(T%2)+4*a
            for i in range(4): A(f"v_fma_f32 v{b+i}, v28, v{c+i}, v{b+i}")
            for i in range(4): A(f"v_mul_f32 v{b+i}, v{b+i}, v29")
            o=40+2*((4*T+a)%8)
            A(f"v_cvt_pk_bf16_f32 v{o}, v{b}, v{b+1}"); A(f"v_cvt_pk_bf16_f32 v{o+1}, v{b+2}, v{b+3}")
            A(f"s_add_u32 s46, s45, {(8*T+2*a)*16384}")
            A(f"buffer_store_dwordx2 v[{o}:{o+1}], v25, s[20:23], s46 offen sc1")
    A("s_waitcnt vmcnt(0)")
    A("s_lshl_b32 s37, s33, 4"); A("s_add_u32 s37, s37, s34"); A("s_lshl_b32 s37, s37, 2"); A("s_add_u32 s37, s37, s35"); A("s_lshl_b32 s37, s37, 2"); A(f"s_add_u32 s37, s37, {WS_FQ}")
    flag_store(A,37,3,4)
    A.label(lskip)
    stamp(A,4)
    srd(A,20,P_WS,P_WS+1,3*QKV_SZ,off=WS_Q); srd(A,24,P_WS,P_WS+1,HO_SZ,off=WS_HO)
    A("s_mul_i32 s37, s34, 10"); A("s_lshr_b32 s38, s37, 5"); A("s_add_u32 s37, s37, 9"); A("s_lshr_b32 s39, s37, 5")
    A("v_lshrrev_b32 v3, 2, v2"); A("v_min_u32 v3, 13, v3")
    A("v_mul_u32_u24 v4, 43, v3"); A("v_lshrrev_b32 v4, 8, v4")
    A("v_mul_u32_u24 v5, 6, v4"); A("v_sub_u32 v5, v3, v5")
    A("v_mul_u32_u24 v6, 86, v5"); A("v_lshrrev_b32 v6, 8, v6")
    A("v_mul_u32_u24 v7, 3, v6"); A("v_sub_u32 v7, v5, v7")
    A("v_cmp_eq_u32 vcc, 2, v4"); A("s_nop 1"); A("v_cndmask_b32 v6, v6, v5, vcc"); A("v_cndmask_b32 v7, v7, 0, vcc" if False else "v_mov_b32 v8, 0"); A("v_cndmask_b32 v7, v7, v8, vcc")
    A("v_add_u32 v8, 1, v4"); A("v_mul_u32_u24 v8, 5, v8"); A("v_cmp_eq_u32 vcc, 15, v8"); A("v_mov_b32 v9, 0"); A("s_nop 0"); A("v_cndmask_b32 v8, v8, v9, vcc")
    A("v_mov_b32 v9, s38"); A("v_mov_b32 v20, s39"); A("v_cmp_eq_u32 vcc, 0, v6"); A("s_nop 1"); A("v_cndmask_b32 v9, v20, v9, vcc"); A("v_add_u32 v8, v8, v9")
    A("v_sub_u32 v9, s33, v7"); A("v_max_i32 v9, 0, v9")
    A("v_lshl_add_u32 v8, v9, 4, v8"); A("v_lshlrev_b32 v8, 2, v8"); A("v_and_b32 v9, 3, v2"); A("v_add_u32 v8, v8, v9"); A("v_lshlrev_b32 v8, 2, v8"); A(f"v_add_u32 v8, {WS_FQ}, v8")
    poll(A,8,9,"fq")
    stamp(A,5)
    A("v_lshlrev_b32 v3, 4, v2")
    A("s_lshl_b32 s40, s33, 10"); A("s_sub_u32 s40, s40, 2048"); A("s_mul_i32 s41, s34, %d"%(10*16384)); A("s_add_u32 s40, s40, s41"); A(f"s_add_u32 s40, s40, {QKV_SZ}")
    for n in range(15):
        A(f"s_add_u32 s42, s35, {4*n}"); A("s_mul_i32 s43, s42, 171"); A("s_lshr_b32 s43, s43, 9"); A("s_mul_i32 s44, s43, 3"); A("s_sub_u32 s44, s42, s44")
        A("s_cmp_ge_u32 s43, 10"); A(f"s_cselect_b32 s45, {QKV_SZ-10*16384}, 0")
        A("s_lshl_b32 s46, s43, 14"); A("s_add_u32 s46, s46, s45"); A("s_lshl_b32 s47, s44, 10"); A("s_add_u32 s46, s46, s47"); A("s_add_u32 s46, s46, s40")
        A(f"s_mul_i32 s47, s43, {GS}"); A("s_lshl_b32 s44, s44, 10"); A("s_add_u32 m0, s47, s44"); A("s_nop 0")
        A("buffer_load_dwordx4 v3, s[4+16:7+16], s46 offen sc1 lds".replace("4+16","20").replace("7+16","23"))
    A("v_mov_b32 v10, 0x3f80"); A("v_mov_b32 v11, 0"); A("v_lshlrev_b32 v4, 3, v0")
    A(f"ds_write_b64 v4, v[10:11] offset:{ONE0}"); A(f"v_add_u32 v5, {ONE1}, v4"); A("ds_write_b64 v5, v[10:11]")
    A("s_cmp_lt_u32 s32, 2"); lo=A.newlabel("on"); A(f"s_cbranch_scc0 {lo}")
    A(f"ds_write_b64 v4, v[10:11] offset:{ONE0+2048}"); A("ds_write_b64 v5, v[10:11] offset:2048")
    A.label(lo)
    A("v_and_b32 v5, 31, v2"); A("v_lshrrev_b32 v6, 5, v2")
    A("s_lshl_b32 s40, s33, 7"); A("s_lshl_b32 s41, s35, 5"); A("s_add_u32 s40, s40, s41")
    A("v_add_u32 v7, s40, v5"); A("v_lshlrev_b32 v7, 3, v7"); A("v_lshl_add_u32 v8, v6, 15, v7")
    for e,QF in ((0,12),(1,240)):
        A("s_mul_i32 s41, s34, 10"); A(f"s_add_u32 s41, s41, {5*e}"); A("s_lshl_b32 s41, s41, 14")
        A(f"buffer_load_dwordx2 v[{QF}:{QF+1}], v8, s[20:23], s41 offen sc1"); A("s_add_u32 s42, s41, 16384")
        A(f"buffer_load_dwordx2 v[{QF+2}:{QF+3}], v8, s[20:23], s42 offen sc1"); A("s_add_u32 s42, s41, 65536")
        A(f"buffer_load_dwordx2 v[{QF+4}:{QF+5}], v7, s[20:23], s42 offen sc1")
        A(f"v_mov_b32 v{QF+6}, 0"); A(f"v_mov_b32 v{QF+7}, 0")
    A("s_waitcnt vmcnt(0) lgkmcnt(0)")
    A("v_cmp_eq_u32 vcc, 0, v6"); A("s_nop 1")
    for QF in (12,240): A(f"v_cndmask_b32 v{QF+4}, 0, v{QF+4}, vcc"); A(f"v_cndmask_b32 v{QF+5}, 0, v{QF+5}, vcc")
    A("s_barrier")
    stamp(A,6)
    A("s_lshl_b32 s46, s33, 2"); A("s_add_u32 s46, s46, s35"); A("s_sub_i32 s46, 8, s46"); A("s_max_i32 s46, s46, 0")
    A("s_mov_b32 s36, 0")
    A.label("L_att")
    A("s_mul_i32 s42, s36, %d"%(5*GS)); A("s_lshl_b32 s43, s35, 8"); A("s_add_u32 s42, s42, s43")
    A("v_lshlrev_b32 v9, 3, v5"); A("v_add_u32 v9, s42, v9"); A(f"v_mul_u32_u24 v20, {2*GS}, v6"); A("v_add_u32 v20, v20, v9"); A(f"v_add_u32 v21, {4*GS}, v9")
    A("v_bfe_u32 v22, v2, 4, 1"); A("v_and_b32 v23, 3, v2"); A("v_bfe_u32 v24, v2, 2, 2")
    A("v_lshl_add_u32 v24, v6, 2, v24"); A("v_lshlrev_b32 v24, 3, v24"); A("v_add_u32 v24, s43, v24")
    A("v_lshl_add_u32 v25, v22, 2, v23"); A(f"v_mul_u32_u24 v26, {GS}, v25")
    A("s_mul_i32 s44, s36, %d"%(5*GS)); A(f"s_add_u32 s44, s44, {VB}"); A("v_add_u32 v26, s44, v26")
    A(f"s_mov_b32 s45, {ONE1}"); A("s_cmp_eq_u32 s36, 0"); A(f"s_cselect_b32 s45, {ONE0}, s45"); A("v_mov_b32 v27, s45")
    A("v_cmp_lt_u32 vcc, 4, v25"); A("s_nop 1"); A("v_cndmask_b32 v26, v26, v27, vcc"); A("v_add_u32 v22, v26, v24")
    S=32; KF=176; QF=12
    for st in range(2): A(f"v_mov_b32 v{KF+8*st+6}, 0"); A(f"v_mov_b32 v{KF+8*st+7}, 0")
    A(f"v_mov_b32 v28, {fhex(-1e30)}")
    for t in range(9):
        kf=KF+8*(t%2); d=S+16*t
        skip=A.newlabel("ts"); done=A.newlabel("td")
        A(f"s_cmp_gt_u32 s46, {t}"); A(f"s_cbranch_scc1 {skip}")
        A(f"ds_read_b64 v[{kf}:{kf+1}], v20 offset:{256*t}"); A(f"ds_read_b64 v[{kf+2}:{kf+3}], v20 offset:{256*t+GS}"); A(f"ds_read_b64 v[{kf+4}:{kf+5}], v21 offset:{256*t}")
        A("s_waitcnt lgkmcnt(0)")
        A(f"v_mfma_f32_32x32x16_bf16 v[{d}:{d+15}], v[{kf}:{kf+3}], v[{QF}:{QF+3}], 0")
        A(f"v_mfma_f32_32x32x16_bf16 v[{d}:{d+15}], v[{kf+4}:{kf+7}], v[{QF+4}:{QF+7}], v[{d}:{d+15}]")
        A(f"s_branch {done}"); A.label(skip)
        for r in range(16): A(f"v_mov_b32 v{d+r}, v28")
        A.label(done)
    A("s_nop 15")
    A("v_lshlrev_b32 v29, 2, v6"); A("v_sub_u32 v29, v5, v29")
    for r in range(16):
        kk=8*(r>>2)+(r&3)
        A(f"v_cmp_le_i32 vcc, {kk}, v29"); A("s_nop 1")
        A(f"v_cndmask_b32 v{S+128+r}, v28, v{S+128+r}, vcc"); A(f"v_cndmask_b32 v{S+r}, v{S+r}, v28, vcc")
    A(f"v_max3_f32 v30, v{S}, v{S+1}, v{S+2}")
    r=3
    while r<144:
        if r+1<144: A(f"v_max3_f32 v30, v30, v{S+r}, v{S+r+1}"); r+=2
        else: A(f"v_max_f32 v30, v30, v{S+r}"); r+=1
    A("v_mov_b32 v31, v30"); A("v_mov_b32 v29, v30"); A("s_nop 1"); A("v_permlane32_swap_b32 v31, v29"); A("s_nop 1"); A("v_max_f32 v30, v31, v29")
    for t in range(9):
        d=S+16*t
        for r in range(16): A(f"v_sub_f32 v{d+r}, v{d+r}, v30")
        for r in range(16): A(f"v_exp_f32 v{d+r}, v{d+r}")
        A("s_nop 0")
        for r in range(8): A(f"v_cvt_pk_bf16_f32 v{d+r}, v{d+2*r}, v{d+2*r+1}")
    O=192; VF=208
    for r in range(16): A(f"v_mov_b32 v{O+r}, 0")
    for t in range(9):
        d=S+16*t; vf=VF+8*(t%2); skip=A.newlabel("ps")
        A(f"s_cmp_gt_u32 s46, {t}"); A(f"s_cbranch_scc1 {skip}")
        for m in range(2):
            A(f"ds_read_b64_tr_b16 v[{vf+4*m}:{vf+4*m+1}], v22 offset:{256*t+128*m}")
            A(f"ds_read_b64_tr_b16 v[{vf+4*m+2}:{vf+4*m+3}], v22 offset:{256*t+128*m+64}")
        A("s_waitcnt lgkmcnt(0)")
        for m in range(2): A(f"v_mfma_f32_32x32x16_bf16 v[{O}:{O+15}], v[{vf+4*m}:{vf+4*m+3}], v[{d+4*m}:{d+4*m+3}], v[{O}:{O+15}]")
        A.label(skip)
    A("s_nop 15")
    A(f"v_mov_b32 v30, v{O+8}"); A(f"v_mov_b32 v31, v{O+8}"); A("s_nop 1"); A("v_permlane32_swap_b32 v30, v31"); A("s_nop 1")
    A("v_rcp_f32 v31, v31"); A("s_nop 0")
    for r in range(12): A(f"v_mul_f32 v{O+r}, v{O+r}, v31")
    for r in range(6): A(f"v_cvt_pk_bf16_f32 v{224+r}, v{O+2*r}, v{O+2*r+1}")
    A("s_mul_i32 s40, s34, 5"); A("s_lshl_b32 s41, s36, 1"); A("s_add_u32 s41, s41, s40")
    A("v_add_u32 v10, s41, v6"); A("v_lshrrev_b32 v11, 2, v10"); A("v_lshlrev_b32 v11, 12, v11")
    A("v_and_b32 v10, 3, v10"); A("v_lshl_add_u32 v11, v10, 8, v11")
    A("v_bfe_u32 v23, v2, 4, 1"); A("v_lshlrev_b32 v23, 10, v23"); A("v_and_b32 v24, 15, v2"); A("v_lshl_add_u32 v23, v24, 4, v23")
    A("v_add_u32 v11, v11, v23")
    A("s_lshl_b32 s42, s33, 1"); A("s_lshr_b32 s43, s35, 1"); A("s_add_u32 s42, s42, s43"); A("s_mul_i32 s42, s42, 68"); A("s_add_u32 s42, s42, 48")
    A("s_lshl_b32 s42, s42, 12"); A("s_and_b32 s43, s35, 1"); A("s_lshl_b32 s43, s43, 11"); A("s_add_u32 s42, s42, s43")
    A("buffer_store_dwordx4 v[224:227], v11, s[24:27], s42 offen sc1")
    A("s_add_u32 s40, s40, 4"); A("s_lshr_b32 s44, s40, 2"); A("s_lshl_b32 s44, s44, 12"); A("s_and_b32 s45, s40, 3"); A("s_lshl_b32 s45, s45, 8"); A("s_add_u32 s44, s44, s45")
    A("s_lshl_b32 s45, s36, 3"); A("s_add_u32 s44, s44, s45"); A("s_add_u32 s44, s44, s42")
    A("s_mov_b32 exec_hi, 0")
    A("buffer_store_dwordx2 v[228:229], v23, s[24:27], s44 offen sc1")
    A("s_mov_b64 exec, -1")
    A("s_cmp_eq_u32 s36, 1"); A("s_cbranch_scc1 L_att_done")
    for r in range(8): A(f"v_mov_b32 v{12+r}, v{240+r}")
    A("s_mov_b32 s36, 1"); A("s_branch L_att")
    A.label("L_att_done")
    A("s_waitcnt vmcnt(0)")
    A("s_lshl_b32 s37, s33, 4"); A("s_add_u32 s37, s37, s34"); A("s_lshl_b32 s37, s37, 2"); A("s_add_u32 s37, s37, s35"); A("s_lshl_b32 s37, s37, 2"); A(f"s_add_u32 s37, s37, {WS_FO}")
    flag_store(A,37,3,4)
    stamp(A,7) if False else None
    stamp_flush(A,7)
    A("s_endpgm")

    A.label("L_fc1")
    ht,hb=make_hooks(1)
    mainloop(1,ht,hb)
    srd(A,24,P_WS,P_WS+1,HO_SZ,off=WS_HO)
    B1=224
    A("v_sub_f32 v28, 0, v28")
    A(f"s_mov_b32 s51, {fhex(GC1)}"); A(f"v_mov_b32 v32, {fhex(GC0)}")
    A("v_lshrrev_b32 v4, 5, v2"); A("v_lshlrev_b32 v26, 4, v4"); A(f"v_add_u32 v26, {CSF+512}, v26")
    A("v_bfe_u32 v3, v2, 4, 1"); A("v_lshlrev_b32 v33, 10, v3"); A("v_lshl_add_u32 v33, v4, 8, v33"); A("v_and_b32 v3, 15, v2"); A("v_lshl_add_u32 v33, v3, 4, v33")
    A("s_lshl_b32 s45, s33, 1"); A("s_lshr_b32 s46, s35, 1"); A("s_add_u32 s45, s45, s46"); A("s_mul_i32 s45, s45, 68")
    A("s_mul_i32 s46, s34, 3"); A("s_add_u32 s45, s45, s46"); A("s_lshl_b32 s45, s45, 12")
    A("s_and_b32 s46, s35, 1"); A("s_lshl_b32 s46, s46, 11"); A("s_add_u32 s45, s45, s46")
    for T in range(3):
        for a in range(4): A(f"ds_read_b128 v[{160+16*(T%2)+4*a}:{163+16*(T%2)+4*a}], v26 offset:{128*T+32*a}")
        A("s_waitcnt lgkmcnt(0)")
        for a in range(4):
            b=ACC+16*T+4*a; c=160+16*(T%2)+4*a; bb=B1+8*T+2*a
            A(f"v_lshlrev_b32 v34, 16, v{bb}"); A(f"v_and_b32 v35, 0xffff0000, v{bb}"); A(f"v_lshlrev_b32 v36, 16, v{bb+1}"); A(f"v_and_b32 v37, 0xffff0000, v{bb+1}")
            for i in range(4): A(f"v_fma_f32 v{b+i}, v28, v{c+i}, v{b+i}")
            for i in range(4): A(f"v_fma_f32 v{b+i}, v{b+i}, v31, v{34+i}")
            ops=[gelu_ops(b+i,40+i,32) for i in range(4)]
            for st in range(7):
                for i in range(4): A(ops[i][st])
            o=(48 if a%2==0 else 52)+(2 if a>=2 else 0)+8*(T%2)
            A(f"v_cvt_pk_bf16_f32 v{o}, v{b}, v{b+1}"); A(f"v_cvt_pk_bf16_f32 v{o+1}, v{b+2}, v{b+3}")
        o=48+8*(T%2)
        A(f"s_add_u32 s46, s45, {T*4096}")
        A(f"buffer_store_dwordx4 v[{o}:{o+3}], v33, s[24:27], s46 offen sc1")
        A(f"buffer_store_dwordx4 v[{o+4}:{o+7}], v33, s[24:27], s46 offen offset:512 sc1")
    A("s_waitcnt vmcnt(0)")
    A("s_lshl_b32 s37, s33, 4"); A("s_add_u32 s37, s37, s34"); A("s_lshl_b32 s37, s37, 2"); A("s_add_u32 s37, s37, s35"); A("s_lshl_b32 s37, s37, 2"); A(f"s_add_u32 s37, s37, {WS_FH}")
    flag_store(A,37,3,4)
    stamp(A,4)
    A("s_and_b32 s37, s2, 7"); A("s_lshr_b32 s38, s2, 3")
    A("s_lshr_b32 s33, s37, 2"); A("s_lshl_b32 s33, s33, 4"); A("s_bfe_u32 s39, s37, 0x10001"); A("s_lshl_b32 s39, s39, 3"); A("s_add_u32 s33, s33, s39"); A("s_and_b32 s39, s38, 7"); A("s_add_u32 s33, s33, s39")
    A("s_and_b32 s34, s37, 1"); A("s_lshl_b32 s34, s34, 2"); A("s_lshr_b32 s39, s38, 3"); A("s_add_u32 s34, s34, s39")
    srd(A,8,P_WS,P_WS+1,W2T_SZ,off=WS_W2T); srd(A,4,P_X,P_X+1,2621440); srd(A,12,P_B2,P_B2+1,1280); srd(A,20,P_OUT,P_OUT+1,2621440)
    A("v_lshrrev_b32 v3, 1, v2"); A("v_min_u32 v3, 16, v3")
    A("s_mul_i32 s37, s35, 12"); A("s_mul_i32 s38, s35, 5"); A("s_add_u32 s38, s38, 36")
    A("v_add_u32 v4, s37, v3"); A("v_add_u32 v5, s38, v3"); A("v_cmp_gt_u32 vcc, 12, v3"); A("s_nop 1"); A("v_cndmask_b32 v4, v5, v4, vcc")
    A("s_mul_i32 s37, s34, 5"); A("s_lshr_b32 s38, s37, 2"); A("s_add_u32 s37, s37, 4"); A("s_lshr_b32 s39, s37, 2")
    A("v_and_b32 v5, 1, v2"); A("v_mov_b32 v6, s38"); A("v_mov_b32 v7, s39"); A("v_cmp_eq_u32 vcc, 0, v5"); A("s_nop 1"); A("v_cndmask_b32 v6, v7, v6, vcc")
    A("v_mul_u32_u24 v4, 10, v4"); A("v_add_u32 v4, v4, v6"); A("v_lshlrev_b32 v4, 2, v4"); A(f"v_add_u32 v4, {WS_FW}, v4")
    poll(A,4,5,"fw")
    A("v_lshlrev_b32 v3, 4, v2"); A("v_add_u32 v4, 4096, v3")
    A("v_and_b32 v5, 15, v2"); A("s_lshl_b32 s39, s33, 6"); A("s_lshl_b32 s40, s35, 4"); A("s_add_u32 s39, s39, s40")
    A("v_add_u32 v5, s39, v5"); A("v_mul_u32_u24 v5, 1280, v5"); A("v_lshrrev_b32 v6, 4, v2"); A("v_lshlrev_b32 v6, 3, v6")
    A("s_mul_i32 s39, s34, 160"); A("v_add_u32 v6, s39, v6"); A("v_add_u32 v5, v5, v6")
    for nt in range(5): A(f"buffer_load_dwordx2 v[{90+2*nt}:{91+2*nt}], v5, s[4:7], 0 offen offset:{32*nt}")
    for nt in range(5): A(f"buffer_load_dwordx2 v[{244+2*nt}:{245+2*nt}], v6, s[12:15], 0 offen offset:{32*nt}")
    A("s_mul_i32 s40, s33, %d"%(68*4096)); A("s_mul_i32 s41, s34, %d"%(68*5120))
    A("s_mul_i32 s42, s35, 12"); A("s_mul_i32 s43, s35, 5"); A("s_add_u32 s43, s43, 48")
    A("s_lshl_b32 s44, s42, 12"); A("s_add_u32 s44, s44, s40"); A("s_mul_i32 s45, s42, 5120"); A("s_add_u32 s45, s45, s41")
    A("s_lshl_b32 s46, s43, 12"); A("s_add_u32 s46, s46, s40"); A("s_mul_i32 s47, s43, 5120"); A("s_add_u32 s47, s47, s41")
    ACC3=10; RING=100
    def loadsW(i):
        b=RING+36*(i%4); ws_,ii=(45,i) if i<12 else (47,i-12)
        A(f"s_add_u32 s57, s{ws_}, {ii*5120}")
        for nt in range(4): A(f"buffer_load_dwordx4 v[{b+16+4*nt}:{b+16+4*nt+3}], v3, s[8:11], s57 offen offset:{1024*nt} sc1")
        A(f"buffer_load_dwordx4 v[{b+32}:{b+35}], v4, s[8:11], s57 offen sc1")
    def loadsH(i):
        b=RING+36*(i%4); hs,ii=(44,i) if i<12 else (46,i-12)
        A(f"s_add_u32 s56, s{hs}, {ii*4096}")
        for tt in range(4): A(f"buffer_load_dwordx4 v[{b+4*tt}:{b+4*tt+3}], v3, s[24:27], s56 offen offset:{1024*tt} sc1")
    for i in range(3): loadsW(i)
    for r in range(80): A(f"v_mov_b32 v{ACC3+r}, 0")
    A("s_barrier")
    stamp(A,5)
    def poll_group(base):
        A("v_bfe_u32 v7, v2, 1, 2"); A("s_lshl_b32 s37, s35, 2"); A("v_add_u32 v7, s37, v7")
        A("s_lshr_b32 s37, s33, 1"); A("s_lshl_b32 s37, s37, 4"); A("v_add_u32 v7, s37, v7"); A("v_lshlrev_b32 v7, 2, v7")
        A("s_and_b32 s37, s33, 1"); A("s_lshl_b32 s37, s37, 1"); A("v_add_u32 v7, s37, v7"); A("v_and_b32 v8, 1, v2"); A("v_add_u32 v7, v7, v8")
        A("v_lshlrev_b32 v7, 2, v7"); A(f"v_add_u32 v7, {base}, v7")
        poll(A,7,8,"fh")
    poll_group(WS_FH)
    stamp(A,6)
    for i in range(3): loadsH(i)
    for i in range(17):
        if i==9:
            poll_group(WS_FO)
            stamp(A,7) if False else None
        if i+3<17:
            loadsW(i+3); loadsH(i+3)
            if i==0: A("s_waitcnt vmcnt(17)")
            elif i==1: A("s_waitcnt vmcnt(22)")
            else: A("s_waitcnt vmcnt(27)")
        else:
            A(f"s_waitcnt vmcnt({9*(16-i)})")
        b=RING+36*(i%4)
        for nt in range(5):
            for tt in range(4):
                a=ACC3+16*nt+4*tt
                A(f"v_mfma_f32_16x16x32_bf16 v[{a}:{a+3}], v[{b+16+4*nt}:{b+16+4*nt+3}], v[{b+4*tt}:{b+4*tt+3}], v[{a}:{a+3}]")
    A("s_nop 15")
    A("s_mul_i32 s39, s35, 20480"); A(f"s_add_u32 s39, s39, {RED}"); A("v_add_u32 v7, s39, v3")
    for nt in range(5):
        for tt in range(4):
            a=ACC3+16*nt+4*tt
            A(f"ds_write_b128 v7, v[{a}:{a+3}] offset:{(nt*4+tt)*1024}")
    A("s_waitcnt lgkmcnt(0)"); A("s_barrier")
    A("s_lshl_b32 s39, s35, 10"); A(f"s_add_u32 s39, s39, {RED}"); A("v_add_u32 v7, s39, v3"); A("v_add_u32 v8, 40960, v7")
    for nt in range(5):
        for w in range(4):
            base=7 if w<2 else 8
            A(f"ds_read_b128 v[{RING+16*nt+4*w}:{RING+16*nt+4*w+3}], v{base} offset:{(w%2)*20480+nt*4096}")
    A("s_waitcnt lgkmcnt(0)")
    for nt in range(5):
        b=RING+16*nt
        for i in range(4): A(f"v_add_f32 v{b+i}, v{b+i}, v{b+4+i}"); A(f"v_add_f32 v{b+8+i}, v{b+8+i}, v{b+12+i}")
        for i in range(4): A(f"v_add_f32 v{b+i}, v{b+i}, v{b+8+i}")
        for (src,t0) in ((90+2*nt,10),(244+2*nt,14)):
            A(f"v_lshlrev_b32 v{t0}, 16, v{src}"); A(f"v_and_b32 v{t0+1}, 0xffff0000, v{src}")
            A(f"v_lshlrev_b32 v{t0+2}, 16, v{src+1}"); A(f"v_and_b32 v{t0+3}, 0xffff0000, v{src+1}")
        for i in range(4): A(f"v_add_f32 v{b+i}, v{b+i}, v{14+i}")
        for i in range(4): A(f"v_add_f32 v{b+i}, v{b+i}, v{10+i}")
        A(f"v_cvt_pk_bf16_f32 v{20+2*nt}, v{b}, v{b+1}"); A(f"v_cvt_pk_bf16_f32 v{21+2*nt}, v{b+2}, v{b+3}")
        A(f"buffer_store_dwordx2 v[{20+2*nt}:{21+2*nt}], v5, s[20:23], 0 offen offset:{32*nt}")
    stamp(A,7) if False else None
    stamp_flush(A,7)
    A.label("L_end")
    A("s_endpgm")
    return A.text()

def build():
    hdr=open("parallel_sum__sliding_block__mixer_channel_mlp__prompt.s.ref").read().split("; Override")[0]
    s=hdr+f"; @launch grid=(256,1,1) block=(512,1,1) lds={LDS_TOTAL}\n"
    s+='.amdgcn_target "amdgcn-amd-amdhsa--gfx950"\n.text\n'+kernel_header(KNAME)+gen()
    s+='.section .rodata,"a"\n'+kernel_desc(KNAME)
    return s
if __name__=="__main__":
    out=sys.argv[1] if len(sys.argv)>1 else "parallel_sum__sliding_block__mixer_channel_mlp__prompt.s"
    if len(sys.argv)>2 and sys.argv[2]=="instr": INSTR=True
    if len(sys.argv)>3: EXP.update(sys.argv[3].split(","))
    open(out,"w").write(build())
```

```python
class Op:
    __slots__=("t","s","k","seq")
    def __init__(self,t,s=None,k=None): self.t=t; self.s=s; self.k=k; self.seq=None
class Em:
    def __init__(self): self.it=[]
    def __call__(self,s,k=None):
        o=Op('i',s,k); self.it.append(o); return o
    def lds(self,s): return self(s,'l')
    def vm(self,s): return self(s,'v')
    def st(self,s): return self(s,'s')
    def wl(self,op): self.it.append(Op('wl',op))
    def wv(self,op): self.it.append(Op('wv',op))
    def slot(self,n): self.it.append(Op('slot',n))
    def label(self,s): self.it.append(Op('lab',s))
    def drain(self): self.it.append(Op('drain'))
    def extend(self,other): self.it+=other.it
    def merge(self,filler):
        out=[]; f=list(filler.it); fi=0
        for o in self.it:
            if o.t=='slot':
                n=o.s
                while n>0 and fi<len(f):
                    x=f[fi]; out.append(x); fi+=1
                    if x.t=='i': n-=max(1,x.s.count("\n")+1)
                    elif x.t in('wl','wv'): n-=1
            else: out.append(o)
        left=len(f)-fi
        out+=f[fi:]
        self.it=out
        return left
    def text(self):
        L=[]; nl=0; nv=0
        for o in self.it:
            if o.t=='i':
                for l in o.s.split("\n"):
                    l=l.strip()
                    if l: L.append(("" if l.endswith(":") or l.startswith(".") else "  ")+l)
                if o.k:
                    for c in o.k:
                        if c=='l': nl+=1
                        elif c=='v': nv+=1
                    o.seq=(nl,nv)
            elif o.t in('wl','wv') and o.s.seq is None:
                pass
            elif o.t=='wl':
                n=nl-o.s.seq[0]; L.append(f"  s_waitcnt lgkmcnt({min(n,15)})")
            elif o.t=='wv':
                n=0 if 's' in o.s.k else nv-o.s.seq[1]
                L.append(f"  s_waitcnt vmcnt({min(n,63)})")
            elif o.t=='lab': L.append(o.s+":")
            elif o.t=='slot': pass
        return "\n".join(L)+"\n"
```

```python
import math, sys, struct
from asmlib import kernel_header, kernel_desc
from em import Em

KNAME="parallel_sum__sliding_block__mixer_channel_mlp__prompt_kernel"
WS_STATS=0; WS_CSP=0x10000; WS_FQ=0x90000; WS_FH=0x98000; WS_FO=0xA0000; WS_FW=0xA8000; SMALL_SZ=0xB0000
WS_W2T=0xB0000; W2T_SZ=8*68*5*1024
WS_Q=0x360000; QKV_SZ=0x280000
WS_HO=0xB00000; HO_SZ=0x880000
WS_STAMP=0x2000000
LOG2E=1.4426950408889634; CQ=(20**-0.5)*LOG2E
GC0=-2.0*LOG2E*math.sqrt(2.0/math.pi); GC1=GC0*0.044715
def fhex(f): return hex(struct.unpack("<I",struct.pack("<f",f))[0])
P_X,P_WQKV,P_WO,P_W1,P_B1,P_W2,P_B2,P_OUT,P_DBG,P_WS=60,62,64,68,70,72,74,76,78,80
SLOT=32768; P0=131072; P1=143360; U0=69632; CSF=155648; NON=156672; CNT=156704; STX=156736; XCH=131072; CSCR=135168
GS=3104; VB=10*GS
def _ones():
    base=VB+10*GS; o0=base+((160-(base-VB))%256); b2=o0+3072; o1=b2+((64-(b2-VB))%256); return o0,o1,o1+3072
ONE0,ONE1,ATT_END=_ones(); RED=69632; LDS_TOTAL=163840
assert ATT_END<=RED
V0=20480
def wf_region(sg): return [P0,P1,U0,U0+12288,U0+2*12288,U0+3*12288,U0+4*12288,V0,V0+12288,V0+2*12288][sg]
S_NONCE=82
INSTR=False; EXP=set(); POLL_MAX=20000
_uid=[0]
def lab(b="L"):
    _uid[0]+=1; return f"{b}_{_uid[0]}"
NST=9
def stamp2(E,idx):
    if INSTR and 'barst' in EXP: E(f"s_memtime s[{84+2*idx}:{85+2*idx}]")
def stamp3(E,idx):
    if INSTR and 'epi' in EXP: E(f"s_memrealtime s[{84+2*idx}:{85+2*idx}]")
def stamp4(E,idx):
    if INSTR and 'gel' in EXP: E(f"s_memrealtime s[{84+2*idx}:{85+2*idx}]")
def stamp5(E,idx):
    if INSTR and 'fq' in EXP: E(f"s_memrealtime s[{84+2*idx}:{85+2*idx}]")
def stamp(E,idx):
    if 'fq' in EXP and idx>0: return
    if 'gel' in EXP and idx>0: return
    if 'epi' in EXP and idx>0: return
    if 'barst' in EXP and idx>0: return
    if INSTR: E(f"s_mem{'time' if 'clk' in EXP else 'realtime'} s[{84+2*idx}:{85+2*idx}]")
def stamp_flush(E):
    if not INSTR: return
    E("s_waitcnt lgkmcnt(0)")
    E(f"s_add_u32 s52, s{P_WS}, {WS_STAMP}\ns_addc_u32 s53, s{P_WS+1}, 0\ns_mov_b32 s54, 0x20000\ns_mov_b32 s55, 0x20000")
    E("s_lshl_b32 s56, s2, 3\ns_add_u32 s56, s56, s32\ns_lshl_b32 s56, s56, 6\nv_mov_b32 v251, 0")
    for i in range(NST):
        E(f"v_mov_b32 v250, s{84+2*i}"); E(f"buffer_store_dword v250, v251, s[52:55], s56 offen offset:{4*i}")
def srd(E,d,p,size,off=0):
    if off: E(f"s_add_u32 s{d}, s{p}, {off}\ns_addc_u32 s{d+1}, s{p+1}, 0")
    else: E(f"s_mov_b32 s{d}, s{p}\ns_mov_b32 s{d+1}, s{p+1}")
    E(f"s_mov_b32 s{d+2}, {size}\ns_mov_b32 s{d+3}, 0x20000")
SLEEP=8
def poll_slow(E,vaddr,vtmp):
    l0=lab("poll"); l1=lab("polld")
    E("s_mov_b32 s37, 0"); E.label(l0)
    E(f"buffer_load_dword v{vtmp}, v{vaddr}, s[16:19], 0 offen sc1\ns_waitcnt vmcnt(0)")
    E(f"v_cmp_ne_u32 vcc, s{S_NONCE}, v{vtmp}\ns_cbranch_vccz {l1}")
    E(f"s_add_u32 s37, s37, 1\ns_cmp_lt_u32 s37, {POLL_MAX}\ns_cbranch_scc0 {l1}\ns_sleep {SLEEP}\ns_branch {l0}")
    E.label(l1)
def check_or_poll(E,vaddr,vval):
    l0=lab("cp"); l1=lab("cpd")
    E(f"v_cmp_ne_u32 vcc, s{S_NONCE}, v{vval}\ns_cbranch_vccz {l1}\ns_mov_b32 s37, 0\n{l0}:\n"
      f"buffer_load_dword v{vval}, v{vaddr}, s[16:19], 0 offen sc1\ns_waitcnt vmcnt(0)\nv_cmp_ne_u32 vcc, s{S_NONCE}, v{vval}\ns_cbranch_vccz {l1}\n"
      f"s_add_u32 s37, s37, 1\ns_cmp_lt_u32 s37, {POLL_MAX}\ns_cbranch_scc0 {l1}\ns_sleep {SLEEP}\ns_branch {l0}\n{l1}:")
def poll_leader(E,vaddr,vtmp,vt2,goaddr):
    lw=lab("pw"); ld=lab("pd"); l0=lab("pl")
    E(f"v_mov_b32 v{vt2}, {goaddr}\ns_cmp_eq_u32 s35, 0\ns_cbranch_scc0 {lw}")
    poll_slow(E,vaddr,vtmp)
    E(f"v_mov_b32 v{vtmp}, s{S_NONCE}\nds_write_b32 v{vt2}, v{vtmp}\ns_waitcnt lgkmcnt(0)\ns_branch {ld}")
    E.label(lw)
    E(f"s_mov_b32 s37, 0\n{l0}:\nds_read_b32 v{vtmp}, v{vt2}\ns_waitcnt lgkmcnt(0)\nv_cmp_ne_u32 vcc, s{S_NONCE}, v{vtmp}\ns_cbranch_vccz {ld}\n"
      f"s_add_u32 s37, s37, 1\ns_cmp_lt_u32 s37, {POLL_MAX*8}\ns_cbranch_scc0 {ld}\ns_sleep 2\ns_branch {l0}")
    E.label(ld)
def flag_store(E,soff,vt0,vt1):
    E(f"v_mov_b32 v{vt0}, s{S_NONCE}\nv_mov_b32 v{vt1}, 0")
    return E.st(f"s_mov_b64 exec, 1\nbuffer_store_dword v{vt0}, v{vt1}, s[16:19], s{soff} offen sc1\ns_mov_b64 exec, -1")
def agg_flag(E,cnt_idx,nwaves,soff,vt0,vt1):
    l=lab("ag")
    E(f"v_mov_b32 v{vt0}, {CNT+4*cnt_idx}\nv_mov_b32 v{vt1}, 1\ns_mov_b64 exec, 1\nds_add_rtn_u32 v{vt1}, v{vt0}, v{vt1}\ns_waitcnt lgkmcnt(0)\ns_mov_b64 exec, -1\n"
      f"v_readfirstlane_b32 s37, v{vt1}\ns_nop 3\ns_cmp_eq_u32 s37, {nwaves-1}\ns_cbranch_scc0 {l}\nv_mov_b32 v{vt0}, s{S_NONCE}\nv_mov_b32 v{vt1}, 0\ns_mov_b64 exec, 1\n"
      f"buffer_store_dword v{vt0}, v{vt1}, s[16:19], s{soff} offen sc1\ns_mov_b64 exec, -1\n{l}:")
def allreduce(E,v,t1,t2):
    for dpp in ("quad_perm:[1,0,3,2]","quad_perm:[2,3,0,1]","row_half_mirror","row_mirror"):
        E(f"s_nop 1\nv_add_f32_dpp v{v}, v{v}, v{v} {dpp} row_mask:0xf bank_mask:0xf")
    for sw in ("16","32"):
        E(f"v_mov_b32 v{t1}, v{v}\nv_mov_b32 v{t2}, v{v}")
        E(f"s_nop 1\nv_permlane{sw}_swap_b32 v{t1}, v{t2}\ns_nop 1\nv_add_f32 v{v}, v{t1}, v{t2}")
def gelu_ops(x,t,c0):
    return [f"v_mul_f32 v{t}, v{x}, v{x}",f"v_fma_f32 v{t}, v{t}, s51, v{c0}",f"v_mul_f32 v{t}, v{t}, v{x}",
            f"v_exp_f32 v{t}, v{t}",f"v_add_f32 v{t}, 1.0, v{t}",f"v_rcp_f32 v{t}, v{t}",f"v_mul_f32 v{x}, v{x}, v{t}"]

def prologue():
    E=Em()
    E("s_cmp_ge_u32 s2, 256\ns_cbranch_scc1 L_end")
    stamp(E,0)
    E("s_load_dwordx2 s[4:5], s[0:1], 0\ns_load_dwordx2 s[8:9], s[0:1], 8\ns_load_dwordx2 s[12:13], s[0:1], 32\ns_load_dwordx2 s[16:17], s[0:1], 80")
    E("s_load_dwordx16 s[60:75], s[0:1], 0\ns_load_dwordx4 s[76:79], s[0:1], 64\ns_load_dwordx2 s[80:81], s[0:1], 80")
    E("v_lshrrev_b32 v1, 6, v0\nv_and_b32 v2, 63, v0\nv_readfirstlane_b32 s32, v1")
    E("s_mov_b32 s6, 2621440\ns_mov_b32 s7, 0x20000\ns_mov_b32 s10, %d\ns_mov_b32 s11, 0x20000"%(640*3840))
    E("s_mov_b32 s14, %d\ns_mov_b32 s15, 0x20000\ns_mov_b32 s18, %d\ns_mov_b32 s19, 0x20000"%(640*3072,SMALL_SZ))
    E("s_and_b32 s37, s2, 7\ns_lshr_b32 s38, s2, 3")
    E("s_lshr_b32 s33, s37, 2\ns_lshl_b32 s33, s33, 3\ns_and_b32 s39, s38, 7\ns_add_u32 s33, s33, s39")
    E("s_and_b32 s34, s37, 3\ns_lshl_b32 s34, s34, 2\ns_lshr_b32 s39, s38, 3\ns_add_u32 s34, s34, s39")
    E("s_min_u32 s41, s34, 14\ns_lshl_b32 s41, s41, 8\ns_mul_i32 s42, s34, 192")
    E("s_and_b32 s35, s32, 3\ns_cmp_ge_u32 s32, 4\ns_cbranch_scc1 L_F")
    return E

def gen_F():
    E=Em(); E.label("L_F")
    E("s_and_b32 s37, s33, 7\ns_and_b32 s38, s34, 3\ns_lshl_b32 s38, s38, 1\ns_add_u32 s37, s37, s38\ns_cmp_ge_u32 s37, 10\ns_cselect_b32 s38, 10, 0\ns_sub_u32 s37, s37, s38")
    if "rot" not in EXP: E("s_mov_b32 s37, 0")
    E("s_lshl_b32 s45, s37, 6\ns_mov_b32 s46, s45\ns_mul_i32 s40, s33, 163840\ns_lshl_b32 s43, s35, 12\ns_mul_i32 s44, s35, 3072")
    E("v_lshrrev_b32 v3, 3, v2\ns_lshl_b32 s39, s35, 5\nv_add_u32 v3, s39, v3\nv_mul_u32_u24 v3, 1280, v3")
    E("v_and_b32 v4, 7, v2\nv_lshrrev_b32 v5, 4, v2\nv_xor_b32 v6, v4, v5\nv_lshl_add_u32 v10, v6, 4, v3")
    E(f"v_or_b32 v7, 4, v5\nv_xor_b32 v7, v4, v7\nv_lshl_add_u32 v11, v7, 4, v3\nv_add_u32 v11, {8*1280}, v11")
    E(f"v_add_u32 v12, {16*1280}, v10\nv_add_u32 v13, {16*1280}, v11")
    E("s_lshl_b32 s39, s35, 4\nv_add_u32 v3, s39, v5\nv_mul_u32_u24 v3, 3840, v3")
    E("v_and_b32 v4, 15, v2\nv_lshlrev_b32 v6, 2, v5\nv_xor_b32 v4, v4, v6\nv_lshl_add_u32 v14, v4, 4, v3")
    for q in range(1,4): E(f"v_add_u32 v{14+q}, {q*4*3840}, v14")
    E("s_waitcnt lgkmcnt(0)")
    def kstep(reg): E(f"s_add_u32 s{reg}, s{reg}, 64\ns_cmp_eq_u32 s{reg}, 640\ns_cselect_b32 s{reg}, 0, s{reg}")
    def dma_slab(tau, sink):
        slot=tau%4; last=None; G=[]
        pre="s_lshl_b32 s56, s45, 1\ns_add_u32 s56, s56, s40\ns_mul_i32 s57, s45, 3840\ns_add_u32 s57, s57, s41\ns_add_u32 s45, s45, 64\ns_cmp_eq_u32 s45, 640\ns_cselect_b32 s45, 0, s45\n"
        for q in range(4):
            last=sink.vm((pre if q==0 else "")+f"s_add_u32 m0, s43, {slot*SLOT+q*1024}\ns_nop 0\nbuffer_load_dwordx4 v{10+q}, s[4:7], s56 offen lds")
        for q in range(4):
            last=sink.vm(f"s_add_u32 m0, s43, {slot*SLOT+16384+q*1024}\ns_nop 0\nbuffer_load_dwordx4 v{14+q}, s[8:11], s57 offen lds")
        return last
    def dma_wf(sg, sink):
        reg=wf_region(sg); last=None
        pre="s_mul_i32 s58, s46, 3072\ns_add_u32 s58, s58, s42\ns_add_u32 s46, s46, 64\ns_cmp_eq_u32 s46, 640\ns_cselect_b32 s46, 0, s46\n"
        for t in range(3):
            last=sink.vm((pre if t==0 else "")+f"s_add_u32 m0, s44, {reg+t*1024}\ns_nop 0\nbuffer_load_dwordx4 v{26+t}, s[12:15], s58 offen lds")
        return last
    D={}
    for tau in range(3): D[tau]=dma_slab(tau,E)
    E(f"v_mov_b32 v3, {CNT}\nv_mov_b32 v4, 0\nv_mov_b32 v5, 0"); ci=E.lds("ds_write_b64 v3, v[4:5]"); ci=E.lds("ds_write_b64 v3, v[4:5] offset:8")
    stamp(E,1)
    PRE=Em()
    PRE("s_lshl_b32 s37, s33, 7\ns_lshl_b32 s38, s34, 3\ns_add_u32 s37, s37, s38\ns_lshl_b32 s38, s35, 1\ns_add_u32 s37, s37, s38\ns_lshl_b32 s31, s37, 4\ns_mul_i32 s36, s37, 1280")
    PRE("v_and_b32 v3, 31, v2\nv_lshlrev_b32 v3, 2, v3\nv_lshrrev_b32 v4, 5, v2\nv_mul_u32_u24 v4, 1280, v4\nv_add_u32 v3, v3, v4")
    srd(PRE,48,P_DBG,256)
    l=lab("non")
    PRE(f"s_or_b32 s37, s2, s35\ns_cmp_eq_u32 s37, 0\ns_cbranch_scc0 {l}\ns_memrealtime s[54:55]\ns_waitcnt lgkmcnt(0)\ns_or_b32 s54, s54, 1\nv_mov_b32 v6, s54\nv_mov_b32 v7, 0\ns_mov_b64 exec, 1\n"
      f"buffer_store_dword v6, v7, s[48:51], 0 offen sc1\ns_mov_b64 exec, -1\n{l}:")
    l=lab("nl")
    PRE(f"v_mov_b32 v63, 0\nv_mov_b32 v62, 0\ns_cmp_eq_u32 s35, 0\ns_cbranch_scc0 {l}\nbuffer_load_dword v62, v63, s[48:51], 0 offen sc1\n{l}:")
    PRE("s_mul_i32 s37, s33, 40\ns_mul_i32 s38, s35, 10\ns_add_u32 s37, s37, s38\ns_mul_i32 s47, s37, 3840\ns_add_u32 s47, s47, s41\ns_mul_i32 s59, s37, 3072\ns_add_u32 s59, s59, s42")
    PRE("v_lshlrev_b32 v5, 2, v2")
    for i in range(10):
        PRE.vm(f"buffer_load_dword v{42+i}, v5, s[8:11], s47 offen"); PRE("s_add_u32 s47, s47, 3840")
    for i in range(10):
        PRE.vm(f"buffer_load_dword v{52+i}, v5, s[12:15], s59 offen"); PRE("s_add_u32 s59, s59, 3072")
    for i in range(10): plast=PRE.vm(f"buffer_load_dword v{32+i}, v3, s[4:7], s36 offen offset:{128*i}")
    F=Em()
    F.wv(plast)
    l0=lab("n0"); l1=lab("n1"); l2=lab("n2")
    F(f"s_cmp_eq_u32 s35, 0\ns_cbranch_scc0 {l2}\ns_mov_b32 s37, 0\n{l0}:\nv_readfirstlane_b32 s{S_NONCE}, v62\ns_nop 3\ns_cmp_lg_u32 s{S_NONCE}, 0\ns_cbranch_scc1 {l1}\n"
      f"s_add_u32 s37, s37, 1\ns_cmp_lt_u32 s37, {POLL_MAX}\ns_cbranch_scc0 {l1}\ns_sleep 1\nbuffer_load_dword v62, v63, s[48:51], 0 offen sc1\ns_waitcnt vmcnt(0)\ns_branch {l0}\n{l1}:\n{l2}:")
    F(f"v_mov_b32 v63, {NON}\nv_mov_b32 v3, {NON+8}\ns_cmp_eq_u32 s35, 0\ns_cselect_b64 vcc, -1, 0\ns_nop 1\nv_cndmask_b32 v63, v3, v63, vcc")
    non_w=F.lds("ds_write_b32 v63, v62")
    for p in range(2):
        src=42+10*p; d=68+2*p
        F(f"v_lshlrev_b32 v{d}, 16, v{src}"); F(f"v_and_b32 v{d+1}, 0xffff0000, v{src}")
        for i in range(1,10):
            F(f"v_lshlrev_b32 v72, 16, v{src+i}"); F(f"v_and_b32 v73, 0xffff0000, v{src+i}")
            F(f"v_add_f32 v{d}, v{d}, v72"); F(f"v_add_f32 v{d+1}, v{d+1}, v73")
    F(f"s_lshl_b32 s37, s35, 10\ns_add_u32 s37, s37, {XCH}"); F("v_lshlrev_b32 v74, 3, v2"); F("v_add_u32 v74, s37, v74")
    F.lds("ds_write_b64 v74, v[68:69]"); xw=F.lds("ds_write_b64 v74, v[70:71] offset:512")
    F.wl(xw)
    nF1=len(F.it)
    B=200
    for i in range(10):
        F(f"v_lshlrev_b32 v{B+2*i}, 16, v{32+i}"); F(f"v_and_b32 v{B+2*i+1}, 0xffff0000, v{32+i}")
    F(f"v_add_f32 v76, v{B}, v{B+1}"); F(f"v_add_f32 v77, v{B+2}, v{B+3}")
    for i in range(4,20,2):
        F(f"v_add_f32 v76, v76, v{B+i}"); F(f"v_add_f32 v77, v77, v{B+i+1}")
    F("v_add_f32 v76, v76, v77")
    def red32(v):
        for dpp in ("quad_perm:[1,0,3,2]","quad_perm:[2,3,0,1]","row_half_mirror","row_mirror"):
            F(f"s_nop 1\nv_add_f32_dpp v{v}, v{v}, v{v} {dpp} row_mask:0xf bank_mask:0xf")
        F(f"v_mov_b32 v88, v{v}\nv_mov_b32 v89, v{v}")
        F(f"s_nop 1\nv_permlane16_swap_b32 v88, v89\ns_nop 1\nv_add_f32 v{v}, v88, v89")
    red32(76)
    F(f"v_mul_f32 v76, {fhex(1.0/640)}, v76")
    for i in range(20): F(f"v_sub_f32 v{B+i}, v{B+i}, v76")
    F(f"v_mul_f32 v77, v{B}, v{B}"); F(f"v_mul_f32 v78, v{B+1}, v{B+1}")
    for i in range(2,20,2):
        F(f"v_fmac_f32 v77, v{B+i}, v{B+i}"); F(f"v_fmac_f32 v78, v{B+i+1}, v{B+i+1}")
    F("v_add_f32 v77, v77, v78")
    red32(77)
    F(f"v_mul_f32 v77, {fhex(1.0/640)}, v77"); F(f"v_add_f32 v78, {fhex(1e-5)}, v77")
    F("v_rsq_f32 v81, v78\ns_nop 0"); F("v_mul_f32 v79, v81, v81"); F("v_mul_f32 v79, v79, v77"); F(f"v_add_f32 v79, {fhex(1e-5)}, v79")
    F("v_rsq_f32 v79, v79\nv_mov_b32 v80, v76"); F("s_nop 0\nv_mul_f32 v82, v81, v79")
    F("v_lshrrev_b32 v84, 5, v2"); F("v_lshlrev_b32 v84, 4, v84")
    F(f"s_lshl_b32 s37, s35, 5\ns_add_u32 s37, s37, {STX}"); F("v_add_u32 v84, s37, v84"); F("v_mov_b32 v83, 0")
    stw=F.lds("ds_write_b128 v84, v[80:83]"); F.wl(stw)
    F2=Em()
    F2(f"v_mov_b32 v3, {NON}"); nr=F2.lds("ds_read_b32 v83, v3")
    F2(f"s_and_b32 s37, s35, 1\ns_lshl_b32 s37, s37, 9\ns_add_u32 s37, s37, {XCH}"); F2("v_lshlrev_b32 v3, 3, v2"); F2("v_add_u32 v3, s37, v3")
    for w in range(4): xr_=F2.lds(f"ds_read_b64 v[{64+2*w}:{65+2*w}], v3 offset:{1024*w}")
    F2.wl(xr_)
    F2(f"v_readfirstlane_b32 s{S_NONCE}, v83")
    F2("v_and_b32 v84, 7, v2"); F2("v_lshlrev_b32 v84, 4, v84"); F2(f"v_add_u32 v85, {STX}, v84")
    sr=F2.lds("ds_read_b128 v[76:79], v85"); F2.wl(sr); F2("v_mov_b32 v79, v83")
    F2(f"s_lshl_b32 s37, s33, 7\ns_lshl_b32 s38, s34, 3\ns_add_u32 s37, s37, s38\ns_lshl_b32 s37, s37, 4\ns_cmp_eq_u32 s35, 0\ns_cselect_b32 s37, s37, {SMALL_SZ}")
    F2.st("s_mov_b64 exec, 0xff\nbuffer_store_dwordx4 v[76:79], v84, s[16:19], s37 offen sc1\ns_mov_b64 exec, -1")
    F2("v_add_f32 v64, v64, v66"); F2("v_add_f32 v65, v65, v67"); F2("v_add_f32 v68, v68, v70"); F2("v_add_f32 v69, v69, v71")
    F2("v_add_f32 v72, v64, v68"); F2("v_add_f32 v74, v65, v69"); F2("v_mov_b32 v73, v83"); F2("v_mov_b32 v75, v83")
    F2(f"s_lshl_b32 s37, s34, 4\ns_add_u32 s37, s37, s33\ns_lshl_b32 s37, s37, 11\ns_and_b32 s38, s35, 1\ns_lshl_b32 s38, s38, 10\ns_add_u32 s37, s37, s38\ns_add_u32 s37, s37, {WS_CSP}\ns_cmp_ge_u32 s35, 2\ns_cselect_b32 s37, {SMALL_SZ}, s37")
    F2("v_lshlrev_b32 v3, 4, v2")
    F2.st("buffer_store_dwordx4 v[72:75], v3, s[16:19], s37 offen sc1")
    E("s_lshl_b32 s39, s35, 4")
    for t in range(3):
        E(f"v_add_u32 v3, {64*t}, v2\nv_mul_u32_u24 v4, 171, v3\nv_lshrrev_b32 v4, 11, v4\nv_mul_u32_u24 v5, 12, v4\nv_sub_u32 v5, v3, v5")
        E(f"v_add_u32 v4, s39, v4\nv_mul_u32_u24 v4, 3072, v4\nv_lshl_add_u32 v{26+t}, v5, 4, v4")
    E("v_and_b32 v3, 31, v2\ns_lshl_b32 s37, s35, 5\nv_add_u32 v3, s37, v3\nv_lshrrev_b32 v4, 5, v2\nv_bfe_u32 v5, v3, 1, 3\nv_xor_b32 v5, v5, v4\nv_lshlrev_b32 v3, 7, v3")
    for t in range(4): E(f"v_xor_b32 v6, {2*t}, v5\nv_lshl_add_u32 v{18+t}, v6, 4, v3\nv_add_u32 v{22+t}, 65536, v{18+t}")
    E("v_bfe_u32 v3, v2, 4, 1\nv_lshrrev_b32 v4, 5, v2\nv_bfe_u32 v5, v2, 2, 2\nv_and_b32 v6, 3, v2\nv_lshl_add_u32 v7, v4, 3, v5")
    E(f"v_mul_u32_u24 v29, 192, v7\nv_lshl_add_u32 v29, v3, 5, v29\nv_lshl_add_u32 v29, v6, 3, v29\nv_add_u32 v30, {P0}, v29\nv_add_u32 v29, {U0}, v29")
    XS=96
    W={}
    xr={}
    def xreads(tau):
        slot=tau%4
        for t in range(4):
            a=(18 if slot<2 else 22)+t; u=4*tau+t
            xr[u]=E.lds(f"ds_read_b128 v[{XS+4*u}:{XS+4*u+3}], v{a} offset:{(slot&1)*SLOT}")
    E.wv(D[0]); E.wl(ci); E("s_barrier"); stamp(E,2); stamp2(E,1)
    allF=list(F.it); nF=len(allF)
    def part(a,b):
        x=Em(); x.it=allF[a:b]; return x
    c1=nF1; c2=nF1+(nF-nF1)//2
    fill={1:part(0,c1),2:part(c1,nF),3:F2}
    for tau in range(10):
        M=Em()
        slot=tau%4
        if tau==0: M.extend(PRE)
        for t in range(4):
            a=(18 if slot<2 else 22)+t; u=4*tau+t
            xr[u]=M.lds(f"ds_read_b128 v[{XS+4*u}:{XS+4*u+3}], v{a} offset:{(slot&1)*SLOT}")
        M.slot(12)
        if (tau>=2 and tau+2<=9) or tau==0:
            tn=3 if tau==0 else tau+2
            slot2=tn%4
            pre="s_lshl_b32 s56, s45, 1\ns_add_u32 s56, s56, s40\ns_mul_i32 s57, s45, 3840\ns_add_u32 s57, s57, s41\ns_add_u32 s45, s45, 64\ns_cmp_eq_u32 s45, 640\ns_cselect_b32 s45, 0, s45\n"
            for q in range(4):
                M.vm((pre if q==0 else "")+f"s_add_u32 m0, s43, {slot2*SLOT+q*1024}\ns_nop 0\nbuffer_load_dwordx4 v{10+q}, s[4:7], s56 offen lds"); M.slot(12)
            for q in range(4):
                D[tn]=M.vm(f"s_add_u32 m0, s43, {slot2*SLOT+16384+q*1024}\ns_nop 0\nbuffer_load_dwordx4 v{14+q}, s[8:11], s57 offen lds"); M.slot(12)
        else:
            M.slot(200)
        if tau==6: W[0]=dma_wf(0,M)
        if tau==7:
            W[1]=dma_wf(1,M)
        if tau==9:
            for sg in range(2,7): W[sg]=dma_wf(sg,M)
        if tau in fill: M.merge(fill[tau])
        E.extend(M)
        if tau<9:
            E.wv(D[tau+1])
            if tau+1==9: E.wv(W[0])
            E.wl(xr[4*tau+3])
            if tau in fill: E("s_waitcnt lgkmcnt(0)")
            E("s_barrier")
            if tau<7: stamp2(E,tau+2)
    stamp(E,3)
    E("v_and_b32 v3, 31, v2\ns_lshl_b32 s37, s33, 7\ns_lshl_b32 s38, s35, 5\ns_add_u32 s37, s37, s38\nv_add_u32 v3, s37, v3\nv_lshlrev_b32 v3, 4, v3")
    ACC=48
    SETS=[(10,14,18),(32,36,40),(22,4,44)]
    E("v_mov_b32 v31, v3")
    for r in range(48): E(f"v_mov_b32 v{ACC+r}, 0")
    rd={}
    def wf_reads(u):
        sg,t=divmod(u,4); reg=wf_region(sg)
        base,ro=(30,reg-P0) if reg>=P0 else ((29,reg-U0) if reg>=U0 else (9,reg))
        L=[]
        for T in range(3):
            fr=SETS[u%3][T]
            for jj in range(2):
                L.append(f"ds_read_b64_tr_b16 v[{fr+2*jj}:{fr+2*jj+1}], v{base} offset:{ro+(16*t+4*jj)*192+64*T}")
        return L
    E(f"v_subrev_u32 v9, {U0}, v29")
    E.wl(xr[39])
    for u in (0,1):
        for r in wf_reads(u): rd[u]=E.lds(r)
    for u in range(40):
        sg,t=divmod(u,4)
        if u==2:
            E.wv(W[1]); E("s_barrier")
            for sg2 in (7,8,9): W[sg2]=dma_wf(sg2,E)
        if u==6:
            E.wv(W[9]); E("s_barrier")
        E.wl(rd[u])
        rl=wf_reads(u+2) if u+2<40 else []
        for T in range(3):
            fr=SETS[u%3][T]; a=ACC+16*T
            E(f"v_mfma_f32_32x32x16_bf16 v[{a}:{a+15}], v[{fr}:{fr+3}], v[{XS+4*u}:{XS+4*u+3}], v[{a}:{a+15}]")
            for r in rl[2*T:2*T+2]: rd[u+2]=E.lds(r)
        if u==30:
            st=E.vm("buffer_load_dwordx4 v[96:99], v31, s[16:19], 0 offen sc1")
            srd(E,48,P_B1,3072)
            E("v_lshrrev_b32 v3, 5, v2\nv_lshlrev_b32 v3, 3, v3\ns_mul_i32 s37, s34, 192")
            for T in range(3):
                for a in range(4):
                    b1l=E.vm(f"buffer_load_dwordx2 v[{100+8*T+2*a}:{101+8*T+2*a}], v3, s[48:51], s37 offen offset:{64*T+16*a}")
    stamp4(E,1)
    E("s_barrier")
    stamp4(E,2)
    stamp(E,4)
    B1=100; CS=128
    srd(E,24,P_WS,HO_SZ,off=WS_HO)
    E(f"s_mov_b32 s51, {fhex(GC1)}\nv_mov_b32 v32, {fhex(GC0)}")
    E(f"v_lshrrev_b32 v4, 5, v2\nv_lshlrev_b32 v26, 4, v4\nv_add_u32 v26, {CSF+512}, v26")
    E("v_bfe_u32 v3, v2, 4, 1\nv_lshlrev_b32 v33, 10, v3\nv_lshl_add_u32 v33, v4, 8, v33\nv_and_b32 v3, 15, v2\nv_lshl_add_u32 v33, v3, 4, v33")
    E("s_lshl_b32 s45, s33, 1\ns_lshr_b32 s46, s35, 1\ns_add_u32 s45, s45, s46\ns_mul_i32 s45, s45, 68\ns_mul_i32 s46, s34, 3\ns_add_u32 s45, s45, s46\ns_lshl_b32 s45, s45, 12")
    E("s_and_b32 s46, s35, 1\ns_lshl_b32 s46, s46, 11\ns_add_u32 s45, s45, s46")
    cr=None
    for T in range(3):
        for a in range(4): cr=E.lds(f"ds_read_b128 v[{CS+16*T+4*a}:{CS+16*T+4*a+3}], v26 offset:{128*T+32*a}")
    E.wv(b1l); E.wl(cr)
    l0=lab("sp"); l1=lab("spd")
    if 'nostat' not in EXP: E(f"v_cmp_ne_u32 vcc, s{S_NONCE}, v99\ns_cbranch_vccz {l1}\ns_mov_b32 s37, 0\n{l0}:\nbuffer_load_dwordx4 v[96:99], v31, s[16:19], 0 offen sc1\ns_waitcnt vmcnt(0)\n"
      f"v_cmp_ne_u32 vcc, s{S_NONCE}, v99\ns_cbranch_vccz {l1}\ns_add_u32 s37, s37, 1\ns_cmp_lt_u32 s37, {POLL_MAX}\ns_cbranch_scc0 {l1}\ns_sleep 1\ns_branch {l0}\n{l1}:")
    stamp4(E,3)
    E("v_sub_f32 v96, 0, v96\ns_nop 7")
    for T in range(3):
        for a in range(4):
            b=ACC+16*T+4*a; c=CS+16*T+4*a; bb=B1+8*T+2*a
            E(f"v_lshlrev_b32 v34, 16, v{bb}\nv_and_b32 v35, 0xffff0000, v{bb}\nv_lshlrev_b32 v36, 16, v{bb+1}\nv_and_b32 v37, 0xffff0000, v{bb+1}")
            for i in range(4): E(f"v_fma_f32 v{b+i}, v96, v{c+i}, v{b+i}")
            for i in range(4): E(f"v_fma_f32 v{b+i}, v{b+i}, v98, v{34+i}")
            ops=[gelu_ops(b+i,40+i,32) for i in range(4)]
            for s_ in range(7):
                for i in range(4): E(ops[i][s_])
            o=(10 if a%2==0 else 14)+(2 if a>=2 else 0)+8*(T%2)
            E(f"v_cvt_pk_bf16_f32 v{o}, v{b}, v{b+1}\nv_cvt_pk_bf16_f32 v{o+1}, v{b+2}, v{b+3}")
        o=10+8*(T%2)
        E(f"s_add_u32 s46, s45, {T*4096}")
        fl='' if 'plainh' in EXP else 'sc1'
        E.st(f"buffer_store_dwordx4 v[{o}:{o+3}], v33, s[24:27], s46 offen {fl}")
        hs=E.st(f"buffer_store_dwordx4 v[{o+4}:{o+7}], v33, s[24:27], s46 offen offset:512 {fl}")
    stamp4(E,4)
    E(f"s_lshl_b32 s59, s33, 4\ns_add_u32 s59, s59, s34\ns_lshl_b32 s59, s59, 7\ns_add_u32 s59, s59, {WS_FH}")
    E("s_and_b32 s37, s2, 7\ns_lshr_b32 s38, s2, 3")
    E("s_lshr_b32 s33, s37, 2\ns_lshl_b32 s33, s33, 4\ns_bfe_u32 s39, s37, 0x10001\ns_lshl_b32 s39, s39, 3\ns_add_u32 s33, s33, s39\ns_and_b32 s39, s38, 7\ns_add_u32 s33, s33, s39")
    E("s_and_b32 s34, s37, 1\ns_lshl_b32 s34, s34, 2\ns_lshr_b32 s39, s38, 3\ns_add_u32 s34, s34, s39")
    srd(E,8,P_WS,W2T_SZ,off=WS_W2T); srd(E,12,P_B2,1280); srd(E,20,P_OUT,2621440)
    E("v_lshrrev_b32 v3, 1, v2\nv_min_u32 v3, 16, v3\ns_mul_i32 s37, s35, 12\ns_mul_i32 s38, s35, 5\ns_add_u32 s38, s38, 36")
    E("v_add_u32 v4, s37, v3\nv_add_u32 v5, s38, v3\nv_cmp_gt_u32 vcc, 12, v3\ns_nop 1\nv_cndmask_b32 v4, v5, v4, vcc")
    E("s_mul_i32 s37, s34, 5\ns_lshr_b32 s38, s37, 2\ns_add_u32 s37, s37, 4\ns_lshr_b32 s39, s37, 2")
    E("v_and_b32 v5, 1, v2\nv_mov_b32 v6, s38\nv_mov_b32 v7, s39\nv_cmp_eq_u32 vcc, 0, v5\ns_nop 1\nv_cndmask_b32 v6, v7, v6, vcc")
    E(f"v_mul_u32_u24 v4, 10, v4\nv_add_u32 v4, v4, v6\nv_mul_u32_u24 v4, 683, v4\nv_lshrrev_b32 v4, 11, v4\nv_lshlrev_b32 v4, 7, v4\nv_add_u32 v4, {WS_FW}, v4")
    fw=E.vm("buffer_load_dword v8, v4, s[16:19], 0 offen sc1")
    stamp4(E,5)
    E.wv(hs); stamp4(E,6); agg_flag(E,2,4,59,5,6)
    stamp(E,5)
    E.wv(fw); stamp4(E,7); (None if 'noC' in EXP else check_or_poll(E,4,8)); stamp4(E,8)
    E("v_lshlrev_b32 v3, 4, v2\nv_add_u32 v4, 4096, v3")
    E("v_and_b32 v5, 15, v2\ns_lshl_b32 s39, s33, 6\ns_lshl_b32 s40, s35, 4\ns_add_u32 s39, s39, s40\nv_add_u32 v5, s39, v5\nv_mul_u32_u24 v5, 1280, v5\nv_lshrrev_b32 v6, 4, v2\nv_lshlrev_b32 v6, 3, v6")
    E("s_mul_i32 s39, s34, 160\nv_add_u32 v6, s39, v6\nv_add_u32 v5, v5, v6")
    E("s_mul_i32 s40, s33, %d\ns_mul_i32 s41, s34, %d"%(68*4096,68*5120))
    E("s_mul_i32 s42, s35, 12\ns_mul_i32 s43, s35, 5\ns_add_u32 s43, s43, 48")
    E("s_lshl_b32 s44, s42, 12\ns_add_u32 s44, s44, s40\ns_mul_i32 s45, s42, 5120\ns_add_u32 s45, s45, s41")
    E("s_lshl_b32 s46, s43, 12\ns_add_u32 s46, s46, s40\ns_mul_i32 s47, s43, 5120\ns_add_u32 s47, s47, s41")
    ACC3=10; WB=[100+20*i for i in range(5)]; HB=[200,216,232]
    XR=90; B2R=248
    LW={}; LH={}
    def loadsW(i):
        b=WB[i%5]; ws_,ii=(45,i) if i<12 else (47,i-12)
        E(f"s_add_u32 s57, s{ws_}, {ii*5120}")
        for nt in range(4): E.vm(f"buffer_load_dwordx4 v[{b+4*nt}:{b+4*nt+3}], v3, s[8:11], s57 offen offset:{1024*nt} sc1")
        LW[i]=E.vm(f"buffer_load_dwordx4 v[{b+16}:{b+19}], v4, s[8:11], s57 offen sc1")
    def loadsH(i):
        b=HB[i%3]; hs_,ii=(44,i) if i<12 else (46,i-12)
        E(f"s_add_u32 s56, s{hs_}, {ii*4096}")
        for tt in range(4): LH[i]=E.vm(f"buffer_load_dwordx4 v[{b+4*tt}:{b+4*tt+3}], v3, s[24:27], s56 offen offset:{1024*tt} sc1")
    for nt in range(5): E.vm(f"buffer_load_dwordx2 v[{XR+2*nt}:{XR+2*nt+1}], v5, s[4:7], 0 offen offset:{32*nt}")
    for i in range(5): loadsW(i)
    for r in range(80): E(f"v_mov_b32 v{ACC3+r}, 0")
    E("s_barrier")
    def group_addr(base,vd):
        E(f"v_and_b32 v{vd}, 3, v2\ns_lshl_b32 s37, s35, 2\nv_add_u32 v{vd}, s37, v{vd}\ns_lshr_b32 s37, s33, 1\ns_lshl_b32 s37, s37, 4\nv_add_u32 v{vd}, s37, v{vd}\nv_lshlrev_b32 v{vd}, 7, v{vd}\nv_add_u32 v{vd}, {base}, v{vd}")
    group_addr(WS_FH,7)
    poll_slow(E,7,8)
    stamp(E,6)
    group_addr(WS_FO,7)
    for i in range(3): loadsH(i)
    for i in range(17):
        if i==8: fo=E.vm("buffer_load_dword v9, v7, s[16:19], 0 offen sc1")
        if i==9:
            E.wv(fo); check_or_poll(E,7,9)
        E.wv(LH[i]); E.wv(LW[i])
        b=WB[i%5]; h=HB[i%3]
        for nt in range(5):
            for tt in range(4):
                a=ACC3+16*nt+4*tt
                E(f"v_mfma_f32_16x16x32_bf16 v[{a}:{a+3}], v[{b+4*nt}:{b+4*nt+3}], v[{h+4*tt}:{h+4*tt+3}], v[{a}:{a+3}]")
        if i+3<17: loadsH(i+3)
        if i+5<17: loadsW(i+5)
        if i==12:
            for nt in range(4): E.vm(f"buffer_load_dwordx2 v[{B2R+2*nt}:{B2R+2*nt+1}], v6, s[12:15], 0 offen offset:{32*nt}")
            b2l=E.vm(f"buffer_load_dwordx2 v[8:9], v6, s[12:15], 0 offen offset:128")
    stamp(E,7)
    E("s_nop 15")
    E(f"s_mul_i32 s39, s35, 20480\ns_add_u32 s39, s39, {RED}\nv_add_u32 v7, s39, v3")
    for nt in range(5):
        for tt in range(4):
            a=ACC3+16*nt+4*tt
            w_=E.lds(f"ds_write_b128 v7, v[{a}:{a+3}] offset:{(nt*4+tt)*1024}")
    E.wl(w_); E("s_barrier")
    E(f"s_lshl_b32 s39, s35, 10\ns_add_u32 s39, s39, {RED}\nv_add_u32 v7, s39, v3\nv_add_u32 v2, 40960, v7")
    R=100
    for nt in range(5):
        for w in range(4):
            base=7 if w<2 else 2
            r_=E.lds(f"ds_read_b128 v[{R+16*nt+4*w}:{R+16*nt+4*w+3}], v{base} offset:{(w%2)*20480+nt*4096}")
    E.wv(b2l); E.wl(r_)
    for nt in range(5):
        b=R+16*nt
        for i in range(4): E(f"v_add_f32 v{b+i}, v{b+i}, v{b+4+i}\nv_add_f32 v{b+8+i}, v{b+8+i}, v{b+12+i}")
        for i in range(4): E(f"v_add_f32 v{b+i}, v{b+i}, v{b+8+i}")
        b2=(B2R+2*nt) if nt<4 else 8
        for (src,t0) in ((XR+2*nt,10),(b2,14)):
            E(f"v_lshlrev_b32 v{t0}, 16, v{src}\nv_and_b32 v{t0+1}, 0xffff0000, v{src}\nv_lshlrev_b32 v{t0+2}, 16, v{src+1}\nv_and_b32 v{t0+3}, 0xffff0000, v{src+1}")
        for i in range(4): E(f"v_add_f32 v{b+i}, v{b+i}, v{14+i}")
        for i in range(4): E(f"v_add_f32 v{b+i}, v{b+i}, v{10+i}")
        E(f"v_cvt_pk_bf16_f32 v{20+2*nt}, v{b}, v{b+1}\nv_cvt_pk_bf16_f32 v{21+2*nt}, v{b+2}, v{b+3}")
        E.st(f"buffer_store_dwordx2 v[{20+2*nt}:{21+2*nt}], v5, s[20:23], 0 offen offset:{32*nt}")
    stamp(E,8)
    stamp_flush(E)
    E.label("L_end"); E("s_endpgm"); E.label("L_codeend")
    return E

def gen_A():
    E=Em()
    if 'nopf' not in EXP:
        E("s_getpc_b64 s[56:57]\nL_pc:\ns_sub_u32 s56, s56, L_pc-%s\ns_subb_u32 s57, s57, 0"%KNAME)
        E("v_lshlrev_b32 v3, 7, v2\ns_lshl_b32 s37, s35, 13\nv_add_u32 v3, s37, v3\nv_add_u32 v8, 0x8000, v3\nv_min_u32 v8, L_codeend-%s-4, v8"%KNAME)
        E("v_mov_b32 v5, s57\nv_add_co_u32 v4, vcc, s56, v3\ns_nop 1\nv_addc_co_u32 v5, vcc, 0, v5, vcc")
        E.vm("global_load_dword v254, v[4:5], off")
        E("v_mov_b32 v5, s57\nv_add_co_u32 v4, vcc, s56, v8\ns_nop 1\nv_addc_co_u32 v5, vcc, 0, v5, vcc")
        E.vm("global_load_dword v255, v[4:5], off")
    E("v_and_b32 v3, 31, v2\ns_lshl_b32 s37, s35, 5\nv_add_u32 v3, s37, v3\nv_lshrrev_b32 v4, 5, v2\nv_bfe_u32 v5, v3, 1, 3\nv_xor_b32 v5, v5, v4\nv_lshlrev_b32 v3, 7, v3")
    for t in range(4): E(f"v_xor_b32 v6, {2*t}, v5\nv_lshl_add_u32 v{10+t}, v6, 4, v3\nv_add_u32 v{14+t}, 65536, v{10+t}")
    E("v_bfe_u32 v3, v2, 4, 1\nv_lshrrev_b32 v4, 5, v2\nv_bfe_u32 v5, v2, 2, 2\nv_and_b32 v6, 3, v2\nv_lshl_add_u32 v7, v4, 3, v5")
    E("v_lshlrev_b32 v8, 8, v7\nv_add_u32 v8, 16384, v8\nv_lshrrev_b32 v9, 1, v6\nv_lshl_add_u32 v9, v3, 1, v9\nv_lshl_add_u32 v8, v9, 4, v8\nv_and_b32 v9, 1, v6\nv_lshl_add_u32 v8, v9, 3, v8")
    for T in range(4): E(f"v_xor_b32 v9, {T}, v5\nv_lshl_add_u32 v{18+T}, v9, 6, v8\nv_add_u32 v{22+T}, 65536, v{18+T}")
    E("s_waitcnt lgkmcnt(0)")
    stamp(E,1)
    ACC=96; FR=(160,180,200)
    for r in range(64): E(f"v_mov_b32 v{ACC+r}, 0")
    F3=Em()
    F3(f"v_mov_b32 v3, {NON}"); nr=F3.lds("ds_read_b32 v62, v3"); F3.wl(nr); F3(f"s_nop 0\nv_readfirstlane_b32 s{S_NONCE}, v62")
    F3("v_and_b32 v3, 31, v2"); F3("s_lshl_b32 s37, s33, 7\ns_lshl_b32 s38, s35, 5\ns_add_u32 s37, s37, s38"); F3("v_add_u32 v3, s37, v3")
    F3("v_lshlrev_b32 v91, 3, v3"); F3("v_lshlrev_b32 v90, 4, v3")
    F3("v_lshlrev_b32 v89, 3, v2"); F3(f"s_lshl_b32 s59, s34, 15\ns_lshl_b32 s38, s35, 9\ns_add_u32 s59, s59, s38\ns_add_u32 s59, s59, {WS_CSP}")
    F4=Em()
    F4.vm("buffer_load_dwordx4 v[92:95], v90, s[16:19], 0 offen sc1")
    ld="\n".join(f"buffer_load_dwordx2 v[{32+2*r}:{33+2*r}], v89, s[16:19], s58 offen sc1\ns_add_u32 s58, s58, 2048" for r in range(16))
    F4("s_mov_b32 s58, s59")
    for r in range(16): cl_=F4.vm(f"buffer_load_dwordx2 v[{32+2*r}:{33+2*r}], v89, s[16:19], s58 offen sc1\ns_add_u32 s58, s58, 2048")
    F5=Em()
    F5.wv(cl_)
    def tagchk():
        t="v_bitop3_b32 v64, v33, v35, v37 bitop3:0x80\nv_or3_b32 v65, v33, v35, v37\n"
        for r in range(39,63,4): t+=f"v_bitop3_b32 v64, v64, v{r}, v{r+2} bitop3:0x80\nv_or3_b32 v65, v65, v{r}, v{r+2}\n"
        t+=f"v_bitop3_b32 v64, v64, v63, v95 bitop3:0x80\nv_or3_b32 v65, v65, v63, v95\nv_xor_b32 v64, s{S_NONCE}, v64\nv_xor_b32 v65, s{S_NONCE}, v65\nv_or_b32 v64, v64, v65\nv_cmp_ne_u32 vcc, 0, v64"
        return t
    l0=lab("tg"); l1=lab("tgd")
    F5(tagchk()+f"\ns_cbranch_vccz {l1}\ns_mov_b32 s37, 0\n{l0}:\nbuffer_load_dwordx4 v[92:95], v90, s[16:19], 0 offen sc1\ns_mov_b32 s58, s59\n{ld}\ns_waitcnt vmcnt(0)\n"
       +tagchk()+f"\ns_cbranch_vccz {l1}\ns_add_u32 s37, s37, 1\ns_cmp_lt_u32 s37, {POLL_MAX}\ns_cbranch_scc0 {l1}\ns_sleep 1\ns_branch {l0}\n{l1}:")
    for st in (8,4,2,1):
        for r in range(st): F5(f"v_add_f32 v{32+2*r}, v{32+2*r}, v{32+2*(r+st)}")
    F5(f"s_lshl_b32 s37, s35, 8\ns_add_u32 s37, s37, {CSF}"); F5("v_lshlrev_b32 v3, 2, v2"); F5("v_add_u32 v3, s37, v3")
    csf=F5.lds("ds_write_b32 v3, v32")

    def reads(u):
        tau,t=divmod(u,4); slot=tau%4; hi=slot>=2; fr=FR[u%3]; so=(slot&1)*SLOT
        L=[f"ds_read_b128 v[{fr}:{fr+3}], v{(14 if hi else 10)+t} offset:{so}"]
        for T in range(4):
            for jj in range(2):
                d=fr+4+4*T+2*jj
                L.append(f"ds_read_b64_tr_b16 v[{d}:{d+1}], v{(22 if hi else 18)+T} offset:{so+(16*t+4*jj)*256}")
        return L
    rd={}
    E("s_barrier"); stamp(E,2)
    for u in (0,1):
        for r in reads(u): rd[u]=E.lds(r)
    segs=[]
    def steps(u0,u1,filler,per):
        M=Em()
        for u in range(u0,u1):
            tau,t=divmod(u,4); fr=FR[u%3]
            M.wl(rd[u])
            rl=reads(u+2) if u+2<40 else []
            cuts=[0,3,5,7,9]
            for T in range(4):
                a=ACC+16*T
                if "nomfma" not in EXP: M(f"v_mfma_f32_32x32x16_bf16 v[{a}:{a+15}], v[{fr+4+4*T}:{fr+7+4*T}], v[{fr}:{fr+3}], v[{a}:{a+15}]")
                for r in rl[cuts[T]:cuts[T+1]]: rd[u+2]=M.lds(r)
                M.slot(per)
        left=M.merge(filler) if filler else 0
        E.extend(M); return left
    def bar(beta): E("s_barrier")
    steps(0,2,None,0); bar(1)
    for b in range(2,7):
        steps(4*b-6,4*b-2,F3 if b==6 else None,3); bar(b)
    steps(22,26,None,0); bar(7)
    steps(26,30,None,0); bar(8)
    steps(30,34,F4,3); bar(9)
    steps(34,40,None,0)
    stamp(E,3)
    E("s_mul_i32 s31, s2, 3\ns_add_u32 s31, s31, s35\ns_cmp_lt_u32 s35, 3\ns_cselect_b32 s31, s31, 1000\ns_min_u32 s31, s31, 680")
    E("s_min_u32 s28, s31, 679\ns_mul_i32 s29, s28, 6554\ns_lshr_b32 s29, s29, 16\ns_mul_i32 s30, s29, 10\ns_sub_u32 s30, s28, s30")
    E("v_lshrrev_b32 v3, 3, v2\nv_and_b32 v4, 7, v2\ns_lshl_b32 s28, s30, 7\nv_lshl_add_u32 v4, v4, 4, s28")
    lw=lab("cwo"); lg=lab("cgo")
    E(f"s_cmp_ge_u32 s29, 48\ns_cbranch_scc1 {lw}")
    srd(E,52,P_W2,1536*1280)
    E("s_lshl_b32 s37, s29, 5\nv_add_u32 v5, s37, v3\nv_mul_u32_u24 v5, 1280, v5\nv_add_u32 v27, v5, v4")
    for i in range(1,4): E(f"v_add_u32 v{27+i}, {8*1280*i}, v27")
    E(f"s_branch {lg}"); E.label(lw)
    srd(E,52,P_WO,640*1280)
    E("s_sub_u32 s37, s29, 48\ns_lshl_b32 s37, s37, 2\nv_lshrrev_b32 v6, 5, v2\nv_and_b32 v7, 3, v3")
    for i in range(4):
        half=i>>1
        E(f"v_add_u32 v8, {2*(i&1)}, v6\nv_add_u32 v8, s37, v8\nv_mul_u32_u24 v9, 205, v8\nv_lshrrev_b32 v9, 10, v9\nv_mul_u32_u24 v64, 5, v9\nv_sub_u32 v64, v8, v64")
        E(f"v_lshrrev_b32 v65, 1, v64\nv_and_b32 v66, 1, v64\nv_add_u32 v66, {2*half}, v66\nv_cmp_eq_u32 vcc, 4, v64\nv_mov_b32 v67, {half}\nv_mov_b32 v8, 4")
        E("v_cndmask_b32 v65, v65, v67, vcc\nv_cndmask_b32 v66, v66, v8, vcc\nv_lshl_add_u32 v65, v9, 1, v65\nv_mul_u32_u24 v65, 20, v65\nv_lshl_add_u32 v65, v66, 2, v65\nv_add_u32 v65, v65, v7")
        E(f"v_mul_u32_u24 v65, 1280, v65\nv_add_u32 v{27+i}, v65, v4")
    E.label(lg)
    if 'noC' in EXP: E("s_mov_b32 s54, 0")
    for i in range(4): cld=E.vm(f"buffer_load_dwordx4 v[{236+4*i}:{239+4*i}], v{27+i}, s[52:55], 0 offen")
    stamp3(E,1)
    E.extend(F5)
    stamp3(E,2)
    srd(E,20,P_WS,3*QKV_SZ,off=WS_Q)
    E("s_cmp_eq_u32 s34, 15\ns_cselect_b32 s22, 0, s22")
    E("s_mul_i32 s45, s34, 205\ns_lshr_b32 s45, s45, 10\ns_mul_i32 s46, s45, 5\ns_sub_u32 s46, s34, s46")
    E(f"v_mul_f32 v94, {fhex(CQ)}, v93\ns_cmp_eq_u32 s45, 0\ns_cselect_b64 vcc, -1, 0\ns_nop 1\nv_cndmask_b32 v93, v93, v94, vcc\nv_sub_f32 v92, 0, v92")
    E(f"v_lshrrev_b32 v4, 5, v2\nv_lshlrev_b32 v26, 4, v4\nv_add_u32 v26, {CSF}, v26\nv_lshlrev_b32 v4, 14, v4\nv_add_u32 v91, v91, v4")
    E(f"s_mul_i32 s45, s45, {QKV_SZ}\ns_lshl_b32 s46, s46, 19\ns_add_u32 s45, s45, s46")
    E.wl(csf)
    E("s_barrier")
    stamp3(E,3)
    crs=[]
    for T in range(4):
        for a in range(4): cr=E.lds(f"ds_read_b128 v[{160+16*T+4*a}:{163+16*T+4*a}], v26 offset:{128*T+32*a}")
        crs.append(cr)
    for T in range(4):
        E.wl(crs[T])
        for a in range(4):
            b=ACC+16*T+4*a; c=160+16*T+4*a
            for i in range(4): E(f"v_fma_f32 v{b+i}, v92, v{c+i}, v{b+i}")
            for i in range(4): E(f"v_mul_f32 v{b+i}, v{b+i}, v93")
            o=40+2*((4*T+a)%8)
            E(f"v_cvt_pk_bf16_f32 v{o}, v{b}, v{b+1}\nv_cvt_pk_bf16_f32 v{o+1}, v{b+2}, v{b+3}")
            E(f"s_add_u32 s46, s45, {(8*T+2*a)*16384}")
            qs=E.st(f"buffer_store_dwordx2 v[{o}:{o+1}], v91, s[20:23], s46 offen {'' if 'plainq' in EXP else 'sc1'}")
        if T==3: stamp3(E,4); E("s_barrier"); stamp3(E,5)
    stamp3(E,6); stamp5(E,1)
    E.wv(qs)
    stamp3(E,7); stamp5(E,2)
    E(f"s_lshl_b32 s38, s33, 4\ns_add_u32 s38, s38, s34\ns_lshl_b32 s38, s38, 7\ns_add_u32 s38, s38, {WS_FQ}")
    agg_flag(E,0,4,38,3,4)
    if 'fq' in EXP: E("s_waitcnt vmcnt(0)"); stamp5(E,3)
    E("s_mul_i32 s37, s35, 5120")
    E("v_lshrrev_b32 v3, 3, v2\nv_mul_u32_u24 v3, 160, v3\nv_and_b32 v4, 7, v2\nv_lshl_add_u32 v3, v4, 4, v3\nv_add_u32 v3, s37, v3")
    E.wv(cld)
    for i in range(4): cw=E.lds(f"ds_write_b128 v3, v[{236+4*i}:{239+4*i}] offset:{8*160*i}")
    E("v_lshrrev_b32 v4, 2, v2\nv_mul_u32_u24 v4, 160, v4\nv_and_b32 v5, 3, v2\nv_lshl_add_u32 v4, v5, 3, v4\nv_add_u32 v4, s37, v4")
    srd(E,52,P_WS,W2T_SZ,off=WS_W2T)
    E("s_cmp_ge_u32 s31, 680\ns_cselect_b32 s54, 0, s54")
    if 'noC' in EXP: E("s_mov_b32 s54, 0")
    E.wl(cw)
    for i in range(4):
        E.lds(f"ds_read_b64_tr_b16 v[{236+4*i}:{237+4*i}], v4 offset:{32*i}")
        cr=E.lds(f"ds_read_b64_tr_b16 v[{238+4*i}:{239+4*i}], v4 offset:{32*i+16*160}")
    E("v_lshlrev_b32 v5, 4, v2")
    E.wl(cr)
    for i in range(4):
        E(f"s_lshl_b32 s37, s30, 2\ns_add_u32 s37, s37, {i}\ns_mul_i32 s38, s37, 205\ns_lshr_b32 s38, s38, 10\ns_mul_i32 s39, s38, 5\ns_sub_u32 s39, s37, s39")
        E("s_mul_i32 s38, s38, 68\ns_add_u32 s38, s38, s29\ns_mul_i32 s38, s38, 5\ns_add_u32 s38, s38, s39\ns_lshl_b32 s38, s38, 10")
        cst=E.st(f"buffer_store_dwordx4 v[{236+4*i}:{239+4*i}], v5, s[52:55], s38 offen {'' if 'plainw' in EXP else 'sc1'}")
    E.wv(cst)
    E(f"s_lshl_b32 s38, s2, 7\ns_add_u32 s38, s38, {WS_FW}")
    agg_flag(E,1,4,38,3,4)
    stamp3(E,8)
    stamp(E,4)
    E(f"s_mov_b32 s22, {3*QKV_SZ}")
    srd(E,24,P_WS,HO_SZ,off=WS_HO)
    E("s_mul_i32 s37, s34, 10\ns_lshr_b32 s38, s37, 5\ns_add_u32 s37, s37, 9\ns_lshr_b32 s39, s37, 5")
    E("v_min_u32 v3, 13, v2\nv_mul_u32_u24 v4, 43, v3\nv_lshrrev_b32 v4, 8, v4\nv_mul_u32_u24 v5, 6, v4\nv_sub_u32 v5, v3, v5")
    E("v_mul_u32_u24 v6, 86, v5\nv_lshrrev_b32 v6, 8, v6\nv_mul_u32_u24 v7, 3, v6\nv_sub_u32 v7, v5, v7")
    E("v_cmp_eq_u32 vcc, 2, v4\nv_mov_b32 v8, 0\ns_nop 0\nv_cndmask_b32 v6, v6, v5, vcc\nv_cndmask_b32 v7, v7, v8, vcc")
    E("v_add_u32 v8, 1, v4\nv_mul_u32_u24 v8, 5, v8\nv_cmp_eq_u32 vcc, 15, v8\nv_mov_b32 v9, 0\ns_nop 0\nv_cndmask_b32 v8, v8, v9, vcc")
    E("v_mov_b32 v9, s38\nv_mov_b32 v20, s39\nv_cmp_eq_u32 vcc, 0, v6\ns_nop 1\nv_cndmask_b32 v9, v20, v9, vcc\nv_add_u32 v8, v8, v9")
    E(f"v_sub_u32 v9, s33, v7\nv_max_i32 v9, 0, v9\nv_lshl_add_u32 v8, v9, 4, v8\nv_lshlrev_b32 v8, 7, v8\nv_add_u32 v8, {WS_FQ}, v8")
    E("v_mov_b32 v10, 0x3f80\nv_mov_b32 v11, 0\nv_lshlrev_b32 v4, 3, v0")
    E.lds(f"ds_write_b64 v4, v[10:11] offset:{ONE0}"); E(f"v_add_u32 v5, {ONE1}, v4"); E.lds("ds_write_b64 v5, v[10:11]")
    E("v_min_u32 v6, 127, v0\nv_lshlrev_b32 v6, 3, v6"); E.lds(f"ds_write_b64 v6, v[10:11] offset:{ONE0+2048}"); E(f"v_add_u32 v6, {ONE1}, v6"); E.lds("ds_write_b64 v6, v[10:11] offset:2048")
    E("s_waitcnt lgkmcnt(0)\ns_barrier")
    stamp5(E,4)
    if 'fq' in EXP:
        E("buffer_load_dword v9, v8, s[16:19], 0 offen sc1\ns_waitcnt vmcnt(0)"); stamp5(E,5)
    if 'nopollq' not in EXP: poll_leader(E,8,9,20,NON+16)
    stamp(E,5); stamp4(E,1); stamp5(E,6)
    E("v_lshlrev_b32 v3, 4, v2")
    E("s_lshl_b32 s40, s33, 10\ns_sub_u32 s40, s40, 2048\ns_mul_i32 s41, s34, %d\ns_add_u32 s40, s40, s41\ns_add_u32 s40, s40, %d"%(10*16384,QKV_SZ))
    E(f"s_lshl_b32 s41, s35, 14\ns_add_u32 s40, s40, s41\ns_mul_i32 s42, s35, {GS}")
    for n in range(5):
        if n<2: E(f"s_add_u32 s46, s40, {4*n*16384}")
        elif n==2: E(f"s_cmp_ge_u32 s35, 2\ns_cselect_b32 s45, {QKV_SZ-10*16384}, 0\ns_add_u32 s46, s40, s45\ns_add_u32 s46, s46, {4*n*16384}")
        else: E(f"s_add_u32 s46, s40, {4*n*16384+QKV_SZ-10*16384}")
        for p in range(3):
            E.vm(f"s_add_u32 m0, s42, {4*n*GS+1024*p}\ns_add_u32 s47, s46, {1024*p}\nbuffer_load_dwordx4 v3, s[20:23], s47 offen sc1 lds")
    E("v_and_b32 v5, 31, v2\nv_lshrrev_b32 v6, 5, v2\ns_lshl_b32 s40, s33, 7\ns_lshl_b32 s41, s35, 5\ns_add_u32 s40, s40, s41")
    E("v_add_u32 v7, s40, v5\nv_lshlrev_b32 v7, 3, v7\nv_lshl_add_u32 v8, v6, 15, v7")
    for e,QF in ((0,12),(1,240)):
        E(f"s_mul_i32 s41, s34, 10\ns_add_u32 s41, s41, {5*e}\ns_lshl_b32 s41, s41, 14")
        E.vm(f"buffer_load_dwordx2 v[{QF}:{QF+1}], v8, s[20:23], s41 offen sc1"); E("s_add_u32 s42, s41, 16384")
        E.vm(f"buffer_load_dwordx2 v[{QF+2}:{QF+3}], v8, s[20:23], s42 offen sc1"); E("s_add_u32 s42, s41, 65536")
        E.vm(f"buffer_load_dwordx2 v[{QF+4}:{QF+5}], v7, s[20:23], s42 offen sc1")
        E(f"v_mov_b32 v{QF+6}, 0\nv_mov_b32 v{QF+7}, 0")
    stamp4(E,2)
    E("s_waitcnt vmcnt(0) lgkmcnt(0)")
    stamp4(E,3)
    E("v_cmp_eq_u32 vcc, 0, v6\ns_nop 1")
    for QF in (12,240): E(f"v_cndmask_b32 v{QF+4}, 0, v{QF+4}, vcc\nv_cndmask_b32 v{QF+5}, 0, v{QF+5}, vcc")
    E("s_barrier")
    stamp(E,6); stamp4(E,4)
    attention(E)
    return E

def attention(E):
    E("s_lshl_b32 s46, s33, 2\ns_add_u32 s46, s46, s35\ns_sub_i32 s46, 8, s46\ns_max_i32 s46, s46, 0\ns_mov_b32 s36, 0")
    E.label("L_att")
    E(f"s_mul_i32 s42, s36, {5*GS}\ns_lshl_b32 s43, s35, 8\ns_add_u32 s42, s42, s43")
    E(f"v_lshlrev_b32 v9, 3, v5\nv_add_u32 v9, s42, v9\nv_mul_u32_u24 v20, {2*GS}, v6\nv_add_u32 v20, v20, v9\nv_add_u32 v21, {4*GS}, v9")
    E("v_bfe_u32 v22, v2, 4, 1\nv_and_b32 v23, 3, v2\nv_bfe_u32 v24, v2, 2, 2\nv_lshl_add_u32 v24, v6, 2, v24\nv_lshlrev_b32 v24, 3, v24\nv_add_u32 v24, s43, v24")
    E(f"v_lshl_add_u32 v25, v22, 2, v23\nv_mul_u32_u24 v26, {GS}, v25\ns_mul_i32 s44, s36, {5*GS}\ns_add_u32 s44, s44, {VB}\nv_add_u32 v26, s44, v26")
    E(f"s_mov_b32 s45, {ONE1}\ns_cmp_eq_u32 s36, 0\ns_cselect_b32 s45, {ONE0}, s45\nv_mov_b32 v27, s45\nv_cmp_lt_u32 vcc, 4, v25\ns_nop 1\nv_cndmask_b32 v26, v26, v27, vcc\nv_add_u32 v22, v26, v24")
    S=32; KF=176; QF=12
    for st in range(2): E(f"v_mov_b32 v{KF+8*st+6}, 0\nv_mov_b32 v{KF+8*st+7}, 0")
    E(f"v_mov_b32 v28, {fhex(-1e30)}")
    for t in range(9):
        kf=KF+8*(t%2); d=S+16*t; skip=lab("ts"); done=lab("td")
        E(f"s_cmp_gt_u32 s46, {t}\ns_cbranch_scc1 {skip}")
        E(f"ds_read_b64 v[{kf}:{kf+1}], v20 offset:{256*t}\nds_read_b64 v[{kf+2}:{kf+3}], v20 offset:{256*t+GS}\nds_read_b64 v[{kf+4}:{kf+5}], v21 offset:{256*t}\ns_waitcnt lgkmcnt(0)")
        E(f"v_mfma_f32_32x32x16_bf16 v[{d}:{d+15}], v[{kf}:{kf+3}], v[{QF}:{QF+3}], 0\nv_mfma_f32_32x32x16_bf16 v[{d}:{d+15}], v[{kf+4}:{kf+7}], v[{QF+4}:{QF+7}], v[{d}:{d+15}]")
        E(f"s_branch {done}"); E.label(skip)
        for r in range(16): E(f"v_mov_b32 v{d+r}, v28")
        E.label(done)
    E("s_nop 15\nv_lshlrev_b32 v29, 2, v6\nv_sub_u32 v29, v5, v29")
    for r in range(16):
        kk=8*(r>>2)+(r&3)
        E(f"v_cmp_le_i32 vcc, {kk}, v29\ns_nop 1\nv_cndmask_b32 v{S+128+r}, v28, v{S+128+r}, vcc\nv_cndmask_b32 v{S+r}, v{S+r}, v28, vcc")
    E(f"v_max3_f32 v30, v{S}, v{S+1}, v{S+2}")
    r=3
    while r<144:
        if r+1<144: E(f"v_max3_f32 v30, v30, v{S+r}, v{S+r+1}"); r+=2
        else: E(f"v_max_f32 v30, v30, v{S+r}"); r+=1
    E("v_mov_b32 v31, v30\nv_mov_b32 v29, v30\ns_nop 1\nv_permlane32_swap_b32 v31, v29\ns_nop 1\nv_max_f32 v30, v31, v29")
    for t in range(9):
        d=S+16*t
        for r in range(16): E(f"v_sub_f32 v{d+r}, v{d+r}, v30")
        for r in range(16): E(f"v_exp_f32 v{d+r}, v{d+r}")
        E("s_nop 0")
        for r in range(8): E(f"v_cvt_pk_bf16_f32 v{d+r}, v{d+2*r}, v{d+2*r+1}")
    O=192; VF=208
    for r in range(16): E(f"v_mov_b32 v{O+r}, 0")
    for t in range(9):
        d=S+16*t; vf=VF+8*(t%2); skip=lab("ps")
        E(f"s_cmp_gt_u32 s46, {t}\ns_cbranch_scc1 {skip}")
        for m in range(2):
            E(f"ds_read_b64_tr_b16 v[{vf+4*m}:{vf+4*m+1}], v22 offset:{256*t+128*m}\nds_read_b64_tr_b16 v[{vf+4*m+2}:{vf+4*m+3}], v22 offset:{256*t+128*m+64}")
        E("s_waitcnt lgkmcnt(0)")
        for m in range(2): E(f"v_mfma_f32_32x32x16_bf16 v[{O}:{O+15}], v[{vf+4*m}:{vf+4*m+3}], v[{d+4*m}:{d+4*m+3}], v[{O}:{O+15}]")
        E.label(skip)
    E(f"s_nop 15\nv_mov_b32 v30, v{O+8}\nv_mov_b32 v31, v{O+8}\ns_nop 1\nv_permlane32_swap_b32 v30, v31\ns_nop 1\nv_rcp_f32 v31, v31\ns_nop 0")
    for r in range(12): E(f"v_mul_f32 v{O+r}, v{O+r}, v31")
    for r in range(6): E(f"v_cvt_pk_bf16_f32 v{224+r}, v{O+2*r}, v{O+2*r+1}")
    E("s_mul_i32 s40, s34, 5\ns_lshl_b32 s41, s36, 1\ns_add_u32 s41, s41, s40")
    E("v_add_u32 v10, s41, v6\nv_lshrrev_b32 v11, 2, v10\nv_lshlrev_b32 v11, 12, v11\nv_and_b32 v10, 3, v10\nv_lshl_add_u32 v11, v10, 8, v11")
    E("v_bfe_u32 v23, v2, 4, 1\nv_lshlrev_b32 v23, 10, v23\nv_and_b32 v24, 15, v2\nv_lshl_add_u32 v23, v24, 4, v23\nv_add_u32 v11, v11, v23")
    E("s_lshl_b32 s42, s33, 1\ns_lshr_b32 s43, s35, 1\ns_add_u32 s42, s42, s43\ns_mul_i32 s42, s42, 68\ns_add_u32 s42, s42, 48\ns_lshl_b32 s42, s42, 12\ns_and_b32 s43, s35, 1\ns_lshl_b32 s43, s43, 11\ns_add_u32 s42, s42, s43")
    E("buffer_store_dwordx4 v[224:227], v11, s[24:27], s42 offen sc1")
    E("s_add_u32 s40, s40, 4\ns_lshr_b32 s44, s40, 2\ns_lshl_b32 s44, s44, 12\ns_and_b32 s45, s40, 3\ns_lshl_b32 s45, s45, 8\ns_add_u32 s44, s44, s45\ns_lshl_b32 s45, s36, 3\ns_add_u32 s44, s44, s45\ns_add_u32 s44, s44, s42")
    E("s_mov_b32 exec_hi, 0\nbuffer_store_dwordx2 v[228:229], v23, s[24:27], s44 offen sc1\ns_mov_b64 exec, -1")
    E("s_cmp_eq_u32 s36, 1\ns_cbranch_scc1 L_att_done")
    for r in range(8): E(f"v_mov_b32 v{12+r}, v{240+r}")
    E("s_mov_b32 s36, 1\ns_branch L_att")
    E.label("L_att_done")
    stamp(E,7)
    E("s_waitcnt vmcnt(0)")
    E(f"s_lshl_b32 s38, s33, 4\ns_add_u32 s38, s38, s34\ns_lshl_b32 s38, s38, 7\ns_add_u32 s38, s38, {WS_FO}")
    agg_flag(E,3,4,38,3,4)
    stamp(E,8)
    stamp_flush(E)
    E("s_endpgm")

def build():
    hdr=open("parallel_sum__sliding_block__mixer_channel_mlp__prompt.s.ref").read().split("; Override")[0]
    s=hdr+f"; @launch grid=(256,1,1) block=(512,1,1) lds={LDS_TOTAL}\n"
    s+='.amdgcn_target "amdgcn-amd-amdhsa--gfx950"\n.text\n'+kernel_header(KNAME)
    s+=prologue().text()+gen_A().text()+gen_F().text()
    s+='.section .rodata,"a"\n'+kernel_desc(KNAME,sgpr=102)
    return s
if __name__=="__main__":
    out=sys.argv[1] if len(sys.argv)>1 else "parallel_sum__sliding_block__mixer_channel_mlp__prompt.s"
    if len(sys.argv)>2 and sys.argv[2]=="instr": INSTR=True
    if len(sys.argv)>3: EXP.update(sys.argv[3].split(","))
    for e in EXP:
        if e.startswith("sleep"): SLEEP=int(e[5:])
    open(out,"w").write(build())
```

```python
import math, sys, struct
from asmlib import kernel_header, kernel_desc
from em import Em

KNAME="parallel_sum__sliding_block__mixer_channel_mlp__prompt_kernel"
WS_STATS=0; WS_CSP=0x10000; WS_FQ=0x90000; WS_FH=0x98000; WS_FO=0xA0000; WS_FW=0xA8000; SMALL_SZ=0xB0000
WS_W2T=0xB0000; W2T_SZ=8*68*5*1024
WS_Q=0x360000; QKV_SZ=0x280000
WS_HO=0xB00000; HO_SZ=0x880000
WS_STAMP=0x2000000
LOG2E=1.4426950408889634; CQ=(20**-0.5)*LOG2E
GC0=-2.0*LOG2E*math.sqrt(2.0/math.pi); GC1=GC0*0.044715
def fhex(f): return hex(struct.unpack("<I",struct.pack("<f",f))[0])
P_X,P_WQKV,P_WO,P_W1,P_B1,P_W2,P_B2,P_OUT,P_DBG,P_WS=60,62,64,68,70,72,74,76,78,80
SLOT=32768; P0=131072; P1=143360; U0=69632; CSF=155648; NON=156672; CNT=156704; STX=156736; XCH=131072; CSCR=135168
GS=3104; VB=10*GS
def _ones():
    base=VB+10*GS; o0=base+((160-(base-VB))%256); b2=o0+3072; o1=b2+((64-(b2-VB))%256); return o0,o1,o1+3072
ONE0,ONE1,ATT_END=_ones(); RED=69632; LDS_TOTAL=163840
assert ATT_END<=RED
V0=20480
def wf_region(sg): return [P0,P1,U0,U0+12288,U0+2*12288,U0+3*12288,U0+4*12288,V0,V0+12288,V0+2*12288][sg]
S_NONCE=82
INSTR=False; EXP=set(); POLL_MAX=20000
_uid=[0]
def lab(b="L"):
    _uid[0]+=1; return f"{b}_{_uid[0]}"
NST=9
def stamp2(E,idx):
    if INSTR and 'barst' in EXP: E(f"s_memtime s[{84+2*idx}:{85+2*idx}]")
def stamp3(E,idx):
    if INSTR and 'epi' in EXP: E(f"s_memrealtime s[{84+2*idx}:{85+2*idx}]")
def stamp4(E,idx):
    if INSTR and 'gel' in EXP: E(f"s_memrealtime s[{84+2*idx}:{85+2*idx}]")
def stamp5(E,idx):
    if INSTR and 'fq' in EXP: E(f"s_memrealtime s[{84+2*idx}:{85+2*idx}]")
def stamp(E,idx):
    if 'fq' in EXP and idx>0: return
    if 'gel' in EXP and idx>0: return
    if 'epi' in EXP and idx>0: return
    if 'barst' in EXP and idx>0: return
    if INSTR: E(f"s_mem{'time' if 'clk' in EXP else 'realtime'} s[{84+2*idx}:{85+2*idx}]")
def stamp_flush(E,role=0):
    if not INSTR: return
    E("s_waitcnt lgkmcnt(0)")
    if 'dbgts' in EXP:
        l=lab("dts")
        E(f"s_cmp_eq_u32 s35, 0\ns_cbranch_scc0 {l}")
        E(f"s_mov_b32 s52, s{P_DBG}\ns_mov_b32 s53, s{P_DBG+1}\ns_mov_b32 s54, 256\ns_mov_b32 s55, 0x20000\nv_mov_b32 v251, 0\ns_mov_b64 exec, 1")
        sel = (0,2,3,4,5,6,7,8) if role==0 else (2,3,4,5,6,7,8)
        base = 1 if role==0 else 9
        for n,i in enumerate(sel):
            E(f"s_sub_u32 s56, s{84+2*i}, s{S_NONCE}\nv_mov_b32 v250, s56\nbuffer_atomic_smax v250, v251, s[52:55], 0 offen offset:{4*(base+n)}")
        E("s_mov_b64 exec, -1"); E.label(l)
        return
    E(f"s_add_u32 s52, s{P_WS}, {WS_STAMP}\ns_addc_u32 s53, s{P_WS+1}, 0\ns_mov_b32 s54, 0x20000\ns_mov_b32 s55, 0x20000")
    E("s_lshl_b32 s56, s2, 3\ns_add_u32 s56, s56, s32\ns_lshl_b32 s56, s56, 6\nv_mov_b32 v251, 0")
    for i in range(NST):
        E(f"v_mov_b32 v250, s{84+2*i}"); E(f"buffer_store_dword v250, v251, s[52:55], s56 offen offset:{4*i}")
def srd(E,d,p,size,off=0):
    if off: E(f"s_add_u32 s{d}, s{p}, {off}\ns_addc_u32 s{d+1}, s{p+1}, 0")
    else: E(f"s_mov_b32 s{d}, s{p}\ns_mov_b32 s{d+1}, s{p+1}")
    E(f"s_mov_b32 s{d+2}, {size}\ns_mov_b32 s{d+3}, 0x20000")
SLEEP=8
def poll_slow(E,vaddr,vtmp):
    l0=lab("poll"); l1=lab("polld")
    E("s_mov_b32 s37, 0"); E.label(l0)
    E(f"buffer_load_dword v{vtmp}, v{vaddr}, s[16:19], 0 offen sc1\ns_waitcnt vmcnt(0)")
    E(f"v_cmp_ne_u32 vcc, s{S_NONCE}, v{vtmp}\ns_cbranch_vccz {l1}")
    E(f"s_add_u32 s37, s37, 1\ns_cmp_lt_u32 s37, {POLL_MAX}\ns_cbranch_scc0 {l1}\ns_sleep {SLEEP}\ns_branch {l0}")
    E.label(l1)
def check_or_poll(E,vaddr,vval):
    l0=lab("cp"); l1=lab("cpd")
    E(f"v_cmp_ne_u32 vcc, s{S_NONCE}, v{vval}\ns_cbranch_vccz {l1}\ns_mov_b32 s37, 0\n{l0}:\n"
      f"buffer_load_dword v{vval}, v{vaddr}, s[16:19], 0 offen sc1\ns_waitcnt vmcnt(0)\nv_cmp_ne_u32 vcc, s{S_NONCE}, v{vval}\ns_cbranch_vccz {l1}\n"
      f"s_add_u32 s37, s37, 1\ns_cmp_lt_u32 s37, {POLL_MAX}\ns_cbranch_scc0 {l1}\ns_sleep {SLEEP}\ns_branch {l0}\n{l1}:")
def poll_leader(E,vaddr,vtmp,vt2,goaddr):
    lw=lab("pw"); ld=lab("pd"); l0=lab("pl")
    E(f"v_mov_b32 v{vt2}, {goaddr}\ns_cmp_eq_u32 s35, 0\ns_cbranch_scc0 {lw}")
    poll_slow(E,vaddr,vtmp)
    E(f"v_mov_b32 v{vtmp}, s{S_NONCE}\nds_write_b32 v{vt2}, v{vtmp}\ns_waitcnt lgkmcnt(0)\ns_branch {ld}")
    E.label(lw)
    E(f"s_mov_b32 s37, 0\n{l0}:\nds_read_b32 v{vtmp}, v{vt2}\ns_waitcnt lgkmcnt(0)\nv_cmp_ne_u32 vcc, s{S_NONCE}, v{vtmp}\ns_cbranch_vccz {ld}\n"
      f"s_add_u32 s37, s37, 1\ns_cmp_lt_u32 s37, {POLL_MAX*8}\ns_cbranch_scc0 {ld}\ns_sleep 2\ns_branch {l0}")
    E.label(ld)
def flag_store(E,soff,vt0,vt1):
    E(f"v_mov_b32 v{vt0}, s{S_NONCE}\nv_mov_b32 v{vt1}, 0")
    return E.st(f"s_mov_b64 exec, 1\nbuffer_store_dword v{vt0}, v{vt1}, s[16:19], s{soff} offen sc1\ns_mov_b64 exec, -1")
def agg_flag(E,cnt_idx,nwaves,soff,vt0,vt1):
    l=lab("ag")
    E(f"v_mov_b32 v{vt0}, {CNT+4*cnt_idx}\nv_mov_b32 v{vt1}, 1\ns_mov_b64 exec, 1\nds_add_rtn_u32 v{vt1}, v{vt0}, v{vt1}\ns_waitcnt lgkmcnt(0)\ns_mov_b64 exec, -1\n"
      f"v_readfirstlane_b32 s37, v{vt1}\ns_nop 3\ns_cmp_eq_u32 s37, {nwaves-1}\ns_cbranch_scc0 {l}\nv_mov_b32 v{vt0}, s{S_NONCE}\nv_mov_b32 v{vt1}, 0\ns_mov_b64 exec, 1\n"
      f"buffer_store_dword v{vt0}, v{vt1}, s[16:19], s{soff} offen sc1\ns_mov_b64 exec, -1\n{l}:")
def allreduce(E,v,t1,t2):
    for dpp in ("quad_perm:[1,0,3,2]","quad_perm:[2,3,0,1]","row_half_mirror","row_mirror"):
        E(f"s_nop 1\nv_add_f32_dpp v{v}, v{v}, v{v} {dpp} row_mask:0xf bank_mask:0xf")
    for sw in ("16","32"):
        E(f"v_mov_b32 v{t1}, v{v}\nv_mov_b32 v{t2}, v{v}")
        E(f"s_nop 1\nv_permlane{sw}_swap_b32 v{t1}, v{t2}\ns_nop 1\nv_add_f32 v{v}, v{t1}, v{t2}")
def gelu_ops(x,t,c0):
    return [f"v_mul_f32 v{t}, v{x}, v{x}",f"v_fma_f32 v{t}, v{t}, s51, v{c0}",f"v_mul_f32 v{t}, v{t}, v{x}",
            f"v_exp_f32 v{t}, v{t}",f"v_add_f32 v{t}, 1.0, v{t}",f"v_rcp_f32 v{t}, v{t}",f"v_mul_f32 v{x}, v{x}, v{t}"]

def prologue():
    E=Em()
    E("s_cmp_ge_u32 s2, 256\ns_cbranch_scc1 L_end")
    stamp(E,0)
    E("s_load_dwordx2 s[4:5], s[0:1], 0\ns_load_dwordx2 s[8:9], s[0:1], 8\ns_load_dwordx2 s[12:13], s[0:1], 32\ns_load_dwordx2 s[16:17], s[0:1], 80")
    E("s_load_dwordx16 s[60:75], s[0:1], 0\ns_load_dwordx4 s[76:79], s[0:1], 64\ns_load_dwordx2 s[80:81], s[0:1], 80")
    E("v_lshrrev_b32 v1, 6, v0\nv_and_b32 v2, 63, v0\nv_readfirstlane_b32 s32, v1")
    E("s_mov_b32 s6, 2621440\ns_mov_b32 s7, 0x20000\ns_mov_b32 s10, %d\ns_mov_b32 s11, 0x20000"%(640*3840))
    E("s_mov_b32 s14, %d\ns_mov_b32 s15, 0x20000\ns_mov_b32 s18, %d\ns_mov_b32 s19, 0x20000"%(640*3072,SMALL_SZ))
    E("s_and_b32 s37, s2, 7\ns_lshr_b32 s38, s2, 3")
    E("s_lshr_b32 s33, s37, 2\ns_lshl_b32 s33, s33, 3\ns_and_b32 s39, s38, 7\ns_add_u32 s33, s33, s39")
    E("s_and_b32 s34, s37, 3\ns_lshl_b32 s34, s34, 2\ns_lshr_b32 s39, s38, 3\ns_add_u32 s34, s34, s39")
    E("s_min_u32 s41, s34, 14\ns_lshl_b32 s41, s41, 8\ns_mul_i32 s42, s34, 192")
    E("s_and_b32 s35, s32, 3\ns_cmp_ge_u32 s32, 4\ns_cbranch_scc1 L_F")
    return E

def gen_F():
    E=Em(); E.label("L_F")
    E("s_and_b32 s37, s33, 7\ns_and_b32 s38, s34, 3\ns_lshl_b32 s38, s38, 1\ns_add_u32 s37, s37, s38\ns_cmp_ge_u32 s37, 10\ns_cselect_b32 s38, 10, 0\ns_sub_u32 s37, s37, s38")
    if "rot" not in EXP: E("s_mov_b32 s37, 0")
    E("s_lshl_b32 s45, s37, 6\ns_mov_b32 s46, s45\ns_mul_i32 s40, s33, 163840\ns_lshl_b32 s43, s35, 12\ns_mul_i32 s44, s35, 3072")
    E("v_lshrrev_b32 v3, 3, v2\ns_lshl_b32 s39, s35, 5\nv_add_u32 v3, s39, v3\nv_mul_u32_u24 v3, 1280, v3")
    E("v_and_b32 v4, 7, v2\nv_lshrrev_b32 v5, 4, v2\nv_xor_b32 v6, v4, v5\nv_lshl_add_u32 v10, v6, 4, v3")
    E(f"v_or_b32 v7, 4, v5\nv_xor_b32 v7, v4, v7\nv_lshl_add_u32 v11, v7, 4, v3\nv_add_u32 v11, {8*1280}, v11")
    E(f"v_add_u32 v12, {16*1280}, v10\nv_add_u32 v13, {16*1280}, v11")
    E("s_lshl_b32 s39, s35, 4\nv_add_u32 v3, s39, v5\nv_mul_u32_u24 v3, 3840, v3")
    E("v_and_b32 v4, 15, v2\nv_lshlrev_b32 v6, 2, v5\nv_xor_b32 v4, v4, v6\nv_lshl_add_u32 v14, v4, 4, v3")
    for q in range(1,4): E(f"v_add_u32 v{14+q}, {q*4*3840}, v14")
    E("s_waitcnt lgkmcnt(0)")
    def kstep(reg): E(f"s_add_u32 s{reg}, s{reg}, 64\ns_cmp_eq_u32 s{reg}, 640\ns_cselect_b32 s{reg}, 0, s{reg}")
    def dma_slab(tau, sink):
        slot=tau%4; last=None; G=[]
        pre="s_lshl_b32 s56, s45, 1\ns_add_u32 s56, s56, s40\ns_mul_i32 s57, s45, 3840\ns_add_u32 s57, s57, s41\ns_add_u32 s45, s45, 64\ns_cmp_eq_u32 s45, 640\ns_cselect_b32 s45, 0, s45\n"
        for q in range(4):
            last=sink.vm((pre if q==0 else "")+f"s_add_u32 m0, s43, {slot*SLOT+q*1024}\ns_nop 0\nbuffer_load_dwordx4 v{10+q}, s[4:7], s56 offen lds")
        for q in range(4):
            last=sink.vm(f"s_add_u32 m0, s43, {slot*SLOT+16384+q*1024}\ns_nop 0\nbuffer_load_dwordx4 v{14+q}, s[8:11], s57 offen lds")
        return last
    def dma_wf(sg, sink):
        reg=wf_region(sg); last=None
        pre="s_mul_i32 s58, s46, 3072\ns_add_u32 s58, s58, s42\ns_add_u32 s46, s46, 64\ns_cmp_eq_u32 s46, 640\ns_cselect_b32 s46, 0, s46\n"
        for t in range(3):
            last=sink.vm((pre if t==0 else "")+f"s_add_u32 m0, s44, {reg+t*1024}\ns_nop 0\nbuffer_load_dwordx4 v{26+t}, s[12:15], s58 offen lds")
        return last
    D={}
    for tau in range(3): D[tau]=dma_slab(tau,E)
    E(f"v_mov_b32 v3, {CNT}\nv_mov_b32 v4, 0\nv_mov_b32 v5, 0"); ci=E.lds("ds_write_b64 v3, v[4:5]"); ci=E.lds("ds_write_b64 v3, v[4:5] offset:8")
    stamp(E,1)
    PRE=Em()
    PRE("s_lshl_b32 s37, s33, 7\ns_lshl_b32 s38, s34, 3\ns_add_u32 s37, s37, s38\ns_lshl_b32 s38, s35, 1\ns_add_u32 s37, s37, s38\ns_lshl_b32 s31, s37, 4\ns_mul_i32 s36, s37, 1280")
    PRE("v_and_b32 v3, 31, v2\nv_lshlrev_b32 v3, 2, v3\nv_lshrrev_b32 v4, 5, v2\nv_mul_u32_u24 v4, 1280, v4\nv_add_u32 v3, v3, v4")
    srd(PRE,48,P_DBG,256)
    l=lab("non")
    PRE(f"s_or_b32 s37, s2, s35\ns_cmp_eq_u32 s37, 0\ns_cbranch_scc0 {l}\ns_memrealtime s[54:55]\ns_waitcnt lgkmcnt(0)\ns_or_b32 s54, s54, 1\nv_mov_b32 v6, s54\nv_mov_b32 v7, 0\ns_mov_b64 exec, 1\n"
      f"buffer_store_dword v6, v7, s[48:51], 0 offen sc1\ns_mov_b64 exec, -1\n{l}:")
    l=lab("nl")
    PRE(f"v_mov_b32 v63, 0\nv_mov_b32 v62, 0\ns_cmp_eq_u32 s35, 0\ns_cbranch_scc0 {l}\nbuffer_load_dword v62, v63, s[48:51], 0 offen sc1\n{l}:")
    PRE("s_mul_i32 s37, s33, 40\ns_mul_i32 s38, s35, 10\ns_add_u32 s37, s37, s38\ns_mul_i32 s47, s37, 3840\ns_add_u32 s47, s47, s41\ns_mul_i32 s59, s37, 3072\ns_add_u32 s59, s59, s42")
    PRE("v_lshlrev_b32 v5, 2, v2")
    for i in range(10):
        PRE.vm(f"buffer_load_dword v{42+i}, v5, s[8:11], s47 offen"); PRE("s_add_u32 s47, s47, 3840")
    for i in range(10):
        PRE.vm(f"buffer_load_dword v{52+i}, v5, s[12:15], s59 offen"); PRE("s_add_u32 s59, s59, 3072")
    for i in range(10): plast=PRE.vm(f"buffer_load_dword v{32+i}, v3, s[4:7], s36 offen offset:{128*i}")
    F=Em()
    F.wv(plast)
    l0=lab("n0"); l1=lab("n1"); l2=lab("n2")
    F(f"s_cmp_eq_u32 s35, 0\ns_cbranch_scc0 {l2}\ns_mov_b32 s37, 0\n{l0}:\nv_readfirstlane_b32 s{S_NONCE}, v62\ns_nop 3\ns_cmp_lg_u32 s{S_NONCE}, 0\ns_cbranch_scc1 {l1}\n"
      f"s_add_u32 s37, s37, 1\ns_cmp_lt_u32 s37, {POLL_MAX}\ns_cbranch_scc0 {l1}\ns_sleep 1\nbuffer_load_dword v62, v63, s[48:51], 0 offen sc1\ns_waitcnt vmcnt(0)\ns_branch {l0}\n{l1}:\n{l2}:")
    F(f"v_mov_b32 v63, {NON}\nv_mov_b32 v3, {NON+8}\ns_cmp_eq_u32 s35, 0\ns_cselect_b64 vcc, -1, 0\ns_nop 1\nv_cndmask_b32 v63, v3, v63, vcc")
    non_w=F.lds("ds_write_b32 v63, v62")
    for p in range(2):
        src=42+10*p; d=68+2*p
        F(f"v_lshlrev_b32 v{d}, 16, v{src}"); F(f"v_and_b32 v{d+1}, 0xffff0000, v{src}")
        for i in range(1,10):
            F(f"v_lshlrev_b32 v72, 16, v{src+i}"); F(f"v_and_b32 v73, 0xffff0000, v{src+i}")
            F(f"v_add_f32 v{d}, v{d}, v72"); F(f"v_add_f32 v{d+1}, v{d+1}, v73")
    F(f"s_lshl_b32 s37, s35, 10\ns_add_u32 s37, s37, {XCH}"); F("v_lshlrev_b32 v74, 3, v2"); F("v_add_u32 v74, s37, v74")
    F.lds("ds_write_b64 v74, v[68:69]"); xw=F.lds("ds_write_b64 v74, v[70:71] offset:512")
    F.wl(xw)
    nF1=len(F.it)
    B=200
    for i in range(10):
        F(f"v_lshlrev_b32 v{B+2*i}, 16, v{32+i}"); F(f"v_and_b32 v{B+2*i+1}, 0xffff0000, v{32+i}")
    F(f"v_add_f32 v76, v{B}, v{B+1}"); F(f"v_add_f32 v77, v{B+2}, v{B+3}")
    for i in range(4,20,2):
        F(f"v_add_f32 v76, v76, v{B+i}"); F(f"v_add_f32 v77, v77, v{B+i+1}")
    F("v_add_f32 v76, v76, v77")
    def red32(v):
        for dpp in ("quad_perm:[1,0,3,2]","quad_perm:[2,3,0,1]","row_half_mirror","row_mirror"):
            F(f"s_nop 1\nv_add_f32_dpp v{v}, v{v}, v{v} {dpp} row_mask:0xf bank_mask:0xf")
        F(f"v_mov_b32 v88, v{v}\nv_mov_b32 v89, v{v}")
        F(f"s_nop 1\nv_permlane16_swap_b32 v88, v89\ns_nop 1\nv_add_f32 v{v}, v88, v89")
    red32(76)
    F(f"v_mul_f32 v76, {fhex(1.0/640)}, v76")
    for i in range(20): F(f"v_sub_f32 v{B+i}, v{B+i}, v76")
    F(f"v_mul_f32 v77, v{B}, v{B}"); F(f"v_mul_f32 v78, v{B+1}, v{B+1}")
    for i in range(2,20,2):
        F(f"v_fmac_f32 v77, v{B+i}, v{B+i}"); F(f"v_fmac_f32 v78, v{B+i+1}, v{B+i+1}")
    F("v_add_f32 v77, v77, v78")
    red32(77)
    F(f"v_mul_f32 v77, {fhex(1.0/640)}, v77"); F(f"v_add_f32 v78, {fhex(1e-5)}, v77")
    F("v_rsq_f32 v81, v78\ns_nop 0"); F("v_mul_f32 v79, v81, v81"); F("v_mul_f32 v79, v79, v77"); F(f"v_add_f32 v79, {fhex(1e-5)}, v79")
    F("v_rsq_f32 v79, v79\nv_mov_b32 v80, v76"); F("s_nop 0\nv_mul_f32 v82, v81, v79")
    F("v_lshrrev_b32 v84, 5, v2"); F("v_lshlrev_b32 v84, 4, v84")
    F(f"s_lshl_b32 s37, s35, 5\ns_add_u32 s37, s37, {STX}"); F("v_add_u32 v84, s37, v84"); F("v_mov_b32 v83, 0")
    stw=F.lds("ds_write_b128 v84, v[80:83]"); F.wl(stw)
    F2=Em()
    F2(f"v_mov_b32 v3, {NON}"); nr=F2.lds("ds_read_b32 v83, v3")
    F2(f"s_and_b32 s37, s35, 1\ns_lshl_b32 s37, s37, 9\ns_add_u32 s37, s37, {XCH}"); F2("v_lshlrev_b32 v3, 3, v2"); F2("v_add_u32 v3, s37, v3")
    for w in range(4): xr_=F2.lds(f"ds_read_b64 v[{64+2*w}:{65+2*w}], v3 offset:{1024*w}")
    F2.wl(xr_)
    F2(f"v_readfirstlane_b32 s{S_NONCE}, v83")
    F2("v_and_b32 v84, 7, v2"); F2("v_lshlrev_b32 v84, 4, v84"); F2(f"v_add_u32 v85, {STX}, v84")
    sr=F2.lds("ds_read_b128 v[76:79], v85"); F2.wl(sr); F2("v_mov_b32 v79, v83")
    F2(f"s_lshl_b32 s37, s33, 7\ns_lshl_b32 s38, s34, 3\ns_add_u32 s37, s37, s38\ns_lshl_b32 s37, s37, 4\ns_cmp_eq_u32 s35, 0\ns_cselect_b32 s37, s37, {SMALL_SZ}")
    F2.st("s_mov_b64 exec, 0xff\nbuffer_store_dwordx4 v[76:79], v84, s[16:19], s37 offen sc1\ns_mov_b64 exec, -1")
    F2("v_add_f32 v64, v64, v66"); F2("v_add_f32 v65, v65, v67"); F2("v_add_f32 v68, v68, v70"); F2("v_add_f32 v69, v69, v71")
    F2("v_add_f32 v72, v64, v68"); F2("v_add_f32 v74, v65, v69"); F2("v_mov_b32 v73, v83"); F2("v_mov_b32 v75, v83")
    F2(f"s_lshl_b32 s37, s34, 4\ns_add_u32 s37, s37, s33\ns_lshl_b32 s37, s37, 11\ns_and_b32 s38, s35, 1\ns_lshl_b32 s38, s38, 10\ns_add_u32 s37, s37, s38\ns_add_u32 s37, s37, {WS_CSP}\ns_cmp_ge_u32 s35, 2\ns_cselect_b32 s37, {SMALL_SZ}, s37")
    F2("v_lshlrev_b32 v3, 4, v2")
    F2.st("buffer_store_dwordx4 v[72:75], v3, s[16:19], s37 offen sc1")
    E("s_lshl_b32 s39, s35, 4")
    for t in range(3):
        E(f"v_add_u32 v3, {64*t}, v2\nv_mul_u32_u24 v4, 171, v3\nv_lshrrev_b32 v4, 11, v4\nv_mul_u32_u24 v5, 12, v4\nv_sub_u32 v5, v3, v5")
        E(f"v_add_u32 v4, s39, v4\nv_mul_u32_u24 v4, 3072, v4\nv_lshl_add_u32 v{26+t}, v5, 4, v4")
    E("v_and_b32 v3, 31, v2\ns_lshl_b32 s37, s35, 5\nv_add_u32 v3, s37, v3\nv_lshrrev_b32 v4, 5, v2\nv_bfe_u32 v5, v3, 1, 3\nv_xor_b32 v5, v5, v4\nv_lshlrev_b32 v3, 7, v3")
    for t in range(4): E(f"v_xor_b32 v6, {2*t}, v5\nv_lshl_add_u32 v{18+t}, v6, 4, v3\nv_add_u32 v{22+t}, 65536, v{18+t}")
    E("v_bfe_u32 v3, v2, 4, 1\nv_lshrrev_b32 v4, 5, v2\nv_bfe_u32 v5, v2, 2, 2\nv_and_b32 v6, 3, v2\nv_lshl_add_u32 v7, v4, 3, v5")
    E(f"v_mul_u32_u24 v29, 192, v7\nv_lshl_add_u32 v29, v3, 5, v29\nv_lshl_add_u32 v29, v6, 3, v29\nv_add_u32 v30, {P0}, v29\nv_add_u32 v29, {U0}, v29")
    XS=96
    W={}
    xr={}
    def xreads(tau):
        slot=tau%4
        for t in range(4):
            a=(18 if slot<2 else 22)+t; u=4*tau+t
            xr[u]=E.lds(f"ds_read_b128 v[{XS+4*u}:{XS+4*u+3}], v{a} offset:{(slot&1)*SLOT}")
    E.wv(D[0]); E.wl(ci); E("s_barrier"); stamp(E,2); stamp2(E,1)
    allF=list(F.it); nF=len(allF)
    def part(a,b):
        x=Em(); x.it=allF[a:b]; return x
    c1=nF1; c2=nF1+(nF-nF1)//2
    fill={1:part(0,c1),2:part(c1,nF),3:F2}
    for tau in range(10):
        M=Em()
        slot=tau%4
        if tau==0: M.extend(PRE)
        for t in range(4):
            a=(18 if slot<2 else 22)+t; u=4*tau+t
            xr[u]=M.lds(f"ds_read_b128 v[{XS+4*u}:{XS+4*u+3}], v{a} offset:{(slot&1)*SLOT}")
        M.slot(12)
        if (tau>=2 and tau+2<=9) or tau==0:
            tn=3 if tau==0 else tau+2
            slot2=tn%4
            pre="s_lshl_b32 s56, s45, 1\ns_add_u32 s56, s56, s40\ns_mul_i32 s57, s45, 3840\ns_add_u32 s57, s57, s41\ns_add_u32 s45, s45, 64\ns_cmp_eq_u32 s45, 640\ns_cselect_b32 s45, 0, s45\n"
            for q in range(4):
                M.vm((pre if q==0 else "")+f"s_add_u32 m0, s43, {slot2*SLOT+q*1024}\ns_nop 0\nbuffer_load_dwordx4 v{10+q}, s[4:7], s56 offen lds"); M.slot(12)
            for q in range(4):
                D[tn]=M.vm(f"s_add_u32 m0, s43, {slot2*SLOT+16384+q*1024}\ns_nop 0\nbuffer_load_dwordx4 v{14+q}, s[8:11], s57 offen lds"); M.slot(12)
        else:
            M.slot(200)
        if tau==6: W[0]=dma_wf(0,M)
        if tau==7:
            W[1]=dma_wf(1,M)
        if tau==9:
            for sg in range(2,7): W[sg]=dma_wf(sg,M)
        if tau in fill: M.merge(fill[tau])
        E.extend(M)
        if tau<9:
            E.wv(D[tau+1])
            if tau+1==9: E.wv(W[0])
            E.wl(xr[4*tau+3])
            if tau in fill: E("s_waitcnt lgkmcnt(0)")
            E("s_barrier")
            if tau<7: stamp2(E,tau+2)
    stamp(E,3)
    E("v_and_b32 v3, 31, v2\ns_lshl_b32 s37, s33, 7\ns_lshl_b32 s38, s35, 5\ns_add_u32 s37, s37, s38\nv_add_u32 v3, s37, v3\nv_lshlrev_b32 v3, 4, v3")
    ACC=48
    SETS=[(10,14,18),(32,36,40),(22,4,44)]
    E("v_mov_b32 v31, v3")
    for r in range(48): E(f"v_mov_b32 v{ACC+r}, 0")
    rd={}
    def wf_reads(u):
        sg,t=divmod(u,4); reg=wf_region(sg)
        base,ro=(30,reg-P0) if reg>=P0 else ((29,reg-U0) if reg>=U0 else (9,reg))
        L=[]
        for T in range(3):
            fr=SETS[u%3][T]
            for jj in range(2):
                L.append(f"ds_read_b64_tr_b16 v[{fr+2*jj}:{fr+2*jj+1}], v{base} offset:{ro+(16*t+4*jj)*192+64*T}")
        return L
    E(f"v_subrev_u32 v9, {U0}, v29")
    E.wl(xr[39])
    for u in (0,1):
        for r in wf_reads(u): rd[u]=E.lds(r)
    for u in range(40):
        sg,t=divmod(u,4)
        if u==2:
            E.wv(W[1]); E("s_barrier")
            for sg2 in (7,8,9): W[sg2]=dma_wf(sg2,E)
        if u==6:
            E.wv(W[9]); E("s_barrier")
        E.wl(rd[u])
        rl=wf_reads(u+2) if u+2<40 else []
        for T in range(3):
            fr=SETS[u%3][T]; a=ACC+16*T
            E(f"v_mfma_f32_32x32x16_bf16 v[{a}:{a+15}], v[{fr}:{fr+3}], v[{XS+4*u}:{XS+4*u+3}], v[{a}:{a+15}]")
            for r in rl[2*T:2*T+2]: rd[u+2]=E.lds(r)
        if u==30:
            st=E.vm("buffer_load_dwordx4 v[96:99], v31, s[16:19], 0 offen sc1")
            srd(E,48,P_B1,3072)
            E("v_lshrrev_b32 v3, 5, v2\nv_lshlrev_b32 v3, 3, v3\ns_mul_i32 s37, s34, 192")
            for T in range(3):
                for a in range(4):
                    b1l=E.vm(f"buffer_load_dwordx2 v[{100+8*T+2*a}:{101+8*T+2*a}], v3, s[48:51], s37 offen offset:{64*T+16*a}")
    stamp4(E,1)
    E("s_barrier")
    stamp4(E,2)
    stamp(E,4)
    B1=100; CS=128
    srd(E,24,P_WS,HO_SZ,off=WS_HO)
    E(f"s_mov_b32 s51, {fhex(GC1)}\nv_mov_b32 v32, {fhex(GC0)}")
    E(f"v_lshrrev_b32 v4, 5, v2\nv_lshlrev_b32 v26, 4, v4\nv_add_u32 v26, {CSF+512}, v26")
    E("v_bfe_u32 v3, v2, 4, 1\nv_lshlrev_b32 v33, 10, v3\nv_lshl_add_u32 v33, v4, 8, v33\nv_and_b32 v3, 15, v2\nv_lshl_add_u32 v33, v3, 4, v33")
    E("s_lshl_b32 s45, s33, 1\ns_lshr_b32 s46, s35, 1\ns_add_u32 s45, s45, s46\ns_mul_i32 s45, s45, 68\ns_mul_i32 s46, s34, 3\ns_add_u32 s45, s45, s46\ns_lshl_b32 s45, s45, 12")
    E("s_and_b32 s46, s35, 1\ns_lshl_b32 s46, s46, 11\ns_add_u32 s45, s45, s46")
    cr=None
    for T in range(3):
        for a in range(4): cr=E.lds(f"ds_read_b128 v[{CS+16*T+4*a}:{CS+16*T+4*a+3}], v26 offset:{128*T+32*a}")
    E.wv(b1l); E.wl(cr)
    l0=lab("sp"); l1=lab("spd")
    if 'nostat' not in EXP: E(f"v_cmp_ne_u32 vcc, s{S_NONCE}, v99\ns_cbranch_vccz {l1}\ns_mov_b32 s37, 0\n{l0}:\nbuffer_load_dwordx4 v[96:99], v31, s[16:19], 0 offen sc1\ns_waitcnt vmcnt(0)\n"
      f"v_cmp_ne_u32 vcc, s{S_NONCE}, v99\ns_cbranch_vccz {l1}\ns_add_u32 s37, s37, 1\ns_cmp_lt_u32 s37, {POLL_MAX}\ns_cbranch_scc0 {l1}\ns_sleep 1\ns_branch {l0}\n{l1}:")
    stamp4(E,3)
    E("v_sub_f32 v96, 0, v96\ns_nop 7")
    for T in range(3):
        for a in range(4):
            b=ACC+16*T+4*a; c=CS+16*T+4*a; bb=B1+8*T+2*a
            E(f"v_lshlrev_b32 v34, 16, v{bb}\nv_and_b32 v35, 0xffff0000, v{bb}\nv_lshlrev_b32 v36, 16, v{bb+1}\nv_and_b32 v37, 0xffff0000, v{bb+1}")
            for i in range(4): E(f"v_fma_f32 v{b+i}, v96, v{c+i}, v{b+i}")
            for i in range(4): E(f"v_fma_f32 v{b+i}, v{b+i}, v98, v{34+i}")
            ops=[gelu_ops(b+i,40+i,32) for i in range(4)]
            for s_ in range(7):
                for i in range(4): E(ops[i][s_])
            o=(10 if a%2==0 else 14)+(2 if a>=2 else 0)+8*(T%2)
            E(f"v_cvt_pk_bf16_f32 v{o}, v{b}, v{b+1}\nv_cvt_pk_bf16_f32 v{o+1}, v{b+2}, v{b+3}")
        o=10+8*(T%2)
        E(f"s_add_u32 s46, s45, {T*4096}")
        fl='' if 'plainh' in EXP else 'sc1'
        E.st(f"buffer_store_dwordx4 v[{o}:{o+3}], v33, s[24:27], s46 offen {fl}")
        hs=E.st(f"buffer_store_dwordx4 v[{o+4}:{o+7}], v33, s[24:27], s46 offen offset:512 {fl}")
    stamp4(E,4)
    E(f"s_lshl_b32 s59, s33, 4\ns_add_u32 s59, s59, s34\ns_lshl_b32 s59, s59, 7\ns_add_u32 s59, s59, {WS_FH}")
    E("s_and_b32 s37, s2, 7\ns_lshr_b32 s38, s2, 3")
    E("s_lshr_b32 s33, s37, 2\ns_lshl_b32 s33, s33, 4\ns_bfe_u32 s39, s37, 0x10001\ns_lshl_b32 s39, s39, 3\ns_add_u32 s33, s33, s39\ns_and_b32 s39, s38, 7\ns_add_u32 s33, s33, s39")
    E("s_and_b32 s34, s37, 1\ns_lshl_b32 s34, s34, 2\ns_lshr_b32 s39, s38, 3\ns_add_u32 s34, s34, s39")
    srd(E,8,P_WS,W2T_SZ,off=WS_W2T); srd(E,12,P_B2,1280); srd(E,20,P_OUT,2621440)
    E("v_lshrrev_b32 v3, 1, v2\nv_min_u32 v3, 16, v3\ns_mul_i32 s37, s35, 12\ns_mul_i32 s38, s35, 5\ns_add_u32 s38, s38, 36")
    E("v_add_u32 v4, s37, v3\nv_add_u32 v5, s38, v3\nv_cmp_gt_u32 vcc, 12, v3\ns_nop 1\nv_cndmask_b32 v4, v5, v4, vcc")
    E("s_mul_i32 s37, s34, 5\ns_lshr_b32 s38, s37, 2\ns_add_u32 s37, s37, 4\ns_lshr_b32 s39, s37, 2")
    E("v_and_b32 v5, 1, v2\nv_mov_b32 v6, s38\nv_mov_b32 v7, s39\nv_cmp_eq_u32 vcc, 0, v5\ns_nop 1\nv_cndmask_b32 v6, v7, v6, vcc")
    E(f"v_mul_u32_u24 v4, 10, v4\nv_add_u32 v4, v4, v6\nv_mul_u32_u24 v4, 683, v4\nv_lshrrev_b32 v4, 11, v4\nv_lshlrev_b32 v4, 7, v4\nv_add_u32 v4, {WS_FW}, v4")
    fw=E.vm("buffer_load_dword v8, v4, s[16:19], 0 offen sc1")
    stamp4(E,5)
    E.wv(hs); stamp4(E,6); agg_flag(E,2,4,59,5,6)
    stamp(E,5)
    E.wv(fw); stamp4(E,7); (None if 'noC' in EXP else check_or_poll(E,4,8)); stamp4(E,8)
    E("v_lshlrev_b32 v3, 4, v2\nv_add_u32 v4, 4096, v3")
    E("v_and_b32 v5, 15, v2\ns_lshl_b32 s39, s33, 6\ns_lshl_b32 s40, s35, 4\ns_add_u32 s39, s39, s40\nv_add_u32 v5, s39, v5\nv_mul_u32_u24 v5, 1280, v5\nv_lshrrev_b32 v6, 4, v2\nv_lshlrev_b32 v6, 3, v6")
    E("s_mul_i32 s39, s34, 160\nv_add_u32 v6, s39, v6\nv_add_u32 v5, v5, v6")
    E("s_mul_i32 s40, s33, %d\ns_mul_i32 s41, s34, %d"%(68*4096,68*5120))
    E("s_mul_i32 s42, s35, 12\ns_mul_i32 s43, s35, 5\ns_add_u32 s43, s43, 48")
    E("s_lshl_b32 s44, s42, 12\ns_add_u32 s44, s44, s40\ns_mul_i32 s45, s42, 5120\ns_add_u32 s45, s45, s41")
    E("s_lshl_b32 s46, s43, 12\ns_add_u32 s46, s46, s40\ns_mul_i32 s47, s43, 5120\ns_add_u32 s47, s47, s41")
    ACC3=10; WB=[100+20*i for i in range(5)]; HB=[200,216,232]
    XR=90; B2R=248
    LW={}; LH={}
    def loadsW(i):
        b=WB[i%5]; ws_,ii=(45,i) if i<12 else (47,i-12)
        E(f"s_add_u32 s57, s{ws_}, {ii*5120}")
        for nt in range(4): E.vm(f"buffer_load_dwordx4 v[{b+4*nt}:{b+4*nt+3}], v3, s[8:11], s57 offen offset:{1024*nt} sc1")
        LW[i]=E.vm(f"buffer_load_dwordx4 v[{b+16}:{b+19}], v4, s[8:11], s57 offen sc1")
    def loadsH(i):
        b=HB[i%3]; hs_,ii=(44,i) if i<12 else (46,i-12)
        E(f"s_add_u32 s56, s{hs_}, {ii*4096}")
        for tt in range(4): LH[i]=E.vm(f"buffer_load_dwordx4 v[{b+4*tt}:{b+4*tt+3}], v3, s[24:27], s56 offen offset:{1024*tt} sc1")
    for nt in range(5): E.vm(f"buffer_load_dwordx2 v[{XR+2*nt}:{XR+2*nt+1}], v5, s[4:7], 0 offen offset:{32*nt}")
    for i in range(5): loadsW(i)
    for r in range(80): E(f"v_mov_b32 v{ACC3+r}, 0")
    E("s_barrier")
    def group_addr(base,vd):
        E(f"v_and_b32 v{vd}, 3, v2\ns_lshl_b32 s37, s35, 2\nv_add_u32 v{vd}, s37, v{vd}\ns_lshr_b32 s37, s33, 1\ns_lshl_b32 s37, s37, 4\nv_add_u32 v{vd}, s37, v{vd}\nv_lshlrev_b32 v{vd}, 7, v{vd}\nv_add_u32 v{vd}, {base}, v{vd}")
    group_addr(WS_FH,7)
    poll_slow(E,7,8)
    stamp(E,6)
    group_addr(WS_FO,7)
    for i in range(3): loadsH(i)
    for i in range(17):
        if i==8: fo=E.vm("buffer_load_dword v9, v7, s[16:19], 0 offen sc1")
        if i==9:
            E.wv(fo); check_or_poll(E,7,9)
        E.wv(LH[i]); E.wv(LW[i])
        b=WB[i%5]; h=HB[i%3]
        for nt in range(5):
            for tt in range(4):
                a=ACC3+16*nt+4*tt
                E(f"v_mfma_f32_16x16x32_bf16 v[{a}:{a+3}], v[{b+4*nt}:{b+4*nt+3}], v[{h+4*tt}:{h+4*tt+3}], v[{a}:{a+3}]")
        if i+3<17: loadsH(i+3)
        if i+5<17: loadsW(i+5)
        if i==12:
            for nt in range(4): E.vm(f"buffer_load_dwordx2 v[{B2R+2*nt}:{B2R+2*nt+1}], v6, s[12:15], 0 offen offset:{32*nt}")
            b2l=E.vm(f"buffer_load_dwordx2 v[8:9], v6, s[12:15], 0 offen offset:128")
    stamp(E,7)
    E("s_nop 15")
    E(f"s_mul_i32 s39, s35, 20480\ns_add_u32 s39, s39, {RED}\nv_add_u32 v7, s39, v3")
    for nt in range(5):
        for tt in range(4):
            a=ACC3+16*nt+4*tt
            w_=E.lds(f"ds_write_b128 v7, v[{a}:{a+3}] offset:{(nt*4+tt)*1024}")
    E.wl(w_); E("s_barrier")
    E(f"s_lshl_b32 s39, s35, 10\ns_add_u32 s39, s39, {RED}\nv_add_u32 v7, s39, v3\nv_add_u32 v2, 40960, v7")
    R=100
    for nt in range(5):
        for w in range(4):
            base=7 if w<2 else 2
            r_=E.lds(f"ds_read_b128 v[{R+16*nt+4*w}:{R+16*nt+4*w+3}], v{base} offset:{(w%2)*20480+nt*4096}")
    E.wv(b2l); E.wl(r_)
    for nt in range(5):
        b=R+16*nt
        for i in range(4): E(f"v_add_f32 v{b+i}, v{b+i}, v{b+4+i}\nv_add_f32 v{b+8+i}, v{b+8+i}, v{b+12+i}")
        for i in range(4): E(f"v_add_f32 v{b+i}, v{b+i}, v{b+8+i}")
        b2=(B2R+2*nt) if nt<4 else 8
        for (src,t0) in ((XR+2*nt,10),(b2,14)):
            E(f"v_lshlrev_b32 v{t0}, 16, v{src}\nv_and_b32 v{t0+1}, 0xffff0000, v{src}\nv_lshlrev_b32 v{t0+2}, 16, v{src+1}\nv_and_b32 v{t0+3}, 0xffff0000, v{src+1}")
        for i in range(4): E(f"v_add_f32 v{b+i}, v{b+i}, v{14+i}")
        for i in range(4): E(f"v_add_f32 v{b+i}, v{b+i}, v{10+i}")
        E(f"v_cvt_pk_bf16_f32 v{20+2*nt}, v{b}, v{b+1}\nv_cvt_pk_bf16_f32 v{21+2*nt}, v{b+2}, v{b+3}")
        E.st(f"buffer_store_dwordx2 v[{20+2*nt}:{21+2*nt}], v5, s[20:23], 0 offen offset:{32*nt}")
    stamp(E,8)
    stamp_flush(E,1)
    E.label("L_end"); E("s_endpgm"); E.label("L_codeend")
    return E

def gen_A():
    E=Em()
    if 'nopf' not in EXP:
        E("s_getpc_b64 s[56:57]\nL_pc:\ns_sub_u32 s56, s56, L_pc-%s\ns_subb_u32 s57, s57, 0"%KNAME)
        E("v_lshlrev_b32 v3, 7, v2\ns_lshl_b32 s37, s35, 13\nv_add_u32 v3, s37, v3\nv_add_u32 v8, 0x8000, v3\nv_min_u32 v8, L_codeend-%s-4, v8"%KNAME)
        E("v_mov_b32 v5, s57\nv_add_co_u32 v4, vcc, s56, v3\ns_nop 1\nv_addc_co_u32 v5, vcc, 0, v5, vcc")
        E.vm("global_load_dword v254, v[4:5], off")
        E("v_mov_b32 v5, s57\nv_add_co_u32 v4, vcc, s56, v8\ns_nop 1\nv_addc_co_u32 v5, vcc, 0, v5, vcc")
        E.vm("global_load_dword v255, v[4:5], off")
    E("v_and_b32 v3, 31, v2\ns_lshl_b32 s37, s35, 5\nv_add_u32 v3, s37, v3\nv_lshrrev_b32 v4, 5, v2\nv_bfe_u32 v5, v3, 1, 3\nv_xor_b32 v5, v5, v4\nv_lshlrev_b32 v3, 7, v3")
    for t in range(4): E(f"v_xor_b32 v6, {2*t}, v5\nv_lshl_add_u32 v{10+t}, v6, 4, v3\nv_add_u32 v{14+t}, 65536, v{10+t}")
    E("v_bfe_u32 v3, v2, 4, 1\nv_lshrrev_b32 v4, 5, v2\nv_bfe_u32 v5, v2, 2, 2\nv_and_b32 v6, 3, v2\nv_lshl_add_u32 v7, v4, 3, v5")
    E("v_lshlrev_b32 v8, 8, v7\nv_add_u32 v8, 16384, v8\nv_lshrrev_b32 v9, 1, v6\nv_lshl_add_u32 v9, v3, 1, v9\nv_lshl_add_u32 v8, v9, 4, v8\nv_and_b32 v9, 1, v6\nv_lshl_add_u32 v8, v9, 3, v8")
    for T in range(4): E(f"v_xor_b32 v9, {T}, v5\nv_lshl_add_u32 v{18+T}, v9, 6, v8\nv_add_u32 v{22+T}, 65536, v{18+T}")
    E("s_waitcnt lgkmcnt(0)")
    stamp(E,1)
    ACC=96; FR=(160,180,200)
    for r in range(64): E(f"v_mov_b32 v{ACC+r}, 0")
    F3=Em()
    F3(f"v_mov_b32 v3, {NON}"); nr=F3.lds("ds_read_b32 v62, v3"); F3.wl(nr); F3(f"s_nop 0\nv_readfirstlane_b32 s{S_NONCE}, v62")
    F3("v_and_b32 v3, 31, v2"); F3("s_lshl_b32 s37, s33, 7\ns_lshl_b32 s38, s35, 5\ns_add_u32 s37, s37, s38"); F3("v_add_u32 v3, s37, v3")
    F3("v_lshlrev_b32 v91, 3, v3"); F3("v_lshlrev_b32 v90, 4, v3")
    F3("v_lshlrev_b32 v89, 3, v2"); F3(f"s_lshl_b32 s59, s34, 15\ns_lshl_b32 s38, s35, 9\ns_add_u32 s59, s59, s38\ns_add_u32 s59, s59, {WS_CSP}")
    F4=Em()
    F4.vm("buffer_load_dwordx4 v[92:95], v90, s[16:19], 0 offen sc1")
    ld="\n".join(f"buffer_load_dwordx2 v[{32+2*r}:{33+2*r}], v89, s[16:19], s58 offen sc1\ns_add_u32 s58, s58, 2048" for r in range(16))
    F4("s_mov_b32 s58, s59")
    for r in range(16): cl_=F4.vm(f"buffer_load_dwordx2 v[{32+2*r}:{33+2*r}], v89, s[16:19], s58 offen sc1\ns_add_u32 s58, s58, 2048")
    F5=Em()
    F5.wv(cl_)
    def tagchk():
        t="v_bitop3_b32 v64, v33, v35, v37 bitop3:0x80\nv_or3_b32 v65, v33, v35, v37\n"
        for r in range(39,63,4): t+=f"v_bitop3_b32 v64, v64, v{r}, v{r+2} bitop3:0x80\nv_or3_b32 v65, v65, v{r}, v{r+2}\n"
        t+=f"v_bitop3_b32 v64, v64, v63, v95 bitop3:0x80\nv_or3_b32 v65, v65, v63, v95\nv_xor_b32 v64, s{S_NONCE}, v64\nv_xor_b32 v65, s{S_NONCE}, v65\nv_or_b32 v64, v64, v65\nv_cmp_ne_u32 vcc, 0, v64"
        return t
    l0=lab("tg"); l1=lab("tgd")
    F5(tagchk()+f"\ns_cbranch_vccz {l1}\ns_mov_b32 s37, 0\n{l0}:\nbuffer_load_dwordx4 v[92:95], v90, s[16:19], 0 offen sc1\ns_mov_b32 s58, s59\n{ld}\ns_waitcnt vmcnt(0)\n"
       +tagchk()+f"\ns_cbranch_vccz {l1}\ns_add_u32 s37, s37, 1\ns_cmp_lt_u32 s37, {POLL_MAX}\ns_cbranch_scc0 {l1}\ns_sleep 1\ns_branch {l0}\n{l1}:")
    for st in (8,4,2,1):
        for r in range(st): F5(f"v_add_f32 v{32+2*r}, v{32+2*r}, v{32+2*(r+st)}")
    F5(f"s_lshl_b32 s37, s35, 8\ns_add_u32 s37, s37, {CSF}"); F5("v_lshlrev_b32 v3, 2, v2"); F5("v_add_u32 v3, s37, v3")
    csf=F5.lds("ds_write_b32 v3, v32")

    def reads(u):
        tau,t=divmod(u,4); slot=tau%4; hi=slot>=2; fr=FR[u%3]; so=(slot&1)*SLOT
        L=[f"ds_read_b128 v[{fr}:{fr+3}], v{(14 if hi else 10)+t} offset:{so}"]
        for T in range(4):
            for jj in range(2):
                d=fr+4+4*T+2*jj
                L.append(f"ds_read_b64_tr_b16 v[{d}:{d+1}], v{(22 if hi else 18)+T} offset:{so+(16*t+4*jj)*256}")
        return L
    rd={}
    E("s_barrier"); stamp(E,2)
    for u in (0,1):
        for r in reads(u): rd[u]=E.lds(r)
    segs=[]
    def steps(u0,u1,filler,per):
        M=Em()
        for u in range(u0,u1):
            tau,t=divmod(u,4); fr=FR[u%3]
            M.wl(rd[u])
            rl=reads(u+2) if u+2<40 else []
            cuts=[0,3,5,7,9]
            for T in range(4):
                a=ACC+16*T
                if "nomfma" not in EXP: M(f"v_mfma_f32_32x32x16_bf16 v[{a}:{a+15}], v[{fr+4+4*T}:{fr+7+4*T}], v[{fr}:{fr+3}], v[{a}:{a+15}]")
                for r in rl[cuts[T]:cuts[T+1]]: rd[u+2]=M.lds(r)
                M.slot(per)
        left=M.merge(filler) if filler else 0
        E.extend(M); return left
    def bar(beta): E("s_barrier")
    steps(0,2,None,0); bar(1)
    for b in range(2,7):
        steps(4*b-6,4*b-2,F3 if b==6 else None,3); bar(b)
    steps(22,26,None,0); bar(7)
    steps(26,30,None,0); bar(8)
    steps(30,34,F4,3); bar(9)
    steps(34,40,None,0)
    stamp(E,3)
    E("s_mul_i32 s31, s2, 3\ns_add_u32 s31, s31, s35\ns_cmp_lt_u32 s35, 3\ns_cselect_b32 s31, s31, 1000\ns_min_u32 s31, s31, 680")
    E("s_min_u32 s28, s31, 679\ns_mul_i32 s29, s28, 6554\ns_lshr_b32 s29, s29, 16\ns_mul_i32 s30, s29, 10\ns_sub_u32 s30, s28, s30")
    E("v_lshrrev_b32 v3, 3, v2\nv_and_b32 v4, 7, v2\ns_lshl_b32 s28, s30, 7\nv_lshl_add_u32 v4, v4, 4, s28")
    lw=lab("cwo"); lg=lab("cgo")
    E(f"s_cmp_ge_u32 s29, 48\ns_cbranch_scc1 {lw}")
    srd(E,52,P_W2,1536*1280)
    E("s_lshl_b32 s37, s29, 5\nv_add_u32 v5, s37, v3\nv_mul_u32_u24 v5, 1280, v5\nv_add_u32 v27, v5, v4")
    for i in range(1,4): E(f"v_add_u32 v{27+i}, {8*1280*i}, v27")
    E(f"s_branch {lg}"); E.label(lw)
    srd(E,52,P_WO,640*1280)
    E("s_sub_u32 s37, s29, 48\ns_lshl_b32 s37, s37, 2\nv_lshrrev_b32 v6, 5, v2\nv_and_b32 v7, 3, v3")
    for i in range(4):
        half=i>>1
        E(f"v_add_u32 v8, {2*(i&1)}, v6\nv_add_u32 v8, s37, v8\nv_mul_u32_u24 v9, 205, v8\nv_lshrrev_b32 v9, 10, v9\nv_mul_u32_u24 v64, 5, v9\nv_sub_u32 v64, v8, v64")
        E(f"v_lshrrev_b32 v65, 1, v64\nv_and_b32 v66, 1, v64\nv_add_u32 v66, {2*half}, v66\nv_cmp_eq_u32 vcc, 4, v64\nv_mov_b32 v67, {half}\nv_mov_b32 v8, 4")
        E("v_cndmask_b32 v65, v65, v67, vcc\nv_cndmask_b32 v66, v66, v8, vcc\nv_lshl_add_u32 v65, v9, 1, v65\nv_mul_u32_u24 v65, 20, v65\nv_lshl_add_u32 v65, v66, 2, v65\nv_add_u32 v65, v65, v7")
        E(f"v_mul_u32_u24 v65, 1280, v65\nv_add_u32 v{27+i}, v65, v4")
    E.label(lg)
    if 'noC' in EXP: E("s_mov_b32 s54, 0")
    for i in range(4): cld=E.vm(f"buffer_load_dwordx4 v[{236+4*i}:{239+4*i}], v{27+i}, s[52:55], 0 offen")
    stamp3(E,1)
    E.extend(F5)
    stamp3(E,2)
    srd(E,20,P_WS,3*QKV_SZ,off=WS_Q)
    E("s_cmp_eq_u32 s34, 15\ns_cselect_b32 s22, 0, s22")
    E("s_mul_i32 s45, s34, 205\ns_lshr_b32 s45, s45, 10\ns_mul_i32 s46, s45, 5\ns_sub_u32 s46, s34, s46")
    E(f"v_mul_f32 v94, {fhex(CQ)}, v93\ns_cmp_eq_u32 s45, 0\ns_cselect_b64 vcc, -1, 0\ns_nop 1\nv_cndmask_b32 v93, v93, v94, vcc\nv_sub_f32 v92, 0, v92")
    E(f"v_lshrrev_b32 v4, 5, v2\nv_lshlrev_b32 v26, 4, v4\nv_add_u32 v26, {CSF}, v26\nv_lshlrev_b32 v4, 14, v4\nv_add_u32 v91, v91, v4")
    E(f"s_mul_i32 s45, s45, {QKV_SZ}\ns_lshl_b32 s46, s46, 19\ns_add_u32 s45, s45, s46")
    E.wl(csf)
    E("s_barrier")
    stamp3(E,3)
    crs=[]
    for T in range(4):
        for a in range(4): cr=E.lds(f"ds_read_b128 v[{160+16*T+4*a}:{163+16*T+4*a}], v26 offset:{128*T+32*a}")
        crs.append(cr)
    for T in range(4):
        E.wl(crs[T])
        for a in range(4):
            b=ACC+16*T+4*a; c=160+16*T+4*a
            for i in range(4): E(f"v_fma_f32 v{b+i}, v92, v{c+i}, v{b+i}")
            for i in range(4): E(f"v_mul_f32 v{b+i}, v{b+i}, v93")
            o=40+2*((4*T+a)%8)
            E(f"v_cvt_pk_bf16_f32 v{o}, v{b}, v{b+1}\nv_cvt_pk_bf16_f32 v{o+1}, v{b+2}, v{b+3}")
            E(f"s_add_u32 s46, s45, {(8*T+2*a)*16384}")
            qs=E.st(f"buffer_store_dwordx2 v[{o}:{o+1}], v91, s[20:23], s46 offen {'' if 'plainq' in EXP else 'sc1'}")
        if T==3: stamp3(E,4); E("s_barrier"); stamp3(E,5)
    stamp3(E,6); stamp5(E,1)
    E.wv(qs)
    stamp3(E,7); stamp5(E,2)
    E(f"s_lshl_b32 s38, s33, 4\ns_add_u32 s38, s38, s34\ns_lshl_b32 s38, s38, 7\ns_add_u32 s38, s38, {WS_FQ}")
    agg_flag(E,0,4,38,3,4)
    if 'fq' in EXP: E("s_waitcnt vmcnt(0)"); stamp5(E,3)
    E("s_mul_i32 s37, s35, 5120")
    E("v_lshrrev_b32 v3, 3, v2\nv_mul_u32_u24 v3, 160, v3\nv_and_b32 v4, 7, v2\nv_lshl_add_u32 v3, v4, 4, v3\nv_add_u32 v3, s37, v3")
    E.wv(cld)
    for i in range(4): cw=E.lds(f"ds_write_b128 v3, v[{236+4*i}:{239+4*i}] offset:{8*160*i}")
    E("v_lshrrev_b32 v4, 2, v2\nv_mul_u32_u24 v4, 160, v4\nv_and_b32 v5, 3, v2\nv_lshl_add_u32 v4, v5, 3, v4\nv_add_u32 v4, s37, v4")
    srd(E,52,P_WS,W2T_SZ,off=WS_W2T)
    E("s_cmp_ge_u32 s31, 680\ns_cselect_b32 s54, 0, s54")
    if 'noC' in EXP: E("s_mov_b32 s54, 0")
    E.wl(cw)
    for i in range(4):
        E.lds(f"ds_read_b64_tr_b16 v[{236+4*i}:{237+4*i}], v4 offset:{32*i}")
        cr=E.lds(f"ds_read_b64_tr_b16 v[{238+4*i}:{239+4*i}], v4 offset:{32*i+16*160}")
    E("v_lshlrev_b32 v5, 4, v2")
    E.wl(cr)
    for i in range(4):
        E(f"s_lshl_b32 s37, s30, 2\ns_add_u32 s37, s37, {i}\ns_mul_i32 s38, s37, 205\ns_lshr_b32 s38, s38, 10\ns_mul_i32 s39, s38, 5\ns_sub_u32 s39, s37, s39")
        E("s_mul_i32 s38, s38, 68\ns_add_u32 s38, s38, s29\ns_mul_i32 s38, s38, 5\ns_add_u32 s38, s38, s39\ns_lshl_b32 s38, s38, 10")
        cst=E.st(f"buffer_store_dwordx4 v[{236+4*i}:{239+4*i}], v5, s[52:55], s38 offen {'' if 'plainw' in EXP else 'sc1'}")
    E.wv(cst)
    E(f"s_lshl_b32 s38, s2, 7\ns_add_u32 s38, s38, {WS_FW}")
    agg_flag(E,1,4,38,3,4)
    stamp3(E,8)
    stamp(E,4)
    E(f"s_mov_b32 s22, {3*QKV_SZ}")
    srd(E,24,P_WS,HO_SZ,off=WS_HO)
    E("s_mul_i32 s37, s34, 10\ns_lshr_b32 s38, s37, 5\ns_add_u32 s37, s37, 9\ns_lshr_b32 s39, s37, 5")
    E("v_min_u32 v3, 13, v2\nv_mul_u32_u24 v4, 43, v3\nv_lshrrev_b32 v4, 8, v4\nv_mul_u32_u24 v5, 6, v4\nv_sub_u32 v5, v3, v5")
    E("v_mul_u32_u24 v6, 86, v5\nv_lshrrev_b32 v6, 8, v6\nv_mul_u32_u24 v7, 3, v6\nv_sub_u32 v7, v5, v7")
    E("v_cmp_eq_u32 vcc, 2, v4\nv_mov_b32 v8, 0\ns_nop 0\nv_cndmask_b32 v6, v6, v5, vcc\nv_cndmask_b32 v7, v7, v8, vcc")
    E("v_add_u32 v8, 1, v4\nv_mul_u32_u24 v8, 5, v8\nv_cmp_eq_u32 vcc, 15, v8\nv_mov_b32 v9, 0\ns_nop 0\nv_cndmask_b32 v8, v8, v9, vcc")
    E("v_mov_b32 v9, s38\nv_mov_b32 v20, s39\nv_cmp_eq_u32 vcc, 0, v6\ns_nop 1\nv_cndmask_b32 v9, v20, v9, vcc\nv_add_u32 v8, v8, v9")
    E(f"v_sub_u32 v9, s33, v7\nv_max_i32 v9, 0, v9\nv_lshl_add_u32 v8, v9, 4, v8\nv_lshlrev_b32 v8, 7, v8\nv_add_u32 v8, {WS_FQ}, v8")
    E("v_mov_b32 v10, 0x3f80\nv_mov_b32 v11, 0\nv_lshlrev_b32 v4, 3, v0")
    E.lds(f"ds_write_b64 v4, v[10:11] offset:{ONE0}"); E(f"v_add_u32 v5, {ONE1}, v4"); E.lds("ds_write_b64 v5, v[10:11]")
    E("v_min_u32 v6, 127, v0\nv_lshlrev_b32 v6, 3, v6"); E.lds(f"ds_write_b64 v6, v[10:11] offset:{ONE0+2048}"); E(f"v_add_u32 v6, {ONE1}, v6"); E.lds("ds_write_b64 v6, v[10:11] offset:2048")
    E("s_waitcnt lgkmcnt(0)\ns_barrier")
    stamp5(E,4)
    if 'fq' in EXP:
        E("buffer_load_dword v9, v8, s[16:19], 0 offen sc1\ns_waitcnt vmcnt(0)"); stamp5(E,5)
    if 'nopollq' not in EXP: poll_leader(E,8,9,20,NON+16)
    stamp(E,5); stamp4(E,1); stamp5(E,6)
    E("v_lshlrev_b32 v3, 4, v2")
    E("s_lshl_b32 s40, s33, 10\ns_sub_u32 s40, s40, 2048\ns_mul_i32 s41, s34, %d\ns_add_u32 s40, s40, s41\ns_add_u32 s40, s40, %d"%(10*16384,QKV_SZ))
    E(f"s_lshl_b32 s41, s35, 14\ns_add_u32 s40, s40, s41\ns_mul_i32 s42, s35, {GS}")
    for n in range(5):
        if n<2: E(f"s_add_u32 s46, s40, {4*n*16384}")
        elif n==2: E(f"s_cmp_ge_u32 s35, 2\ns_cselect_b32 s45, {QKV_SZ-10*16384}, 0\ns_add_u32 s46, s40, s45\ns_add_u32 s46, s46, {4*n*16384}")
        else: E(f"s_add_u32 s46, s40, {4*n*16384+QKV_SZ-10*16384}")
        for p in range(3):
            E.vm(f"s_add_u32 m0, s42, {4*n*GS+1024*p}\ns_add_u32 s47, s46, {1024*p}\nbuffer_load_dwordx4 v3, s[20:23], s47 offen sc1 lds")
    E("v_and_b32 v5, 31, v2\nv_lshrrev_b32 v6, 5, v2\ns_lshl_b32 s40, s33, 7\ns_lshl_b32 s41, s35, 5\ns_add_u32 s40, s40, s41")
    E("v_add_u32 v7, s40, v5\nv_lshlrev_b32 v7, 3, v7\nv_lshl_add_u32 v8, v6, 15, v7")
    for e,QF in ((0,12),(1,240)):
        E(f"s_mul_i32 s41, s34, 10\ns_add_u32 s41, s41, {5*e}\ns_lshl_b32 s41, s41, 14")
        E.vm(f"buffer_load_dwordx2 v[{QF}:{QF+1}], v8, s[20:23], s41 offen sc1"); E("s_add_u32 s42, s41, 16384")
        E.vm(f"buffer_load_dwordx2 v[{QF+2}:{QF+3}], v8, s[20:23], s42 offen sc1"); E("s_add_u32 s42, s41, 65536")
        E.vm(f"buffer_load_dwordx2 v[{QF+4}:{QF+5}], v7, s[20:23], s42 offen sc1")
        E(f"v_mov_b32 v{QF+6}, 0\nv_mov_b32 v{QF+7}, 0")
    stamp4(E,2)
    E("s_waitcnt vmcnt(0) lgkmcnt(0)")
    stamp4(E,3)
    E("v_cmp_eq_u32 vcc, 0, v6\ns_nop 1")
    for QF in (12,240): E(f"v_cndmask_b32 v{QF+4}, 0, v{QF+4}, vcc\nv_cndmask_b32 v{QF+5}, 0, v{QF+5}, vcc")
    E("s_barrier")
    stamp(E,6); stamp4(E,4)
    attention(E)
    return E

def attention(E):
    E("s_lshl_b32 s46, s33, 2\ns_add_u32 s46, s46, s35\ns_sub_i32 s46, 8, s46\ns_max_i32 s46, s46, 0\ns_mov_b32 s36, 0")
    E.label("L_att")
    E(f"s_mul_i32 s42, s36, {5*GS}\ns_lshl_b32 s43, s35, 8\ns_add_u32 s42, s42, s43")
    E(f"v_lshlrev_b32 v9, 3, v5\nv_add_u32 v9, s42, v9\nv_mul_u32_u24 v20, {2*GS}, v6\nv_add_u32 v20, v20, v9\nv_add_u32 v21, {4*GS}, v9")
    E("v_bfe_u32 v22, v2, 4, 1\nv_and_b32 v23, 3, v2\nv_bfe_u32 v24, v2, 2, 2\nv_lshl_add_u32 v24, v6, 2, v24\nv_lshlrev_b32 v24, 3, v24\nv_add_u32 v24, s43, v24")
    E(f"v_lshl_add_u32 v25, v22, 2, v23\nv_mul_u32_u24 v26, {GS}, v25\ns_mul_i32 s44, s36, {5*GS}\ns_add_u32 s44, s44, {VB}\nv_add_u32 v26, s44, v26")
    E(f"s_mov_b32 s45, {ONE1}\ns_cmp_eq_u32 s36, 0\ns_cselect_b32 s45, {ONE0}, s45\nv_mov_b32 v27, s45\nv_cmp_lt_u32 vcc, 4, v25\ns_nop 1\nv_cndmask_b32 v26, v26, v27, vcc\nv_add_u32 v22, v26, v24")
    S=32; KF=176; QF=12
    for st in range(2): E(f"v_mov_b32 v{KF+8*st+6}, 0\nv_mov_b32 v{KF+8*st+7}, 0")
    E(f"v_mov_b32 v28, {fhex(-1e30)}")
    for t in range(9):
        kf=KF+8*(t%2); d=S+16*t; skip=lab("ts"); done=lab("td")
        E(f"s_cmp_gt_u32 s46, {t}\ns_cbranch_scc1 {skip}")
        E(f"ds_read_b64 v[{kf}:{kf+1}], v20 offset:{256*t}\nds_read_b64 v[{kf+2}:{kf+3}], v20 offset:{256*t+GS}\nds_read_b64 v[{kf+4}:{kf+5}], v21 offset:{256*t}\ns_waitcnt lgkmcnt(0)")
        E(f"v_mfma_f32_32x32x16_bf16 v[{d}:{d+15}], v[{kf}:{kf+3}], v[{QF}:{QF+3}], 0\nv_mfma_f32_32x32x16_bf16 v[{d}:{d+15}], v[{kf+4}:{kf+7}], v[{QF+4}:{QF+7}], v[{d}:{d+15}]")
        E(f"s_branch {done}"); E.label(skip)
        for r in range(16): E(f"v_mov_b32 v{d+r}, v28")
        E.label(done)
    E("s_nop 15\nv_lshlrev_b32 v29, 2, v6\nv_sub_u32 v29, v5, v29")
    for r in range(16):
        kk=8*(r>>2)+(r&3)
        E(f"v_cmp_le_i32 vcc, {kk}, v29\ns_nop 1\nv_cndmask_b32 v{S+128+r}, v28, v{S+128+r}, vcc\nv_cndmask_b32 v{S+r}, v{S+r}, v28, vcc")
    E(f"v_max3_f32 v30, v{S}, v{S+1}, v{S+2}")
    r=3
    while r<144:
        if r+1<144: E(f"v_max3_f32 v30, v30, v{S+r}, v{S+r+1}"); r+=2
        else: E(f"v_max_f32 v30, v30, v{S+r}"); r+=1
    E("v_mov_b32 v31, v30\nv_mov_b32 v29, v30\ns_nop 1\nv_permlane32_swap_b32 v31, v29\ns_nop 1\nv_max_f32 v30, v31, v29")
    for t in range(9):
        d=S+16*t
        for r in range(16): E(f"v_sub_f32 v{d+r}, v{d+r}, v30")
        for r in range(16): E(f"v_exp_f32 v{d+r}, v{d+r}")
        E("s_nop 0")
        for r in range(8): E(f"v_cvt_pk_bf16_f32 v{d+r}, v{d+2*r}, v{d+2*r+1}")
    O=192; VF=208
    for r in range(16): E(f"v_mov_b32 v{O+r}, 0")
    for t in range(9):
        d=S+16*t; vf=VF+8*(t%2); skip=lab("ps")
        E(f"s_cmp_gt_u32 s46, {t}\ns_cbranch_scc1 {skip}")
        for m in range(2):
            E(f"ds_read_b64_tr_b16 v[{vf+4*m}:{vf+4*m+1}], v22 offset:{256*t+128*m}\nds_read_b64_tr_b16 v[{vf+4*m+2}:{vf+4*m+3}], v22 offset:{256*t+128*m+64}")
        E("s_waitcnt lgkmcnt(0)")
        for m in range(2): E(f"v_mfma_f32_32x32x16_bf16 v[{O}:{O+15}], v[{vf+4*m}:{vf+4*m+3}], v[{d+4*m}:{d+4*m+3}], v[{O}:{O+15}]")
        E.label(skip)
    E(f"s_nop 15\nv_mov_b32 v30, v{O+8}\nv_mov_b32 v31, v{O+8}\ns_nop 1\nv_permlane32_swap_b32 v30, v31\ns_nop 1\nv_rcp_f32 v31, v31\ns_nop 0")
    for r in range(12): E(f"v_mul_f32 v{O+r}, v{O+r}, v31")
    for r in range(6): E(f"v_cvt_pk_bf16_f32 v{224+r}, v{O+2*r}, v{O+2*r+1}")
    E("s_mul_i32 s40, s34, 5\ns_lshl_b32 s41, s36, 1\ns_add_u32 s41, s41, s40")
    E("v_add_u32 v10, s41, v6\nv_lshrrev_b32 v11, 2, v10\nv_lshlrev_b32 v11, 12, v11\nv_and_b32 v10, 3, v10\nv_lshl_add_u32 v11, v10, 8, v11")
    E("v_bfe_u32 v23, v2, 4, 1\nv_lshlrev_b32 v23, 10, v23\nv_and_b32 v24, 15, v2\nv_lshl_add_u32 v23, v24, 4, v23\nv_add_u32 v11, v11, v23")
    E("s_lshl_b32 s42, s33, 1\ns_lshr_b32 s43, s35, 1\ns_add_u32 s42, s42, s43\ns_mul_i32 s42, s42, 68\ns_add_u32 s42, s42, 48\ns_lshl_b32 s42, s42, 12\ns_and_b32 s43, s35, 1\ns_lshl_b32 s43, s43, 11\ns_add_u32 s42, s42, s43")
    E("buffer_store_dwordx4 v[224:227], v11, s[24:27], s42 offen sc1")
    E("s_add_u32 s40, s40, 4\ns_lshr_b32 s44, s40, 2\ns_lshl_b32 s44, s44, 12\ns_and_b32 s45, s40, 3\ns_lshl_b32 s45, s45, 8\ns_add_u32 s44, s44, s45\ns_lshl_b32 s45, s36, 3\ns_add_u32 s44, s44, s45\ns_add_u32 s44, s44, s42")
    E("s_mov_b32 exec_hi, 0\nbuffer_store_dwordx2 v[228:229], v23, s[24:27], s44 offen sc1\ns_mov_b64 exec, -1")
    E("s_cmp_eq_u32 s36, 1\ns_cbranch_scc1 L_att_done")
    for r in range(8): E(f"v_mov_b32 v{12+r}, v{240+r}")
    E("s_mov_b32 s36, 1\ns_branch L_att")
    E.label("L_att_done")
    stamp(E,7)
    E("s_waitcnt vmcnt(0)")
    E(f"s_lshl_b32 s38, s33, 4\ns_add_u32 s38, s38, s34\ns_lshl_b32 s38, s38, 7\ns_add_u32 s38, s38, {WS_FO}")
    agg_flag(E,3,4,38,3,4)
    stamp(E,8)
    stamp_flush(E)
    E("s_endpgm")

def build():
    hdr=open("parallel_sum__sliding_block__mixer_channel_mlp__prompt.s.ref").read().split("; Override")[0]
    s=hdr+f"; @launch grid=(256,1,1) block=(512,1,1) lds={LDS_TOTAL}\n"
    s+='.amdgcn_target "amdgcn-amd-amdhsa--gfx950"\n.text\n'+kernel_header(KNAME)
    s+=prologue().text()+gen_A().text()+gen_F().text()
    s+='.section .rodata,"a"\n'+kernel_desc(KNAME,sgpr=102)
    return s
if __name__=="__main__":
    out=sys.argv[1] if len(sys.argv)>1 else "parallel_sum__sliding_block__mixer_channel_mlp__prompt.s"
    if len(sys.argv)>2 and sys.argv[2]=="instr": INSTR=True
    if len(sys.argv)>3: EXP.update(sys.argv[3].split(","))
    for e in EXP:
        if e.startswith("sleep"): SLEEP=int(e[5:])
    open(out,"w").write(build())
```

```python
import math, sys, struct
from asmlib import kernel_header, kernel_desc
from em import Em

KNAME="parallel_sum__sliding_block__mixer_channel_mlp__prompt_kernel"
WS_STATS=0; WS_CSP=0x10000; WS_FQ=0x90000; WS_FH=0x98000; WS_FO=0xA0000; WS_FW=0xA8000; SMALL_SZ=0xB0000
WS_W2T=0xB0000; W2T_SZ=8*68*5*1024
WS_Q=0x360000; QKV_SZ=0x280000
WS_HO=0xB00000; HO_SZ=0x880000
WS_STAMP=0x2000000
LOG2E=1.4426950408889634; CQ=(20**-0.5)*LOG2E
GC0=-2.0*LOG2E*math.sqrt(2.0/math.pi); GC1=GC0*0.044715
def fhex(f): return hex(struct.unpack("<I",struct.pack("<f",f))[0])
P_X,P_WQKV,P_WO,P_W1,P_B1,P_W2,P_B2,P_OUT,P_DBG,P_WS=60,62,64,68,70,72,74,76,78,80
SLOT=32768; P0=131072; P1=143360; U0=69632; CSF=155648; NON=156672; CNT=156704; STX=156768; B1F=156928; STA=157312; XCH=131072; CSCR=135168
GS=3104; VB=10*GS
def _ones():
    base=VB+10*GS; o0=base+((160-(base-VB))%256); b2=o0+3072; o1=b2+((64-(b2-VB))%256); return o0,o1,o1+3072
ONE0,ONE1,ATT_END=_ones(); RED=69632; LDS_TOTAL=163840
assert ATT_END<=RED
V0=20480
def wf_region(sg): return [P0,P1,U0,U0+12288,U0+2*12288,U0+3*12288,U0+4*12288,V0,V0+12288,V0+2*12288][sg]
S_NONCE=82
INSTR=False; EXP=set(); POLL_MAX=20000
_uid=[0]
def lab(b="L"):
    _uid[0]+=1; return f"{b}_{_uid[0]}"
NST=9
def stamp2(E,idx):
    if INSTR and 'barst' in EXP: E(f"s_memtime s[{84+2*idx}:{85+2*idx}]")
def stamp3(E,idx):
    if INSTR and 'epi' in EXP: E(f"s_memrealtime s[{84+2*idx}:{85+2*idx}]")
def stamp4(E,idx):
    if INSTR and 'gel' in EXP: E(f"s_memrealtime s[{84+2*idx}:{85+2*idx}]")
def stamp5(E,idx):
    if INSTR and 'fq' in EXP: E(f"s_memrealtime s[{84+2*idx}:{85+2*idx}]")
def stamp6(E,idx):
    if INSTR and 'att' in EXP:
        l=lab("s6"); E(f"s_cmp_eq_u32 s36, {0 if idx<5 else 1}\ns_cbranch_scc0 {l}\ns_memtime s[{84+2*idx}:{85+2*idx}]\n{l}:")
def stamp8(E,idx):
    if INSTR and 'p1b' in EXP: E(f"s_memtime s[{84+2*idx}:{85+2*idx}]")
def stamp(E,idx):
    if 'p1b' in EXP and idx>0: return
    if 'intv' in EXP and idx>0: return
    if 'lat' in EXP and idx>0: return
    if 'att' in EXP and idx>0: return
    if 'fq' in EXP and idx>0: return
    if 'gel' in EXP and idx>0: return
    if 'epi' in EXP and idx>0: return
    if 'barst' in EXP and idx>0: return
    if INSTR: E(f"s_mem{'time' if 'clk' in EXP else 'realtime'} s[{84+2*idx}:{85+2*idx}]")
def stamp_flush(E,role=0):
    if not INSTR: return
    E("s_waitcnt lgkmcnt(0)")
    if 'dbgts' in EXP:
        l=lab("dts")
        E(f"s_cmp_eq_u32 s35, 0\ns_cbranch_scc0 {l}")
        E(f"s_mov_b32 s52, s{P_DBG}\ns_mov_b32 s53, s{P_DBG+1}\ns_mov_b32 s54, 256\ns_mov_b32 s55, 0x20000\nv_mov_b32 v251, 0\ns_mov_b64 exec, 1")
        sel = (0,2,3,4,5,6,7,8) if role==0 else (2,3,4,5,6,7,8)
        base = 1 if role==0 else 9
        for n,i in enumerate(sel):
            E(f"s_sub_u32 s56, s{84+2*i}, s{S_NONCE}\nv_mov_b32 v250, s56\nbuffer_atomic_smax v250, v251, s[52:55], 0 offen offset:{4*(base+n)}")
        E("s_mov_b64 exec, -1"); E.label(l)
        return
    E(f"s_add_u32 s52, s{P_WS}, {WS_STAMP}\ns_addc_u32 s53, s{P_WS+1}, 0\ns_mov_b32 s54, 0x20000\ns_mov_b32 s55, 0x20000")
    E("s_lshl_b32 s56, s2, 3\ns_add_u32 s56, s56, s32\ns_lshl_b32 s56, s56, 6\nv_mov_b32 v251, 0")
    for i in range(NST):
        E(f"v_mov_b32 v250, s{84+2*i}"); E(f"buffer_store_dword v250, v251, s[52:55], s56 offen offset:{4*i}")
def srd(E,d,p,size,off=0):
    if off: E(f"s_add_u32 s{d}, s{p}, {off}\ns_addc_u32 s{d+1}, s{p+1}, 0")
    else: E(f"s_mov_b32 s{d}, s{p}\ns_mov_b32 s{d+1}, s{p+1}")
    E(f"s_mov_b32 s{d+2}, {size}\ns_mov_b32 s{d+3}, 0x20000")
SLEEP=8
def poll_slow(E,vaddr,vtmp):
    l0=lab("poll"); l1=lab("polld")
    E("s_mov_b32 s37, 0"); E.label(l0)
    E(f"buffer_load_dword v{vtmp}, v{vaddr}, s[16:19], 0 offen sc1\ns_waitcnt vmcnt(0)")
    E(f"v_cmp_ne_u32 vcc, s{S_NONCE}, v{vtmp}\ns_cbranch_vccz {l1}")
    E(f"s_add_u32 s37, s37, 1\ns_cmp_lt_u32 s37, {POLL_MAX}\ns_cbranch_scc0 {l1}\ns_sleep {SLEEP}\ns_branch {l0}")
    E.label(l1)
def check_or_poll(E,vaddr,vval):
    l0=lab("cp"); l1=lab("cpd")
    E(f"v_cmp_ne_u32 vcc, s{S_NONCE}, v{vval}\ns_cbranch_vccz {l1}\ns_mov_b32 s37, 0\n{l0}:\n"
      f"buffer_load_dword v{vval}, v{vaddr}, s[16:19], 0 offen sc1\ns_waitcnt vmcnt(0)\nv_cmp_ne_u32 vcc, s{S_NONCE}, v{vval}\ns_cbranch_vccz {l1}\n"
      f"s_add_u32 s37, s37, 1\ns_cmp_lt_u32 s37, {POLL_MAX}\ns_cbranch_scc0 {l1}\ns_sleep {SLEEP}\ns_branch {l0}\n{l1}:")
def poll_leader(E,vaddr,vtmp,vt2,goaddr):
    lw=lab("pw"); ld=lab("pd"); l0=lab("pl")
    E(f"v_mov_b32 v{vt2}, {goaddr}\ns_cmp_eq_u32 s35, 0\ns_cbranch_scc0 {lw}")
    poll_slow(E,vaddr,vtmp)
    E(f"v_mov_b32 v{vtmp}, s{S_NONCE}\nds_write_b32 v{vt2}, v{vtmp}\ns_waitcnt lgkmcnt(0)\ns_branch {ld}")
    E.label(lw)
    E(f"s_mov_b32 s37, 0\n{l0}:\nds_read_b32 v{vtmp}, v{vt2}\ns_waitcnt lgkmcnt(0)\nv_cmp_ne_u32 vcc, s{S_NONCE}, v{vtmp}\ns_cbranch_vccz {ld}\n"
      f"s_add_u32 s37, s37, 1\ns_cmp_lt_u32 s37, {POLL_MAX*8}\ns_cbranch_scc0 {ld}\ns_sleep 2\ns_branch {l0}")
    E.label(ld)
def flag_store(E,soff,vt0,vt1):
    E(f"v_mov_b32 v{vt0}, s{S_NONCE}\nv_mov_b32 v{vt1}, 0")
    return E.st(f"s_mov_b64 exec, 1\nbuffer_store_dword v{vt0}, v{vt1}, s[16:19], s{soff} offen sc1\ns_mov_b64 exec, -1")
def agg_flag(E,cnt_idx,nwaves,soff,vt0,vt1):
    l=lab("ag")
    E(f"v_mov_b32 v{vt0}, {CNT+4*cnt_idx}\nv_mov_b32 v{vt1}, 1\ns_mov_b64 exec, 1\nds_add_rtn_u32 v{vt1}, v{vt0}, v{vt1}\ns_waitcnt lgkmcnt(0)\ns_mov_b64 exec, -1\n"
      f"v_readfirstlane_b32 s37, v{vt1}\ns_nop 3\ns_cmp_eq_u32 s37, {nwaves-1}\ns_cbranch_scc0 {l}\nv_mov_b32 v{vt0}, s{S_NONCE}\nv_mov_b32 v{vt1}, 0\ns_mov_b64 exec, 1\n"
      f"buffer_store_dword v{vt0}, v{vt1}, s[16:19], s{soff} offen sc1\ns_mov_b64 exec, -1\n{l}:")
def lds_arrive(E,idx,vt0,vt1):
    E(f"v_mov_b32 v{vt0}, {CNT+4*idx}\nv_mov_b32 v{vt1}, 1\ns_mov_b64 exec, 1\nds_add_u32 v{vt0}, v{vt1}\ns_mov_b64 exec, -1")
def lds_wait(E,idx,target,vt0,vt1):
    l0=lab("lw"); l1=lab("lwd")
    E(f"v_mov_b32 v{vt0}, {CNT+4*idx}\ns_mov_b32 s37, 0\n{l0}:\nds_read_b32 v{vt1}, v{vt0}\ns_waitcnt lgkmcnt(0)\nv_cmp_gt_u32 vcc, {target}, v{vt1}\ns_cbranch_vccz {l1}\n"
      f"s_add_u32 s37, s37, 1\ns_cmp_lt_u32 s37, {POLL_MAX*8}\ns_cbranch_scc0 {l1}\ns_sleep 1\ns_branch {l0}\n{l1}:")
def allreduce(E,v,t1,t2):
    for dpp in ("quad_perm:[1,0,3,2]","quad_perm:[2,3,0,1]","row_half_mirror","row_mirror"):
        E(f"s_nop 1\nv_add_f32_dpp v{v}, v{v}, v{v} {dpp} row_mask:0xf bank_mask:0xf")
    for sw in ("16","32"):
        E(f"v_mov_b32 v{t1}, v{v}\nv_mov_b32 v{t2}, v{v}")
        E(f"s_nop 1\nv_permlane{sw}_swap_b32 v{t1}, v{t2}\ns_nop 1\nv_add_f32 v{v}, v{t1}, v{t2}")
def gelu_ops(x,t,c0):
    return [f"v_mul_f32 v{t}, v{x}, v{x}",f"v_fma_f32 v{t}, v{t}, s51, v{c0}",f"v_mul_f32 v{t}, v{t}, v{x}",
            f"v_exp_f32 v{t}, v{t}",f"v_add_f32 v{t}, 1.0, v{t}",f"v_rcp_f32 v{t}, v{t}",f"v_mul_f32 v{x}, v{x}, v{t}"]

def prologue():
    E=Em()
    E("s_cmp_ge_u32 s2, 256\ns_cbranch_scc1 L_end")
    stamp(E,0)
    E("s_load_dwordx2 s[4:5], s[0:1], 0\ns_load_dwordx2 s[8:9], s[0:1], 8\ns_load_dwordx2 s[12:13], s[0:1], 32\ns_load_dwordx2 s[16:17], s[0:1], 80")
    E("s_load_dwordx16 s[60:75], s[0:1], 0\ns_load_dwordx4 s[76:79], s[0:1], 64\ns_load_dwordx2 s[80:81], s[0:1], 80")
    E("v_lshrrev_b32 v1, 6, v0\nv_and_b32 v2, 63, v0\nv_readfirstlane_b32 s32, v1")
    E("s_mov_b32 s6, 2621440\ns_mov_b32 s7, 0x20000\ns_mov_b32 s10, %d\ns_mov_b32 s11, 0x20000"%(640*3840))
    E("s_mov_b32 s14, %d\ns_mov_b32 s15, 0x20000\ns_mov_b32 s18, %d\ns_mov_b32 s19, 0x20000"%(640*3072,SMALL_SZ))
    E("s_and_b32 s37, s2, 7\ns_lshr_b32 s38, s2, 3")
    E("s_lshr_b32 s33, s37, 2\ns_lshl_b32 s33, s33, 3\ns_and_b32 s39, s38, 7\ns_add_u32 s33, s33, s39")
    E("s_and_b32 s34, s37, 3\ns_lshl_b32 s34, s34, 2\ns_lshr_b32 s39, s38, 3\ns_add_u32 s34, s34, s39")
    E("s_min_u32 s41, s34, 14\ns_lshl_b32 s41, s41, 8\ns_mul_i32 s42, s34, 192")
    E("s_and_b32 s35, s32, 3\ns_cmp_ge_u32 s32, 4\ns_cbranch_scc1 L_F")
    return E

def gen_F():
    E=Em(); E.label("L_F")
    if 'nofprio' not in EXP: E("s_setprio 2")
    E("s_mov_b32 s45, 0\ns_mov_b32 s46, 0\ns_mul_i32 s40, s33, 163840\ns_lshl_b32 s43, s35, 12\ns_mul_i32 s44, s35, 3072")
    E("v_lshrrev_b32 v3, 3, v2\ns_lshl_b32 s39, s35, 5\nv_add_u32 v3, s39, v3\nv_mul_u32_u24 v3, 1280, v3")
    E("v_and_b32 v4, 7, v2\nv_lshrrev_b32 v5, 4, v2\nv_xor_b32 v6, v4, v5\nv_lshl_add_u32 v10, v6, 4, v3")
    E(f"v_or_b32 v7, 4, v5\nv_xor_b32 v7, v4, v7\nv_lshl_add_u32 v11, v7, 4, v3\nv_add_u32 v11, {8*1280}, v11")
    E(f"v_add_u32 v12, {16*1280}, v10\nv_add_u32 v13, {16*1280}, v11")
    E("s_lshl_b32 s39, s35, 4\nv_add_u32 v3, s39, v5\nv_mul_u32_u24 v3, 3840, v3")
    E("v_and_b32 v4, 15, v2\nv_lshlrev_b32 v6, 2, v5\nv_xor_b32 v4, v4, v6\nv_lshl_add_u32 v14, v4, 4, v3")
    for q in range(1,4): E(f"v_add_u32 v{14+q}, {q*4*3840}, v14")
    E("s_waitcnt lgkmcnt(0)")
    def dma_ops(tau):
        slot=tau%4; G=[]
        for q in range(4):
            pre=f"s_add_u32 s56, s40, {tau*128}\ns_add_u32 s57, s41, {tau*64*3840}\n" if q==0 else ""
            G.append(pre+f"s_add_u32 m0, s43, {slot*SLOT+q*1024}\ns_nop 0\nbuffer_load_dwordx4 v{10+q}, s[4:7], s56 offen lds")
        for q in range(4):
            G.append(f"s_add_u32 m0, s43, {slot*SLOT+16384+q*1024}\ns_nop 0\nbuffer_load_dwordx4 v{14+q}, s[8:11], s57 offen lds")
        return G
    WFV=(34,35,40)
    def dma_wf(sg, sink):
        reg=wf_region(sg); last=None
        for t in range(3):
            pre=f"s_add_u32 s58, s42, {sg*64*3072}\n" if t==0 else ""
            last=sink.vm(pre+f"s_add_u32 m0, s44, {reg+t*1024}\ns_nop 0\nbuffer_load_dwordx4 v{WFV[t]}, s[12:15], s58 offen lds")
        return last
    D={}
    for tau in range(3):
        for g in dma_ops(tau): D[tau]=E.vm(g)
    E(f"v_lshlrev_b32 v3, 3, v2\nv_mov_b32 v4, 0\nv_mov_b32 v5, 0\nv_add_u32 v6, {CSF+512}, v3\nv_add_u32 v3, {CNT}, v3")
    E("s_mov_b64 exec, 0xff"); E.lds("ds_write_b64 v3, v[4:5]"); E("s_mov_b64 exec, -1"); ci=E.lds("ds_write_b64 v6, v[4:5]")
    stamp(E,1)
    E("s_lshl_b32 s39, s35, 4")
    for t in range(3):
        E(f"v_add_u32 v3, {64*t}, v2\nv_mul_u32_u24 v4, 171, v3\nv_lshrrev_b32 v4, 11, v4\nv_mul_u32_u24 v5, 12, v4\nv_sub_u32 v5, v3, v5")
        E(f"v_add_u32 v4, s39, v4\nv_mul_u32_u24 v4, 3072, v4\nv_lshl_add_u32 v{WFV[t]}, v5, 4, v4")
    E("v_and_b32 v3, 31, v2\ns_lshl_b32 s37, s35, 5\nv_add_u32 v3, s37, v3\nv_lshrrev_b32 v4, 5, v2\nv_bfe_u32 v5, v3, 1, 3\nv_xor_b32 v5, v5, v4\nv_lshlrev_b32 v3, 7, v3")
    for t in range(4): E(f"v_xor_b32 v6, {2*t}, v5\nv_lshl_add_u32 v{18+t}, v6, 4, v3\nv_add_u32 v{22+t}, 65536, v{18+t}")
    E("v_bfe_u32 v3, v2, 4, 1\nv_lshrrev_b32 v4, 5, v2\nv_bfe_u32 v5, v2, 2, 2\nv_and_b32 v6, 3, v2\nv_lshl_add_u32 v7, v4, 3, v5")
    E(f"v_mul_u32_u24 v41, 192, v7\nv_lshl_add_u32 v41, v3, 5, v41\nv_lshl_add_u32 v41, v6, 3, v41\nv_add_u32 v47, {P0}, v41\nv_add_u32 v46, {U0}, v41")
    E("v_lshlrev_b32 v8, 8, v7\nv_add_u32 v8, 16384, v8\nv_lshrrev_b32 v9, 1, v6\nv_lshl_add_u32 v9, v3, 1, v9\nv_lshl_add_u32 v8, v9, 4, v8\nv_and_b32 v9, 1, v6\nv_lshl_add_u32 v8, v9, 3, v8")
    E("v_xor_b32 v9, s35, v5\nv_lshl_add_u32 v64, v9, 6, v8\nv_add_u32 v65, 65536, v64")
    E("v_and_b32 v3, 15, v2\nv_bfe_u32 v4, v2, 4, 1\nv_cmp_eq_u32 vcc, v3, v4\nv_mov_b32 v5, 0x3f803f80\ns_nop 0\nv_cndmask_b32 v36, 0, v5, vcc\nv_mov_b32 v37, v36\nv_mov_b32 v38, v36\nv_mov_b32 v39, v36")
    E("v_mov_b32 v66, 0\nv_mov_b32 v67, 0\nv_mov_b32 v68, 0\nv_mov_b32 v69, 0")
    XS=96; W={}; xr={}
    PRE=Em()
    PRE("s_lshl_b32 s37, s33, 7\ns_lshl_b32 s38, s34, 3\ns_add_u32 s37, s37, s38\ns_lshl_b32 s38, s35, 1\ns_add_u32 s37, s37, s38\ns_mul_i32 s36, s37, 1280")
    PRE("v_and_b32 v3, 31, v2\nv_mul_u32_u24 v3, 40, v3\nv_lshrrev_b32 v4, 5, v2\nv_mul_u32_u24 v4, 1280, v4\nv_add_u32 v3, v3, v4")
    srd(PRE,48,P_DBG,256)
    l=lab("non")
    PRE(f"s_or_b32 s37, s2, s35\ns_cmp_eq_u32 s37, 0\ns_cbranch_scc0 {l}\ns_memrealtime s[54:55]\ns_waitcnt lgkmcnt(0)\ns_or_b32 s54, s54, 1\nv_mov_b32 v6, s54\nv_mov_b32 v7, 0\ns_mov_b64 exec, 1\n"
        f"buffer_store_dword v6, v7, s[48:51], 0 offen sc1\ns_mov_b64 exec, -1\n{l}:")
    l=lab("nl")
    PRE(f"v_mov_b32 v82, 0\nv_mov_b32 v81, 0\ns_cmp_eq_u32 s35, 0\ns_cbranch_scc0 {l}\nbuffer_load_dword v81, v82, s[48:51], 0 offen sc1\n{l}:")
    PRE.vm("buffer_load_dwordx4 v[70:73], v3, s[4:7], s36 offen"); PRE.vm("buffer_load_dwordx4 v[74:77], v3, s[4:7], s36 offen offset:16")
    PRE.vm("buffer_load_dwordx2 v[78:79], v3, s[4:7], s36 offen offset:32")
    srd(PRE,52,P_B1,3072)
    PRE("v_lshlrev_b32 v4, 2, v2\ns_mul_i32 s37, s34, 192\nv_min_u32 v4, 188, v4")
    pl1=PRE.vm("buffer_load_dword v80, v4, s[52:55], s37 offen")
    F=Em()
    F.wv(pl1)
    l0=lab("n0"); l1=lab("n1"); l2=lab("n2")
    F(f"s_cmp_eq_u32 s35, 0\ns_cbranch_scc0 {l2}\ns_mov_b32 s37, 0\n{l0}:\nv_readfirstlane_b32 s{S_NONCE}, v81\ns_nop 3\ns_cmp_lg_u32 s{S_NONCE}, 0\ns_cbranch_scc1 {l1}\n"
      f"s_add_u32 s37, s37, 1\ns_cmp_lt_u32 s37, {POLL_MAX}\ns_cbranch_scc0 {l1}\ns_sleep 1\nbuffer_load_dword v81, v82, s[48:51], 0 offen sc1\ns_waitcnt vmcnt(0)\ns_branch {l0}\n{l1}:\n"
      f"v_mov_b32 v82, {NON}\nds_write_b32 v82, v81\n{l2}:")
    F("v_lshlrev_b32 v82, 16, v80"); F("v_and_b32 v83, 0xffff0000, v80"); F("v_min_u32 v4, 47, v2"); F("v_lshlrev_b32 v4, 3, v4"); F(f"v_add_u32 v4, {B1F}, v4")
    F.lds("ds_write_b64 v4, v[82:83]")
    B=200
    for i in range(10):
        F(f"v_lshlrev_b32 v{B+2*i}, 16, v{70+i}"); F(f"v_and_b32 v{B+2*i+1}, 0xffff0000, v{70+i}")
    F(f"v_add_f32 v70, v{B}, v{B+1}"); F(f"v_add_f32 v71, v{B+2}, v{B+3}")
    for i in range(4,20,2):
        F(f"v_add_f32 v70, v70, v{B+i}"); F(f"v_add_f32 v71, v71, v{B+i+1}")
    F("v_add_f32 v70, v70, v71")
    def red32(v):
        for dpp in ("quad_perm:[1,0,3,2]","quad_perm:[2,3,0,1]","row_half_mirror","row_mirror"):
            F(f"s_nop 1\nv_add_f32_dpp v{v}, v{v}, v{v} {dpp} row_mask:0xf bank_mask:0xf")
        F(f"v_mov_b32 v78, v{v}\nv_mov_b32 v79, v{v}")
        F(f"s_nop 1\nv_permlane16_swap_b32 v78, v79\ns_nop 1\nv_add_f32 v{v}, v78, v79")
    red32(70)
    F(f"v_mul_f32 v70, {fhex(1.0/640)}, v70")
    nF1=len(F.it)
    for i in range(20): F(f"v_sub_f32 v{B+i}, v{B+i}, v70")
    F(f"v_mul_f32 v71, v{B}, v{B}"); F(f"v_mul_f32 v72, v{B+1}, v{B+1}")
    for i in range(2,20,2):
        F(f"v_fmac_f32 v71, v{B+i}, v{B+i}"); F(f"v_fmac_f32 v72, v{B+i+1}, v{B+i+1}")
    F("v_add_f32 v71, v71, v72")
    red32(71)
    F(f"v_mul_f32 v71, {fhex(1.0/640)}, v71"); F(f"v_add_f32 v72, {fhex(1e-5)}, v71")
    F("v_rsq_f32 v75, v72\ns_nop 0"); F("v_mul_f32 v73, v75, v75"); F("v_mul_f32 v73, v73, v71"); F(f"v_add_f32 v73, {fhex(1e-5)}, v73")
    F("v_rsq_f32 v73, v73\nv_mov_b32 v74, v70"); F("s_nop 0\nv_mul_f32 v76, v75, v73")
    F("v_lshrrev_b32 v78, 5, v2"); F("v_lshlrev_b32 v78, 4, v78"); F(f"s_lshl_b32 s37, s35, 5\ns_add_u32 s37, s37, {STX}"); F("v_add_u32 v78, s37, v78"); F("v_mov_b32 v77, 0")
    F.lds("ds_write_b128 v78, v[74:77]")
    F2=Em()
    F2(f"v_mov_b32 v3, {NON}"); nr=F2.lds("ds_read_b32 v83, v3")
    F2("v_and_b32 v78, 7, v2"); F2("v_lshlrev_b32 v78, 4, v78"); F2(f"v_add_u32 v79, {STX}, v78")
    sr=F2.lds("ds_read_b128 v[74:77], v79"); F2.wl(sr); F2(f"v_mov_b32 v77, v83\nv_readfirstlane_b32 s{S_NONCE}, v83")
    l=lab("sst")
    F2(f"s_cmp_eq_u32 s35, 0\ns_cbranch_scc0 {l}\ns_lshl_b32 s37, s33, 7\ns_lshl_b32 s38, s34, 3\ns_add_u32 s37, s37, s38\ns_lshl_b32 s37, s37, 4\ns_mov_b64 exec, 0xff\n"
       f"buffer_store_dwordx4 v[74:77], v78, s[16:19], s37 offen sc1\ns_mov_b64 exec, -1\n{l}:")
    allF=list(F.it)
    def part(L,a,b):
        x=Em(); x.it=L[a:b]; return x
    def cat(*xs):
        y=Em()
        for x in xs:
            if x: y.it+=x.it
        return y
    fill={1:part(allF,0,nF1), 2:part(allF,nF1,len(allF)), 3:F2}
    E.wv(D[0]); E.wl(ci); E("s_barrier"); stamp(E,2); stamp2(E,1)
    csr={}
    for tau in range(10):
        M=Em(); slot=tau%4
        if tau==0: M.extend(PRE)
        for t in range(4):
            a=(18 if slot<2 else 22)+t; u=4*tau+t
            xr[u]=M.lds(f"ds_read_b128 v[{XS+4*u}:{XS+4*u+3}], v{a} offset:{(slot&1)*SLOT}")
        wa=64 if slot<2 else 65; so=(slot&1)*SLOT
        for t in range(4):
            for jj in range(2):
                csr[t]=M.lds(f"ds_read_b64_tr_b16 v[{48+4*t+2*jj}:{49+4*t+2*jj}], v{wa} offset:{so+(16*t+4*jj)*256}")
        M.slot(10)
        tn = 3 if tau==0 else (tau+2 if (tau>=2 and tau+2<=9) else None)
        if tn is not None:
            for k,g in enumerate(dma_ops(tn)):
                D[tn]=M.vm(g); M.slot(10)
                if k==1:
                    for t in range(4):
                        M.wl(csr[t]); M(f"v_mfma_f32_16x16x32_bf16 v[66:69], v[36:39], v[{48+4*t}:{51+4*t}], v[66:69]")
        else:
            for t in range(4):
                M.wl(csr[t]); M(f"v_mfma_f32_16x16x32_bf16 v[66:69], v[36:39], v[{48+4*t}:{51+4*t}], v[66:69]")
            M.slot(300)
        if tau==6: W[0]=dma_wf(0,M)
        if tau==7: W[1]=dma_wf(1,M)
        if tau==8: W[2]=dma_wf(2,M); W[3]=dma_wf(3,M)
        if tau==9:
            for sg in range(4,7): W[sg]=dma_wf(sg,M)
        if fill.get(tau): M.merge(fill[tau])
        E.extend(M)
        if tau<9:
            E.wv(D[tau+1])
            if tau+1==9: E.wv(W[1])
            E("s_waitcnt lgkmcnt(0)")
            E("s_barrier")
            if tau<7: stamp2(E,tau+2)
    E(f"v_and_b32 v3, 15, v2\nv_lshlrev_b32 v3, 2, v3\ns_lshl_b32 s37, s35, 7\ns_add_u32 s37, s37, {CSF}\nv_add_u32 v3, s37, v3\ns_nop 4")
    E("s_mov_b64 exec, 0xffff"); E.lds("ds_write_b32 v3, v66"); cq=E.lds("ds_write_b32 v3, v67 offset:64"); E("s_mov_b64 exec, -1")
    E.wl(cq); lds_arrive(E,8,3,8)
    if 'nofprio' not in EXP: E("s_setprio 0")
    stamp(E,3)
    ACC=48
    for r in list(range(32))+[36,37,38,39]: E(f"v_mov_b32 v{ACC+r}, 0")
    for r in (4,5,6,7,42,43,44,45): E(f"v_mov_b32 v{r}, 0")
    E("s_mul_i32 s37, s35, 3072\ns_add_u32 s37, s37, 128\nv_add_u32 v88, s37, v47\nv_add_u32 v89, s37, v46\nv_add_u32 v90, s37, v41")
    def wf_addr(sg):
        reg=wf_region(sg)
        return (47,reg-P0) if reg>=P0 else ((46,reg-U0) if reg>=U0 else (41,reg))
    SA=[10,18,26]
    rd={}
    def readsA(u):
        sg,t=divmod(u,4); base,ro=wf_addr(sg); L=[]
        for T in range(2):
            fr=SA[u%3]+4*T
            for jj in range(2): L.append(f"ds_read_b64_tr_b16 v[{fr+2*jj}:{fr+2*jj+1}], v{base} offset:{ro+(16*t+4*jj)*192+64*T}")
        return L
    E.wl(xr[39])
    stamp8(E,1)
    for u in (0,1):
        for r in readsA(u): rd[u]=E.lds(r)
    for u in range(40):
        if u==3: stamp8(E,2)
        if u==7: stamp8(E,3)
        if u==15: stamp8(E,4)
        if u==27: stamp8(E,5)
        if u==16:
            lds_wait(E,8,4,3,8)
            lds_wait(E,5,4,3,8)
            for sg2 in (7,8,9): W[sg2]=dma_wf(sg2,E)
        if u==4: E.wv(W[3]); lds_arrive(E,6,3,8)
        if u==6: lds_wait(E,6,4,3,8)
        if u==12: E.wv(W[6]); lds_arrive(E,6,3,8)
        if u==14: lds_wait(E,6,8,3,8)
        if u==24: E.wv(W[9]); lds_arrive(E,6,3,8)
        if u==26:
            lds_wait(E,6,12,3,8)
        E.wl(rd[u])
        rl=readsA(u+2) if u+2<40 else []
        for T in range(2):
            fr=SA[u%3]+4*T; a=ACC+16*T
            E(f"v_mfma_f32_32x32x16_bf16 v[{a}:{a+15}], v[{fr}:{fr+3}], v[{XS+4*u}:{XS+4*u+3}], v[{a}:{a+15}]")
            for r in rl[2*T:2*T+2]: rd[u+2]=E.lds(r)
        sg_,t_=divmod(u,4)
        if t_==0:
            base,ro=wf_addr(sg_); b2={47:88,46:89,41:90}[base]
            E.lds(f"ds_read_b64_tr_b16 v[80:81], v{b2} offset:{ro}"); c2r=E.lds(f"ds_read_b64_tr_b16 v[82:83], v{b2} offset:{ro+4*192}")
        if t_==3:
            E.wl(c2r); E("v_mfma_f32_16x16x32_bf16 v[84:87], v[36:39], v[80:83], v[84:87]")
        l=lab("csm")
        fr=SA[u%3]
        E(f"s_cmp_eq_u32 s35, {u&3}\ns_cbranch_scc0 {l}\nv_mfma_f32_16x16x32_bf16 v[4:7], v[36:39], v[{fr}:{fr+3}], v[4:7]\nv_mfma_f32_16x16x32_bf16 v[42:45], v[36:39], v[{fr+4}:{fr+7}], v[42:45]\n{l}:")
    stamp8(E,6)
    E(f"v_and_b32 v3, 15, v2\nv_lshlrev_b32 v3, 2, v3\nv_add_u32 v9, {CSF+512}, v3\ns_nop 6")
    E("s_mov_b64 exec, 0xffff")
    E.lds("ds_add_f32 v9, v4"); E.lds("ds_add_f32 v9, v5 offset:64"); E.lds("ds_add_f32 v9, v42 offset:128"); E.lds("ds_add_f32 v9, v43 offset:192")
    E.lds("ds_add_f32 v9, v84 offset:256"); ca=E.lds("ds_add_f32 v9, v85 offset:320")
    E("s_mov_b64 exec, -1")
    E.wl(ca); lds_arrive(E,6,3,8)
    for r in range(16): E(f"v_mov_b32 v{ACC+32+r}, 0")
    srd(E,24,P_WS,HO_SZ,off=WS_HO)
    E(f"s_mov_b32 s51, {fhex(GC1)}\nv_mov_b32 v40, {fhex(GC0)}")
    E(f"v_lshrrev_b32 v3, 5, v2\nv_lshlrev_b32 v34, 4, v3\nv_add_u32 v35, {B1F}, v34\nv_add_u32 v34, {CSF+512}, v34")
    E("v_bfe_u32 v8, v2, 4, 1\nv_lshlrev_b32 v44, 10, v8\nv_lshl_add_u32 v44, v3, 8, v44\nv_and_b32 v8, 15, v2\nv_lshl_add_u32 v44, v8, 4, v44")
    E(f"v_and_b32 v8, 31, v2\ns_lshl_b32 s37, s35, 5\nv_add_u32 v8, s37, v8\nv_lshlrev_b32 v8, 3, v8\nv_add_u32 v8, {STA}, v8")
    sta=E.lds("ds_read_b64 v[42:43], v8")
    E("s_lshl_b32 s45, s33, 1\ns_lshr_b32 s46, s35, 1\ns_add_u32 s45, s45, s46\ns_mul_i32 s45, s45, 68\ns_mul_i32 s46, s34, 3\ns_add_u32 s45, s45, s46\ns_lshl_b32 s45, s45, 12")
    E("s_and_b32 s46, s35, 1\ns_lshl_b32 s46, s46, 11\ns_add_u32 s45, s45, s46")
    SBk=[10,14,18,22,26]
    def readsB(u):
        sg,t=divmod(u,4); base,ro=wf_addr(sg); fr=SBk[u%5]
        return [f"ds_read_b64_tr_b16 v[{fr+2*jj}:{fr+2*jj+1}], v{base} offset:{ro+(16*t+4*jj)*192+128}" for jj in range(2)]
    hs=[None]
    def gelu_tile(G,T,cb0,tt):
        a0=ACC+16*T; rr={}
        order=(0,2,1,3)
        def rd_(i):
            a=order[i]; c=cb0+8*(i%2)
            G.lds(f"ds_read_b128 v[{c}:{c+3}], v34 offset:{128*T+32*a}")
            rr[i]=G.lds(f"ds_read_b128 v[{c+4}:{c+7}], v35 offset:{128*T+32*a}")
        rd_(0); rd_(1)
        for i in range(4):
            a=order[i]; b=a0+4*a; c=cb0+8*(i%2)
            G.wl(rr[i])
            for k in range(4): G(f"v_fma_f32 v{c+4+k}, v42, v{c+k}, v{c+4+k}")
            for k in range(4): G(f"v_fma_f32 v{b+k}, v{b+k}, v43, v{c+4+k}")
            if i+2<4: rd_(i+2)
            ops=[[f"v_mul_f32 v{tt+k}, v{b+k}, v{b+k}",f"v_fma_f32 v{tt+k}, v{tt+k}, s51, v40",f"v_mul_f32 v{tt+k}, v{tt+k}, v{b+k}",f"v_exp_f32 v{tt+k}, v{tt+k}",
                  f"v_add_f32 v{tt+k}, 1.0, v{tt+k}",f"v_rcp_f32 v{tt+k}, v{tt+k}",f"v_mul_f32 v{b+k}, v{b+k}, v{tt+k}"] for k in range(4)]
            for s_ in range(7):
                for k in range(4): G(ops[k][s_])
            o=a0+{0:0,2:2,1:4,3:6}[a]
            G(f"v_cvt_pk_bf16_f32 v{o}, v{b}, v{b+1}"); G(f"v_cvt_pk_bf16_f32 v{o+1}, v{b+2}, v{b+3}")
        G(f"s_add_u32 s46, s45, {T*4096}")
        G.vm(f"buffer_store_dwordx4 v[{a0}:{a0+3}], v44, s[24:27], s46 offen sc1")
        hs[0]=G.vm(f"buffer_store_dwordx4 v[{a0+4}:{a0+7}], v44, s[24:27], s46 offen offset:512 sc1")
    G=Em()
    G.wl(sta)
    gelu_tile(G,0,208,30); gelu_tile(G,1,208,30)
    rd={}
    order=list(range(28,40))+list(range(0,28))
    def readsB2(n):
        u=order[n]; sg,t=divmod(u,4); base,ro=wf_addr(sg); fr=SBk[n%5]
        return [f"ds_read_b64_tr_b16 v[{fr+2*jj}:{fr+2*jj+1}], v{base} offset:{ro+(16*t+4*jj)*192+128}" for jj in range(2)]
    for n in range(4):
        for r in readsB2(n): rd[n]=E.lds(r)
    M=Em(); a=ACC+32
    for n in range(40):
        u=order[n]
        M.wl(rd[n]); fr=SBk[n%5]
        M(f"v_mfma_f32_32x32x16_bf16 v[{a}:{a+15}], v[{fr}:{fr+3}], v[{XS+4*u}:{XS+4*u+3}], v[{a}:{a+15}]")
        if n+4<40:
            for r in readsB2(n+4): rd[n+4]=M.lds(r)
        if n==4:
            x=Em(); lds_wait(x,6,16,3,8); M.extend(x)
        if n==12:
            x=Em(); lds_arrive(x,7,3,8); M.extend(x)
        if n>=4: M.slot(9)
    M.merge(G)
    E.extend(M)
    stamp8(E,7)
    E("s_nop 6")
    stamp(E,4)
    G=Em(); gelu_tile(G,2,208,30); E.extend(G)
    stamp8(E,8)
    hs=hs[0]
    E(f"s_lshl_b32 s59, s33, 4\ns_add_u32 s59, s59, s34\ns_lshl_b32 s59, s59, 7\ns_add_u32 s59, s59, {WS_FH}")
    E("s_and_b32 s37, s2, 7\ns_lshr_b32 s38, s2, 3")
    E("s_lshr_b32 s33, s37, 2\ns_lshl_b32 s33, s33, 4\ns_bfe_u32 s39, s37, 0x10001\ns_lshl_b32 s39, s39, 3\ns_add_u32 s33, s33, s39\ns_and_b32 s39, s38, 7\ns_add_u32 s33, s33, s39")
    E("s_and_b32 s34, s37, 1\ns_lshl_b32 s34, s34, 2\ns_lshr_b32 s39, s38, 3\ns_add_u32 s34, s34, s39")
    srd(E,8,P_WS,W2T_SZ,off=WS_W2T); srd(E,12,P_B2,1280); srd(E,20,P_OUT,2621440)
    E("v_lshrrev_b32 v3, 1, v2\nv_min_u32 v3, 16, v3\ns_mul_i32 s37, s35, 12\ns_mul_i32 s38, s35, 5\ns_add_u32 s38, s38, 36")
    E("v_add_u32 v4, s37, v3\nv_add_u32 v5, s38, v3\nv_cmp_gt_u32 vcc, 12, v3\ns_nop 1\nv_cndmask_b32 v4, v5, v4, vcc")
    E("s_mul_i32 s37, s34, 5\ns_lshr_b32 s38, s37, 2\ns_add_u32 s37, s37, 4\ns_lshr_b32 s39, s37, 2")
    E("v_and_b32 v5, 1, v2\nv_mov_b32 v6, s38\nv_mov_b32 v7, s39\nv_cmp_eq_u32 vcc, 0, v5\ns_nop 1\nv_cndmask_b32 v6, v7, v6, vcc")
    E(f"v_mul_u32_u24 v4, 10, v4\nv_add_u32 v4, v4, v6\nv_mul_u32_u24 v4, 683, v4\nv_lshrrev_b32 v4, 11, v4\nv_lshlrev_b32 v4, 7, v4\nv_add_u32 v4, {WS_FW}, v4")
    fw=E.vm("buffer_load_dword v8, v4, s[16:19], 0 offen sc1")
    E("v_mov_b32 v9, v4")
    E("v_lshlrev_b32 v3, 4, v2\nv_add_u32 v4, 4096, v3")
    E("v_and_b32 v5, 15, v2\ns_lshl_b32 s39, s33, 6\ns_lshl_b32 s40, s35, 4\ns_add_u32 s39, s39, s40\nv_add_u32 v5, s39, v5\nv_mul_u32_u24 v5, 1280, v5\nv_lshrrev_b32 v6, 4, v2\nv_lshlrev_b32 v6, 3, v6")
    E("s_mul_i32 s39, s34, 160\nv_add_u32 v6, s39, v6\nv_add_u32 v5, v5, v6")
    E("s_mul_i32 s40, s33, %d\ns_mul_i32 s41, s34, %d"%(68*4096,68*5120))
    E("s_mul_i32 s42, s35, 12\ns_mul_i32 s43, s35, 5\ns_add_u32 s43, s43, 48")
    E("s_lshl_b32 s44, s42, 12\ns_add_u32 s44, s44, s40\ns_mul_i32 s45, s42, 5120\ns_add_u32 s45, s45, s41")
    E("s_lshl_b32 s46, s43, 12\ns_add_u32 s46, s46, s40\ns_mul_i32 s47, s43, 5120\ns_add_u32 s47, s47, s41")
    ACC3=10; WB=[100+20*i for i in range(5)]; HB=[200,216,232]
    XR=90; B2R=248
    LW={}; LH={}
    def loadsW(i):
        b=WB[i%5]; ws_,ii=(45,i) if i<12 else (47,i-12)
        E(f"s_add_u32 s57, s{ws_}, {ii*5120}")
        for nt in range(4): E.vm(f"buffer_load_dwordx4 v[{b+4*nt}:{b+4*nt+3}], v3, s[8:11], s57 offen offset:{1024*nt} sc1")
        LW[i]=E.vm(f"buffer_load_dwordx4 v[{b+16}:{b+19}], v4, s[8:11], s57 offen sc1")
    def loadsH(i):
        b=HB[i%3]; hs_,ii=(44,i) if i<12 else (46,i-12)
        E(f"s_add_u32 s56, s{hs_}, {ii*4096}")
        for tt in range(4): LH[i]=E.vm(f"buffer_load_dwordx4 v[{b+4*tt}:{b+4*tt+3}], v3, s[24:27], s56 offen offset:{1024*tt} sc1")
    for r in range(80): E(f"v_mov_b32 v{ACC3+r}, 0")
    stamp4(E,5)
    E.wv(hs); stamp4(E,6); agg_flag(E,2,4,59,7,8) if False else None
    E.wv(fw)
    agg_flag(E,2,4,59,7,207)
    stamp(E,5)
    check_or_poll(E,9,8)
    for nt in range(5): E.vm(f"buffer_load_dwordx2 v[{XR+2*nt}:{XR+2*nt+1}], v5, s[4:7], 0 offen offset:{32*nt}")
    for i in range(5): loadsW(i)
    def group_addr(base,vd):
        E(f"v_and_b32 v{vd}, 3, v2\ns_lshl_b32 s37, s35, 2\nv_add_u32 v{vd}, s37, v{vd}\ns_lshr_b32 s37, s33, 1\ns_lshl_b32 s37, s37, 4\nv_add_u32 v{vd}, s37, v{vd}\nv_lshlrev_b32 v{vd}, 7, v{vd}\nv_add_u32 v{vd}, {base}, v{vd}")
    group_addr(WS_FH,7)
    poll_slow(E,7,8)
    stamp(E,6)
    group_addr(WS_FO,7)
    if 'fidle' in EXP: poll_slow(E,7,8)
    for i in range(3): loadsH(i)
    for i in range(17):
        if i==8: fo=E.vm("buffer_load_dword v9, v7, s[16:19], 0 offen sc1")
        if i==9:
            E.wv(fo); check_or_poll(E,7,9)
        E.wv(LH[i]); E.wv(LW[i])
        b=WB[i%5]; h=HB[i%3]
        for nt in range(5):
            for tt in range(4):
                a=ACC3+16*nt+4*tt
                E(f"v_mfma_f32_16x16x32_bf16 v[{a}:{a+3}], v[{b+4*nt}:{b+4*nt+3}], v[{h+4*tt}:{h+4*tt+3}], v[{a}:{a+3}]")
        if i+3<17: loadsH(i+3)
        if i+5<17: loadsW(i+5)
        if i==12:
            for nt in range(4): E.vm(f"buffer_load_dwordx2 v[{B2R+2*nt}:{B2R+2*nt+1}], v6, s[12:15], 0 offen offset:{32*nt}")
            b2l=E.vm(f"buffer_load_dwordx2 v[8:9], v6, s[12:15], 0 offen offset:128")
    stamp(E,7)
    E("s_nop 15")
    E(f"s_mul_i32 s39, s35, 20480\ns_add_u32 s39, s39, {RED}\nv_add_u32 v7, s39, v3")
    for nt in range(5):
        for tt in range(4):
            a=ACC3+16*nt+4*tt
            w_=E.lds(f"ds_write_b128 v7, v[{a}:{a+3}] offset:{(nt*4+tt)*1024}")
    E.wl(w_); E("s_barrier")
    E(f"s_lshl_b32 s39, s35, 10\ns_add_u32 s39, s39, {RED}\nv_add_u32 v7, s39, v3\nv_add_u32 v2, 40960, v7")
    R=100
    for nt in range(5):
        for w in range(4):
            base=7 if w<2 else 2
            r_=E.lds(f"ds_read_b128 v[{R+16*nt+4*w}:{R+16*nt+4*w+3}], v{base} offset:{(w%2)*20480+nt*4096}")
    E.wv(b2l); E.wl(r_)
    for nt in range(5):
        b=R+16*nt
        for i in range(4): E(f"v_add_f32 v{b+i}, v{b+i}, v{b+4+i}\nv_add_f32 v{b+8+i}, v{b+8+i}, v{b+12+i}")
        for i in range(4): E(f"v_add_f32 v{b+i}, v{b+i}, v{b+8+i}")
        b2=(B2R+2*nt) if nt<4 else 8
        for (src,t0) in ((XR+2*nt,10),(b2,14)):
            E(f"v_lshlrev_b32 v{t0}, 16, v{src}\nv_and_b32 v{t0+1}, 0xffff0000, v{src}\nv_lshlrev_b32 v{t0+2}, 16, v{src+1}\nv_and_b32 v{t0+3}, 0xffff0000, v{src+1}")
        for i in range(4): E(f"v_add_f32 v{b+i}, v{b+i}, v{14+i}")
        for i in range(4): E(f"v_add_f32 v{b+i}, v{b+i}, v{10+i}")
        E(f"v_cvt_pk_bf16_f32 v{20+2*nt}, v{b}, v{b+1}\nv_cvt_pk_bf16_f32 v{21+2*nt}, v{b+2}, v{b+3}")
        E.st(f"buffer_store_dwordx2 v[{20+2*nt}:{21+2*nt}], v5, s[20:23], 0 offen offset:{32*nt}")
    stamp(E,8)
    stamp_flush(E,1)
    E.label("L_end"); E("s_endpgm"); E.label("L_codeend")
    return E


def gen_A():
    E=Em()
    if 'nopf' not in EXP:
        E("s_getpc_b64 s[56:57]\nL_pc:\ns_sub_u32 s56, s56, L_pc-%s\ns_subb_u32 s57, s57, 0"%KNAME)
        E("v_lshlrev_b32 v3, 7, v2\ns_lshl_b32 s37, s35, 13\nv_add_u32 v3, s37, v3\nv_add_u32 v8, 0x8000, v3\nv_min_u32 v8, L_codeend-%s-4, v8"%KNAME)
        E("v_mov_b32 v5, s57\nv_add_co_u32 v4, vcc, s56, v3\ns_nop 1\nv_addc_co_u32 v5, vcc, 0, v5, vcc")
        E.vm("global_load_dword v254, v[4:5], off")
        E("v_mov_b32 v5, s57\nv_add_co_u32 v4, vcc, s56, v8\ns_nop 1\nv_addc_co_u32 v5, vcc, 0, v5, vcc")
        E.vm("global_load_dword v255, v[4:5], off")
    E("v_and_b32 v3, 31, v2\ns_lshl_b32 s37, s35, 5\nv_add_u32 v3, s37, v3\nv_lshrrev_b32 v4, 5, v2\nv_bfe_u32 v5, v3, 1, 3\nv_xor_b32 v5, v5, v4\nv_lshlrev_b32 v3, 7, v3")
    for t in range(4): E(f"v_xor_b32 v6, {2*t}, v5\nv_lshl_add_u32 v{10+t}, v6, 4, v3\nv_add_u32 v{14+t}, 65536, v{10+t}")
    E("v_bfe_u32 v3, v2, 4, 1\nv_lshrrev_b32 v4, 5, v2\nv_bfe_u32 v5, v2, 2, 2\nv_and_b32 v6, 3, v2\nv_lshl_add_u32 v7, v4, 3, v5")
    E("v_lshlrev_b32 v8, 8, v7\nv_add_u32 v8, 16384, v8\nv_lshrrev_b32 v9, 1, v6\nv_lshl_add_u32 v9, v3, 1, v9\nv_lshl_add_u32 v8, v9, 4, v8\nv_and_b32 v9, 1, v6\nv_lshl_add_u32 v8, v9, 3, v8")
    for T in range(4): E(f"v_xor_b32 v9, {T}, v5\nv_lshl_add_u32 v{18+T}, v9, 6, v8\nv_add_u32 v{22+T}, 65536, v{18+T}")
    E("s_waitcnt lgkmcnt(0)")
    stamp(E,1)
    ACC=96; FR=(160,180,200)
    for r in range(64): E(f"v_mov_b32 v{ACC+r}, 0")
    F3=Em()
    F3(f"v_mov_b32 v3, {NON}"); nr=F3.lds("ds_read_b32 v62, v3"); F3.wl(nr); F3(f"s_nop 0\nv_readfirstlane_b32 s{S_NONCE}, v62")
    F3("v_and_b32 v3, 31, v2"); F3("s_lshl_b32 s37, s33, 7\ns_lshl_b32 s38, s35, 5\ns_add_u32 s37, s37, s38"); F3("v_add_u32 v3, s37, v3")
    F3("v_lshlrev_b32 v91, 3, v3"); F3("v_lshlrev_b32 v90, 4, v3")
    F4=Em()
    stl=F4.vm("buffer_load_dwordx4 v[92:95], v90, s[16:19], 0 offen sc1")
    def reads(u):
        tau,t=divmod(u,4); slot=tau%4; hi=slot>=2; fr=FR[u%3]; so=(slot&1)*SLOT
        L=[f"ds_read_b128 v[{fr}:{fr+3}], v{(14 if hi else 10)+t} offset:{so}"]
        for T in range(4):
            for jj in range(2):
                d=fr+4+4*T+2*jj
                L.append(f"ds_read_b64_tr_b16 v[{d}:{d+1}], v{(22 if hi else 18)+T} offset:{so+(16*t+4*jj)*256}")
        return L
    rd={}
    E("s_barrier"); stamp(E,2)
    for u in (0,1):
        for r in reads(u): rd[u]=E.lds(r)
    def steps(u0,u1,filler,per):
        M=Em()
        for u in range(u0,u1):
            tau,t=divmod(u,4); fr=FR[u%3]
            M.wl(rd[u])
            rl=reads(u+2) if u+2<40 else []
            cuts=[0,3,5,7,9]
            for T in range(4):
                a=ACC+16*T
                if "nomfma" not in EXP: M(f"v_mfma_f32_32x32x16_bf16 v[{a}:{a+15}], v[{fr+4+4*T}:{fr+7+4*T}], v[{fr}:{fr+3}], v[{a}:{a+15}]")
                for r in rl[cuts[T]:cuts[T+1]]: rd[u+2]=M.lds(r)
                M.slot(per)
        if filler: M.merge(filler)
        E.extend(M)
    steps(0,2,None,0); E("s_barrier")
    for b in range(2,10):
        steps(4*b-6,4*b-2,{6:F3,8:F4}.get(b),2); E("s_barrier")
    steps(34,40,None,0)
    stamp(E,3)
    srd(E,20,P_WS,3*QKV_SZ,off=WS_Q)
    E("s_cmp_eq_u32 s34, 15\ns_cselect_b32 s22, 0, s22")
    E("s_mul_i32 s45, s34, 205\ns_lshr_b32 s45, s45, 10\ns_mul_i32 s46, s45, 5\ns_sub_u32 s46, s34, s46")
    E(f"v_lshrrev_b32 v4, 5, v2\nv_lshlrev_b32 v26, 4, v4\nv_add_u32 v26, {CSF}, v26\nv_lshlrev_b32 v4, 14, v4\nv_add_u32 v91, v91, v4")
    E(f"v_and_b32 v8, 31, v2\ns_lshl_b32 s37, s35, 5\nv_add_u32 v8, s37, v8\nv_lshlrev_b32 v8, 3, v8\nv_add_u32 v8, {STA}, v8")
    E.wv(stl)
    l0=lab("sp"); l1=lab("spd")
    E(f"v_cmp_ne_u32 vcc, s{S_NONCE}, v95\ns_cbranch_vccz {l1}\ns_mov_b32 s37, 0\n{l0}:\nbuffer_load_dwordx4 v[92:95], v90, s[16:19], 0 offen sc1\ns_waitcnt vmcnt(0)\n"
      f"v_cmp_ne_u32 vcc, s{S_NONCE}, v95\ns_cbranch_vccz {l1}\ns_add_u32 s37, s37, 1\ns_cmp_lt_u32 s37, {POLL_MAX}\ns_cbranch_scc0 {l1}\ns_sleep 2\ns_branch {l0}\n{l1}:")
    E("v_mul_f32 v6, v92, v94\nv_sub_f32 v6, 0, v6\nv_mov_b32 v7, v94")
    sw=E.lds("ds_write_b64 v8, v[6:7]")
    E(f"v_mul_f32 v94, {fhex(CQ)}, v93\ns_cmp_eq_u32 s45, 0\ns_cselect_b64 vcc, -1, 0\ns_nop 1\nv_cndmask_b32 v93, v93, v94, vcc\nv_sub_f32 v92, 0, v92")
    E(f"s_mul_i32 s45, s45, {QKV_SZ}\ns_lshl_b32 s46, s46, 19\ns_add_u32 s45, s45, s46")
    E.wl(sw); lds_arrive(E,5,3,4)
    stamp3(E,2)
    lds_wait(E,8,4,3,4)
    stamp3(E,3)
    crs=[]
    for T in range(4):
        for a in range(4): cr=E.lds(f"ds_read_b128 v[{160+16*T+4*a}:{163+16*T+4*a}], v26 offset:{128*T+32*a}")
        crs.append(cr)
    for T in range(4):
        E.wl(crs[T])
        for a in range(4):
            b=ACC+16*T+4*a; c=160+16*T+4*a
            for i in range(4): E(f"v_fma_f32 v{b+i}, v92, v{c+i}, v{b+i}")
            for i in range(4): E(f"v_mul_f32 v{b+i}, v{b+i}, v93")
            o=40+2*((4*T+a)%8)
            E(f"v_cvt_pk_bf16_f32 v{o}, v{b}, v{b+1}\nv_cvt_pk_bf16_f32 v{o+1}, v{b+2}, v{b+3}")
            E(f"s_add_u32 s46, s45, {(8*T+2*a)*16384}")
            qs=E.st(f"buffer_store_dwordx2 v[{o}:{o+1}], v91, s[20:23], s46 offen sc1")
    stamp3(E,4)
    E.wv(qs)
    stamp3(E,7)
    E(f"s_lshl_b32 s38, s33, 4\ns_add_u32 s38, s38, s34\ns_lshl_b32 s38, s38, 7\ns_add_u32 s38, s38, {WS_FQ}")
    agg_flag(E,0,4,38,3,4)
    stamp3(E,8)
    stamp(E,4)
    T_=Em()
    T_("s_mul_i32 s31, s2, 3\ns_add_u32 s31, s31, s35\ns_cmp_lt_u32 s35, 3\ns_cselect_b32 s31, s31, 1000\ns_min_u32 s31, s31, 680")
    T_("s_min_u32 s28, s31, 679\ns_mul_i32 s29, s28, 6554\ns_lshr_b32 s29, s29, 16\ns_mul_i32 s30, s29, 10\ns_sub_u32 s30, s28, s30")
    T_(f"s_cmp_ge_u32 s29, 48\ns_cselect_b32 s52, s{P_WO}, s{P_W2}\ns_cselect_b32 s53, s{P_WO+1}, s{P_W2+1}\ns_mov_b32 s54, {640*1280}\ns_cselect_b32 s54, s54, {1536*1280}\ns_mov_b32 s55, 0x20000\ns_cselect_b64 s[56:57], -1, 0")
    T_("v_lshrrev_b32 v84, 3, v2"); T_("v_and_b32 v85, 7, v2"); T_("s_lshl_b32 s28, s30, 7"); T_("v_lshl_add_u32 v85, v85, 4, s28")
    T_("s_sub_u32 s38, s29, 48\ns_lshl_b32 s58, s38, 2\ns_lshl_b32 s59, s29, 5"); T_("v_lshrrev_b32 v86, 5, v2"); T_("v_and_b32 v87, 3, v84")
    for i in range(4):
        half=i>>1
        for x in (f"v_add_u32 v88, {2*(i&1)}, v86","v_add_u32 v88, s58, v88","v_mul_u32_u24 v89, 205, v88","v_lshrrev_b32 v89, 10, v89","v_mul_u32_u24 v90, 5, v89","v_sub_u32 v90, v88, v90",
                  "v_lshrrev_b32 v91, 1, v90","v_and_b32 v92, 1, v90",f"v_add_u32 v92, {2*half}, v92"): T_(x)
        T_(f"v_cmp_eq_u32 vcc, 4, v90\nv_mov_b32 v88, {half}\nv_mov_b32 v90, 4\nv_cndmask_b32 v91, v91, v88, vcc\nv_cndmask_b32 v92, v92, v90, vcc")
        for x in ("v_lshl_add_u32 v91, v89, 1, v91","v_mul_u32_u24 v91, 20, v91","v_lshl_add_u32 v91, v92, 2, v91","v_add_u32 v91, v91, v87"): T_(x)
        T_(f"v_add_u32 v88, {8*i}, v84"); T_("v_add_u32 v88, s59, v88")
        T_("v_cndmask_b32 v91, v88, v91, s[56:57]")
        T_("v_mul_u32_u24 v91, 1280, v91"); T_("v_add_u32 v91, v91, v85")
        cld=T_.vm(f"buffer_load_dwordx4 v[{220+4*i}:{223+4*i}], v91, s[52:55], 0 offen")
    C2=Em()
    C2(f"s_mul_i32 s59, s35, 5120\ns_add_u32 s59, s59, 0")
    C2("v_lshrrev_b32 v84, 3, v2"); C2("v_mul_u32_u24 v84, 160, v84"); C2("v_and_b32 v85, 7, v2"); C2("v_lshl_add_u32 v84, v85, 4, v84"); C2("v_add_u32 v84, s59, v84")
    C2.wv(cld)
    for i in range(4): cw=C2.lds(f"ds_write_b128 v84, v[{220+4*i}:{223+4*i}] offset:{8*160*i}")
    C2("v_lshrrev_b32 v85, 2, v2"); C2("v_mul_u32_u24 v85, 160, v85"); C2("v_and_b32 v86, 3, v2"); C2("v_lshl_add_u32 v85, v86, 3, v85"); C2("v_add_u32 v85, s59, v85")
    srd(C2,52,P_WS,W2T_SZ,off=WS_W2T)
    C2.wl(cw)
    for i in range(4):
        C2.lds(f"ds_read_b64_tr_b16 v[{220+4*i}:{221+4*i}], v85 offset:{32*i}")
        cr=C2.lds(f"ds_read_b64_tr_b16 v[{222+4*i}:{223+4*i}], v85 offset:{32*i+16*160}")
    C2("v_lshlrev_b32 v86, 4, v2")
    C2.wl(cr)
    l=lab("cst"); txt=f"s_cmp_lt_u32 s31, 680\ns_cbranch_scc0 {l}\n"
    for i in range(4):
        txt+=(f"s_lshl_b32 s37, s30, 2\ns_add_u32 s37, s37, {i}\ns_mul_i32 s38, s37, 205\ns_lshr_b32 s38, s38, 10\ns_mul_i32 s39, s38, 5\ns_sub_u32 s39, s37, s39\n"
              "s_mul_i32 s38, s38, 68\ns_add_u32 s38, s38, s29\ns_mul_i32 s38, s38, 5\ns_add_u32 s38, s38, s39\ns_lshl_b32 s38, s38, 10\n"
              f"buffer_store_dwordx4 v[{220+4*i}:{223+4*i}], v86, s[52:55], s38 offen sc1\n")
    C2(txt+f"{l}:")
    E.extend(T_); lds_wait(E,5,4,3,4); E.extend(C2)
    E("s_waitcnt vmcnt(0)")
    E(f"s_lshl_b32 s38, s2, 7\ns_add_u32 s38, s38, {WS_FW}")
    agg_flag(E,1,4,38,3,4)
    E(f"s_mov_b32 s22, {3*QKV_SZ}")
    srd(E,24,P_WS,HO_SZ,off=WS_HO)
    E("s_mul_i32 s37, s34, 10\ns_lshr_b32 s38, s37, 5\ns_add_u32 s37, s37, 9\ns_lshr_b32 s39, s37, 5")
    E("v_min_u32 v3, 13, v2\nv_mul_u32_u24 v4, 43, v3\nv_lshrrev_b32 v4, 8, v4\nv_mul_u32_u24 v5, 6, v4\nv_sub_u32 v5, v3, v5")
    E("v_mul_u32_u24 v6, 86, v5\nv_lshrrev_b32 v6, 8, v6\nv_mul_u32_u24 v7, 3, v6\nv_sub_u32 v7, v5, v7")
    E("v_cmp_eq_u32 vcc, 2, v4\nv_mov_b32 v8, 0\ns_nop 0\nv_cndmask_b32 v6, v6, v5, vcc\nv_cndmask_b32 v7, v7, v8, vcc")
    E("v_add_u32 v8, 1, v4\nv_mul_u32_u24 v8, 5, v8\nv_cmp_eq_u32 vcc, 15, v8\nv_mov_b32 v9, 0\ns_nop 0\nv_cndmask_b32 v8, v8, v9, vcc")
    E("v_mov_b32 v9, s38\nv_mov_b32 v20, s39\nv_cmp_eq_u32 vcc, 0, v6\ns_nop 1\nv_cndmask_b32 v9, v20, v9, vcc\nv_add_u32 v8, v8, v9")
    E(f"v_sub_u32 v9, s33, v7\nv_max_i32 v9, 0, v9\nv_lshl_add_u32 v8, v9, 4, v8\nv_lshlrev_b32 v8, 7, v8\nv_add_u32 v8, {WS_FQ}, v8")
    E("v_mov_b32 v10, 0x3f80\nv_mov_b32 v11, 0\nv_lshlrev_b32 v4, 3, v0")
    E.lds(f"ds_write_b64 v4, v[10:11] offset:{ONE0}"); E(f"v_add_u32 v5, {ONE1}, v4"); E.lds("ds_write_b64 v5, v[10:11]")
    E("v_min_u32 v6, 127, v0\nv_lshlrev_b32 v6, 3, v6"); E.lds(f"ds_write_b64 v6, v[10:11] offset:{ONE0+2048}"); E(f"v_add_u32 v6, {ONE1}, v6"); E.lds("ds_write_b64 v6, v[10:11] offset:2048")
    E("s_lshl_b32 s40, s33, 10\ns_sub_u32 s40, s40, 2048\ns_mul_i32 s41, s34, %d\ns_add_u32 s40, s40, s41\ns_add_u32 s40, s40, %d"%(10*16384,QKV_SZ))
    E(f"s_lshl_b32 s41, s35, 14\ns_add_u32 s28, s40, s41\ns_mul_i32 s42, s35, {GS}\ns_add_u32 s29, s28, {4*16384}")
    E(f"s_cmp_ge_u32 s35, 2\ns_cselect_b32 s45, {QKV_SZ-10*16384}, 0\ns_add_u32 s30, s28, s45\ns_add_u32 s30, s30, {8*16384}\ns_add_u32 s31, s28, {12*16384+QKV_SZ-10*16384}")
    E("s_waitcnt lgkmcnt(0)")
    lds_wait(E,7,4,3,4)
    stamp5(E,4)
    if 'fq' in EXP:
        E("buffer_load_dword v9, v8, s[16:19], 0 offen sc1\ns_waitcnt vmcnt(0)"); stamp5(E,5)
    if 'nopollq' not in EXP: poll_leader(E,8,9,20,NON+16)
    E("v_lshlrev_b32 v3, 4, v2")
    stamp(E,5); stamp4(E,1); stamp5(E,6)
    for n in range(5):
        for p in range(3):
            E.vm(f"s_add_u32 m0, s42, {4*n*GS+1024*p}\ns_add_u32 s47, s{28+min(n,3)}, {1024*p+(4*16384 if n==4 else 0)}\nbuffer_load_dwordx4 v3, s[20:23], s47 offen sc1 lds")
    E("v_and_b32 v5, 31, v2\nv_lshrrev_b32 v6, 5, v2\ns_lshl_b32 s40, s33, 7\ns_lshl_b32 s41, s35, 5\ns_add_u32 s40, s40, s41")
    E("v_add_u32 v7, s40, v5\nv_lshlrev_b32 v7, 3, v7\nv_lshl_add_u32 v8, v6, 15, v7")
    for e,QF in ((0,12),(1,232)):
        E(f"s_mul_i32 s41, s34, 10\ns_add_u32 s41, s41, {5*e}\ns_lshl_b32 s41, s41, 14")
        E.vm(f"buffer_load_dwordx2 v[{QF}:{QF+1}], v8, s[20:23], s41 offen sc1"); E("s_add_u32 s42, s41, 16384")
        E.vm(f"buffer_load_dwordx2 v[{QF+2}:{QF+3}], v8, s[20:23], s42 offen sc1"); E("s_add_u32 s42, s41, 65536")
        E.vm(f"buffer_load_dwordx2 v[{QF+4}:{QF+5}], v7, s[20:23], s42 offen sc1")
        E(f"v_mov_b32 v{QF+6}, 0\nv_mov_b32 v{QF+7}, 0")
    stamp4(E,2)
    E("s_waitcnt vmcnt(0) lgkmcnt(0)")
    stamp4(E,3)
    E("v_cmp_eq_u32 vcc, 0, v6\ns_nop 1")
    for QF in (12,232): E(f"v_cndmask_b32 v{QF+4}, 0, v{QF+4}, vcc\nv_cndmask_b32 v{QF+5}, 0, v{QF+5}, vcc")
    l0=lab("kv"); l1=lab("kvd")
    E(f"v_mov_b32 v9, {CNT+16}\nv_mov_b32 v10, 1\ns_mov_b64 exec, 1\nds_add_u32 v9, v10\ns_mov_b64 exec, -1\ns_mov_b32 s37, 0\n{l0}:\nds_read_b32 v10, v9\ns_waitcnt lgkmcnt(0)\n"
      f"v_cmp_ne_u32 vcc, 4, v10\ns_cbranch_vccz {l1}\ns_add_u32 s37, s37, 1\ns_cmp_lt_u32 s37, {POLL_MAX*8}\ns_cbranch_scc0 {l1}\ns_sleep 1\ns_branch {l0}\n{l1}:")
    stamp(E,6); stamp4(E,4)
    attention(E)
    return E


def attention_fast(E):
    KF=32; SB=(104,120,136); PB=(152,160); O=168; CN=184; M0=200; M8=216; Q1=232; VB_=(240,248); QF=12
    PM0=None
    NEG=fhex(-1e30)
    E(f"s_lshl_b32 s43, s35, 8\nv_lshlrev_b32 v9, 3, v5\nv_add_u32 v9, s43, v9\nv_mul_u32_u24 v20, {2*GS}, v6\nv_add_u32 v20, v20, v9\nv_add_u32 v21, {4*GS}, v9")
    kr={}
    def kreads(e,ts):
        for t in ts:
            kf=KF+8*t; o=5*GS*e
            E.lds(f"ds_read_b64 v[{kf}:{kf+1}], v20 offset:{o+256*t}"); E.lds(f"ds_read_b64 v[{kf+2}:{kf+3}], v20 offset:{o+256*t+GS}")
            kr[t]=E.lds(f"ds_read_b64 v[{kf+4}:{kf+5}], v21 offset:{o+256*t}")
    for t in range(9): E(f"v_mov_b32 v{KF+8*t+6}, 0\nv_mov_b32 v{KF+8*t+7}, 0")
    kreads(0,range(9))
    E("v_bfe_u32 v22, v2, 4, 1\nv_and_b32 v23, 3, v2\nv_bfe_u32 v24, v2, 2, 2\nv_lshl_add_u32 v24, v6, 2, v24\nv_lshlrev_b32 v24, 3, v24\nv_add_u32 v24, s43, v24")
    E(f"v_lshl_add_u32 v25, v22, 2, v23\nv_mul_u32_u24 v26, {GS}, v25\nv_add_u32 v26, {VB}, v26\nv_cmp_lt_u32 vcc, 4, v25\nv_mov_b32 v7, {ONE0}\nv_mov_b32 v8, {ONE1}")
    E(f"v_cndmask_b32 v22, v26, v7, vcc\nv_add_u32 v26, {5*GS}, v26\nv_cndmask_b32 v23, v26, v8, vcc\nv_add_u32 v22, v22, v24\nv_add_u32 v23, v23, v24")
    E(f"v_mov_b32 v28, {NEG}\nv_mov_b32 v27, 0\nv_lshlrev_b32 v29, 2, v6\nv_sub_u32 v29, v5, v29")
    for r in range(16):
        kk=8*(r>>2)+(r&3)
        E(f"v_cmp_le_i32 vcc, {kk}, v29\ns_nop 1\nv_cndmask_b32 v{M8+r}, v28, v27, vcc\nv_cndmask_b32 v{M0+r}, v27, v28, vcc")
    E("v_bfe_u32 v24, v2, 4, 1\nv_lshlrev_b32 v24, 10, v24\nv_and_b32 v25, 15, v2\nv_lshl_add_u32 v24, v25, 4, v24")
    E("s_lshl_b32 s42, s33, 1\ns_lshr_b32 s43, s35, 1\ns_add_u32 s42, s42, s43\ns_mul_i32 s42, s42, 68\ns_add_u32 s42, s42, 48\ns_lshl_b32 s42, s42, 12\ns_and_b32 s43, s35, 1\ns_lshl_b32 s43, s43, 11\ns_add_u32 s42, s42, s43")
    E("s_mul_i32 s40, s34, 5")
    def qk(t,cinit):
        kf=KF+8*t; d=SB[t%3]
        return [f"v_mfma_f32_32x32x16_bf16 v[{d}:{d+15}], v[{kf}:{kf+3}], v[{QF}:{QF+3}], {cinit}",
                f"v_mfma_f32_32x32x16_bf16 v[{d}:{d+15}], v[{kf+4}:{kf+7}], v[{QF+4}:{QF+7}], v[{d}:{d+15}]"]
    def maxes(t,first):
        d=SB[t%3]; L=[]
        for i in range(8):
            acc=30+(i&1)
            if first and i<2: L.append(f"v_max_f32 v{acc}, v{d+2*i}, v{d+2*i+1}")
            else: L.append(f"v_max3_f32 v{acc}, v{acc}, v{d+2*i}, v{d+2*i+1}")
        return L
    for e in range(2):
        va=22+e
        stamp6(E,1) if e==0 else stamp6(E,5)
        for t in range(9):
            E.wl(kr[t])
            ci = f"v[{M0}:{M0+15}]" if t==0 else (f"v[{M8}:{M8+15}]" if t==8 else "0")
            m=qk(t,ci); E(m[0])
            mx=maxes(t-2,t==2) if t>=2 else []
            for x in mx[:4]: E(x)
            E(m[1])
            for x in mx[4:]: E(x)
            if t==1: E("s_nop 7")
        stamp6(E,2) if e==0 else stamp6(E,6)
        E("s_nop 3")
        for x in maxes(7,False): E(x)
        E("s_nop 1")
        for x in maxes(8,False): E(x)
        E("v_max_f32 v30, v30, v31\ns_nop 0\nv_mov_b32 v31, v30\nv_mov_b32 v29, v30\ns_nop 1\nv_permlane32_swap_b32 v31, v29\ns_nop 1\nv_max_f32 v30, v31, v29\nv_sub_f32 v30, 0, v30")
        for r in range(16): E(f"v_mov_b32 v{CN+r}, v30")
        if e==0: stamp6(E,3)
        vr_={}
        def vreads(t):
            vf=VB_[t%2]
            for m in range(2):
                E.lds(f"ds_read_b64_tr_b16 v[{vf+4*m}:{vf+4*m+1}], v{va} offset:{256*t+128*m}")
                vr_[t]=E.lds(f"ds_read_b64_tr_b16 v[{vf+4*m+2}:{vf+4*m+3}], v{va} offset:{256*t+128*m+64}")
        def cin(t): return f"v[{SB[0]}:{SB[0]+15}]" if t==0 else (f"v[{SB[2]}:{SB[2]+15}]" if t==8 else f"v[{CN}:{CN+15}]")
        vreads(0)
        for r in range(16): E(f"v_add_f32 v{SB[0]+r}, v{M0+r}, v30")
        E("s_nop 1")
        for x in qk(0,cin(0)): E(x)
        for x in qk(1,cin(1)): E(x)
        vreads(1)
        E("s_nop 5")
        def pv(t):
            vf=VB_[t%2]; p=PB[t%2]
            c0 = "0" if t==0 else f"v[{O}:{O+15}]"
            return [f"v_mfma_f32_32x32x16_bf16 v[{O}:{O+15}], v[{vf}:{vf+3}], v[{p}:{p+3}], {c0}",
                    f"v_mfma_f32_32x32x16_bf16 v[{O}:{O+15}], v[{vf+4}:{vf+7}], v[{p+4}:{p+7}], v[{O}:{O+15}]"]
        for t in range(9):
            d=SB[t%3]; p=PB[t%2]
            nx=qk(t+2,cin(t+2)) if t+2<9 else []
            pp=pv(t-1) if t>=1 else []
            if t>=1: E.wl(vr_[t-1])
            ms=[]
            if pp: ms.append(pp[0])
            if t+2==8:
                pre8=[f"v_add_f32 v{SB[2]+r}, v{M8+r}, v30" for r in range(16)]
            else: pre8=[]
            seq=[]
            mf=[]
            if pp: mf+= [pp[0]]
            if nx and not pre8: mf+=[nx[0]]
            if pp: mf+=[pp[1]]
            if nx and not pre8: mf+=[nx[1]]
            k=0
            for g in range(4):
                for r in range(4*g,4*g+4): E(f"v_exp_f32 v{d+r}, v{d+r}")
                if k<len(mf): E(mf[k]); k+=1
            while k<len(mf): E(mf[k]); k+=1
            if t>=1 and t+1<9: vreads(t+1)
            if pre8:
                for x in pre8: E(x)
                E("s_nop 1"); E(nx[0]); E(nx[1])
            for r in range(8): E(f"v_cvt_pk_bf16_f32 v{p+r}, v{d+2*r}, v{d+2*r+1}")
            if e==0 and t==6: kreads(1,range(0,5))
            if e==0 and t==7: kreads(1,range(5,9))
        E.wl(vr_[8]); E("s_nop 1")
        for x in pv(8): E(x)
        stamp6(E,4) if e==0 else stamp6(E,7)
        PK=SB[0]
        E(f"s_lshl_b32 s41, {e}, 1\ns_add_u32 s41, s41, s40" if False else f"s_add_u32 s41, s40, {2*e}")
        E("v_add_u32 v10, s41, v6\nv_lshrrev_b32 v11, 2, v10\nv_lshlrev_b32 v11, 12, v11\nv_and_b32 v10, 3, v10\nv_lshl_add_u32 v11, v10, 8, v11\nv_add_u32 v11, v11, v24")
        E(f"s_add_u32 s45, s40, 4\ns_lshr_b32 s44, s45, 2\ns_lshl_b32 s44, s44, 12\ns_and_b32 s45, s45, 3\ns_lshl_b32 s45, s45, 8\ns_add_u32 s44, s44, s45\ns_add_u32 s44, s44, {8*e}\ns_add_u32 s44, s44, s42")
        if e==0:
            for r in range(8): E(f"v_mov_b32 v{12+r}, v{Q1+r}")
        else: E("s_nop 7")
        E(f"v_mov_b32 v30, v{O+8}\nv_mov_b32 v31, v{O+8}\ns_nop 1\nv_permlane32_swap_b32 v30, v31\ns_nop 1\nv_rcp_f32 v31, v31\ns_nop 0")
        for r in range(12): E(f"v_mul_f32 v{O+r}, v{O+r}, v31")
        for r in range(6): E(f"v_cvt_pk_bf16_f32 v{PK+r}, v{O+2*r}, v{O+2*r+1}")
        E(f"buffer_store_dwordx4 v[{PK}:{PK+3}], v11, s[24:27], s42 offen sc1")
        E(f"s_mov_b32 exec_hi, 0\nbuffer_store_dwordx2 v[{PK+4}:{PK+5}], v24, s[24:27], s44 offen sc1\ns_mov_b64 exec, -1")
    E("s_branch L_att_done")

def att_out(E,O,loop,Q1,PK):
    E(f"s_nop 7\nv_mov_b32 v30, v{O+8}\nv_mov_b32 v31, v{O+8}\ns_nop 1\nv_permlane32_swap_b32 v30, v31\ns_nop 1\nv_rcp_f32 v31, v31\ns_nop 0")
    for r in range(12): E(f"v_mul_f32 v{O+r}, v{O+r}, v31")
    for r in range(6): E(f"v_cvt_pk_bf16_f32 v{PK+r}, v{O+2*r}, v{O+2*r+1}")
    E("s_mul_i32 s40, s34, 5\ns_lshl_b32 s41, s36, 1\ns_add_u32 s41, s41, s40")
    E("v_add_u32 v10, s41, v6\nv_lshrrev_b32 v11, 2, v10\nv_lshlrev_b32 v11, 12, v11\nv_and_b32 v10, 3, v10\nv_lshl_add_u32 v11, v10, 8, v11")
    E("v_bfe_u32 v23, v2, 4, 1\nv_lshlrev_b32 v23, 10, v23\nv_and_b32 v24, 15, v2\nv_lshl_add_u32 v23, v24, 4, v23\nv_add_u32 v11, v11, v23")
    E("s_lshl_b32 s42, s33, 1\ns_lshr_b32 s43, s35, 1\ns_add_u32 s42, s42, s43\ns_mul_i32 s42, s42, 68\ns_add_u32 s42, s42, 48\ns_lshl_b32 s42, s42, 12\ns_and_b32 s43, s35, 1\ns_lshl_b32 s43, s43, 11\ns_add_u32 s42, s42, s43")
    E(f"buffer_store_dwordx4 v[{PK}:{PK+3}], v11, s[24:27], s42 offen sc1")
    E("s_add_u32 s40, s40, 4\ns_lshr_b32 s44, s40, 2\ns_lshl_b32 s44, s44, 12\ns_and_b32 s45, s40, 3\ns_lshl_b32 s45, s45, 8\ns_add_u32 s44, s44, s45\ns_lshl_b32 s45, s36, 3\ns_add_u32 s44, s44, s45\ns_add_u32 s44, s44, s42")
    E(f"s_mov_b32 exec_hi, 0\nbuffer_store_dwordx2 v[{PK+4}:{PK+5}], v23, s[24:27], s44 offen sc1\ns_mov_b64 exec, -1")
    E(f"s_cmp_eq_u32 s36, 1\ns_cbranch_scc1 L_att_done")
    for r in range(8): E(f"v_mov_b32 v{12+r}, v{Q1+r}")
    E(f"s_mov_b32 s36, 1\ns_branch {loop}")
def attention_slow(E):
    E("s_lshl_b32 s46, s33, 2\ns_add_u32 s46, s46, s35\ns_sub_i32 s46, 8, s46\ns_max_i32 s46, s46, 0\ns_mov_b32 s36, 0")
    E.label("L_att")
    E(f"s_mul_i32 s42, s36, {5*GS}\ns_lshl_b32 s43, s35, 8\ns_add_u32 s42, s42, s43")
    E(f"v_lshlrev_b32 v9, 3, v5\nv_add_u32 v9, s42, v9\nv_mul_u32_u24 v20, {2*GS}, v6\nv_add_u32 v20, v20, v9\nv_add_u32 v21, {4*GS}, v9")
    E("v_bfe_u32 v22, v2, 4, 1\nv_and_b32 v23, 3, v2\nv_bfe_u32 v24, v2, 2, 2\nv_lshl_add_u32 v24, v6, 2, v24\nv_lshlrev_b32 v24, 3, v24\nv_add_u32 v24, s43, v24")
    E(f"v_lshl_add_u32 v25, v22, 2, v23\nv_mul_u32_u24 v26, {GS}, v25\ns_mul_i32 s44, s36, {5*GS}\ns_add_u32 s44, s44, {VB}\nv_add_u32 v26, s44, v26")
    E(f"s_mov_b32 s45, {ONE1}\ns_cmp_eq_u32 s36, 0\ns_cselect_b32 s45, {ONE0}, s45\nv_mov_b32 v27, s45\nv_cmp_lt_u32 vcc, 4, v25\ns_nop 1\nv_cndmask_b32 v26, v26, v27, vcc\nv_add_u32 v22, v26, v24")
    S=32; KF=176; QF=12
    for st in range(2): E(f"v_mov_b32 v{KF+8*st+6}, 0\nv_mov_b32 v{KF+8*st+7}, 0")
    E(f"v_mov_b32 v28, {fhex(-1e30)}")
    for t in range(9):
        kf=KF+8*(t%2); d=S+16*t; skip=lab("ts"); done=lab("td")
        E(f"s_cmp_gt_u32 s46, {t}\ns_cbranch_scc1 {skip}")
        E(f"ds_read_b64 v[{kf}:{kf+1}], v20 offset:{256*t}\nds_read_b64 v[{kf+2}:{kf+3}], v20 offset:{256*t+GS}\nds_read_b64 v[{kf+4}:{kf+5}], v21 offset:{256*t}\ns_waitcnt lgkmcnt(0)")
        E(f"v_mfma_f32_32x32x16_bf16 v[{d}:{d+15}], v[{kf}:{kf+3}], v[{QF}:{QF+3}], 0\nv_mfma_f32_32x32x16_bf16 v[{d}:{d+15}], v[{kf+4}:{kf+7}], v[{QF+4}:{QF+7}], v[{d}:{d+15}]")
        E(f"s_branch {done}"); E.label(skip)
        for r in range(16): E(f"v_mov_b32 v{d+r}, v28")
        E.label(done)
    E("s_nop 15\nv_lshlrev_b32 v29, 2, v6\nv_sub_u32 v29, v5, v29")
    for r in range(16):
        kk=8*(r>>2)+(r&3)
        E(f"v_cmp_le_i32 vcc, {kk}, v29\ns_nop 1\nv_cndmask_b32 v{S+128+r}, v28, v{S+128+r}, vcc\nv_cndmask_b32 v{S+r}, v{S+r}, v28, vcc")
    E(f"v_max3_f32 v30, v{S}, v{S+1}, v{S+2}")
    r=3
    while r<144:
        if r+1<144: E(f"v_max3_f32 v30, v30, v{S+r}, v{S+r+1}"); r+=2
        else: E(f"v_max_f32 v30, v30, v{S+r}"); r+=1
    E("v_mov_b32 v31, v30\nv_mov_b32 v29, v30\ns_nop 1\nv_permlane32_swap_b32 v31, v29\ns_nop 1\nv_max_f32 v30, v31, v29")
    for t in range(9):
        d=S+16*t
        for r in range(16): E(f"v_sub_f32 v{d+r}, v{d+r}, v30")
        for r in range(16): E(f"v_exp_f32 v{d+r}, v{d+r}")
        E("s_nop 0")
        for r in range(8): E(f"v_cvt_pk_bf16_f32 v{d+r}, v{d+2*r}, v{d+2*r+1}")
    O=192; VF=208
    for r in range(16): E(f"v_mov_b32 v{O+r}, 0")
    for t in range(9):
        d=S+16*t; vf=VF+8*(t%2); skip=lab("ps")
        E(f"s_cmp_gt_u32 s46, {t}\ns_cbranch_scc1 {skip}")
        for m in range(2):
            E(f"ds_read_b64_tr_b16 v[{vf+4*m}:{vf+4*m+1}], v22 offset:{256*t+128*m}\nds_read_b64_tr_b16 v[{vf+4*m+2}:{vf+4*m+3}], v22 offset:{256*t+128*m+64}")
        E("s_waitcnt lgkmcnt(0)")
        for m in range(2): E(f"v_mfma_f32_32x32x16_bf16 v[{O}:{O+15}], v[{vf+4*m}:{vf+4*m+3}], v[{d+4*m}:{d+4*m+3}], v[{O}:{O+15}]")
        E.label(skip)
    E("s_nop 7")
    att_out(E,O,"L_att",232,224)

def attention(E):
    if 'noaprio' not in EXP: E("s_setprio 1")
    E("s_cmp_lt_u32 s33, 2\ns_cbranch_scc1 L_att_slow")
    attention_fast(E)
    E.label("L_att_slow")
    attention_slow(E)
    E.label("L_att_done")
    stamp(E,7)
    E("s_waitcnt vmcnt(0)")
    E(f"s_lshl_b32 s38, s33, 4\ns_add_u32 s38, s38, s34\ns_lshl_b32 s38, s38, 7\ns_add_u32 s38, s38, {WS_FO}")
    agg_flag(E,3,4,38,3,4)
    stamp(E,8)
    stamp_flush(E)
    E("s_endpgm")

def build():
    hdr=open("parallel_sum__sliding_block__mixer_channel_mlp__prompt.s.ref").read().split("; Override")[0]
    s=hdr+f"; @launch grid=(256,1,1) block=(512,1,1) lds={LDS_TOTAL}\n"
    s+='.amdgcn_target "amdgcn-amd-amdhsa--gfx950"\n.text\n'+kernel_header(KNAME)
    s+=prologue().text()+gen_A().text()+gen_F().text()
    s+='.section .rodata,"a"\n'+kernel_desc(KNAME,sgpr=102)
    return s
if __name__=="__main__":
    out=sys.argv[1] if len(sys.argv)>1 else "parallel_sum__sliding_block__mixer_channel_mlp__prompt.s"
    if len(sys.argv)>2 and sys.argv[2]=="instr": INSTR=True
    if len(sys.argv)>3: EXP.update(sys.argv[3].split(","))
    for e in EXP:
        if e.startswith("sleep"): SLEEP=int(e[5:])
    open(out,"w").write(build())
```

```python
import math, sys, struct
from asmlib import kernel_header, kernel_desc
from em import Em

KNAME="parallel_sum__sliding_block__mixer_channel_mlp__prompt_kernel"
WS_STATS=0; WS_CSP=0x10000; WS_FQ=0x90000; WS_FH=0x98000; WS_FO=0xA0000; WS_FW=0xA8000; SMALL_SZ=0xB0000
WS_W2T=0xB0000; W2T_SZ=8*68*5*1024
WS_Q=0x360000; QKV_SZ=0x280000
WS_HO=0xB00000; HO_SZ=0x880000
WS_STAMP=0x2000000
LOG2E=1.4426950408889634; CQ=(20**-0.5)*LOG2E
GC0=-2.0*LOG2E*math.sqrt(2.0/math.pi); GC1=GC0*0.044715
def fhex(f): return hex(struct.unpack("<I",struct.pack("<f",f))[0])
P_X,P_WQKV,P_WO,P_W1,P_B1,P_W2,P_B2,P_OUT,P_DBG,P_WS=60,62,64,68,70,72,74,76,78,80
SLOT=32768; P0=131072; P1=143360; U0=69632; CSF=155648; NON=156672; CNT=156704; STX=156768; B1F=156928; STA=157312; XCH=131072; CSCR=135168
GS=3104; VB=10*GS
def _ones():
    base=VB+10*GS; o0=base+((160-(base-VB))%256); b2=o0+3072; o1=b2+((64-(b2-VB))%256); return o0,o1,o1+3072
ONE0,ONE1,ATT_END=_ones(); RED=69632; LDS_TOTAL=163840
assert ATT_END<=RED
V0=20480
def wf_region(sg): return [P0,P1,U0,U0+12288,U0+2*12288,U0+3*12288,U0+4*12288,V0,V0+12288,V0+2*12288][sg]
S_NONCE=82
INSTR=False; EXP=set(); POLL_MAX=20000
_uid=[0]
def lab(b="L"):
    _uid[0]+=1; return f"{b}_{_uid[0]}"
NST=9
def stamp2(E,idx):
    if INSTR and 'barst' in EXP: E(f"s_memtime s[{84+2*idx}:{85+2*idx}]")
def stamp3(E,idx):
    if INSTR and 'epi' in EXP: E(f"s_memrealtime s[{84+2*idx}:{85+2*idx}]")
def stamp4(E,idx):
    if INSTR and 'gel' in EXP: E(f"s_memrealtime s[{84+2*idx}:{85+2*idx}]")
def stamp5(E,idx):
    if INSTR and 'fq' in EXP: E(f"s_memrealtime s[{84+2*idx}:{85+2*idx}]")
def stamp6(E,idx):
    if INSTR and 'att' in EXP:
        l=lab("s6"); E(f"s_cmp_eq_u32 s36, {0 if idx<5 else 1}\ns_cbranch_scc0 {l}\ns_memtime s[{84+2*idx}:{85+2*idx}]\n{l}:")
def stamp8(E,idx):
    if INSTR and 'p1b' in EXP: E(f"s_memtime s[{84+2*idx}:{85+2*idx}]")
def stamp9(E,idx):
    if INSTR and 'fc2' in EXP: E(f"s_memrealtime s[{84+2*idx}:{85+2*idx}]")
def stampA(E,idx):
    if INSTR and 'pA' in EXP: E(f"s_memtime s[{84+2*idx}:{85+2*idx}]")
def stamp(E,idx):
    if 'pA' in EXP and idx>0: return
    if 'pB' in EXP and idx>0: return
    if 'fc2' in EXP and idx>0: return
    if 'p1b' in EXP and idx>0: return
    if 'intv' in EXP and idx>0: return
    if 'lat' in EXP and idx>0: return
    if 'att' in EXP and idx>0: return
    if 'fq' in EXP and idx>0: return
    if 'gel' in EXP and idx>0: return
    if 'epi' in EXP and idx>0: return
    if 'barst' in EXP and idx>0: return
    if INSTR: E(f"s_mem{'time' if 'clk' in EXP else 'realtime'} s[{84+2*idx}:{85+2*idx}]")
def stamp_flush(E,role=0):
    if not INSTR: return
    E("s_waitcnt lgkmcnt(0)")
    if 'dbgts' in EXP:
        l=lab("dts")
        E(f"s_cmp_eq_u32 s35, 0\ns_cbranch_scc0 {l}")
        E(f"s_mov_b32 s52, s{P_DBG}\ns_mov_b32 s53, s{P_DBG+1}\ns_mov_b32 s54, 256\ns_mov_b32 s55, 0x20000\nv_mov_b32 v251, 0\ns_mov_b64 exec, 1")
        sel = (0,2,3,4,5,6,7,8) if role==0 else (2,3,4,5,6,7,8)
        base = 1 if role==0 else 9
        for n,i in enumerate(sel):
            E(f"s_sub_u32 s56, s{84+2*i}, s{S_NONCE}\nv_mov_b32 v250, s56\nbuffer_atomic_smax v250, v251, s[52:55], 0 offen offset:{4*(base+n)}")
        E("s_mov_b64 exec, -1"); E.label(l)
        return
    E(f"s_add_u32 s52, s{P_WS}, {WS_STAMP}\ns_addc_u32 s53, s{P_WS+1}, 0\ns_mov_b32 s54, 0x20000\ns_mov_b32 s55, 0x20000")
    E("s_lshl_b32 s56, s2, 3\ns_add_u32 s56, s56, s32\ns_lshl_b32 s56, s56, 6\nv_mov_b32 v251, 0")
    for i in range(NST):
        E(f"v_mov_b32 v250, s{84+2*i}"); E(f"buffer_store_dword v250, v251, s[52:55], s56 offen offset:{4*i}")
def srd(E,d,p,size,off=0):
    if off: E(f"s_add_u32 s{d}, s{p}, {off}\ns_addc_u32 s{d+1}, s{p+1}, 0")
    else: E(f"s_mov_b32 s{d}, s{p}\ns_mov_b32 s{d+1}, s{p+1}")
    E(f"s_mov_b32 s{d+2}, {size}\ns_mov_b32 s{d+3}, 0x20000")
SLEEP=8
def poll_slow(E,vaddr,vtmp):
    l0=lab("poll"); l1=lab("polld")
    E("s_mov_b32 s37, 0"); E.label(l0)
    E(f"buffer_load_dword v{vtmp}, v{vaddr}, s[16:19], 0 offen sc1\ns_waitcnt vmcnt(0)")
    E(f"v_cmp_ne_u32 vcc, s{S_NONCE}, v{vtmp}\ns_cbranch_vccz {l1}")
    E(f"s_add_u32 s37, s37, 1\ns_cmp_lt_u32 s37, {POLL_MAX}\ns_cbranch_scc0 {l1}\ns_sleep {SLEEP}\ns_branch {l0}")
    E.label(l1)
def check_or_poll(E,vaddr,vval):
    l0=lab("cp"); l1=lab("cpd")
    E(f"v_cmp_ne_u32 vcc, s{S_NONCE}, v{vval}\ns_cbranch_vccz {l1}\ns_mov_b32 s37, 0\n{l0}:\n"
      f"buffer_load_dword v{vval}, v{vaddr}, s[16:19], 0 offen sc1\ns_waitcnt vmcnt(0)\nv_cmp_ne_u32 vcc, s{S_NONCE}, v{vval}\ns_cbranch_vccz {l1}\n"
      f"s_add_u32 s37, s37, 1\ns_cmp_lt_u32 s37, {POLL_MAX}\ns_cbranch_scc0 {l1}\ns_sleep {SLEEP}\ns_branch {l0}\n{l1}:")
def poll_leader(E,vaddr,vtmp,vt2,goaddr):
    lw=lab("pw"); ld=lab("pd"); l0=lab("pl")
    E(f"v_mov_b32 v{vt2}, {goaddr}\ns_cmp_eq_u32 s35, 0\ns_cbranch_scc0 {lw}")
    poll_slow(E,vaddr,vtmp)
    E(f"v_mov_b32 v{vtmp}, s{S_NONCE}\nds_write_b32 v{vt2}, v{vtmp}\ns_waitcnt lgkmcnt(0)\ns_branch {ld}")
    E.label(lw)
    E(f"s_mov_b32 s37, 0\n{l0}:\nds_read_b32 v{vtmp}, v{vt2}\ns_waitcnt lgkmcnt(0)\nv_cmp_ne_u32 vcc, s{S_NONCE}, v{vtmp}\ns_cbranch_vccz {ld}\n"
      f"s_add_u32 s37, s37, 1\ns_cmp_lt_u32 s37, {POLL_MAX*8}\ns_cbranch_scc0 {ld}\ns_sleep 2\ns_branch {l0}")
    E.label(ld)
def flag_store(E,soff,vt0,vt1):
    E(f"v_mov_b32 v{vt0}, s{S_NONCE}\nv_mov_b32 v{vt1}, 0")
    return E.st(f"s_mov_b64 exec, 1\nbuffer_store_dword v{vt0}, v{vt1}, s[16:19], s{soff} offen sc1\ns_mov_b64 exec, -1")
def agg_flag(E,cnt_idx,nwaves,soff,vt0,vt1):
    l=lab("ag")
    E(f"v_mov_b32 v{vt0}, {CNT+4*cnt_idx}\nv_mov_b32 v{vt1}, 1\ns_mov_b64 exec, 1\nds_add_rtn_u32 v{vt1}, v{vt0}, v{vt1}\ns_waitcnt lgkmcnt(0)\ns_mov_b64 exec, -1\n"
      f"v_readfirstlane_b32 s37, v{vt1}\ns_nop 3\ns_cmp_eq_u32 s37, {nwaves-1}\ns_cbranch_scc0 {l}\nv_mov_b32 v{vt0}, s{S_NONCE}\nv_mov_b32 v{vt1}, 0\ns_mov_b64 exec, 1\n"
      f"buffer_store_dword v{vt0}, v{vt1}, s[16:19], s{soff} offen sc1\ns_mov_b64 exec, -1\n{l}:")
def lds_arrive(E,idx,vt0,vt1):
    E(f"v_mov_b32 v{vt0}, {CNT+4*idx}\nv_mov_b32 v{vt1}, 1\ns_mov_b64 exec, 1\nds_add_u32 v{vt0}, v{vt1}\ns_mov_b64 exec, -1")
def lds_wait(E,idx,target,vt0,vt1,slp=1):
    l0=lab("lw"); l1=lab("lwd")
    E(f"v_mov_b32 v{vt0}, {CNT+4*idx}\ns_mov_b32 s37, 0\n{l0}:\nds_read_b32 v{vt1}, v{vt0}\ns_waitcnt lgkmcnt(0)\nv_cmp_gt_u32 vcc, {target}, v{vt1}\ns_cbranch_vccz {l1}\n"
      f"s_add_u32 s37, s37, 1\ns_cmp_lt_u32 s37, {POLL_MAX*32}\ns_cbranch_scc0 {l1}\n"+(f"s_sleep {slp}\n" if slp else "")+f"s_branch {l0}\n{l1}:")
def allreduce(E,v,t1,t2):
    for dpp in ("quad_perm:[1,0,3,2]","quad_perm:[2,3,0,1]","row_half_mirror","row_mirror"):
        E(f"s_nop 1\nv_add_f32_dpp v{v}, v{v}, v{v} {dpp} row_mask:0xf bank_mask:0xf")
    for sw in ("16","32"):
        E(f"v_mov_b32 v{t1}, v{v}\nv_mov_b32 v{t2}, v{v}")
        E(f"s_nop 1\nv_permlane{sw}_swap_b32 v{t1}, v{t2}\ns_nop 1\nv_add_f32 v{v}, v{t1}, v{t2}")
def gelu_ops(x,t,c0):
    return [f"v_mul_f32 v{t}, v{x}, v{x}",f"v_fma_f32 v{t}, v{t}, s51, v{c0}",f"v_mul_f32 v{t}, v{t}, v{x}",
            f"v_exp_f32 v{t}, v{t}",f"v_add_f32 v{t}, 1.0, v{t}",f"v_rcp_f32 v{t}, v{t}",f"v_mul_f32 v{x}, v{x}, v{t}"]

def prologue():
    E=Em()
    E("s_cmp_ge_u32 s2, 256\ns_cbranch_scc1 L_end")
    stamp(E,0)
    E("s_load_dwordx2 s[4:5], s[0:1], 0\ns_load_dwordx2 s[8:9], s[0:1], 8\ns_load_dwordx2 s[12:13], s[0:1], 32\ns_load_dwordx2 s[16:17], s[0:1], 80")
    E("s_load_dwordx16 s[60:75], s[0:1], 0\ns_load_dwordx4 s[76:79], s[0:1], 64\ns_load_dwordx2 s[80:81], s[0:1], 80")
    E("v_lshrrev_b32 v1, 6, v0\nv_and_b32 v2, 63, v0\nv_readfirstlane_b32 s32, v1")
    E("s_mov_b32 s6, 2621440\ns_mov_b32 s7, 0x20000\ns_mov_b32 s10, %d\ns_mov_b32 s11, 0x20000"%(640*3840))
    E("s_mov_b32 s14, %d\ns_mov_b32 s15, 0x20000\ns_mov_b32 s18, %d\ns_mov_b32 s19, 0x20000"%(640*3072,SMALL_SZ))
    E("s_and_b32 s37, s2, 7\ns_lshr_b32 s38, s2, 3")
    E("s_lshr_b32 s33, s37, 2\ns_lshl_b32 s33, s33, 3\ns_and_b32 s39, s38, 7\ns_add_u32 s33, s33, s39")
    E("s_and_b32 s34, s37, 3\ns_lshl_b32 s34, s34, 2\ns_lshr_b32 s39, s38, 3\ns_add_u32 s34, s34, s39")
    E("s_min_u32 s41, s34, 14\ns_lshl_b32 s41, s41, 8\ns_mul_i32 s42, s34, 192")
    E("s_and_b32 s35, s32, 3\ns_cmp_ge_u32 s32, 4\ns_cbranch_scc1 L_F")
    return E

def gen_F():
    U_V0=int(next((e[3:] for e in EXP if e.startswith('uv0')),'10'))
    E=Em(); E.label("L_F")
    if 'nofprio' not in EXP: E("s_setprio 2")
    E("s_mov_b32 s45, 0\ns_mov_b32 s46, 0\ns_mul_i32 s40, s33, 163840\ns_lshl_b32 s43, s35, 12\ns_mul_i32 s44, s35, 3072")
    E("v_lshrrev_b32 v3, 3, v2\ns_lshl_b32 s39, s35, 5\nv_add_u32 v3, s39, v3\nv_mul_u32_u24 v3, 1280, v3")
    E("v_and_b32 v4, 7, v2\nv_lshrrev_b32 v5, 4, v2\nv_xor_b32 v6, v4, v5\nv_lshl_add_u32 v10, v6, 4, v3")
    E(f"v_or_b32 v7, 4, v5\nv_xor_b32 v7, v4, v7\nv_lshl_add_u32 v11, v7, 4, v3\nv_add_u32 v11, {8*1280}, v11")
    E(f"v_add_u32 v12, {16*1280}, v10\nv_add_u32 v13, {16*1280}, v11")
    E("s_lshl_b32 s39, s35, 4\nv_add_u32 v3, s39, v5\nv_mul_u32_u24 v3, 3840, v3")
    E("v_and_b32 v4, 15, v2\nv_lshlrev_b32 v6, 2, v5\nv_xor_b32 v4, v4, v6\nv_lshl_add_u32 v14, v4, 4, v3")
    for q in range(1,4): E(f"v_add_u32 v{14+q}, {q*4*3840}, v14")
    E("s_waitcnt lgkmcnt(0)")
    def dma_ops(tau):
        slot=tau%4; G=[]
        for q in range(4):
            pre=f"s_add_u32 s56, s40, {tau*128}\ns_add_u32 s57, s41, {tau*64*3840}\n" if q==0 else ""
            G.append(pre+f"s_add_u32 m0, s43, {slot*SLOT+q*1024}\ns_nop 0\nbuffer_load_dwordx4 v{10+q}, s[4:7], s56 offen lds")
        for q in range(4):
            G.append(f"s_add_u32 m0, s43, {slot*SLOT+16384+q*1024}\ns_nop 0\nbuffer_load_dwordx4 v{14+q}, s[8:11], s57 offen lds")
        return G
    WFV=(34,35,40)
    def dma_wf(sg, sink):
        reg=wf_region(sg); last=None
        for t in range(3):
            pre=f"s_add_u32 s58, s42, {sg*64*3072}\n" if t==0 else ""
            last=sink.vm(pre+f"s_add_u32 m0, s44, {reg+t*1024}\ns_nop 0\nbuffer_load_dwordx4 v{WFV[t]}, s[12:15], s58 offen lds")
        return last
    D={}
    for tau in range(3):
        for g in dma_ops(tau): D[tau]=E.vm(g)
    E(f"v_lshlrev_b32 v3, 3, v2\nv_mov_b32 v4, 0\nv_mov_b32 v5, 0\nv_add_u32 v6, {CSF+512}, v3\nv_add_u32 v3, {CNT}, v3")
    E("s_mov_b64 exec, 0xff"); E.lds("ds_write_b64 v3, v[4:5]"); E("s_mov_b64 exec, -1"); ci=E.lds("ds_write_b64 v6, v[4:5]")
    stamp(E,1)
    E("s_lshl_b32 s39, s35, 4")
    for t in range(3):
        E(f"v_add_u32 v3, {64*t}, v2\nv_mul_u32_u24 v4, 171, v3\nv_lshrrev_b32 v4, 11, v4\nv_mul_u32_u24 v5, 12, v4\nv_sub_u32 v5, v3, v5")
        E(f"v_add_u32 v4, s39, v4\nv_mul_u32_u24 v4, 3072, v4\nv_lshl_add_u32 v{WFV[t]}, v5, 4, v4")
    E("v_and_b32 v3, 31, v2\ns_lshl_b32 s37, s35, 5\nv_add_u32 v3, s37, v3\nv_lshrrev_b32 v4, 5, v2\nv_bfe_u32 v5, v3, 1, 3\nv_xor_b32 v5, v5, v4\nv_lshlrev_b32 v3, 7, v3")
    for t in range(4): E(f"v_xor_b32 v6, {2*t}, v5\nv_lshl_add_u32 v{18+t}, v6, 4, v3\nv_add_u32 v{22+t}, 65536, v{18+t}")
    E("v_bfe_u32 v3, v2, 4, 1\nv_lshrrev_b32 v4, 5, v2\nv_bfe_u32 v5, v2, 2, 2\nv_and_b32 v6, 3, v2\nv_lshl_add_u32 v7, v4, 3, v5")
    E(f"v_mul_u32_u24 v41, 192, v7\nv_lshl_add_u32 v41, v3, 5, v41\nv_lshl_add_u32 v41, v6, 3, v41\nv_add_u32 v47, {P0}, v41\nv_add_u32 v46, {U0}, v41")
    E("v_lshlrev_b32 v8, 8, v7\nv_add_u32 v8, 16384, v8\nv_lshrrev_b32 v9, 1, v6\nv_lshl_add_u32 v9, v3, 1, v9\nv_lshl_add_u32 v8, v9, 4, v8\nv_and_b32 v9, 1, v6\nv_lshl_add_u32 v8, v9, 3, v8")
    E("v_xor_b32 v9, s35, v5\nv_lshl_add_u32 v64, v9, 6, v8\nv_add_u32 v65, 65536, v64")
    E("v_and_b32 v3, 15, v2\nv_bfe_u32 v4, v2, 4, 1\nv_cmp_eq_u32 vcc, v3, v4\nv_mov_b32 v5, 0x3f803f80\ns_nop 0\nv_cndmask_b32 v36, 0, v5, vcc\nv_mov_b32 v37, v36\nv_mov_b32 v38, v36\nv_mov_b32 v39, v36")
    E("v_mov_b32 v66, 0\nv_mov_b32 v67, 0\nv_mov_b32 v68, 0\nv_mov_b32 v69, 0")
    XS=96; W={}; xr={}
    PRE=Em()
    PRE("s_lshl_b32 s37, s33, 7\ns_lshl_b32 s38, s34, 3\ns_add_u32 s37, s37, s38\ns_lshl_b32 s38, s35, 1\ns_add_u32 s37, s37, s38\ns_mul_i32 s36, s37, 1280")
    PRE("v_and_b32 v3, 31, v2\nv_mul_u32_u24 v3, 40, v3\nv_lshrrev_b32 v4, 5, v2\nv_mul_u32_u24 v4, 1280, v4\nv_add_u32 v3, v3, v4")
    srd(PRE,48,P_DBG,256)
    l=lab("non")
    PRE(f"s_or_b32 s37, s2, s35\ns_cmp_eq_u32 s37, 0\ns_cbranch_scc0 {l}\ns_memrealtime s[54:55]\ns_waitcnt lgkmcnt(0)\ns_or_b32 s54, s54, 1\nv_mov_b32 v6, s54\nv_mov_b32 v7, 0\ns_mov_b64 exec, 1\n"
        f"buffer_store_dword v6, v7, s[48:51], 0 offen sc1\ns_mov_b64 exec, -1\n{l}:")
    l=lab("nl")
    PRE(f"v_mov_b32 v82, 0\nv_mov_b32 v81, 0\ns_cmp_eq_u32 s35, 0\ns_cbranch_scc0 {l}\nbuffer_load_dword v81, v82, s[48:51], 0 offen sc1\n{l}:")
    PRE.vm("buffer_load_dwordx4 v[70:73], v3, s[4:7], s36 offen"); PRE.vm("buffer_load_dwordx4 v[74:77], v3, s[4:7], s36 offen offset:16")
    PRE.vm("buffer_load_dwordx2 v[78:79], v3, s[4:7], s36 offen offset:32")
    srd(PRE,52,P_B1,3072)
    PRE("v_lshlrev_b32 v4, 2, v2\ns_mul_i32 s37, s34, 192\nv_min_u32 v4, 188, v4")
    pl1=PRE.vm("buffer_load_dword v80, v4, s[52:55], s37 offen")
    F=Em()
    F.wv(pl1)
    l0=lab("n0"); l1=lab("n1"); l2=lab("n2")
    F(f"s_cmp_eq_u32 s35, 0\ns_cbranch_scc0 {l2}\ns_mov_b32 s37, 0\n{l0}:\nv_readfirstlane_b32 s{S_NONCE}, v81\ns_nop 3\ns_cmp_lg_u32 s{S_NONCE}, 0\ns_cbranch_scc1 {l1}\n"
      f"s_add_u32 s37, s37, 1\ns_cmp_lt_u32 s37, {POLL_MAX}\ns_cbranch_scc0 {l1}\ns_sleep 1\nbuffer_load_dword v81, v82, s[48:51], 0 offen sc1\ns_waitcnt vmcnt(0)\ns_branch {l0}\n{l1}:\n"
      f"v_mov_b32 v82, {NON}\nds_write_b32 v82, v81\n{l2}:")
    F("v_lshlrev_b32 v82, 16, v80"); F("v_and_b32 v83, 0xffff0000, v80"); F("v_min_u32 v4, 47, v2"); F("v_lshlrev_b32 v4, 3, v4"); F(f"v_add_u32 v4, {B1F}, v4")
    F.lds("ds_write_b64 v4, v[82:83]")
    B=200
    for i in range(10):
        F(f"v_lshlrev_b32 v{B+2*i}, 16, v{70+i}"); F(f"v_and_b32 v{B+2*i+1}, 0xffff0000, v{70+i}")
    F(f"v_add_f32 v70, v{B}, v{B+1}"); F(f"v_add_f32 v71, v{B+2}, v{B+3}")
    for i in range(4,20,2):
        F(f"v_add_f32 v70, v70, v{B+i}"); F(f"v_add_f32 v71, v71, v{B+i+1}")
    F("v_add_f32 v70, v70, v71")
    def red32(v):
        for dpp in ("quad_perm:[1,0,3,2]","quad_perm:[2,3,0,1]","row_half_mirror","row_mirror"):
            F(f"s_nop 1\nv_add_f32_dpp v{v}, v{v}, v{v} {dpp} row_mask:0xf bank_mask:0xf")
        F(f"v_mov_b32 v78, v{v}\nv_mov_b32 v79, v{v}")
        F(f"s_nop 1\nv_permlane16_swap_b32 v78, v79\ns_nop 1\nv_add_f32 v{v}, v78, v79")
    red32(70)
    F(f"v_mul_f32 v70, {fhex(1.0/640)}, v70")
    nF1=len(F.it)
    for i in range(20): F(f"v_sub_f32 v{B+i}, v{B+i}, v70")
    F(f"v_mul_f32 v71, v{B}, v{B}"); F(f"v_mul_f32 v72, v{B+1}, v{B+1}")
    for i in range(2,20,2):
        F(f"v_fmac_f32 v71, v{B+i}, v{B+i}"); F(f"v_fmac_f32 v72, v{B+i+1}, v{B+i+1}")
    F("v_add_f32 v71, v71, v72")
    red32(71)
    F(f"v_mul_f32 v71, {fhex(1.0/640)}, v71"); F(f"v_add_f32 v72, {fhex(1e-5)}, v71")
    F("v_rsq_f32 v75, v72\ns_nop 0"); F("v_mul_f32 v73, v75, v75"); F("v_mul_f32 v73, v73, v71"); F(f"v_add_f32 v73, {fhex(1e-5)}, v73")
    F("v_rsq_f32 v73, v73\nv_mov_b32 v74, v70"); F("s_nop 0\nv_mul_f32 v76, v75, v73")
    F("v_lshrrev_b32 v78, 5, v2"); F("v_lshlrev_b32 v78, 4, v78"); F(f"s_lshl_b32 s37, s35, 5\ns_add_u32 s37, s37, {STX}"); F("v_add_u32 v78, s37, v78"); F("v_mov_b32 v77, 0")
    F.lds("ds_write_b128 v78, v[74:77]")
    F2=Em()
    F2(f"v_mov_b32 v3, {NON}"); nr=F2.lds("ds_read_b32 v83, v3")
    F2("v_and_b32 v78, 7, v2"); F2("v_lshlrev_b32 v78, 4, v78"); F2(f"v_add_u32 v79, {STX}, v78")
    sr=F2.lds("ds_read_b128 v[74:77], v79"); F2.wl(sr); F2(f"v_mov_b32 v77, v83\nv_readfirstlane_b32 s{S_NONCE}, v83")
    l=lab("sst")
    F2(f"s_cmp_eq_u32 s35, 0\ns_cbranch_scc0 {l}\ns_lshl_b32 s37, s33, 7\ns_lshl_b32 s38, s34, 3\ns_add_u32 s37, s37, s38\ns_lshl_b32 s37, s37, 4\ns_mov_b64 exec, 0xff\n"
       f"buffer_store_dwordx4 v[74:77], v78, s[16:19], s37 offen sc1\ns_mov_b64 exec, -1\n{l}:")
    allF=list(F.it)
    def part(L,a,b):
        x=Em(); x.it=L[a:b]; return x
    def cat(*xs):
        y=Em()
        for x in xs:
            if x: y.it+=x.it
        return y
    fill={1:part(allF,0,nF1), 2:part(allF,nF1,len(allF)), 3:F2}
    E.wv(D[0]); E.wl(ci); E("s_barrier"); stamp(E,2); stamp2(E,1)
    csr={}
    for tau in range(10):
        M=Em(); slot=tau%4
        if tau==0: M.extend(PRE)
        for t in range(4):
            a=(18 if slot<2 else 22)+t; u=4*tau+t
            xr[u]=M.lds(f"ds_read_b128 v[{XS+4*u}:{XS+4*u+3}], v{a} offset:{(slot&1)*SLOT}")
        wa=64 if slot<2 else 65; so=(slot&1)*SLOT
        for t in range(4):
            for jj in range(2):
                csr[t]=M.lds(f"ds_read_b64_tr_b16 v[{48+4*t+2*jj}:{49+4*t+2*jj}], v{wa} offset:{so+(16*t+4*jj)*256}")
        M.slot(10)
        tn = 3 if tau==0 else (tau+2 if (tau>=2 and tau+2<=9) else None)
        if tn is not None:
            for k,g in enumerate(dma_ops(tn)):
                D[tn]=M.vm(g); M.slot(10)
                if k==1:
                    for t in range(4):
                        M.wl(csr[t]); M(f"v_mfma_f32_16x16x32_bf16 v[66:69], v[36:39], v[{48+4*t}:{51+4*t}], v[66:69]")
        else:
            for t in range(4):
                M.wl(csr[t]); M(f"v_mfma_f32_16x16x32_bf16 v[66:69], v[36:39], v[{48+4*t}:{51+4*t}], v[66:69]")
            M.slot(300)
        if tau==6: W[0]=dma_wf(0,M)
        if tau==7: W[1]=dma_wf(1,M)
        if tau==8: W[2]=dma_wf(2,M); W[3]=dma_wf(3,M)
        if tau==9:
            for sg in range(4,7): W[sg]=dma_wf(sg,M)
        if fill.get(tau): M.merge(fill[tau])
        E.extend(M)
        if tau<9:
            E.wv(D[tau+1])
            if tau+1==9: E.wv(W[1])
            E("s_waitcnt lgkmcnt(0)")
            E("s_barrier")
            if tau<7: stamp2(E,tau+2)
    E(f"v_and_b32 v3, 15, v2\nv_lshlrev_b32 v3, 2, v3\ns_lshl_b32 s37, s35, 7\ns_add_u32 s37, s37, {CSF}\nv_add_u32 v3, s37, v3\ns_nop 4")
    E("s_mov_b64 exec, 0xffff"); E.lds("ds_write_b32 v3, v66"); cq=E.lds("ds_write_b32 v3, v67 offset:64"); E("s_mov_b64 exec, -1")
    E.wl(cq); lds_arrive(E,8,3,8)
    if 'nofprio' not in EXP: E("s_setprio 0")
    stamp(E,3)
    srd(E,24,P_WS,HO_SZ,off=WS_HO)
    E(f"s_mov_b32 s51, {fhex(GC1)}")
    E("s_lshl_b32 s47, s33, 1\ns_lshr_b32 s59, s35, 1\ns_add_u32 s47, s47, s59\ns_mul_i32 s47, s47, 68\ns_mul_i32 s59, s34, 3\ns_add_u32 s47, s47, s59\ns_lshl_b32 s47, s47, 12")
    E("s_and_b32 s59, s35, 1\ns_lshl_b32 s59, s59, 11\ns_add_u32 s47, s47, s59")
    ACC=48
    for r in list(range(32))+[36,37,38,39]: E(f"v_mov_b32 v{ACC+r}, 0")
    for r in (4,5,6,7,42,43,44,45): E(f"v_mov_b32 v{r}, 0")
    E("s_mul_i32 s37, s35, 3072\ns_add_u32 s37, s37, 128\nv_add_u32 v88, s37, v47\nv_add_u32 v89, s37, v46\nv_add_u32 v90, s37, v41")
    VS=Em()
    VS("v_lshrrev_b32 v3, 5, v2\nv_lshlrev_b32 v34, 4, v3"); VS(f"v_add_u32 v35, {B1F}, v34"); VS(f"v_add_u32 v34, {CSF+512}, v34"); VS(f"v_mov_b32 v40, {fhex(GC0)}")
    VS("v_bfe_u32 v8, v2, 4, 1\nv_lshlrev_b32 v91, 10, v8\nv_lshrrev_b32 v3, 5, v2\nv_lshl_add_u32 v91, v3, 8, v91\nv_and_b32 v8, 15, v2\nv_lshl_add_u32 v91, v8, 4, v91")
    VS(f"v_and_b32 v8, 31, v2\ns_lshl_b32 s37, s35, 5\nv_add_u32 v8, s37, v8\nv_lshlrev_b32 v8, 3, v8\nv_add_u32 v92, {STA}, v8")
    VS(f"v_and_b32 v3, 15, v2\nv_lshlrev_b32 v3, 2, v3\nv_add_u32 v9, {CSF+512}, v3")
    def wf_addr(sg):
        reg=wf_region(sg)
        return (47,reg-P0) if reg>=P0 else ((46,reg-U0) if reg>=U0 else (41,reg))
    SA=[10,18,26]
    rd={}; pend=[]
    def readsA(u):
        sg,t=divmod(u,4); base,ro=wf_addr(sg); L=[]
        for T in range(2):
            fr=SA[u%3]+4*T
            for jj in range(2): L.append(f"ds_read_b64_tr_b16 v[{fr+2*jj}:{fr+2*jj+1}], v{base} offset:{ro+(16*t+4*jj)*192+64*T}")
        return L
    E.wl(xr[39])
    stamp8(E,1)
    if INSTR and 'pA' in EXP: E("s_memtime s[100:101]")
    for u in (0,1):
        for r in readsA(u): rd[u]=E.lds(r)
    for u in range(40):
        if u==3: stamp8(E,2)
        if u==7: stamp8(E,3)
        if u==15: stamp8(E,4)
        if u==27: stamp8(E,5)
        if u==U_V0:
            stampA(E,1)
            if 'nowA' not in EXP: lds_wait(E,8,4,3,8)
            if 'nowA' not in EXP: lds_wait(E,5,4,3,8)
            stampA(E,2)
            if 'nofprio' not in EXP: E("s_setprio 2")
            tmp=Em()
            for sg2 in (7,8,9): W[sg2]=dma_wf(sg2,tmp)
            pend=list(tmp.it)
        if 'nowA' in EXP:
            if u in (4,12,24): lds_arrive(E,6,3,8)
        else:
          if u==4: E.wv(W[3]); lds_arrive(E,6,3,8)
          if u==6: lds_wait(E,6,4,3,8)
          if u==12: stampA(E,3); E.wv(W[6]); stampA(E,4); lds_arrive(E,6,3,8)
          if u==14: lds_wait(E,6,8,3,8); stampA(E,5)
          if u==24: stampA(E,6); E.wv(W[9]); stampA(E,7); lds_arrive(E,6,3,8)
        if u==26 and 'nowA' not in EXP:
            lds_wait(E,6,12,3,8)
        E.wl(rd[u])
        rl=readsA(u+2) if u+2<40 else []
        for T in range(2):
            fr=SA[u%3]+4*T; a=ACC+16*T
            E(f"v_mfma_f32_32x32x16_bf16 v[{a}:{a+15}], v[{fr}:{fr+3}], v[{XS+4*u}:{XS+4*u+3}], v[{a}:{a+15}]")
            for r in rl[2*T:2*T+2]: rd[u+2]=E.lds(r)
            if T==0 and pend: E.it.append(pend.pop(0))
        if u==30: E.extend(VS)
        sg_,t_=divmod(u,4)
        if t_==0:
            base,ro=wf_addr(sg_); b2={47:88,46:89,41:90}[base]
            E.lds(f"ds_read_b64_tr_b16 v[80:81], v{b2} offset:{ro}"); c2r=E.lds(f"ds_read_b64_tr_b16 v[82:83], v{b2} offset:{ro+4*192}")
        if t_==3:
            E.wl(c2r); E("v_mfma_f32_16x16x32_bf16 v[84:87], v[36:39], v[80:83], v[84:87]")
        l=lab("csm")
        fr=SA[u%3]
        if 'nocsA' not in EXP: E(f"s_cmp_eq_u32 s35, {u&3}\ns_cbranch_scc0 {l}\nv_mfma_f32_16x16x32_bf16 v[4:7], v[36:39], v[{fr}:{fr+3}], v[4:7]\nv_mfma_f32_16x16x32_bf16 v[42:45], v[36:39], v[{fr+4}:{fr+7}], v[42:45]\n{l}:")
    stamp8(E,6)
    E("s_nop 7")
    E("s_mov_b64 exec, 0xffff")
    E.lds("ds_add_f32 v9, v4"); E.lds("ds_add_f32 v9, v5 offset:64"); E.lds("ds_add_f32 v9, v42 offset:128"); E.lds("ds_add_f32 v9, v43 offset:192")
    E.lds("ds_add_f32 v9, v84 offset:256"); ca=E.lds("ds_add_f32 v9, v85 offset:320")
    E("s_mov_b64 exec, -1")
    E("v_mov_b32 v44, v91\nv_mov_b32 v45, v92")
    cs_done=ca
    SBk=[10,14,18,22,26]
    def readsB(u):
        sg,t=divmod(u,4); base,ro=wf_addr(sg); fr=SBk[u%5]
        return [f"ds_read_b64_tr_b16 v[{fr+2*jj}:{fr+2*jj+1}], v{base} offset:{ro+(16*t+4*jj)*192+128}" for jj in range(2)]
    hs=[None]
    def gelu_tile(G,T,cb0,tt):
        a0=ACC+16*T; rr={}
        order=(0,2,1,3)
        def rd_(i):
            a=order[i]; c=cb0+8*(i%2)
            G.lds(f"ds_read_b128 v[{c}:{c+3}], v34 offset:{128*T+32*a}")
            rr[i]=G.lds(f"ds_read_b128 v[{c+4}:{c+7}], v35 offset:{128*T+32*a}")
        rd_(0); rd_(1)
        for i in range(4):
            a=order[i]; b=a0+4*a; c=cb0+8*(i%2)
            G.wl(rr[i])
            for k in range(4): G(f"v_fma_f32 v{c+4+k}, v42, v{c+k}, v{c+4+k}")
            for k in range(4): G(f"v_fma_f32 v{b+k}, v{b+k}, v43, v{c+4+k}")
            if i+2<4: rd_(i+2)
            ops=[[f"v_mul_f32 v{tt+k}, v{b+k}, v{b+k}",f"v_fma_f32 v{tt+k}, v{tt+k}, s51, v40",f"v_mul_f32 v{tt+k}, v{tt+k}, v{b+k}",f"v_exp_f32 v{tt+k}, v{tt+k}",
                  f"v_add_f32 v{tt+k}, 1.0, v{tt+k}",f"v_rcp_f32 v{tt+k}, v{tt+k}",f"v_mul_f32 v{b+k}, v{b+k}, v{tt+k}"] for k in range(4)]
            for s_ in range(7):
                for k in range(4): G(ops[k][s_])
            o=a0+{0:0,2:2,1:4,3:6}[a]
            G(f"v_cvt_pk_bf16_f32 v{o}, v{b}, v{b+1}"); G(f"v_cvt_pk_bf16_f32 v{o+1}, v{b+2}, v{b+3}")
        G(f"s_add_u32 s46, s47, {T*4096}")
        G.vm(f"buffer_store_dwordx4 v[{a0}:{a0+3}], v44, s[24:27], s46 offen sc1")
        hs[0]=G.vm(f"buffer_store_dwordx4 v[{a0+4}:{a0+7}], v44, s[24:27], s46 offen offset:512 sc1")
    G=Em()
    sta=G.lds("ds_read_b64 v[42:43], v45"); G.wl(sta)
    gelu_tile(G,0,208,30); gelu_tile(G,1,208,30)
    rd={}
    order=list(range(28,40))+list(range(0,28))
    def readsB2(n):
        u=order[n]; sg,t=divmod(u,4); base,ro=wf_addr(sg); fr=SBk[n%5]
        return [f"ds_read_b64_tr_b16 v[{fr+2*jj}:{fr+2*jj+1}], v{base} offset:{ro+(16*t+4*jj)*192+128}" for jj in range(2)]
    for n in range(4):
        for r in readsB2(n): rd[n]=E.lds(r)
    E.wl(cs_done); lds_arrive(E,6,3,8)
    M=Em(); a=ACC+32
    for n in range(40):
        u=order[n]
        M.wl(rd[n]); fr=SBk[n%5]
        cin_=("0" if n==0 else f"v[{a}:{a+15}]")
        M(f"v_mfma_f32_32x32x16_bf16 v[{a}:{a+15}], v[{fr}:{fr+3}], v[{XS+4*u}:{XS+4*u+3}], {cin_}")
        if n+4<40:
            for r in readsB2(n+4): rd[n+4]=M.lds(r)
        if n==4:
            x=Em()
            if INSTR and 'pB' in EXP: x("s_memtime s[86:87]")
            lds_wait(x,6,16,3,8); lds_wait(x,9,4,3,8)
            if INSTR and 'pB' in EXP: x("s_memtime s[88:89]")
            M.extend(x)
        if INSTR and 'pB' in EXP and n in (12,20,28,36): M(f"s_memtime s[{90+2*((n-12)//8)}:{91+2*((n-12)//8)}]")
        if n==12:
            x=Em(); lds_arrive(x,7,3,8); M.extend(x)
        if n>=4: M.slot(10)
    M.merge(G)
    E.extend(M)
    stamp8(E,7)
    E("s_nop 6")
    stamp(E,4)
    G=Em(); gelu_tile(G,2,208,30); E.extend(G)
    if 'nofprio' not in EXP: E("s_setprio %d"%(2 if 'f2prio' in EXP else 0))
    stamp8(E,8)
    hs=hs[0]
    E(f"s_lshl_b32 s59, s33, 4\ns_add_u32 s59, s59, s34\ns_lshl_b32 s59, s59, 7\ns_add_u32 s59, s59, {WS_FH}")
    E("s_and_b32 s37, s2, 7\ns_lshr_b32 s38, s2, 3")
    E("s_lshr_b32 s33, s37, 2\ns_lshl_b32 s33, s33, 4\ns_bfe_u32 s39, s37, 0x10001\ns_lshl_b32 s39, s39, 3\ns_add_u32 s33, s33, s39\ns_and_b32 s39, s38, 7\ns_add_u32 s33, s33, s39")
    E("s_and_b32 s34, s37, 1\ns_lshl_b32 s34, s34, 2\ns_lshr_b32 s39, s38, 3\ns_add_u32 s34, s34, s39")
    srd(E,8,P_WS,W2T_SZ,off=WS_W2T); srd(E,12,P_B2,1280); srd(E,20,P_OUT,2621440)
    E("v_lshrrev_b32 v3, 1, v2\nv_min_u32 v3, 16, v3\ns_mul_i32 s37, s35, 12\ns_mul_i32 s38, s35, 5\ns_add_u32 s38, s38, 36")
    E("v_add_u32 v4, s37, v3\nv_add_u32 v5, s38, v3\nv_cmp_gt_u32 vcc, 12, v3\ns_nop 1\nv_cndmask_b32 v4, v5, v4, vcc")
    E("s_mul_i32 s37, s34, 5\ns_lshr_b32 s38, s37, 2\ns_add_u32 s37, s37, 4\ns_lshr_b32 s39, s37, 2")
    E("v_and_b32 v5, 1, v2\nv_mov_b32 v6, s38\nv_mov_b32 v7, s39\nv_cmp_eq_u32 vcc, 0, v5\ns_nop 1\nv_cndmask_b32 v6, v7, v6, vcc")
    E(f"v_mul_u32_u24 v4, 10, v4\nv_add_u32 v4, v4, v6\nv_mul_u32_u24 v4, 683, v4\nv_lshrrev_b32 v4, 11, v4\nv_lshlrev_b32 v4, 7, v4\nv_add_u32 v4, {WS_FW}, v4")
    fw=E.vm("buffer_load_dword v8, v4, s[16:19], 0 offen sc1")
    E("v_mov_b32 v9, v4")
    E("v_lshlrev_b32 v3, 4, v2\nv_add_u32 v4, 4096, v3")
    E("v_and_b32 v5, 15, v2\ns_lshl_b32 s39, s33, 6\ns_lshl_b32 s40, s35, 4\ns_add_u32 s39, s39, s40\nv_add_u32 v5, s39, v5\nv_mul_u32_u24 v5, 1280, v5\nv_lshrrev_b32 v6, 4, v2\nv_lshlrev_b32 v6, 3, v6")
    E("s_mul_i32 s39, s34, 160\nv_add_u32 v6, s39, v6\nv_add_u32 v5, v5, v6")
    E("s_mul_i32 s40, s33, %d\ns_mul_i32 s41, s34, %d"%(68*4096,68*5120))
    E("s_mul_i32 s42, s35, 12\ns_mul_i32 s43, s35, 5\ns_add_u32 s43, s43, 48")
    E("s_lshl_b32 s44, s42, 12\ns_add_u32 s44, s44, s40\ns_mul_i32 s45, s42, 5120\ns_add_u32 s45, s45, s41")
    E("s_lshl_b32 s46, s43, 12\ns_add_u32 s46, s46, s40\ns_mul_i32 s47, s43, 5120\ns_add_u32 s47, s47, s41")
    ACC3=10; WB=[100+20*i for i in range(5)]; HB=[200,216,232]
    XR=90; B2R=248
    LW={}; LH={}
    def loadsW(i):
        b=WB[i%5]; ws_,ii=(45,i) if i<12 else (47,i-12)
        E(f"s_add_u32 s57, s{ws_}, {ii*5120}")
        for nt in range(4): E.vm(f"buffer_load_dwordx4 v[{b+4*nt}:{b+4*nt+3}], v3, s[8:11], s57 offen offset:{1024*nt} sc1")
        LW[i]=E.vm(f"buffer_load_dwordx4 v[{b+16}:{b+19}], v4, s[8:11], s57 offen sc1")
    def loadsH(i):
        b=HB[i%3]; hs_,ii=(44,i) if i<12 else (46,i-12)
        E(f"s_add_u32 s56, s{hs_}, {ii*4096}")
        for tt in range(4): LH[i]=E.vm(f"buffer_load_dwordx4 v[{b+4*tt}:{b+4*tt+3}], v3, s[24:27], s56 offen offset:{1024*tt} sc1")
    for r in range(80): E(f"v_mov_b32 v{ACC3+r}, 0")
    stamp4(E,5)
    E.wv(hs); stamp4(E,6); agg_flag(E,2,4,59,7,8) if False else None
    E.wv(fw)
    agg_flag(E,2,4,59,7,207)
    stamp(E,5)
    check_or_poll(E,9,8)
    for nt in range(5): E.vm(f"buffer_load_dwordx2 v[{XR+2*nt}:{XR+2*nt+1}], v5, s[4:7], 0 offen offset:{32*nt}")
    for i in range(5): loadsW(i)
    def group_addr(base,vd):
        E(f"v_and_b32 v{vd}, 3, v2\ns_lshl_b32 s37, s35, 2\nv_add_u32 v{vd}, s37, v{vd}\ns_lshr_b32 s37, s33, 1\ns_lshl_b32 s37, s37, 4\nv_add_u32 v{vd}, s37, v{vd}\nv_lshlrev_b32 v{vd}, 7, v{vd}\nv_add_u32 v{vd}, {base}, v{vd}")
    group_addr(WS_FH,7)
    poll_slow(E,7,8)
    stamp(E,6)
    group_addr(WS_FO,7)
    if 'fidle' in EXP: poll_slow(E,7,8)
    def mf(i):
        E.wv(LH[i]); E.wv(LW[i])
        b=WB[i%5]; h=HB[i%3]
        for nt in range(5):
            for tt in range(4):
                a=ACC3+16*nt+4*tt
                E(f"v_mfma_f32_16x16x32_bf16 v[{a}:{a+3}], v[{b+4*nt}:{b+4*nt+3}], v[{h+4*tt}:{h+4*tt+3}], v[{a}:{a+3}]")
    stamp9(E,1)
    for i in range(3): loadsH(i)
    for i in range(12):
        if i==1: stamp9(E,2)
        if i==6: stamp9(E,3)
        if i==10: fo=E.vm("buffer_load_dword v9, v7, s[16:19], 0 offen sc1")
        mf(i)
        if i+3<12: loadsH(i+3)
        if i+5<17: loadsW(i+5)
    stamp9(E,4)
    E.wv(fo); check_or_poll(E,7,9)
    stamp9(E,5)
    for i in range(12,15): loadsH(i)
    for nt in range(4): E.vm(f"buffer_load_dwordx2 v[{B2R+2*nt}:{B2R+2*nt+1}], v6, s[12:15], 0 offen offset:{32*nt}")
    b2l=E.vm(f"buffer_load_dwordx2 v[8:9], v6, s[12:15], 0 offen offset:128")
    for i in range(12,17):
        mf(i)
        if i+3<17: loadsH(i+3)
    stamp(E,7); stamp9(E,6)
    E("s_nop 15")
    E(f"s_mul_i32 s39, s35, 20480\ns_add_u32 s39, s39, {RED}\nv_add_u32 v7, s39, v3")
    for nt in range(5):
        for tt in range(4):
            a=ACC3+16*nt+4*tt
            w_=E.lds(f"ds_write_b128 v7, v[{a}:{a+3}] offset:{(nt*4+tt)*1024}")
    E.wl(w_); E("s_barrier"); stamp9(E,7)
    E(f"s_lshl_b32 s39, s35, 10\ns_add_u32 s39, s39, {RED}\nv_add_u32 v7, s39, v3\nv_add_u32 v2, 40960, v7")
    R=100
    for nt in range(5):
        for w in range(4):
            base=7 if w<2 else 2
            r_=E.lds(f"ds_read_b128 v[{R+16*nt+4*w}:{R+16*nt+4*w+3}], v{base} offset:{(w%2)*20480+nt*4096}")
    E.wv(b2l); E.wl(r_)
    for nt in range(5):
        b=R+16*nt
        for i in range(4): E(f"v_add_f32 v{b+i}, v{b+i}, v{b+4+i}\nv_add_f32 v{b+8+i}, v{b+8+i}, v{b+12+i}")
        for i in range(4): E(f"v_add_f32 v{b+i}, v{b+i}, v{b+8+i}")
        b2=(B2R+2*nt) if nt<4 else 8
        for (src,t0) in ((XR+2*nt,10),(b2,14)):
            E(f"v_lshlrev_b32 v{t0}, 16, v{src}\nv_and_b32 v{t0+1}, 0xffff0000, v{src}\nv_lshlrev_b32 v{t0+2}, 16, v{src+1}\nv_and_b32 v{t0+3}, 0xffff0000, v{src+1}")
        for i in range(4): E(f"v_add_f32 v{b+i}, v{b+i}, v{14+i}")
        for i in range(4): E(f"v_add_f32 v{b+i}, v{b+i}, v{10+i}")
        E(f"v_cvt_pk_bf16_f32 v{20+2*nt}, v{b}, v{b+1}\nv_cvt_pk_bf16_f32 v{21+2*nt}, v{b+2}, v{b+3}")
        E.st(f"buffer_store_dwordx2 v[{20+2*nt}:{21+2*nt}], v5, s[20:23], 0 offen offset:{32*nt}")
    stamp(E,8); stamp9(E,8)
    stamp_flush(E,1)
    E.label("L_end"); E("s_endpgm"); E.label("L_codeend")
    return E


def gen_A():
    E=Em()
    if 'nopf' not in EXP:
        E("s_getpc_b64 s[56:57]\nL_pc:\ns_sub_u32 s56, s56, L_pc-%s\ns_subb_u32 s57, s57, 0"%KNAME)
        E("v_lshlrev_b32 v3, 7, v2\ns_lshl_b32 s37, s35, 13\nv_add_u32 v3, s37, v3\nv_add_u32 v8, 0x8000, v3\nv_min_u32 v8, L_codeend-%s-4, v8"%KNAME)
        E("v_mov_b32 v5, s57\nv_add_co_u32 v4, vcc, s56, v3\ns_nop 1\nv_addc_co_u32 v5, vcc, 0, v5, vcc")
        E.vm("global_load_dword v254, v[4:5], off")
        E("v_mov_b32 v5, s57\nv_add_co_u32 v4, vcc, s56, v8\ns_nop 1\nv_addc_co_u32 v5, vcc, 0, v5, vcc")
        E.vm("global_load_dword v255, v[4:5], off")
    E("v_and_b32 v3, 31, v2\ns_lshl_b32 s37, s35, 5\nv_add_u32 v3, s37, v3\nv_lshrrev_b32 v4, 5, v2\nv_bfe_u32 v5, v3, 1, 3\nv_xor_b32 v5, v5, v4\nv_lshlrev_b32 v3, 7, v3")
    for t in range(4): E(f"v_xor_b32 v6, {2*t}, v5\nv_lshl_add_u32 v{10+t}, v6, 4, v3\nv_add_u32 v{14+t}, 65536, v{10+t}")
    E("v_bfe_u32 v3, v2, 4, 1\nv_lshrrev_b32 v4, 5, v2\nv_bfe_u32 v5, v2, 2, 2\nv_and_b32 v6, 3, v2\nv_lshl_add_u32 v7, v4, 3, v5")
    E("v_lshlrev_b32 v8, 8, v7\nv_add_u32 v8, 16384, v8\nv_lshrrev_b32 v9, 1, v6\nv_lshl_add_u32 v9, v3, 1, v9\nv_lshl_add_u32 v8, v9, 4, v8\nv_and_b32 v9, 1, v6\nv_lshl_add_u32 v8, v9, 3, v8")
    for T in range(4): E(f"v_xor_b32 v9, {T}, v5\nv_lshl_add_u32 v{18+T}, v9, 6, v8\nv_add_u32 v{22+T}, 65536, v{18+T}")
    E("v_and_b32 v70, 31, v2\nv_lshrrev_b32 v71, 5, v2\ns_and_b32 s37, s34, 3\ns_lshl_b32 s37, s37, 5\ns_lshl_b32 s38, s33, 7\ns_add_u32 s37, s37, s38\nv_add_u32 v70, s37, v70\nv_mul_u32_u24 v70, 1280, v70\nv_lshl_add_u32 v70, v71, 7, v70")
    E("v_bfe_u32 v72, v2, 1, 3\nv_lshrrev_b32 v73, 4, v2\nv_lshl_add_u32 v72, v73, 6, v72\ns_and_b32 s37, s33, 7\ns_lshl_b32 s37, s37, 3\nv_add_u32 v72, s37, v72\nv_and_b32 v73, 1, v2\nv_lshlrev_b32 v73, 7, v73")
    E("v_mul_u32_u24 v74, 3840, v72\nv_add_u32 v74, v74, v73\nv_add_u32 v74, s41, v74\nv_mul_u32_u24 v75, 3072, v72\nv_add_u32 v75, v75, v73\nv_add_u32 v75, s42, v75")
    E("s_cmp_eq_u32 s35, 1\ns_cselect_b64 vcc, -1, 0\ns_nop 1\nv_cndmask_b32 v31, v70, v74, vcc\ns_cmp_eq_u32 s35, 2\ns_cselect_b64 vcc, -1, 0\ns_nop 1\nv_cndmask_b32 v31, v31, v75, vcc")
    E(f"s_mov_b32 s44, {3*128}\ns_mov_b32 s43, 512\ns_mov_b32 s40, 0x5\n"
      f"s_cmp_eq_u32 s35, 3\ns_cselect_b32 s44, {5*128}, s44\ns_cselect_b32 s40, 0xa, s40\n"
      f"s_cmp_eq_u32 s35, 1\ns_cselect_b32 s44, {3*64*3840}, s44\ns_cselect_b32 s43, {4*64*3840}, s43\n"
      f"s_cmp_eq_u32 s35, 2\ns_cselect_b32 s44, 0, s44\ns_cselect_b32 s43, {4*64*3072}, s43\ns_cselect_b32 s40, 0xe, s40")
    if 'wfonly' in EXP: E("s_cmp_eq_u32 s35, 2\ns_cselect_b32 s40, 0xe, 0")
    E("s_waitcnt lgkmcnt(0)")
    E("s_cmp_eq_u32 s35, 1\ns_cselect_b32 s48, s8, s4\ns_cselect_b32 s49, s9, s5\ns_cselect_b32 s50, s10, s6\ns_cmp_eq_u32 s35, 2\ns_cselect_b32 s48, s12, s48\ns_cselect_b32 s49, s13, s49\ns_cselect_b32 s50, s14, s50\ns_mov_b32 s51, 0x20000")
    def pfpoint(p):
        x=Em(); l=lab("pfp")
        if 'l2pf' in EXP:
            x(f"s_bitcmp1_b32 s40, {p}\ns_cbranch_scc0 {l}\nbuffer_load_dword v253, v31, s[48:51], s44 offen\ns_add_u32 s44, s44, s43\n{l}:")
        return x
    T_=Em()
    T_("s_mul_i32 s31, s2, 3\ns_add_u32 s31, s31, s35\ns_cmp_lt_u32 s35, 3\ns_cselect_b32 s31, s31, 1000\ns_min_u32 s31, s31, 680")
    T_("s_min_u32 s28, s31, 679\ns_mul_i32 s29, s28, 6554\ns_lshr_b32 s29, s29, 16\ns_mul_i32 s30, s29, 10\ns_sub_u32 s30, s28, s30")
    T_(f"s_cmp_ge_u32 s29, 48\ns_cselect_b32 s52, s{P_WO}, s{P_W2}\ns_cselect_b32 s53, s{P_WO+1}, s{P_W2+1}\ns_mov_b32 s54, {640*1280}\ns_cselect_b32 s54, s54, {1536*1280}\ns_mov_b32 s55, 0x20000\ns_cselect_b64 s[56:57], -1, 0")
    T_("v_lshrrev_b32 v84, 3, v2"); T_("v_and_b32 v85, 7, v2"); T_("s_lshl_b32 s28, s30, 7"); T_("v_lshl_add_u32 v85, v85, 4, s28")
    T_("s_sub_u32 s38, s29, 48\ns_lshl_b32 s58, s38, 2\ns_lshl_b32 s59, s29, 5"); T_("v_lshrrev_b32 v86, 5, v2"); T_("v_and_b32 v87, 3, v84")
    for i in range(4):
        half=i>>1
        for x in (f"v_add_u32 v88, {2*(i&1)}, v86","v_add_u32 v88, s58, v88","v_mul_u32_u24 v89, 205, v88","v_lshrrev_b32 v89, 10, v89","v_mul_u32_u24 v90, 5, v89","v_sub_u32 v90, v88, v90",
                  "v_lshrrev_b32 v91, 1, v90","v_and_b32 v92, 1, v90",f"v_add_u32 v92, {2*half}, v92"): T_(x)
        T_(f"v_cmp_eq_u32 vcc, 4, v90\nv_mov_b32 v88, {half}\nv_mov_b32 v90, 4\nv_cndmask_b32 v91, v91, v88, vcc\nv_cndmask_b32 v92, v92, v90, vcc")
        for x in ("v_lshl_add_u32 v91, v89, 1, v91","v_mul_u32_u24 v91, 20, v91","v_lshl_add_u32 v91, v92, 2, v91","v_add_u32 v91, v91, v87"): T_(x)
        T_(f"v_add_u32 v88, {8*i}, v84"); T_("v_add_u32 v88, s59, v88")
        T_("v_cndmask_b32 v91, v88, v91, s[56:57]")
        T_("v_mul_u32_u24 v91, 1280, v91"); T_("v_add_u32 v91, v91, v85")
        cld=T_.vm(f"buffer_load_dwordx4 v[{236+4*i}:{239+4*i}], v91, s[52:55], 0 offen")
    C2=Em()
    C2(f"s_mul_i32 s59, s35, 5120")
    C2("v_lshrrev_b32 v84, 3, v2"); C2("v_mul_u32_u24 v84, 160, v84"); C2("v_and_b32 v85, 7, v2"); C2("v_lshl_add_u32 v84, v85, 4, v84"); C2("v_add_u32 v84, s59, v84")
    C2.wv(cld)
    for i in range(4): cw=C2.lds(f"ds_write_b128 v84, v[{236+4*i}:{239+4*i}] offset:{8*160*i}")
    C2("v_lshrrev_b32 v85, 2, v2"); C2("v_mul_u32_u24 v85, 160, v85"); C2("v_and_b32 v86, 3, v2"); C2("v_lshl_add_u32 v85, v86, 3, v85"); C2("v_add_u32 v85, s59, v85")
    srd(C2,52,P_WS,W2T_SZ,off=WS_W2T)
    C2.wl(cw)
    for i in range(4):
        C2.lds(f"ds_read_b64_tr_b16 v[{236+4*i}:{237+4*i}], v85 offset:{32*i}")
        cr=C2.lds(f"ds_read_b64_tr_b16 v[{238+4*i}:{239+4*i}], v85 offset:{32*i+16*160}")
    C2("v_lshlrev_b32 v86, 4, v2")
    C2.wl(cr)
    l=lab("cst"); txt=f"s_cmp_lt_u32 s31, 680\ns_cbranch_scc0 {l}\n"
    for i in range(4):
        txt+=(f"s_lshl_b32 s37, s30, 2\ns_add_u32 s37, s37, {i}\ns_mul_i32 s38, s37, 205\ns_lshr_b32 s38, s38, 10\ns_mul_i32 s39, s38, 5\ns_sub_u32 s39, s37, s39\n"
              "s_mul_i32 s38, s38, 68\ns_add_u32 s38, s38, s29\ns_mul_i32 s38, s38, 5\ns_add_u32 s38, s38, s39\ns_lshl_b32 s38, s38, 10\n"
              f"buffer_store_dwordx4 v[{236+4*i}:{239+4*i}], v86, s[52:55], s38 offen sc1\n")
    C2(txt+f"{l}:")
    E.extend(T_)
    stamp(E,1)
    ACC=96; FR=(160,180,200)
    for r in range(64): E(f"v_mov_b32 v{ACC+r}, 0")
    F3=Em()
    F3(f"v_mov_b32 v3, {NON}"); nr=F3.lds("ds_read_b32 v62, v3"); F3.wl(nr); F3(f"s_nop 0\nv_readfirstlane_b32 s{S_NONCE}, v62")
    F3("v_and_b32 v3, 31, v2"); F3("s_lshl_b32 s37, s33, 7\ns_lshl_b32 s38, s35, 5\ns_add_u32 s37, s37, s38"); F3("v_add_u32 v3, s37, v3")
    F3("v_lshlrev_b32 v91, 3, v3"); F3("v_lshlrev_b32 v90, 4, v3")
    F4=Em()
    stl=F4.vm("buffer_load_dwordx4 v[92:95], v90, s[16:19], 0 offen sc1")
    def reads(u):
        tau,t=divmod(u,4); slot=tau%4; hi=slot>=2; fr=FR[u%3]; so=(slot&1)*SLOT
        L=[f"ds_read_b128 v[{fr}:{fr+3}], v{(14 if hi else 10)+t} offset:{so}"]
        for T in range(4):
            for jj in range(2):
                d=fr+4+4*T+2*jj
                L.append(f"ds_read_b64_tr_b16 v[{d}:{d+1}], v{(22 if hi else 18)+T} offset:{so+(16*t+4*jj)*256}")
        return L
    rd={}
    E("s_barrier"); stamp(E,2)
    for u in (0,1):
        for r in reads(u): rd[u]=E.lds(r)
    def steps(u0,u1,filler,per):
        M=Em()
        for u in range(u0,u1):
            tau,t=divmod(u,4); fr=FR[u%3]
            M.wl(rd[u])
            rl=reads(u+2) if u+2<40 else []
            cuts=[0,3,5,7,9]
            for T in range(4):
                a=ACC+16*T
                if "nomfma" not in EXP: M(f"v_mfma_f32_32x32x16_bf16 v[{a}:{a+15}], v[{fr+4+4*T}:{fr+7+4*T}], v[{fr}:{fr+3}], v[{a}:{a+15}]")
                for r in rl[cuts[T]:cuts[T+1]]: rd[u+2]=M.lds(r)
                M.slot(per)
        if filler: M.merge(filler)
        E.extend(M)
    PFS=[int(c) for c in (next((e[3:] for e in EXP if e.startswith("pfs")),"0123"))]
    def cat(*xs):
        y=Em()
        for x in xs:
            if x: y.it+=x.it
        return y
    def fl(iv,base=None):
        return cat(*[pfpoint(p) for p in range(4) if PFS[p]==iv],base)
    steps(0,2,fl(0),5); E("s_barrier")
    for b in range(2,10):
        steps(4*b-6,4*b-2,fl(b-1,{6:F3,8:F4}.get(b)),3); E("s_barrier")
    steps(34,40,None,0)
    lds_arrive(E,5,3,4)
    stamp(E,3)
    srd(E,20,P_WS,3*QKV_SZ,off=WS_Q)
    E("s_cmp_eq_u32 s34, 15\ns_cselect_b32 s22, 0, s22")
    E("s_mul_i32 s45, s34, 205\ns_lshr_b32 s45, s45, 10\ns_mul_i32 s46, s45, 5\ns_sub_u32 s46, s34, s46")
    E(f"v_lshrrev_b32 v4, 5, v2\nv_lshlrev_b32 v26, 4, v4\nv_add_u32 v26, {CSF}, v26\nv_lshlrev_b32 v4, 14, v4\nv_add_u32 v91, v91, v4")
    E(f"v_and_b32 v8, 31, v2\ns_lshl_b32 s37, s35, 5\nv_add_u32 v8, s37, v8\nv_lshlrev_b32 v8, 3, v8\nv_add_u32 v8, {STA}, v8")
    E.wv(stl)
    l0=lab("sp"); l1=lab("spd")
    E(f"v_cmp_ne_u32 vcc, s{S_NONCE}, v95\ns_cbranch_vccz {l1}\ns_mov_b32 s37, 0\n{l0}:\nbuffer_load_dwordx4 v[92:95], v90, s[16:19], 0 offen sc1\ns_waitcnt vmcnt(0)\n"
      f"v_cmp_ne_u32 vcc, s{S_NONCE}, v95\ns_cbranch_vccz {l1}\ns_add_u32 s37, s37, 1\ns_cmp_lt_u32 s37, {POLL_MAX}\ns_cbranch_scc0 {l1}\ns_sleep 2\ns_branch {l0}\n{l1}:")
    E("v_mul_f32 v6, v92, v94\nv_sub_f32 v6, 0, v6\nv_mov_b32 v7, v94")
    sw=E.lds("ds_write_b64 v8, v[6:7]")
    E(f"v_mul_f32 v94, {fhex(CQ)}, v93\ns_cmp_eq_u32 s45, 0\ns_cselect_b64 vcc, -1, 0\ns_nop 1\nv_cndmask_b32 v93, v93, v94, vcc\nv_sub_f32 v92, 0, v92")
    E(f"s_mul_i32 s45, s45, {QKV_SZ}\ns_lshl_b32 s46, s46, 19\ns_add_u32 s45, s45, s46")
    E.wl(sw); lds_arrive(E,9,3,4)
    stamp3(E,2)
    lds_wait(E,8,4,3,4)
    stamp3(E,3)
    crs=[]
    for T in range(4):
        for a in range(4): cr=E.lds(f"ds_read_b128 v[{160+16*T+4*a}:{163+16*T+4*a}], v26 offset:{128*T+32*a}")
        crs.append(cr)
    for T in range(4):
        E.wl(crs[T])
        for a in range(4):
            b=ACC+16*T+4*a; c=160+16*T+4*a
            for i in range(4): E(f"v_fma_f32 v{b+i}, v92, v{c+i}, v{b+i}")
            for i in range(4): E(f"v_mul_f32 v{b+i}, v{b+i}, v93")
            o=40+2*((4*T+a)%8)
            E(f"v_cvt_pk_bf16_f32 v{o}, v{b}, v{b+1}\nv_cvt_pk_bf16_f32 v{o+1}, v{b+2}, v{b+3}")
            E(f"s_add_u32 s46, s45, {(8*T+2*a)*16384}")
            qs=E.st(f"buffer_store_dwordx2 v[{o}:{o+1}], v91, s[20:23], s46 offen sc1")
    stamp3(E,4)
    E.wv(qs)
    stamp3(E,7)
    E(f"s_lshl_b32 s38, s33, 4\ns_add_u32 s38, s38, s34\ns_lshl_b32 s38, s38, 7\ns_add_u32 s38, s38, {WS_FQ}")
    agg_flag(E,0,4,38,3,4)
    stamp3(E,8)
    stamp(E,4)
    lds_wait(E,5,4,3,4)
    E.extend(C2)
    E(f"s_mov_b32 s22, {3*QKV_SZ}")
    srd(E,24,P_WS,HO_SZ,off=WS_HO)
    E("s_mul_i32 s37, s34, 10\ns_lshr_b32 s38, s37, 5\ns_add_u32 s37, s37, 9\ns_lshr_b32 s39, s37, 5")
    E("v_min_u32 v3, 13, v2\nv_mul_u32_u24 v4, 43, v3\nv_lshrrev_b32 v4, 8, v4\nv_mul_u32_u24 v5, 6, v4\nv_sub_u32 v5, v3, v5")
    E("v_mul_u32_u24 v6, 86, v5\nv_lshrrev_b32 v6, 8, v6\nv_mul_u32_u24 v7, 3, v6\nv_sub_u32 v7, v5, v7")
    E("v_cmp_eq_u32 vcc, 2, v4\nv_mov_b32 v8, 0\ns_nop 0\nv_cndmask_b32 v6, v6, v5, vcc\nv_cndmask_b32 v7, v7, v8, vcc")
    E("v_add_u32 v8, 1, v4\nv_mul_u32_u24 v8, 5, v8\nv_cmp_eq_u32 vcc, 15, v8\nv_mov_b32 v9, 0\ns_nop 0\nv_cndmask_b32 v8, v8, v9, vcc")
    E("v_mov_b32 v9, s38\nv_mov_b32 v20, s39\nv_cmp_eq_u32 vcc, 0, v6\ns_nop 1\nv_cndmask_b32 v9, v20, v9, vcc\nv_add_u32 v8, v8, v9")
    E(f"v_sub_u32 v9, s33, v7\nv_max_i32 v9, 0, v9\nv_lshl_add_u32 v8, v9, 4, v8\nv_lshlrev_b32 v8, 7, v8\nv_add_u32 v8, {WS_FQ}, v8")
    E("v_mov_b32 v10, 0x3f80\nv_mov_b32 v11, 0\nv_lshlrev_b32 v4, 3, v0")
    E.lds(f"ds_write_b64 v4, v[10:11] offset:{ONE0}"); E(f"v_add_u32 v5, {ONE1}, v4"); E.lds("ds_write_b64 v5, v[10:11]")
    E("v_min_u32 v6, 127, v0\nv_lshlrev_b32 v6, 3, v6"); E.lds(f"ds_write_b64 v6, v[10:11] offset:{ONE0+2048}"); E(f"v_add_u32 v6, {ONE1}, v6"); E.lds("ds_write_b64 v6, v[10:11] offset:2048")
    E("s_cmp_lt_u32 s33, 2\ns_cselect_b32 s56, 0x40000000, 0\ns_cmp_lt_u32 s33, 1\ns_cselect_b32 s57, 0x40000000, 0")
    E("s_lshl_b32 s40, s33, 10\ns_sub_u32 s40, s40, 2048\ns_mul_i32 s41, s34, %d\ns_add_u32 s40, s40, s41\ns_add_u32 s40, s40, %d"%(10*16384,QKV_SZ))
    E(f"s_lshl_b32 s41, s35, 14\ns_add_u32 s28, s40, s41\ns_mul_i32 s42, s35, {GS}\ns_add_u32 s29, s28, {4*16384}")
    E(f"s_cmp_ge_u32 s35, 2\ns_cselect_b32 s45, {QKV_SZ-10*16384}, 0\ns_add_u32 s30, s28, s45\ns_add_u32 s30, s30, {8*16384}\ns_add_u32 s31, s28, {12*16384+QKV_SZ-10*16384}")
    E("s_waitcnt vmcnt(0) lgkmcnt(0)")
    E(f"s_lshl_b32 s38, s2, 7\ns_add_u32 s38, s38, {WS_FW}")
    agg_flag(E,1,4,38,3,4)
    lds_wait(E,7,4,3,4,2)
    stamp5(E,4)
    if 'fq' in EXP:
        E("buffer_load_dword v9, v8, s[16:19], 0 offen sc1\ns_waitcnt vmcnt(0)"); stamp5(E,5)
    if 'nopollq' not in EXP: poll_leader(E,8,9,20,NON+16)
    E("v_lshlrev_b32 v3, 4, v2")
    stamp(E,5); stamp4(E,1); stamp5(E,6)
    for n in range(5):
        for p in range(3):
            oob={0:"s_add_u32 s47, s47, s56\n",1:"s_add_u32 s47, s47, s57\n",2:""}[p]
            E.vm(f"s_add_u32 m0, s42, {4*n*GS+1024*p}\ns_add_u32 s47, s{28+min(n,3)}, {1024*p+(4*16384 if n==4 else 0)}\n{oob}buffer_load_dwordx4 v3, s[20:23], s47 offen sc1 lds")
    E("v_and_b32 v5, 31, v2\nv_lshrrev_b32 v6, 5, v2\ns_lshl_b32 s40, s33, 7\ns_lshl_b32 s41, s35, 5\ns_add_u32 s40, s40, s41")
    E("v_add_u32 v7, s40, v5\nv_lshlrev_b32 v7, 3, v7\nv_lshl_add_u32 v8, v6, 15, v7")
    for e,QF in ((0,12),(1,232)):
        E(f"s_mul_i32 s41, s34, 10\ns_add_u32 s41, s41, {5*e}\ns_lshl_b32 s41, s41, 14")
        E.vm(f"buffer_load_dwordx2 v[{QF}:{QF+1}], v8, s[20:23], s41 offen sc1"); E("s_add_u32 s42, s41, 16384")
        E.vm(f"buffer_load_dwordx2 v[{QF+2}:{QF+3}], v8, s[20:23], s42 offen sc1"); E("s_add_u32 s42, s41, 65536")
        E.vm(f"buffer_load_dwordx2 v[{QF+4}:{QF+5}], v7, s[20:23], s42 offen sc1")
        E(f"v_mov_b32 v{QF+6}, 0\nv_mov_b32 v{QF+7}, 0")
    stamp4(E,2)
    E("s_waitcnt vmcnt(0) lgkmcnt(0)")
    stamp4(E,3)
    E("v_cmp_eq_u32 vcc, 0, v6\ns_nop 1")
    for QF in (12,232): E(f"v_cndmask_b32 v{QF+4}, 0, v{QF+4}, vcc\nv_cndmask_b32 v{QF+5}, 0, v{QF+5}, vcc")
    l0=lab("kv"); l1=lab("kvd")
    E(f"v_mov_b32 v9, {CNT+16}\nv_mov_b32 v10, 1\ns_mov_b64 exec, 1\nds_add_u32 v9, v10\ns_mov_b64 exec, -1\ns_mov_b32 s37, 0\n{l0}:\nds_read_b32 v10, v9\ns_waitcnt lgkmcnt(0)\n"
      f"v_cmp_ne_u32 vcc, 4, v10\ns_cbranch_vccz {l1}\ns_add_u32 s37, s37, 1\ns_cmp_lt_u32 s37, {POLL_MAX*8}\ns_cbranch_scc0 {l1}\ns_sleep 1\ns_branch {l0}\n{l1}:")
    stamp(E,6); stamp4(E,4)
    attention(E)
    return E


def attention_fast(E):
    KF=32; SB=(104,120,136); PB=(152,160); O=168; CN=184; M0=200; M8=216; Q1=232; VB_=(240,248); QF=12
    PM0=None
    NEG=fhex(-1e30)
    E(f"s_lshl_b32 s43, s35, 8\nv_lshlrev_b32 v9, 3, v5\nv_add_u32 v9, s43, v9\nv_mul_u32_u24 v20, {2*GS}, v6\nv_add_u32 v20, v20, v9\nv_add_u32 v21, {4*GS}, v9")
    kr={}
    def kreads(e,ts):
        for t in ts:
            kf=KF+8*t; o=5*GS*e
            E.lds(f"ds_read_b64 v[{kf}:{kf+1}], v20 offset:{o+256*t}"); E.lds(f"ds_read_b64 v[{kf+2}:{kf+3}], v20 offset:{o+256*t+GS}")
            kr[t]=E.lds(f"ds_read_b64 v[{kf+4}:{kf+5}], v21 offset:{o+256*t}")
    E("s_lshl_b32 s46, s33, 2\ns_add_u32 s46, s46, s35\ns_sub_i32 s46, 8, s46\ns_max_i32 s46, s46, 0")
    for t in range(9):
        if t<8: E(f"s_cmp_gt_u32 s46, {t}\ns_cselect_b32 s47, 0xff7f, 0\nv_mov_b32 v{KF+8*t+6}, s47\nv_mov_b32 v{KF+8*t+7}, 0")
        else: E(f"v_mov_b32 v{KF+8*t+6}, 0\nv_mov_b32 v{KF+8*t+7}, 0")
    E(f"v_cmp_eq_u32 vcc, 0, v6\nv_mov_b32 v7, 0x3f80\ns_nop 0\nv_cndmask_b32 v{QF+6}, 0, v7, vcc\nv_mov_b32 v{Q1+6}, v{QF+6}")
    kreads(0,range(9))
    E("v_bfe_u32 v22, v2, 4, 1\nv_and_b32 v23, 3, v2\nv_bfe_u32 v24, v2, 2, 2\nv_lshl_add_u32 v24, v6, 2, v24\nv_lshlrev_b32 v24, 3, v24\nv_add_u32 v24, s43, v24")
    E(f"v_lshl_add_u32 v25, v22, 2, v23\nv_mul_u32_u24 v26, {GS}, v25\nv_add_u32 v26, {VB}, v26\nv_cmp_lt_u32 vcc, 4, v25\nv_mov_b32 v7, {ONE0}\nv_mov_b32 v8, {ONE1}")
    E(f"v_cndmask_b32 v22, v26, v7, vcc\nv_add_u32 v26, {5*GS}, v26\nv_cndmask_b32 v23, v26, v8, vcc\nv_add_u32 v22, v22, v24\nv_add_u32 v23, v23, v24")
    E(f"v_mov_b32 v28, {NEG}\nv_mov_b32 v27, 0\nv_lshlrev_b32 v29, 2, v6\nv_sub_u32 v29, v5, v29")
    for r in range(16):
        kk=8*(r>>2)+(r&3)
        E(f"v_cmp_le_i32 vcc, {kk}, v29\ns_nop 1\nv_cndmask_b32 v{M8+r}, v28, v27, vcc\nv_cndmask_b32 v{M0+r}, v27, v28, vcc")
    E("v_bfe_u32 v24, v2, 4, 1\nv_lshlrev_b32 v24, 10, v24\nv_and_b32 v25, 15, v2\nv_lshl_add_u32 v24, v25, 4, v24")
    E("s_lshl_b32 s42, s33, 1\ns_lshr_b32 s43, s35, 1\ns_add_u32 s42, s42, s43\ns_mul_i32 s42, s42, 68\ns_add_u32 s42, s42, 48\ns_lshl_b32 s42, s42, 12\ns_and_b32 s43, s35, 1\ns_lshl_b32 s43, s43, 11\ns_add_u32 s42, s42, s43")
    E("s_mul_i32 s40, s34, 5")
    def qk(t,cinit):
        kf=KF+8*t; d=SB[t%3]
        return [f"v_mfma_f32_32x32x16_bf16 v[{d}:{d+15}], v[{kf}:{kf+3}], v[{QF}:{QF+3}], {cinit}",
                f"v_mfma_f32_32x32x16_bf16 v[{d}:{d+15}], v[{kf+4}:{kf+7}], v[{QF+4}:{QF+7}], v[{d}:{d+15}]"]
    def maxes(t,first):
        d=SB[t%3]; L=[]
        for i in range(8):
            acc=30+(i&1)
            if first and i<2: L.append(f"v_max_f32 v{acc}, v{d+2*i}, v{d+2*i+1}")
            else: L.append(f"v_max3_f32 v{acc}, v{acc}, v{d+2*i}, v{d+2*i+1}")
        return L
    for e in range(2):
        va=22+e
        stamp6(E,1) if e==0 else stamp6(E,5)
        vr_={}
        def vreads(t):
            vf=VB_[t%2]
            for m in range(2):
                E.lds(f"ds_read_b64_tr_b16 v[{vf+4*m}:{vf+4*m+1}], v{va} offset:{256*t+128*m}")
                vr_[t]=E.lds(f"ds_read_b64_tr_b16 v[{vf+4*m+2}:{vf+4*m+3}], v{va} offset:{256*t+128*m+64}")
        def cin(t): return f"v[{M0}:{M0+15}]" if t==0 else (f"v[{M8}:{M8+15}]" if t==8 else "0")
        vreads(0)
        E.wl(kr[0])
        for x in qk(0,cin(0)): E(x)
        E.wl(kr[1])
        for x in qk(1,cin(1)): E(x)
        vreads(1)
        E("s_nop 5")
        def pv(t):
            vf=VB_[t%2]; p=PB[t%2]
            c0 = "0" if t==0 else f"v[{O}:{O+15}]"
            return [f"v_mfma_f32_32x32x16_bf16 v[{O}:{O+15}], v[{vf}:{vf+3}], v[{p}:{p+3}], {c0}",
                    f"v_mfma_f32_32x32x16_bf16 v[{O}:{O+15}], v[{vf+4}:{vf+7}], v[{p+4}:{p+7}], v[{O}:{O+15}]"]
        for t in range(9):
            d=SB[t%3]; p=PB[t%2]
            nx=qk(t+2,cin(t+2)) if t+2<9 else []
            pp=pv(t-1) if t>=1 else []
            if t>=1: E.wl(vr_[t-1])
            if nx: E.wl(kr[t+2])
            mf=[]
            if pp: mf+=[pp[0]]
            if nx: mf+=[nx[0]]
            if pp: mf+=[pp[1]]
            if nx: mf+=[nx[1]]
            k=0
            for g in range(4):
                for r in range(4*g,4*g+4): E(f"v_exp_f32 v{d+r}, v{d+r}")
                if k<len(mf): E(mf[k]); k+=1
            while k<len(mf): E(mf[k]); k+=1
            if t>=1 and t+1<9: vreads(t+1)
            for r in range(8): E(f"v_cvt_pk_bf16_f32 v{p+r}, v{d+2*r}, v{d+2*r+1}")
            if e==0 and t==6: kreads(1,range(0,5))
            if e==0 and t==7: kreads(1,range(5,9))
        E.wl(vr_[8]); E("s_nop 1")
        for x in pv(8): E(x)
        stamp6(E,4) if e==0 else stamp6(E,7)
        PK=SB[0]
        E(f"s_add_u32 s41, s40, {2*e}")
        E("v_add_u32 v10, s41, v6\nv_lshrrev_b32 v11, 2, v10\nv_lshlrev_b32 v11, 12, v11\nv_and_b32 v10, 3, v10\nv_lshl_add_u32 v11, v10, 8, v11\nv_add_u32 v11, v11, v24")
        E(f"s_add_u32 s45, s40, 4\ns_lshr_b32 s44, s45, 2\ns_lshl_b32 s44, s44, 12\ns_and_b32 s45, s45, 3\ns_lshl_b32 s45, s45, 8\ns_add_u32 s44, s44, s45\ns_add_u32 s44, s44, {8*e}\ns_add_u32 s44, s44, s42")
        E(f"s_nop 1\nv_mov_b32 v30, v{O+8}\nv_mov_b32 v31, v{O+8}\ns_nop 1\nv_permlane32_swap_b32 v30, v31\ns_nop 1")
        E(f"v_mov_b32 v29, {fhex(2.0**60)}\nv_cmp_nle_f32 vcc, v31, v29\nv_mov_b32 v29, {fhex(2.0**-60)}\nv_cmp_nge_f32 s[56:57], v31, v29\ns_nop 1\ns_or_b64 vcc, vcc, s[56:57]\ns_mov_b32 s36, {e}")
        if 'forcefb' in EXP: E("s_mov_b64 vcc, -1")
        E("s_cbranch_vccnz L_att_fb")
        E("v_rcp_f32 v31, v31\ns_nop 0")
        for r in range(12): E(f"v_mul_f32 v{O+r}, v{O+r}, v31")
        for r in range(6): E(f"v_cvt_pk_bf16_f32 v{PK+r}, v{O+2*r}, v{O+2*r+1}")
        E(f"buffer_store_dwordx4 v[{PK}:{PK+3}], v11, s[24:27], s42 offen sc1")
        E(f"s_mov_b32 exec_hi, 0\nbuffer_store_dwordx2 v[{PK+4}:{PK+5}], v24, s[24:27], s44 offen sc1\ns_mov_b64 exec, -1")
        if e==0:
            for r in range(8): E(f"v_mov_b32 v{12+r}, v{Q1+r}")
    E("s_branch L_att_done")

def att_out(E,O,loop,Q1,PK):
    E(f"s_nop 7\nv_mov_b32 v30, v{O+8}\nv_mov_b32 v31, v{O+8}\ns_nop 1\nv_permlane32_swap_b32 v30, v31\ns_nop 1\nv_rcp_f32 v31, v31\ns_nop 0")
    for r in range(12): E(f"v_mul_f32 v{O+r}, v{O+r}, v31")
    for r in range(6): E(f"v_cvt_pk_bf16_f32 v{PK+r}, v{O+2*r}, v{O+2*r+1}")
    E("s_mul_i32 s40, s34, 5\ns_lshl_b32 s41, s36, 1\ns_add_u32 s41, s41, s40")
    E("v_add_u32 v10, s41, v6\nv_lshrrev_b32 v11, 2, v10\nv_lshlrev_b32 v11, 12, v11\nv_and_b32 v10, 3, v10\nv_lshl_add_u32 v11, v10, 8, v11")
    E("v_bfe_u32 v23, v2, 4, 1\nv_lshlrev_b32 v23, 10, v23\nv_and_b32 v24, 15, v2\nv_lshl_add_u32 v23, v24, 4, v23\nv_add_u32 v11, v11, v23")
    E("s_lshl_b32 s42, s33, 1\ns_lshr_b32 s43, s35, 1\ns_add_u32 s42, s42, s43\ns_mul_i32 s42, s42, 68\ns_add_u32 s42, s42, 48\ns_lshl_b32 s42, s42, 12\ns_and_b32 s43, s35, 1\ns_lshl_b32 s43, s43, 11\ns_add_u32 s42, s42, s43")
    E(f"buffer_store_dwordx4 v[{PK}:{PK+3}], v11, s[24:27], s42 offen sc1")
    E("s_add_u32 s40, s40, 4\ns_lshr_b32 s44, s40, 2\ns_lshl_b32 s44, s44, 12\ns_and_b32 s45, s40, 3\ns_lshl_b32 s45, s45, 8\ns_add_u32 s44, s44, s45\ns_lshl_b32 s45, s36, 3\ns_add_u32 s44, s44, s45\ns_add_u32 s44, s44, s42")
    E(f"s_mov_b32 exec_hi, 0\nbuffer_store_dwordx2 v[{PK+4}:{PK+5}], v23, s[24:27], s44 offen sc1\ns_mov_b64 exec, -1")
    E(f"s_cmp_eq_u32 s36, 1\ns_cbranch_scc1 L_att_done")
    for r in range(8): E(f"v_mov_b32 v{12+r}, v{Q1+r}")
    E(f"s_mov_b32 s36, 1\ns_branch {loop}")
def attention_slow(E):
    E("s_mov_b32 s36, 0")
    E.label("L_att_fb")
    E("s_waitcnt lgkmcnt(0)\nv_mov_b32 v18, 0\nv_mov_b32 v238, 0")
    E("s_lshl_b32 s46, s33, 2\ns_add_u32 s46, s46, s35\ns_sub_i32 s46, 8, s46\ns_max_i32 s46, s46, 0")
    E.label("L_att")
    E(f"s_mul_i32 s42, s36, {5*GS}\ns_lshl_b32 s43, s35, 8\ns_add_u32 s42, s42, s43")
    E(f"v_lshlrev_b32 v9, 3, v5\nv_add_u32 v9, s42, v9\nv_mul_u32_u24 v20, {2*GS}, v6\nv_add_u32 v20, v20, v9\nv_add_u32 v21, {4*GS}, v9")
    E("v_bfe_u32 v22, v2, 4, 1\nv_and_b32 v23, 3, v2\nv_bfe_u32 v24, v2, 2, 2\nv_lshl_add_u32 v24, v6, 2, v24\nv_lshlrev_b32 v24, 3, v24\nv_add_u32 v24, s43, v24")
    E(f"v_lshl_add_u32 v25, v22, 2, v23\nv_mul_u32_u24 v26, {GS}, v25\ns_mul_i32 s44, s36, {5*GS}\ns_add_u32 s44, s44, {VB}\nv_add_u32 v26, s44, v26")
    E(f"s_mov_b32 s45, {ONE1}\ns_cmp_eq_u32 s36, 0\ns_cselect_b32 s45, {ONE0}, s45\nv_mov_b32 v27, s45\nv_cmp_lt_u32 vcc, 4, v25\ns_nop 1\nv_cndmask_b32 v26, v26, v27, vcc\nv_add_u32 v22, v26, v24")
    S=32; KF=176; QF=12
    for st in range(2): E(f"v_mov_b32 v{KF+8*st+6}, 0\nv_mov_b32 v{KF+8*st+7}, 0")
    E(f"v_mov_b32 v28, {fhex(-1e30)}")
    for t in range(9):
        kf=KF+8*(t%2); d=S+16*t; skip=lab("ts"); done=lab("td")
        E(f"s_cmp_gt_u32 s46, {t}\ns_cbranch_scc1 {skip}")
        E(f"ds_read_b64 v[{kf}:{kf+1}], v20 offset:{256*t}\nds_read_b64 v[{kf+2}:{kf+3}], v20 offset:{256*t+GS}\nds_read_b64 v[{kf+4}:{kf+5}], v21 offset:{256*t}\ns_waitcnt lgkmcnt(0)")
        E(f"v_mfma_f32_32x32x16_bf16 v[{d}:{d+15}], v[{kf}:{kf+3}], v[{QF}:{QF+3}], 0\nv_mfma_f32_32x32x16_bf16 v[{d}:{d+15}], v[{kf+4}:{kf+7}], v[{QF+4}:{QF+7}], v[{d}:{d+15}]")
        E(f"s_branch {done}"); E.label(skip)
        for r in range(16): E(f"v_mov_b32 v{d+r}, v28")
        E.label(done)
    E("s_nop 15\nv_lshlrev_b32 v29, 2, v6\nv_sub_u32 v29, v5, v29")
    for r in range(16):
        kk=8*(r>>2)+(r&3)
        E(f"v_cmp_le_i32 vcc, {kk}, v29\ns_nop 1\nv_cndmask_b32 v{S+128+r}, v28, v{S+128+r}, vcc\nv_cndmask_b32 v{S+r}, v{S+r}, v28, vcc")
    E(f"v_max3_f32 v30, v{S}, v{S+1}, v{S+2}")
    r=3
    while r<144:
        if r+1<144: E(f"v_max3_f32 v30, v30, v{S+r}, v{S+r+1}"); r+=2
        else: E(f"v_max_f32 v30, v30, v{S+r}"); r+=1
    E("v_mov_b32 v31, v30\nv_mov_b32 v29, v30\ns_nop 1\nv_permlane32_swap_b32 v31, v29\ns_nop 1\nv_max_f32 v30, v31, v29")
    for t in range(9):
        d=S+16*t
        for r in range(16): E(f"v_sub_f32 v{d+r}, v{d+r}, v30")
        for r in range(16): E(f"v_exp_f32 v{d+r}, v{d+r}")
        E("s_nop 0")
        for r in range(8): E(f"v_cvt_pk_bf16_f32 v{d+r}, v{d+2*r}, v{d+2*r+1}")
    O=192; VF=208
    for r in range(16): E(f"v_mov_b32 v{O+r}, 0")
    for t in range(9):
        d=S+16*t; vf=VF+8*(t%2); skip=lab("ps")
        E(f"s_cmp_gt_u32 s46, {t}\ns_cbranch_scc1 {skip}")
        for m in range(2):
            E(f"ds_read_b64_tr_b16 v[{vf+4*m}:{vf+4*m+1}], v22 offset:{256*t+128*m}\nds_read_b64_tr_b16 v[{vf+4*m+2}:{vf+4*m+3}], v22 offset:{256*t+128*m+64}")
        E("s_waitcnt lgkmcnt(0)")
        for m in range(2): E(f"v_mfma_f32_32x32x16_bf16 v[{O}:{O+15}], v[{vf+4*m}:{vf+4*m+3}], v[{d+4*m}:{d+4*m+3}], v[{O}:{O+15}]")
        E.label(skip)
    E("s_nop 7")
    att_out(E,O,"L_att",232,224)

def attention(E):
    if 'noaprio' not in EXP: E("s_setprio 1")
    attention_fast(E)
    E.label("L_att_slow")
    attention_slow(E)
    E.label("L_att_done")
    stamp(E,7)
    E("s_waitcnt vmcnt(0)")
    E(f"s_lshl_b32 s38, s33, 4\ns_add_u32 s38, s38, s34\ns_lshl_b32 s38, s38, 7\ns_add_u32 s38, s38, {WS_FO}")
    agg_flag(E,3,4,38,3,4)
    stamp(E,8)
    stamp_flush(E)
    E("s_endpgm")

def build():
    hdr=open("parallel_sum__sliding_block__mixer_channel_mlp__prompt.s.ref").read().split("; Override")[0]
    s=hdr+f"; @launch grid=(256,1,1) block=(512,1,1) lds={LDS_TOTAL}\n"
    s+='.amdgcn_target "amdgcn-amd-amdhsa--gfx950"\n.text\n'+kernel_header(KNAME)
    s+=prologue().text()+gen_A().text()+gen_F().text()
    s+='.section .rodata,"a"\n'+kernel_desc(KNAME,sgpr=102)
    return s
if __name__=="__main__":
    out=sys.argv[1] if len(sys.argv)>1 else "parallel_sum__sliding_block__mixer_channel_mlp__prompt.s"
    if len(sys.argv)>2 and sys.argv[2]=="instr": INSTR=True
    if len(sys.argv)>3: EXP.update(sys.argv[3].split(","))
    for e in EXP:
        if e.startswith("sleep"): SLEEP=int(e[5:])
    open(out,"w").write(build())
```

```python
import math, sys, struct
from asmlib import kernel_header, kernel_desc
from em import Em

KNAME="parallel_sum__sliding_block__mixer_channel_mlp__prompt_kernel"
WS_STATS=0; WS_CSP=0x10000; WS_FQ=0x90000; WS_FH=0x98000; WS_FO=0xA0000; WS_FW=0xA8000; SMALL_SZ=0xB0000
WS_W2T=0xB0000; W2T_SZ=8*68*5*1024
WS_Q=0x360000; QKV_SZ=0x280000
WS_HO=0xB00000; HO_SZ=0x880000
WS_STAMP=0x2000000
LOG2E=1.4426950408889634; CQ=(20**-0.5)*LOG2E
GC0=-2.0*LOG2E*math.sqrt(2.0/math.pi); GC1=GC0*0.044715
def fhex(f): return hex(struct.unpack("<I",struct.pack("<f",f))[0])
P_X,P_WQKV,P_WO,P_W1,P_B1,P_W2,P_B2,P_OUT,P_DBG,P_WS=60,62,64,68,70,72,74,76,78,80
SLOT=32768; P0=131072; P1=143360; U0=69632; CSF=155648; NON=156672; CNT=156704; STX=156768; B1F=156928; STA=157312; XCH=131072; CSCR=135168
GS=3104; VB=10*GS
def _ones():
    base=VB+10*GS; o0=base+((160-(base-VB))%256); b2=o0+3072; o1=b2+((64-(b2-VB))%256); return o0,o1,o1+3072
ONE0,ONE1,ATT_END=_ones(); RED=69632; LDS_TOTAL=163840
assert ATT_END<=RED
V0=20480
def wf_region(sg): return [P0,P1,U0,U0+12288,U0+2*12288,U0+3*12288,U0+4*12288,V0,V0+12288,V0+2*12288][sg]
S_NONCE=82
INSTR=False; EXP=set(); POLL_MAX=20000
_uid=[0]
def lab(b="L"):
    _uid[0]+=1; return f"{b}_{_uid[0]}"
NST=9
def stamp2(E,idx):
    if INSTR and 'barst' in EXP: E(f"s_memtime s[{84+2*idx}:{85+2*idx}]")
def stamp3(E,idx):
    if INSTR and 'epi' in EXP: E(f"s_memrealtime s[{84+2*idx}:{85+2*idx}]")
def stamp4(E,idx):
    if INSTR and 'gel' in EXP: E(f"s_memrealtime s[{84+2*idx}:{85+2*idx}]")
def stamp5(E,idx):
    if INSTR and 'fq' in EXP: E(f"s_memrealtime s[{84+2*idx}:{85+2*idx}]")
def stamp6(E,idx):
    if INSTR and 'att' in EXP:
        l=lab("s6"); E(f"s_cmp_eq_u32 s36, {0 if idx<5 else 1}\ns_cbranch_scc0 {l}\ns_memtime s[{84+2*idx}:{85+2*idx}]\n{l}:")
def stamp8(E,idx):
    if INSTR and 'p1b' in EXP: E(f"s_memtime s[{84+2*idx}:{85+2*idx}]")
def stamp9(E,idx):
    if INSTR and 'fc2' in EXP: E(f"s_memrealtime s[{84+2*idx}:{85+2*idx}]")
def stampA(E,idx):
    if INSTR and 'pA' in EXP: E(f"s_memtime s[{84+2*idx}:{85+2*idx}]")
def stamp(E,idx):
    if 'pA' in EXP and idx>0: return
    if 'pB' in EXP and idx>0: return
    if 'fc2' in EXP and idx>0: return
    if 'p1b' in EXP and idx>0: return
    if 'intv' in EXP and idx>0: return
    if 'lat' in EXP and idx>0: return
    if 'att' in EXP and idx>0: return
    if 'fq' in EXP and idx>0: return
    if 'gel' in EXP and idx>0: return
    if 'epi' in EXP and idx>0: return
    if 'barst' in EXP and idx>0: return
    if INSTR: E(f"s_mem{'time' if 'clk' in EXP else 'realtime'} s[{84+2*idx}:{85+2*idx}]")
def stamp_flush(E,role=0):
    if not INSTR: return
    E("s_waitcnt lgkmcnt(0)")
    if 'dbgts' in EXP:
        l=lab("dts")
        E(f"s_cmp_eq_u32 s35, 0\ns_cbranch_scc0 {l}\ns_cmp_eq_u32 s2, 37\ns_cbranch_scc0 {l}")
        E(f"s_mov_b32 s52, s{P_DBG}\ns_mov_b32 s53, s{P_DBG+1}\ns_mov_b32 s54, 256\ns_mov_b32 s55, 0x20000\nv_mov_b32 v251, 0\ns_mov_b64 exec, 1")
        sel = (0,2,3,4,5,6,7) if role==0 else (2,3,4,5,6,7,8)
        base = 1 if role==0 else 8
        for n,i in enumerate(sel):
            E(f"s_sub_u32 s56, s{84+2*i}, s{S_NONCE}\nv_mov_b32 v250, s56\nbuffer_store_dword v250, v251, s[52:55], 0 offen offset:{4*(base+n)}")
        E("s_mov_b64 exec, -1"); E.label(l)
        return
    E(f"s_add_u32 s52, s{P_WS}, {WS_STAMP}\ns_addc_u32 s53, s{P_WS+1}, 0\ns_mov_b32 s54, 0x20000\ns_mov_b32 s55, 0x20000")
    E("s_lshl_b32 s56, s2, 3\ns_add_u32 s56, s56, s32\ns_lshl_b32 s56, s56, 6\nv_mov_b32 v251, 0")
    for i in range(NST):
        E(f"v_mov_b32 v250, s{84+2*i}"); E(f"buffer_store_dword v250, v251, s[52:55], s56 offen offset:{4*i}")
def srd(E,d,p,size,off=0):
    if off: E(f"s_add_u32 s{d}, s{p}, {off}\ns_addc_u32 s{d+1}, s{p+1}, 0")
    else: E(f"s_mov_b32 s{d}, s{p}\ns_mov_b32 s{d+1}, s{p+1}")
    E(f"s_mov_b32 s{d+2}, {size}\ns_mov_b32 s{d+3}, 0x20000")
SLEEP=8
def poll_slow(E,vaddr,vtmp):
    l0=lab("poll"); l1=lab("polld")
    E("s_mov_b32 s37, 0"); E.label(l0)
    E(f"buffer_load_dword v{vtmp}, v{vaddr}, s[16:19], 0 offen sc1\ns_waitcnt vmcnt(0)")
    E(f"v_cmp_ne_u32 vcc, s{S_NONCE}, v{vtmp}\ns_cbranch_vccz {l1}")
    E(f"s_add_u32 s37, s37, 1\ns_cmp_lt_u32 s37, {POLL_MAX}\ns_cbranch_scc0 {l1}\ns_sleep {SLEEP}\ns_branch {l0}")
    E.label(l1)
def check_or_poll(E,vaddr,vval):
    l0=lab("cp"); l1=lab("cpd")
    E(f"v_cmp_ne_u32 vcc, s{S_NONCE}, v{vval}\ns_cbranch_vccz {l1}\ns_mov_b32 s37, 0\n{l0}:\n"
      f"buffer_load_dword v{vval}, v{vaddr}, s[16:19], 0 offen sc1\ns_waitcnt vmcnt(0)\nv_cmp_ne_u32 vcc, s{S_NONCE}, v{vval}\ns_cbranch_vccz {l1}\n"
      f"s_add_u32 s37, s37, 1\ns_cmp_lt_u32 s37, {POLL_MAX}\ns_cbranch_scc0 {l1}\ns_sleep {SLEEP}\ns_branch {l0}\n{l1}:")
def poll_leader(E,vaddr,vtmp,vt2,goaddr):
    lw=lab("pw"); ld=lab("pd"); l0=lab("pl")
    E(f"v_mov_b32 v{vt2}, {goaddr}\ns_cmp_eq_u32 s35, 0\ns_cbranch_scc0 {lw}")
    poll_slow(E,vaddr,vtmp)
    E(f"v_mov_b32 v{vtmp}, s{S_NONCE}\nds_write_b32 v{vt2}, v{vtmp}\ns_waitcnt lgkmcnt(0)\ns_branch {ld}")
    E.label(lw)
    E(f"s_mov_b32 s37, 0\n{l0}:\nds_read_b32 v{vtmp}, v{vt2}\ns_waitcnt lgkmcnt(0)\nv_cmp_ne_u32 vcc, s{S_NONCE}, v{vtmp}\ns_cbranch_vccz {ld}\n"
      f"s_add_u32 s37, s37, 1\ns_cmp_lt_u32 s37, {POLL_MAX*8}\ns_cbranch_scc0 {ld}\ns_sleep 2\ns_branch {l0}")
    E.label(ld)
def flag_store(E,soff,vt0,vt1):
    E(f"v_mov_b32 v{vt0}, s{S_NONCE}\nv_mov_b32 v{vt1}, 0")
    return E.st(f"s_mov_b64 exec, 1\nbuffer_store_dword v{vt0}, v{vt1}, s[16:19], s{soff} offen sc1\ns_mov_b64 exec, -1")
def agg_flag(E,cnt_idx,nwaves,soff,vt0,vt1):
    l=lab("ag")
    E(f"v_mov_b32 v{vt0}, {CNT+4*cnt_idx}\nv_mov_b32 v{vt1}, 1\ns_mov_b64 exec, 1\nds_add_rtn_u32 v{vt1}, v{vt0}, v{vt1}\ns_waitcnt lgkmcnt(0)\ns_mov_b64 exec, -1\n"
      f"v_readfirstlane_b32 s37, v{vt1}\ns_nop 3\ns_cmp_eq_u32 s37, {nwaves-1}\ns_cbranch_scc0 {l}\nv_mov_b32 v{vt0}, s{S_NONCE}\nv_mov_b32 v{vt1}, 0\ns_mov_b64 exec, 1\n"
      f"buffer_store_dword v{vt0}, v{vt1}, s[16:19], s{soff} offen sc1\ns_mov_b64 exec, -1\n{l}:")
def lds_arrive(E,idx,vt0,vt1):
    E(f"v_mov_b32 v{vt0}, {CNT+4*idx}\nv_mov_b32 v{vt1}, 1\ns_mov_b64 exec, 1\nds_add_u32 v{vt0}, v{vt1}\ns_mov_b64 exec, -1")
def lds_wait(E,idx,target,vt0,vt1,slp=1):
    l0=lab("lw"); l1=lab("lwd")
    E(f"v_mov_b32 v{vt0}, {CNT+4*idx}\ns_mov_b32 s37, 0\n{l0}:\nds_read_b32 v{vt1}, v{vt0}\ns_waitcnt lgkmcnt(0)\nv_cmp_gt_u32 vcc, {target}, v{vt1}\ns_cbranch_vccz {l1}\n"
      f"s_add_u32 s37, s37, 1\ns_cmp_lt_u32 s37, {POLL_MAX*32}\ns_cbranch_scc0 {l1}\n"+(f"s_sleep {slp}\n" if slp else "")+f"s_branch {l0}\n{l1}:")
def allreduce(E,v,t1,t2):
    for dpp in ("quad_perm:[1,0,3,2]","quad_perm:[2,3,0,1]","row_half_mirror","row_mirror"):
        E(f"s_nop 1\nv_add_f32_dpp v{v}, v{v}, v{v} {dpp} row_mask:0xf bank_mask:0xf")
    for sw in ("16","32"):
        E(f"v_mov_b32 v{t1}, v{v}\nv_mov_b32 v{t2}, v{v}")
        E(f"s_nop 1\nv_permlane{sw}_swap_b32 v{t1}, v{t2}\ns_nop 1\nv_add_f32 v{v}, v{t1}, v{t2}")
def gelu_ops(x,t,c0):
    return [f"v_mul_f32 v{t}, v{x}, v{x}",f"v_fma_f32 v{t}, v{t}, s51, v{c0}",f"v_mul_f32 v{t}, v{t}, v{x}",
            f"v_exp_f32 v{t}, v{t}",f"v_add_f32 v{t}, 1.0, v{t}",f"v_rcp_f32 v{t}, v{t}",f"v_mul_f32 v{x}, v{x}, v{t}"]

def prologue():
    E=Em()
    E("s_cmp_ge_u32 s2, 256\ns_cbranch_scc1 L_end")
    stamp(E,0)
    E("s_load_dwordx2 s[4:5], s[0:1], 0\ns_load_dwordx2 s[8:9], s[0:1], 8\ns_load_dwordx2 s[12:13], s[0:1], 32\ns_load_dwordx2 s[16:17], s[0:1], 80")
    E("s_load_dwordx16 s[60:75], s[0:1], 0\ns_load_dwordx4 s[76:79], s[0:1], 64\ns_load_dwordx2 s[80:81], s[0:1], 80")
    E("v_lshrrev_b32 v1, 6, v0\nv_and_b32 v2, 63, v0\nv_readfirstlane_b32 s32, v1")
    E("s_mov_b32 s6, 2621440\ns_mov_b32 s7, 0x20000\ns_mov_b32 s10, %d\ns_mov_b32 s11, 0x20000"%(640*3840))
    E("s_mov_b32 s14, %d\ns_mov_b32 s15, 0x20000\ns_mov_b32 s18, %d\ns_mov_b32 s19, 0x20000"%(640*3072,SMALL_SZ))
    E("s_and_b32 s37, s2, 7\ns_lshr_b32 s38, s2, 3")
    E("s_lshr_b32 s33, s37, 2\ns_lshl_b32 s33, s33, 3\ns_and_b32 s39, s38, 7\ns_add_u32 s33, s33, s39")
    E("s_and_b32 s34, s37, 3\ns_lshl_b32 s34, s34, 2\ns_lshr_b32 s39, s38, 3\ns_add_u32 s34, s34, s39")
    E("s_min_u32 s41, s34, 14\ns_lshl_b32 s41, s41, 8\ns_mul_i32 s42, s34, 192")
    E("s_and_b32 s35, s32, 3\ns_cmp_ge_u32 s32, 4\ns_cbranch_scc1 L_F")
    return E

def gen_F():
    U_V0=int(next((e[3:] for e in EXP if e.startswith('uv0')),'10'))
    E=Em(); E.label("L_F")
    if 'nofprio' not in EXP: E("s_setprio 2")
    E("s_mov_b32 s45, 0\ns_mov_b32 s46, 0\ns_mul_i32 s40, s33, 163840\ns_lshl_b32 s43, s35, 12\ns_mul_i32 s44, s35, 3072")
    E("v_lshrrev_b32 v3, 3, v2\ns_lshl_b32 s39, s35, 5\nv_add_u32 v3, s39, v3\nv_mul_u32_u24 v3, 1280, v3")
    E("v_and_b32 v4, 7, v2\nv_lshrrev_b32 v5, 4, v2\nv_xor_b32 v6, v4, v5\nv_lshl_add_u32 v10, v6, 4, v3")
    E(f"v_or_b32 v7, 4, v5\nv_xor_b32 v7, v4, v7\nv_lshl_add_u32 v11, v7, 4, v3\nv_add_u32 v11, {8*1280}, v11")
    E(f"v_add_u32 v12, {16*1280}, v10\nv_add_u32 v13, {16*1280}, v11")
    E("s_lshl_b32 s39, s35, 4\nv_add_u32 v3, s39, v5\nv_mul_u32_u24 v3, 3840, v3")
    E("v_and_b32 v4, 15, v2\nv_lshlrev_b32 v6, 2, v5\nv_xor_b32 v4, v4, v6\nv_lshl_add_u32 v14, v4, 4, v3")
    for q in range(1,4): E(f"v_add_u32 v{14+q}, {q*4*3840}, v14")
    E("s_waitcnt lgkmcnt(0)")
    def dma_ops(tau):
        slot=tau%4; G=[]
        for q in range(4):
            pre=f"s_add_u32 s56, s40, {tau*128}\ns_add_u32 s57, s41, {tau*64*3840}\n" if q==0 else ""
            G.append(pre+f"s_add_u32 m0, s43, {slot*SLOT+q*1024}\ns_nop 0\nbuffer_load_dwordx4 v{10+q}, s[4:7], s56 offen lds")
        for q in range(4):
            G.append(f"s_add_u32 m0, s43, {slot*SLOT+16384+q*1024}\ns_nop 0\nbuffer_load_dwordx4 v{14+q}, s[8:11], s57 offen lds")
        return G
    WFV=(34,35,40)
    def dma_wf(sg, sink):
        reg=wf_region(sg); last=None
        for t in range(3):
            pre=f"s_add_u32 s58, s42, {sg*64*3072}\n" if t==0 else ""
            last=sink.vm(pre+f"s_add_u32 m0, s44, {reg+t*1024}\ns_nop 0\nbuffer_load_dwordx4 v{WFV[t]}, s[12:15], s58 offen lds")
        return last
    D={}
    for tau in range(3):
        for g in dma_ops(tau): D[tau]=E.vm(g)
    E(f"v_lshlrev_b32 v3, 3, v2\nv_mov_b32 v4, 0\nv_mov_b32 v5, 0\nv_add_u32 v6, {CSF+512}, v3\nv_add_u32 v3, {CNT}, v3")
    E("s_mov_b64 exec, 0xff"); E.lds("ds_write_b64 v3, v[4:5]"); E("s_mov_b64 exec, -1"); ci=E.lds("ds_write_b64 v6, v[4:5]")
    stamp(E,1)
    E("s_lshl_b32 s39, s35, 4")
    for t in range(3):
        E(f"v_add_u32 v3, {64*t}, v2\nv_mul_u32_u24 v4, 171, v3\nv_lshrrev_b32 v4, 11, v4\nv_mul_u32_u24 v5, 12, v4\nv_sub_u32 v5, v3, v5")
        E(f"v_add_u32 v4, s39, v4\nv_mul_u32_u24 v4, 3072, v4\nv_lshl_add_u32 v{WFV[t]}, v5, 4, v4")
    E("v_and_b32 v3, 31, v2\ns_lshl_b32 s37, s35, 5\nv_add_u32 v3, s37, v3\nv_lshrrev_b32 v4, 5, v2\nv_bfe_u32 v5, v3, 1, 3\nv_xor_b32 v5, v5, v4\nv_lshlrev_b32 v3, 7, v3")
    for t in range(4): E(f"v_xor_b32 v6, {2*t}, v5\nv_lshl_add_u32 v{18+t}, v6, 4, v3\nv_add_u32 v{22+t}, 65536, v{18+t}")
    E("v_bfe_u32 v3, v2, 4, 1\nv_lshrrev_b32 v4, 5, v2\nv_bfe_u32 v5, v2, 2, 2\nv_and_b32 v6, 3, v2\nv_lshl_add_u32 v7, v4, 3, v5")
    E(f"v_mul_u32_u24 v41, 192, v7\nv_lshl_add_u32 v41, v3, 5, v41\nv_lshl_add_u32 v41, v6, 3, v41\nv_add_u32 v47, {P0}, v41\nv_add_u32 v46, {U0}, v41")
    E("v_lshlrev_b32 v8, 8, v7\nv_add_u32 v8, 16384, v8\nv_lshrrev_b32 v9, 1, v6\nv_lshl_add_u32 v9, v3, 1, v9\nv_lshl_add_u32 v8, v9, 4, v8\nv_and_b32 v9, 1, v6\nv_lshl_add_u32 v8, v9, 3, v8")
    E("v_xor_b32 v9, s35, v5\nv_lshl_add_u32 v64, v9, 6, v8\nv_add_u32 v65, 65536, v64")
    E("v_and_b32 v3, 15, v2\nv_bfe_u32 v4, v2, 4, 1\nv_cmp_eq_u32 vcc, v3, v4\nv_mov_b32 v5, 0x3f803f80\ns_nop 0\nv_cndmask_b32 v36, 0, v5, vcc\nv_mov_b32 v37, v36\nv_mov_b32 v38, v36\nv_mov_b32 v39, v36")
    E("v_mov_b32 v66, 0\nv_mov_b32 v67, 0\nv_mov_b32 v68, 0\nv_mov_b32 v69, 0")
    XS=96; W={}; xr={}
    PRE=Em()
    PRE("s_lshl_b32 s37, s33, 7\ns_lshl_b32 s38, s34, 3\ns_add_u32 s37, s37, s38\ns_lshl_b32 s38, s35, 1\ns_add_u32 s37, s37, s38\ns_mul_i32 s36, s37, 1280")
    PRE("v_and_b32 v3, 31, v2\nv_mul_u32_u24 v3, 40, v3\nv_lshrrev_b32 v4, 5, v2\nv_mul_u32_u24 v4, 1280, v4\nv_add_u32 v3, v3, v4")
    srd(PRE,48,P_DBG,256)
    l=lab("non")
    PRE(f"s_or_b32 s37, s2, s35\ns_cmp_eq_u32 s37, 0\ns_cbranch_scc0 {l}\ns_memrealtime s[54:55]\ns_waitcnt lgkmcnt(0)\ns_or_b32 s54, s54, 1\nv_mov_b32 v6, s54\nv_mov_b32 v7, 0\ns_mov_b64 exec, 1\n"
        f"buffer_store_dword v6, v7, s[48:51], 0 offen sc1\ns_mov_b64 exec, -1\n{l}:")
    l=lab("nl")
    PRE(f"v_mov_b32 v82, 0\nv_mov_b32 v81, 0\ns_cmp_eq_u32 s35, 0\ns_cbranch_scc0 {l}\nbuffer_load_dword v81, v82, s[48:51], 0 offen sc1\n{l}:")
    PRE.vm("buffer_load_dwordx4 v[70:73], v3, s[4:7], s36 offen"); PRE.vm("buffer_load_dwordx4 v[74:77], v3, s[4:7], s36 offen offset:16")
    PRE.vm("buffer_load_dwordx2 v[78:79], v3, s[4:7], s36 offen offset:32")
    srd(PRE,52,P_B1,3072)
    PRE("v_lshlrev_b32 v4, 2, v2\ns_mul_i32 s37, s34, 192\nv_min_u32 v4, 188, v4")
    pl1=PRE.vm("buffer_load_dword v80, v4, s[52:55], s37 offen")
    F=Em()
    F.wv(pl1)
    l0=lab("n0"); l1=lab("n1"); l2=lab("n2")
    F(f"s_cmp_eq_u32 s35, 0\ns_cbranch_scc0 {l2}\ns_mov_b32 s37, 0\n{l0}:\nv_readfirstlane_b32 s{S_NONCE}, v81\ns_nop 3\ns_cmp_lg_u32 s{S_NONCE}, 0\ns_cbranch_scc1 {l1}\n"
      f"s_add_u32 s37, s37, 1\ns_cmp_lt_u32 s37, {POLL_MAX}\ns_cbranch_scc0 {l1}\ns_sleep 1\nbuffer_load_dword v81, v82, s[48:51], 0 offen sc1\ns_waitcnt vmcnt(0)\ns_branch {l0}\n{l1}:\n"
      f"v_mov_b32 v82, {NON}\nds_write_b32 v82, v81\n{l2}:")
    F("v_lshlrev_b32 v82, 16, v80"); F("v_and_b32 v83, 0xffff0000, v80"); F("v_min_u32 v4, 47, v2"); F("v_lshlrev_b32 v4, 3, v4"); F(f"v_add_u32 v4, {B1F}, v4")
    F.lds("ds_write_b64 v4, v[82:83]")
    B=200
    for i in range(10):
        F(f"v_lshlrev_b32 v{B+2*i}, 16, v{70+i}"); F(f"v_and_b32 v{B+2*i+1}, 0xffff0000, v{70+i}")
    F(f"v_add_f32 v70, v{B}, v{B+1}"); F(f"v_add_f32 v71, v{B+2}, v{B+3}")
    for i in range(4,20,2):
        F(f"v_add_f32 v70, v70, v{B+i}"); F(f"v_add_f32 v71, v71, v{B+i+1}")
    F("v_add_f32 v70, v70, v71")
    def red32(v):
        for dpp in ("quad_perm:[1,0,3,2]","quad_perm:[2,3,0,1]","row_half_mirror","row_mirror"):
            F(f"s_nop 1\nv_add_f32_dpp v{v}, v{v}, v{v} {dpp} row_mask:0xf bank_mask:0xf")
        F(f"v_mov_b32 v78, v{v}\nv_mov_b32 v79, v{v}")
        F(f"s_nop 1\nv_permlane16_swap_b32 v78, v79\ns_nop 1\nv_add_f32 v{v}, v78, v79")
    red32(70)
    F(f"v_mul_f32 v70, {fhex(1.0/640)}, v70")
    nF1=len(F.it)
    for i in range(20): F(f"v_sub_f32 v{B+i}, v{B+i}, v70")
    F(f"v_mul_f32 v71, v{B}, v{B}"); F(f"v_mul_f32 v72, v{B+1}, v{B+1}")
    for i in range(2,20,2):
        F(f"v_fmac_f32 v71, v{B+i}, v{B+i}"); F(f"v_fmac_f32 v72, v{B+i+1}, v{B+i+1}")
    F("v_add_f32 v71, v71, v72")
    red32(71)
    F(f"v_mul_f32 v71, {fhex(1.0/640)}, v71"); F(f"v_add_f32 v72, {fhex(1e-5)}, v71")
    F("v_rsq_f32 v75, v72\ns_nop 0"); F("v_mul_f32 v73, v75, v75"); F("v_mul_f32 v73, v73, v71"); F(f"v_add_f32 v73, {fhex(1e-5)}, v73")
    F("v_rsq_f32 v73, v73\nv_mov_b32 v74, v70"); F("s_nop 0\nv_mul_f32 v76, v75, v73")
    F("v_lshrrev_b32 v78, 5, v2"); F("v_lshlrev_b32 v78, 4, v78"); F(f"s_lshl_b32 s37, s35, 5\ns_add_u32 s37, s37, {STX}"); F("v_add_u32 v78, s37, v78"); F("v_mov_b32 v77, 0")
    F.lds("ds_write_b128 v78, v[74:77]")
    F2=Em()
    F2(f"v_mov_b32 v3, {NON}"); nr=F2.lds("ds_read_b32 v83, v3")
    F2("v_and_b32 v78, 7, v2"); F2("v_lshlrev_b32 v78, 4, v78"); F2(f"v_add_u32 v79, {STX}, v78")
    sr=F2.lds("ds_read_b128 v[74:77], v79"); F2.wl(sr); F2(f"v_mov_b32 v77, v83\nv_readfirstlane_b32 s{S_NONCE}, v83")
    l=lab("sst")
    F2(f"s_cmp_eq_u32 s35, 0\ns_cbranch_scc0 {l}\ns_lshl_b32 s37, s33, 7\ns_lshl_b32 s38, s34, 3\ns_add_u32 s37, s37, s38\ns_lshl_b32 s37, s37, 4\ns_mov_b64 exec, 0xff\n"
       f"buffer_store_dwordx4 v[74:77], v78, s[16:19], s37 offen sc1\ns_mov_b64 exec, -1\n{l}:")
    allF=list(F.it)
    def part(L,a,b):
        x=Em(); x.it=L[a:b]; return x
    def cat(*xs):
        y=Em()
        for x in xs:
            if x: y.it+=x.it
        return y
    fill={1:part(allF,0,nF1), 2:part(allF,nF1,len(allF)), 3:F2}
    E.wv(D[0]); E.wl(ci); E("s_barrier"); stamp(E,2); stamp2(E,1)
    csr={}
    for tau in range(10):
        M=Em(); slot=tau%4
        if tau==0: M.extend(PRE)
        for t in range(4):
            a=(18 if slot<2 else 22)+t; u=4*tau+t
            xr[u]=M.lds(f"ds_read_b128 v[{XS+4*u}:{XS+4*u+3}], v{a} offset:{(slot&1)*SLOT}")
        wa=64 if slot<2 else 65; so=(slot&1)*SLOT
        for t in range(4):
            for jj in range(2):
                csr[t]=M.lds(f"ds_read_b64_tr_b16 v[{48+4*t+2*jj}:{49+4*t+2*jj}], v{wa} offset:{so+(16*t+4*jj)*256}")
        M.slot(10)
        tn = 3 if tau==0 else (tau+2 if (tau>=2 and tau+2<=9) else None)
        if tn is not None:
            for k,g in enumerate(dma_ops(tn)):
                D[tn]=M.vm(g); M.slot(10)
                if k==1:
                    for t in range(4):
                        M.wl(csr[t]); M(f"v_mfma_f32_16x16x32_bf16 v[66:69], v[36:39], v[{48+4*t}:{51+4*t}], v[66:69]")
        else:
            for t in range(4):
                M.wl(csr[t]); M(f"v_mfma_f32_16x16x32_bf16 v[66:69], v[36:39], v[{48+4*t}:{51+4*t}], v[66:69]")
            M.slot(300)
        if tau==6: W[0]=dma_wf(0,M)
        if tau==7: W[1]=dma_wf(1,M)
        if tau==8: W[2]=dma_wf(2,M); W[3]=dma_wf(3,M)
        if tau==9:
            for sg in range(4,7): W[sg]=dma_wf(sg,M)
        if fill.get(tau): M.merge(fill[tau])
        E.extend(M)
        if tau<9:
            E.wv(D[tau+1])
            if tau+1==9: E.wv(W[1])
            E("s_waitcnt lgkmcnt(0)")
            E("s_barrier")
            if tau<7: stamp2(E,tau+2)
    E(f"v_and_b32 v3, 15, v2\nv_lshlrev_b32 v3, 2, v3\ns_lshl_b32 s37, s35, 7\ns_add_u32 s37, s37, {CSF}\nv_add_u32 v3, s37, v3\ns_nop 4")
    E("s_mov_b64 exec, 0xffff"); E.lds("ds_write_b32 v3, v66"); cq=E.lds("ds_write_b32 v3, v67 offset:64"); E("s_mov_b64 exec, -1")
    E.wl(cq); lds_arrive(E,8,3,8)
    if 'nofprio' not in EXP: E("s_setprio 0")
    stamp(E,3)
    srd(E,24,P_WS,HO_SZ,off=WS_HO)
    E(f"s_mov_b32 s51, {fhex(GC1)}")
    E("s_lshl_b32 s47, s33, 1\ns_lshr_b32 s59, s35, 1\ns_add_u32 s47, s47, s59\ns_mul_i32 s47, s47, 68\ns_mul_i32 s59, s34, 3\ns_add_u32 s47, s47, s59\ns_lshl_b32 s47, s47, 12")
    E("s_and_b32 s59, s35, 1\ns_lshl_b32 s59, s59, 11\ns_add_u32 s47, s47, s59")
    ACC=48
    for r in list(range(32))+[36,37,38,39]: E(f"v_mov_b32 v{ACC+r}, 0")
    for r in (4,5,6,7,42,43,44,45): E(f"v_mov_b32 v{r}, 0")
    E("s_mul_i32 s37, s35, 3072\ns_add_u32 s37, s37, 128\nv_add_u32 v88, s37, v47\nv_add_u32 v89, s37, v46\nv_add_u32 v90, s37, v41")
    VS=Em()
    VS("v_lshrrev_b32 v3, 5, v2\nv_lshlrev_b32 v34, 4, v3"); VS(f"v_add_u32 v35, {B1F}, v34"); VS(f"v_add_u32 v34, {CSF+512}, v34"); VS(f"v_mov_b32 v40, {fhex(GC0)}")
    VS("v_bfe_u32 v8, v2, 4, 1\nv_lshlrev_b32 v91, 10, v8\nv_lshrrev_b32 v3, 5, v2\nv_lshl_add_u32 v91, v3, 8, v91\nv_and_b32 v8, 15, v2\nv_lshl_add_u32 v91, v8, 4, v91")
    VS(f"v_and_b32 v8, 31, v2\ns_lshl_b32 s37, s35, 5\nv_add_u32 v8, s37, v8\nv_lshlrev_b32 v8, 3, v8\nv_add_u32 v92, {STA}, v8")
    VS(f"v_and_b32 v3, 15, v2\nv_lshlrev_b32 v3, 2, v3\nv_add_u32 v9, {CSF+512}, v3")
    def wf_addr(sg):
        reg=wf_region(sg)
        return (47,reg-P0) if reg>=P0 else ((46,reg-U0) if reg>=U0 else (41,reg))
    SA=[10,18,26]
    rd={}; pend=[]
    def readsA(u):
        sg,t=divmod(u,4); base,ro=wf_addr(sg); L=[]
        for T in range(2):
            fr=SA[u%3]+4*T
            for jj in range(2): L.append(f"ds_read_b64_tr_b16 v[{fr+2*jj}:{fr+2*jj+1}], v{base} offset:{ro+(16*t+4*jj)*192+64*T}")
        return L
    E.wl(xr[39])
    stamp8(E,1)
    if INSTR and 'pA' in EXP: E("s_memtime s[100:101]")
    for u in (0,1):
        for r in readsA(u): rd[u]=E.lds(r)
    for u in range(40):
        if u==3: stamp8(E,2)
        if u==7: stamp8(E,3)
        if u==15: stamp8(E,4)
        if u==27: stamp8(E,5)
        if u==U_V0:
            stampA(E,1)
            if 'nowA' not in EXP: lds_wait(E,8,4,3,8)
            if 'nowA' not in EXP: lds_wait(E,5,4,3,8)
            stampA(E,2)
            if 'nofprio' not in EXP: E("s_setprio 2")
            tmp=Em()
            for sg2 in (7,8,9): W[sg2]=dma_wf(sg2,tmp)
            pend=list(tmp.it)
        if 'nowA' in EXP:
            if u in (4,12,24): lds_arrive(E,6,3,8)
        else:
          if u==4: E.wv(W[3]); lds_arrive(E,6,3,8)
          if u==6: lds_wait(E,6,4,3,8)
          if u==12: stampA(E,3); E.wv(W[6]); stampA(E,4); lds_arrive(E,6,3,8)
          if u==14: lds_wait(E,6,8,3,8); stampA(E,5)
          if u==24: stampA(E,6); E.wv(W[9]); stampA(E,7); lds_arrive(E,6,3,8)
        if u==26 and 'nowA' not in EXP:
            lds_wait(E,6,12,3,8)
        E.wl(rd[u])
        rl=readsA(u+2) if u+2<40 else []
        for T in range(2):
            fr=SA[u%3]+4*T; a=ACC+16*T
            E(f"v_mfma_f32_32x32x16_bf16 v[{a}:{a+15}], v[{fr}:{fr+3}], v[{XS+4*u}:{XS+4*u+3}], v[{a}:{a+15}]")
            for r in rl[2*T:2*T+2]: rd[u+2]=E.lds(r)
            if T==0 and pend: E.it.append(pend.pop(0))
        if u==30: E.extend(VS)
        sg_,t_=divmod(u,4)
        if t_==0:
            base,ro=wf_addr(sg_); b2={47:88,46:89,41:90}[base]
            E.lds(f"ds_read_b64_tr_b16 v[80:81], v{b2} offset:{ro}"); c2r=E.lds(f"ds_read_b64_tr_b16 v[82:83], v{b2} offset:{ro+4*192}")
        if t_==3:
            E.wl(c2r); E("v_mfma_f32_16x16x32_bf16 v[84:87], v[36:39], v[80:83], v[84:87]")
        l=lab("csm")
        fr=SA[u%3]
        if 'nocsA' not in EXP: E(f"s_cmp_eq_u32 s35, {u&3}\ns_cbranch_scc0 {l}\nv_mfma_f32_16x16x32_bf16 v[4:7], v[36:39], v[{fr}:{fr+3}], v[4:7]\nv_mfma_f32_16x16x32_bf16 v[42:45], v[36:39], v[{fr+4}:{fr+7}], v[42:45]\n{l}:")
    stamp8(E,6)
    E("s_nop 7")
    E("s_mov_b64 exec, 0xffff")
    E.lds("ds_add_f32 v9, v4"); E.lds("ds_add_f32 v9, v5 offset:64"); E.lds("ds_add_f32 v9, v42 offset:128"); E.lds("ds_add_f32 v9, v43 offset:192")
    E.lds("ds_add_f32 v9, v84 offset:256"); ca=E.lds("ds_add_f32 v9, v85 offset:320")
    E("s_mov_b64 exec, -1")
    E("v_mov_b32 v44, v91\nv_mov_b32 v45, v92")
    cs_done=ca
    SBk=[10,14,18,22,26]
    def readsB(u):
        sg,t=divmod(u,4); base,ro=wf_addr(sg); fr=SBk[u%5]
        return [f"ds_read_b64_tr_b16 v[{fr+2*jj}:{fr+2*jj+1}], v{base} offset:{ro+(16*t+4*jj)*192+128}" for jj in range(2)]
    hs=[None]
    def gelu_tile(G,T,cb0,tt):
        a0=ACC+16*T; rr={}
        order=(0,2,1,3)
        def rd_(i):
            a=order[i]; c=cb0+8*(i%2)
            G.lds(f"ds_read_b128 v[{c}:{c+3}], v34 offset:{128*T+32*a}")
            rr[i]=G.lds(f"ds_read_b128 v[{c+4}:{c+7}], v35 offset:{128*T+32*a}")
        rd_(0); rd_(1)
        for i in range(4):
            a=order[i]; b=a0+4*a; c=cb0+8*(i%2)
            G.wl(rr[i])
            for k in range(4): G(f"v_fma_f32 v{c+4+k}, v42, v{c+k}, v{c+4+k}")
            for k in range(4): G(f"v_fma_f32 v{b+k}, v{b+k}, v43, v{c+4+k}")
            if i+2<4: rd_(i+2)
            ops=[[f"v_mul_f32 v{tt+k}, v{b+k}, v{b+k}",f"v_fma_f32 v{tt+k}, v{tt+k}, s51, v40",f"v_mul_f32 v{tt+k}, v{tt+k}, v{b+k}",f"v_exp_f32 v{tt+k}, v{tt+k}",
                  f"v_add_f32 v{tt+k}, 1.0, v{tt+k}",f"v_rcp_f32 v{tt+k}, v{tt+k}",f"v_mul_f32 v{b+k}, v{b+k}, v{tt+k}"] for k in range(4)]
            for s_ in range(7):
                for k in range(4): G(ops[k][s_])
            o=a0+{0:0,2:2,1:4,3:6}[a]
            G(f"v_cvt_pk_bf16_f32 v{o}, v{b}, v{b+1}"); G(f"v_cvt_pk_bf16_f32 v{o+1}, v{b+2}, v{b+3}")
        G(f"s_add_u32 s46, s47, {T*4096}")
        G.vm(f"buffer_store_dwordx4 v[{a0}:{a0+3}], v44, s[24:27], s46 offen sc1")
        hs[0]=G.vm(f"buffer_store_dwordx4 v[{a0+4}:{a0+7}], v44, s[24:27], s46 offen offset:512 sc1")
    G=Em()
    sta=G.lds("ds_read_b64 v[42:43], v45"); G.wl(sta)
    gelu_tile(G,0,208,30); gelu_tile(G,1,208,30)
    rd={}
    order=list(range(28,40))+list(range(0,28))
    def readsB2(n):
        u=order[n]; sg,t=divmod(u,4); base,ro=wf_addr(sg); fr=SBk[n%5]
        return [f"ds_read_b64_tr_b16 v[{fr+2*jj}:{fr+2*jj+1}], v{base} offset:{ro+(16*t+4*jj)*192+128}" for jj in range(2)]
    for n in range(4):
        for r in readsB2(n): rd[n]=E.lds(r)
    E.wl(cs_done); lds_arrive(E,6,3,8)
    M=Em(); a=ACC+32
    for n in range(40):
        u=order[n]
        M.wl(rd[n]); fr=SBk[n%5]
        cin_=("0" if n==0 else f"v[{a}:{a+15}]")
        M(f"v_mfma_f32_32x32x16_bf16 v[{a}:{a+15}], v[{fr}:{fr+3}], v[{XS+4*u}:{XS+4*u+3}], {cin_}")
        if n+4<40:
            for r in readsB2(n+4): rd[n+4]=M.lds(r)
        if n==4:
            x=Em()
            if INSTR and 'pB' in EXP: x("s_memtime s[86:87]")
            lds_wait(x,6,16,3,8); lds_wait(x,9,4,3,8)
            if INSTR and 'pB' in EXP: x("s_memtime s[88:89]")
            M.extend(x)
        if INSTR and 'pB' in EXP and n in (12,20,28,36): M(f"s_memtime s[{90+2*((n-12)//8)}:{91+2*((n-12)//8)}]")
        if n==12:
            x=Em(); lds_arrive(x,7,3,8); M.extend(x)
        if n>=4: M.slot(10)
    M.merge(G)
    E.extend(M)
    stamp8(E,7)
    E("s_nop 6")
    stamp(E,4)
    G=Em(); gelu_tile(G,2,208,30); E.extend(G)
    if 'nofprio' not in EXP: E("s_setprio %d"%(2 if 'f2prio' in EXP else 0))
    stamp8(E,8)
    hs=hs[0]
    E(f"s_lshl_b32 s59, s33, 4\ns_add_u32 s59, s59, s34\ns_lshl_b32 s59, s59, 7\ns_add_u32 s59, s59, {WS_FH}")
    E("s_and_b32 s37, s2, 7\ns_lshr_b32 s38, s2, 3")
    E("s_lshr_b32 s33, s37, 2\ns_lshl_b32 s33, s33, 4\ns_bfe_u32 s39, s37, 0x10001\ns_lshl_b32 s39, s39, 3\ns_add_u32 s33, s33, s39\ns_and_b32 s39, s38, 7\ns_add_u32 s33, s33, s39")
    E("s_and_b32 s34, s37, 1\ns_lshl_b32 s34, s34, 2\ns_lshr_b32 s39, s38, 3\ns_add_u32 s34, s34, s39")
    srd(E,8,P_WS,W2T_SZ,off=WS_W2T); srd(E,12,P_B2,1280); srd(E,20,P_OUT,2621440)
    E("v_lshrrev_b32 v3, 1, v2\nv_min_u32 v3, 16, v3\ns_mul_i32 s37, s35, 12\ns_mul_i32 s38, s35, 5\ns_add_u32 s38, s38, 36")
    E("v_add_u32 v4, s37, v3\nv_add_u32 v5, s38, v3\nv_cmp_gt_u32 vcc, 12, v3\ns_nop 1\nv_cndmask_b32 v4, v5, v4, vcc")
    E("s_mul_i32 s37, s34, 5\ns_lshr_b32 s38, s37, 2\ns_add_u32 s37, s37, 4\ns_lshr_b32 s39, s37, 2")
    E("v_and_b32 v5, 1, v2\nv_mov_b32 v6, s38\nv_mov_b32 v7, s39\nv_cmp_eq_u32 vcc, 0, v5\ns_nop 1\nv_cndmask_b32 v6, v7, v6, vcc")
    E(f"v_mul_u32_u24 v4, 10, v4\nv_add_u32 v4, v4, v6\nv_mul_u32_u24 v4, 683, v4\nv_lshrrev_b32 v4, 11, v4\nv_lshlrev_b32 v4, 7, v4\nv_add_u32 v4, {WS_FW}, v4")
    fw=E.vm("buffer_load_dword v8, v4, s[16:19], 0 offen sc1")
    E("v_mov_b32 v9, v4")
    E("v_lshlrev_b32 v3, 4, v2\nv_add_u32 v4, 4096, v3")
    E("v_and_b32 v5, 15, v2\ns_lshl_b32 s39, s33, 6\ns_lshl_b32 s40, s35, 4\ns_add_u32 s39, s39, s40\nv_add_u32 v5, s39, v5\nv_mul_u32_u24 v5, 1280, v5\nv_lshrrev_b32 v6, 4, v2\nv_lshlrev_b32 v6, 3, v6")
    E("s_mul_i32 s39, s34, 160\nv_add_u32 v6, s39, v6\nv_add_u32 v5, v5, v6")
    E("s_mul_i32 s40, s33, %d\ns_mul_i32 s41, s34, %d"%(68*4096,68*5120))
    E("s_mul_i32 s42, s35, 12\ns_mul_i32 s43, s35, 5\ns_add_u32 s43, s43, 48")
    E("s_lshl_b32 s44, s42, 12\ns_add_u32 s44, s44, s40\ns_mul_i32 s45, s42, 5120\ns_add_u32 s45, s45, s41")
    E("s_lshl_b32 s46, s43, 12\ns_add_u32 s46, s46, s40\ns_mul_i32 s47, s43, 5120\ns_add_u32 s47, s47, s41")
    ACC3=10; WB=[100+20*i for i in range(5)]; HB=[200,216,232]
    XR=90; B2R=248
    LW={}; LH={}
    def loadsW(i):
        b=WB[i%5]; ws_,ii=(45,i) if i<12 else (47,i-12)
        E(f"s_add_u32 s57, s{ws_}, {ii*5120}")
        for nt in range(4): E.vm(f"buffer_load_dwordx4 v[{b+4*nt}:{b+4*nt+3}], v3, s[8:11], s57 offen offset:{1024*nt} sc1")
        LW[i]=E.vm(f"buffer_load_dwordx4 v[{b+16}:{b+19}], v4, s[8:11], s57 offen sc1")
    def loadsH(i):
        b=HB[i%3]; hs_,ii=(44,i) if i<12 else (46,i-12)
        E(f"s_add_u32 s56, s{hs_}, {ii*4096}")
        for tt in range(4): LH[i]=E.vm(f"buffer_load_dwordx4 v[{b+4*tt}:{b+4*tt+3}], v3, s[24:27], s56 offen offset:{1024*tt} sc1")
    for r in range(80): E(f"v_mov_b32 v{ACC3+r}, 0")
    stamp4(E,5)
    E.wv(hs); stamp4(E,6); agg_flag(E,2,4,59,7,8) if False else None
    E.wv(fw)
    agg_flag(E,2,4,59,7,207)
    stamp(E,5)
    check_or_poll(E,9,8)
    for nt in range(5): E.vm(f"buffer_load_dwordx2 v[{XR+2*nt}:{XR+2*nt+1}], v5, s[4:7], 0 offen offset:{32*nt}")
    for i in range(5): loadsW(i)
    def group_addr(base,vd):
        E(f"v_and_b32 v{vd}, 3, v2\ns_lshl_b32 s37, s35, 2\nv_add_u32 v{vd}, s37, v{vd}\ns_lshr_b32 s37, s33, 1\ns_lshl_b32 s37, s37, 4\nv_add_u32 v{vd}, s37, v{vd}\nv_lshlrev_b32 v{vd}, 7, v{vd}\nv_add_u32 v{vd}, {base}, v{vd}")
    group_addr(WS_FH,7)
    poll_slow(E,7,8)
    stamp(E,6)
    group_addr(WS_FO,7)
    if 'fidle' in EXP: poll_slow(E,7,8)
    def mf(i):
        E.wv(LH[i]); E.wv(LW[i])
        b=WB[i%5]; h=HB[i%3]
        for nt in range(5):
            for tt in range(4):
                a=ACC3+16*nt+4*tt
                E(f"v_mfma_f32_16x16x32_bf16 v[{a}:{a+3}], v[{b+4*nt}:{b+4*nt+3}], v[{h+4*tt}:{h+4*tt+3}], v[{a}:{a+3}]")
    stamp9(E,1)
    for i in range(3): loadsH(i)
    for i in range(12):
        if i==1: stamp9(E,2)
        if i==6: stamp9(E,3)
        if i==10: fo=E.vm("buffer_load_dword v9, v7, s[16:19], 0 offen sc1")
        mf(i)
        if i+3<12: loadsH(i+3)
        if i+5<17: loadsW(i+5)
    stamp9(E,4)
    E.wv(fo); check_or_poll(E,7,9)
    stamp9(E,5)
    for i in range(12,15): loadsH(i)
    for nt in range(4): E.vm(f"buffer_load_dwordx2 v[{B2R+2*nt}:{B2R+2*nt+1}], v6, s[12:15], 0 offen offset:{32*nt}")
    b2l=E.vm(f"buffer_load_dwordx2 v[8:9], v6, s[12:15], 0 offen offset:128")
    for i in range(12,17):
        mf(i)
        if i+3<17: loadsH(i+3)
    stamp(E,7); stamp9(E,6)
    E("s_nop 15")
    E(f"s_mul_i32 s39, s35, 20480\ns_add_u32 s39, s39, {RED}\nv_add_u32 v7, s39, v3")
    for nt in range(5):
        for tt in range(4):
            a=ACC3+16*nt+4*tt
            w_=E.lds(f"ds_write_b128 v7, v[{a}:{a+3}] offset:{(nt*4+tt)*1024}")
    E.wl(w_); E("s_barrier"); stamp9(E,7)
    E(f"s_lshl_b32 s39, s35, 10\ns_add_u32 s39, s39, {RED}\nv_add_u32 v7, s39, v3\nv_add_u32 v2, 40960, v7")
    R=100
    for nt in range(5):
        for w in range(4):
            base=7 if w<2 else 2
            r_=E.lds(f"ds_read_b128 v[{R+16*nt+4*w}:{R+16*nt+4*w+3}], v{base} offset:{(w%2)*20480+nt*4096}")
    E.wv(b2l); E.wl(r_)
    for nt in range(5):
        b=R+16*nt
        for i in range(4): E(f"v_add_f32 v{b+i}, v{b+i}, v{b+4+i}\nv_add_f32 v{b+8+i}, v{b+8+i}, v{b+12+i}")
        for i in range(4): E(f"v_add_f32 v{b+i}, v{b+i}, v{b+8+i}")
        b2=(B2R+2*nt) if nt<4 else 8
        for (src,t0) in ((XR+2*nt,10),(b2,14)):
            E(f"v_lshlrev_b32 v{t0}, 16, v{src}\nv_and_b32 v{t0+1}, 0xffff0000, v{src}\nv_lshlrev_b32 v{t0+2}, 16, v{src+1}\nv_and_b32 v{t0+3}, 0xffff0000, v{src+1}")
        for i in range(4): E(f"v_add_f32 v{b+i}, v{b+i}, v{14+i}")
        for i in range(4): E(f"v_add_f32 v{b+i}, v{b+i}, v{10+i}")
        E(f"v_cvt_pk_bf16_f32 v{20+2*nt}, v{b}, v{b+1}\nv_cvt_pk_bf16_f32 v{21+2*nt}, v{b+2}, v{b+3}")
        E.st(f"buffer_store_dwordx2 v[{20+2*nt}:{21+2*nt}], v5, s[20:23], 0 offen offset:{32*nt}")
    stamp(E,8); stamp9(E,8)
    stamp_flush(E,1)
    E.label("L_end"); E("s_endpgm"); E.label("L_codeend")
    return E


def gen_A():
    E=Em()
    if 'nopf' not in EXP:
        E("s_getpc_b64 s[56:57]\nL_pc:\ns_sub_u32 s56, s56, L_pc-%s\ns_subb_u32 s57, s57, 0"%KNAME)
        E("v_lshlrev_b32 v3, 7, v2\ns_lshl_b32 s37, s35, 13\nv_add_u32 v3, s37, v3\nv_add_u32 v8, 0x8000, v3\nv_min_u32 v8, L_codeend-%s-4, v8"%KNAME)
        E("v_mov_b32 v5, s57\nv_add_co_u32 v4, vcc, s56, v3\ns_nop 1\nv_addc_co_u32 v5, vcc, 0, v5, vcc")
        E.vm("global_load_dword v254, v[4:5], off")
        E("v_mov_b32 v5, s57\nv_add_co_u32 v4, vcc, s56, v8\ns_nop 1\nv_addc_co_u32 v5, vcc, 0, v5, vcc")
        E.vm("global_load_dword v255, v[4:5], off")
    E("v_and_b32 v3, 31, v2\ns_lshl_b32 s37, s35, 5\nv_add_u32 v3, s37, v3\nv_lshrrev_b32 v4, 5, v2\nv_bfe_u32 v5, v3, 1, 3\nv_xor_b32 v5, v5, v4\nv_lshlrev_b32 v3, 7, v3")
    for t in range(4): E(f"v_xor_b32 v6, {2*t}, v5\nv_lshl_add_u32 v{10+t}, v6, 4, v3\nv_add_u32 v{14+t}, 65536, v{10+t}")
    E("v_bfe_u32 v3, v2, 4, 1\nv_lshrrev_b32 v4, 5, v2\nv_bfe_u32 v5, v2, 2, 2\nv_and_b32 v6, 3, v2\nv_lshl_add_u32 v7, v4, 3, v5")
    E("v_lshlrev_b32 v8, 8, v7\nv_add_u32 v8, 16384, v8\nv_lshrrev_b32 v9, 1, v6\nv_lshl_add_u32 v9, v3, 1, v9\nv_lshl_add_u32 v8, v9, 4, v8\nv_and_b32 v9, 1, v6\nv_lshl_add_u32 v8, v9, 3, v8")
    for T in range(4): E(f"v_xor_b32 v9, {T}, v5\nv_lshl_add_u32 v{18+T}, v9, 6, v8\nv_add_u32 v{22+T}, 65536, v{18+T}")
    E("v_and_b32 v70, 31, v2\nv_lshrrev_b32 v71, 5, v2\ns_and_b32 s37, s34, 3\ns_lshl_b32 s37, s37, 5\ns_lshl_b32 s38, s33, 7\ns_add_u32 s37, s37, s38\nv_add_u32 v70, s37, v70\nv_mul_u32_u24 v70, 1280, v70\nv_lshl_add_u32 v70, v71, 7, v70")
    E("v_bfe_u32 v72, v2, 1, 3\nv_lshrrev_b32 v73, 4, v2\nv_lshl_add_u32 v72, v73, 6, v72\ns_and_b32 s37, s33, 7\ns_lshl_b32 s37, s37, 3\nv_add_u32 v72, s37, v72\nv_and_b32 v73, 1, v2\nv_lshlrev_b32 v73, 7, v73")
    E("v_mul_u32_u24 v74, 3840, v72\nv_add_u32 v74, v74, v73\nv_add_u32 v74, s41, v74\nv_mul_u32_u24 v75, 3072, v72\nv_add_u32 v75, v75, v73\nv_add_u32 v75, s42, v75")
    E("s_cmp_eq_u32 s35, 1\ns_cselect_b64 vcc, -1, 0\ns_nop 1\nv_cndmask_b32 v31, v70, v74, vcc\ns_cmp_eq_u32 s35, 2\ns_cselect_b64 vcc, -1, 0\ns_nop 1\nv_cndmask_b32 v31, v31, v75, vcc")
    E(f"s_mov_b32 s44, {3*128}\ns_mov_b32 s43, 512\ns_mov_b32 s40, 0x5\n"
      f"s_cmp_eq_u32 s35, 3\ns_cselect_b32 s44, {5*128}, s44\ns_cselect_b32 s40, 0xa, s40\n"
      f"s_cmp_eq_u32 s35, 1\ns_cselect_b32 s44, {3*64*3840}, s44\ns_cselect_b32 s43, {4*64*3840}, s43\n"
      f"s_cmp_eq_u32 s35, 2\ns_cselect_b32 s44, 0, s44\ns_cselect_b32 s43, {4*64*3072}, s43\ns_cselect_b32 s40, 0xe, s40")
    if 'wfonly' in EXP: E("s_cmp_eq_u32 s35, 2\ns_cselect_b32 s40, 0xe, 0")
    E("s_waitcnt lgkmcnt(0)")
    E("s_cmp_eq_u32 s35, 1\ns_cselect_b32 s48, s8, s4\ns_cselect_b32 s49, s9, s5\ns_cselect_b32 s50, s10, s6\ns_cmp_eq_u32 s35, 2\ns_cselect_b32 s48, s12, s48\ns_cselect_b32 s49, s13, s49\ns_cselect_b32 s50, s14, s50\ns_mov_b32 s51, 0x20000")
    def pfpoint(p):
        x=Em(); l=lab("pfp")
        if 'l2pf' in EXP:
            x(f"s_bitcmp1_b32 s40, {p}\ns_cbranch_scc0 {l}\nbuffer_load_dword v253, v31, s[48:51], s44 offen\ns_add_u32 s44, s44, s43\n{l}:")
        return x
    T_=Em()
    T_("s_mul_i32 s31, s2, 3\ns_add_u32 s31, s31, s35\ns_cmp_lt_u32 s35, 3\ns_cselect_b32 s31, s31, 1000\ns_min_u32 s31, s31, 680")
    T_("s_min_u32 s28, s31, 679\ns_mul_i32 s29, s28, 6554\ns_lshr_b32 s29, s29, 16\ns_mul_i32 s30, s29, 10\ns_sub_u32 s30, s28, s30")
    T_(f"s_cmp_ge_u32 s29, 48\ns_cselect_b32 s52, s{P_WO}, s{P_W2}\ns_cselect_b32 s53, s{P_WO+1}, s{P_W2+1}\ns_mov_b32 s54, {640*1280}\ns_cselect_b32 s54, s54, {1536*1280}\ns_mov_b32 s55, 0x20000\ns_cselect_b64 s[56:57], -1, 0")
    T_("v_lshrrev_b32 v84, 3, v2"); T_("v_and_b32 v85, 7, v2"); T_("s_lshl_b32 s28, s30, 7"); T_("v_lshl_add_u32 v85, v85, 4, s28")
    T_("s_sub_u32 s38, s29, 48\ns_lshl_b32 s58, s38, 2\ns_lshl_b32 s59, s29, 5"); T_("v_lshrrev_b32 v86, 5, v2"); T_("v_and_b32 v87, 3, v84")
    for i in range(4):
        half=i>>1
        for x in (f"v_add_u32 v88, {2*(i&1)}, v86","v_add_u32 v88, s58, v88","v_mul_u32_u24 v89, 205, v88","v_lshrrev_b32 v89, 10, v89","v_mul_u32_u24 v90, 5, v89","v_sub_u32 v90, v88, v90",
                  "v_lshrrev_b32 v91, 1, v90","v_and_b32 v92, 1, v90",f"v_add_u32 v92, {2*half}, v92"): T_(x)
        T_(f"v_cmp_eq_u32 vcc, 4, v90\nv_mov_b32 v88, {half}\nv_mov_b32 v90, 4\nv_cndmask_b32 v91, v91, v88, vcc\nv_cndmask_b32 v92, v92, v90, vcc")
        for x in ("v_lshl_add_u32 v91, v89, 1, v91","v_mul_u32_u24 v91, 20, v91","v_lshl_add_u32 v91, v92, 2, v91","v_add_u32 v91, v91, v87"): T_(x)
        T_(f"v_add_u32 v88, {8*i}, v84"); T_("v_add_u32 v88, s59, v88")
        T_("v_cndmask_b32 v91, v88, v91, s[56:57]")
        T_("v_mul_u32_u24 v91, 1280, v91"); T_("v_add_u32 v91, v91, v85")
        cld=T_.vm(f"buffer_load_dwordx4 v[{236+4*i}:{239+4*i}], v91, s[52:55], 0 offen")
    C2=Em()
    C2(f"s_mul_i32 s59, s35, 5120")
    C2("v_lshrrev_b32 v84, 3, v2"); C2("v_mul_u32_u24 v84, 160, v84"); C2("v_and_b32 v85, 7, v2"); C2("v_lshl_add_u32 v84, v85, 4, v84"); C2("v_add_u32 v84, s59, v84")
    C2.wv(cld)
    for i in range(4): cw=C2.lds(f"ds_write_b128 v84, v[{236+4*i}:{239+4*i}] offset:{8*160*i}")
    C2("v_lshrrev_b32 v85, 2, v2"); C2("v_mul_u32_u24 v85, 160, v85"); C2("v_and_b32 v86, 3, v2"); C2("v_lshl_add_u32 v85, v86, 3, v85"); C2("v_add_u32 v85, s59, v85")
    srd(C2,52,P_WS,W2T_SZ,off=WS_W2T)
    C2.wl(cw)
    for i in range(4):
        C2.lds(f"ds_read_b64_tr_b16 v[{236+4*i}:{237+4*i}], v85 offset:{32*i}")
        cr=C2.lds(f"ds_read_b64_tr_b16 v[{238+4*i}:{239+4*i}], v85 offset:{32*i+16*160}")
    C2("v_lshlrev_b32 v86, 4, v2")
    C2.wl(cr)
    l=lab("cst"); txt=f"s_cmp_lt_u32 s31, 680\ns_cbranch_scc0 {l}\n"
    for i in range(4):
        txt+=(f"s_lshl_b32 s37, s30, 2\ns_add_u32 s37, s37, {i}\ns_mul_i32 s38, s37, 205\ns_lshr_b32 s38, s38, 10\ns_mul_i32 s39, s38, 5\ns_sub_u32 s39, s37, s39\n"
              "s_mul_i32 s38, s38, 68\ns_add_u32 s38, s38, s29\ns_mul_i32 s38, s38, 5\ns_add_u32 s38, s38, s39\ns_lshl_b32 s38, s38, 10\n"
              f"buffer_store_dwordx4 v[{236+4*i}:{239+4*i}], v86, s[52:55], s38 offen sc1\n")
    C2(txt+f"{l}:")
    E.extend(T_)
    stamp(E,1)
    ACC=96; FR=(160,180,200)
    for r in range(64): E(f"v_mov_b32 v{ACC+r}, 0")
    F3=Em()
    F3(f"v_mov_b32 v3, {NON}"); nr=F3.lds("ds_read_b32 v62, v3"); F3.wl(nr); F3(f"s_nop 0\nv_readfirstlane_b32 s{S_NONCE}, v62")
    F3("v_and_b32 v3, 31, v2"); F3("s_lshl_b32 s37, s33, 7\ns_lshl_b32 s38, s35, 5\ns_add_u32 s37, s37, s38"); F3("v_add_u32 v3, s37, v3")
    F3("v_lshlrev_b32 v91, 3, v3"); F3("v_lshlrev_b32 v90, 4, v3")
    F4=Em()
    stl=F4.vm("buffer_load_dwordx4 v[92:95], v90, s[16:19], 0 offen sc1")
    def reads(u):
        tau,t=divmod(u,4); slot=tau%4; hi=slot>=2; fr=FR[u%3]; so=(slot&1)*SLOT
        L=[f"ds_read_b128 v[{fr}:{fr+3}], v{(14 if hi else 10)+t} offset:{so}"]
        for T in range(4):
            for jj in range(2):
                d=fr+4+4*T+2*jj
                L.append(f"ds_read_b64_tr_b16 v[{d}:{d+1}], v{(22 if hi else 18)+T} offset:{so+(16*t+4*jj)*256}")
        return L
    rd={}
    E("s_barrier"); stamp(E,2)
    for u in (0,1):
        for r in reads(u): rd[u]=E.lds(r)
    def steps(u0,u1,filler,per):
        M=Em()
        for u in range(u0,u1):
            tau,t=divmod(u,4); fr=FR[u%3]
            M.wl(rd[u])
            rl=reads(u+2) if u+2<40 else []
            cuts=[0,3,5,7,9]
            for T in range(4):
                a=ACC+16*T
                if "nomfma" not in EXP: M(f"v_mfma_f32_32x32x16_bf16 v[{a}:{a+15}], v[{fr+4+4*T}:{fr+7+4*T}], v[{fr}:{fr+3}], v[{a}:{a+15}]")
                for r in rl[cuts[T]:cuts[T+1]]: rd[u+2]=M.lds(r)
                M.slot(per)
        if filler: M.merge(filler)
        E.extend(M)
    PFS=[int(c) for c in (next((e[3:] for e in EXP if e.startswith("pfs")),"0123"))]
    def cat(*xs):
        y=Em()
        for x in xs:
            if x: y.it+=x.it
        return y
    def fl(iv,base=None):
        return cat(*[pfpoint(p) for p in range(4) if PFS[p]==iv],base)
    steps(0,2,fl(0),5); E("s_barrier")
    for b in range(2,10):
        steps(4*b-6,4*b-2,fl(b-1,{6:F3,8:F4}.get(b)),3); E("s_barrier")
    steps(34,40,None,0)
    lds_arrive(E,5,3,4)
    stamp(E,3)
    srd(E,20,P_WS,3*QKV_SZ,off=WS_Q)
    E("s_cmp_eq_u32 s34, 15\ns_cselect_b32 s22, 0, s22")
    E("s_mul_i32 s45, s34, 205\ns_lshr_b32 s45, s45, 10\ns_mul_i32 s46, s45, 5\ns_sub_u32 s46, s34, s46")
    E(f"v_lshrrev_b32 v4, 5, v2\nv_lshlrev_b32 v26, 4, v4\nv_add_u32 v26, {CSF}, v26\nv_lshlrev_b32 v4, 14, v4\nv_add_u32 v91, v91, v4")
    E(f"v_and_b32 v8, 31, v2\ns_lshl_b32 s37, s35, 5\nv_add_u32 v8, s37, v8\nv_lshlrev_b32 v8, 3, v8\nv_add_u32 v8, {STA}, v8")
    E.wv(stl)
    l0=lab("sp"); l1=lab("spd")
    E(f"v_cmp_ne_u32 vcc, s{S_NONCE}, v95\ns_cbranch_vccz {l1}\ns_mov_b32 s37, 0\n{l0}:\nbuffer_load_dwordx4 v[92:95], v90, s[16:19], 0 offen sc1\ns_waitcnt vmcnt(0)\n"
      f"v_cmp_ne_u32 vcc, s{S_NONCE}, v95\ns_cbranch_vccz {l1}\ns_add_u32 s37, s37, 1\ns_cmp_lt_u32 s37, {POLL_MAX}\ns_cbranch_scc0 {l1}\ns_sleep 2\ns_branch {l0}\n{l1}:")
    E("v_mul_f32 v6, v92, v94\nv_sub_f32 v6, 0, v6\nv_mov_b32 v7, v94")
    sw=E.lds("ds_write_b64 v8, v[6:7]")
    E(f"v_mul_f32 v94, {fhex(CQ)}, v93\ns_cmp_eq_u32 s45, 0\ns_cselect_b64 vcc, -1, 0\ns_nop 1\nv_cndmask_b32 v93, v93, v94, vcc\nv_sub_f32 v92, 0, v92")
    E(f"s_mul_i32 s45, s45, {QKV_SZ}\ns_lshl_b32 s46, s46, 19\ns_add_u32 s45, s45, s46")
    E.wl(sw); lds_arrive(E,9,3,4)
    stamp3(E,2)
    lds_wait(E,8,4,3,4)
    stamp3(E,3)
    crs=[]
    for T in range(4):
        for a in range(4): cr=E.lds(f"ds_read_b128 v[{160+16*T+4*a}:{163+16*T+4*a}], v26 offset:{128*T+32*a}")
        crs.append(cr)
    for T in range(4):
        E.wl(crs[T])
        for a in range(4):
            b=ACC+16*T+4*a; c=160+16*T+4*a
            for i in range(4): E(f"v_fma_f32 v{b+i}, v92, v{c+i}, v{b+i}")
            for i in range(4): E(f"v_mul_f32 v{b+i}, v{b+i}, v93")
            o=40+2*((4*T+a)%8)
            E(f"v_cvt_pk_bf16_f32 v{o}, v{b}, v{b+1}\nv_cvt_pk_bf16_f32 v{o+1}, v{b+2}, v{b+3}")
            E(f"s_add_u32 s46, s45, {(8*T+2*a)*16384}")
            qs=E.st(f"buffer_store_dwordx2 v[{o}:{o+1}], v91, s[20:23], s46 offen sc1")
    stamp3(E,4)
    E.wv(qs)
    stamp3(E,7)
    E(f"s_lshl_b32 s38, s33, 4\ns_add_u32 s38, s38, s34\ns_lshl_b32 s38, s38, 7\ns_add_u32 s38, s38, {WS_FQ}")
    agg_flag(E,0,4,38,3,4)
    stamp3(E,8)
    stamp(E,4)
    lds_wait(E,5,4,3,4)
    E.extend(C2)
    E(f"s_mov_b32 s22, {3*QKV_SZ}")
    srd(E,24,P_WS,HO_SZ,off=WS_HO)
    E("s_mul_i32 s37, s34, 10\ns_lshr_b32 s38, s37, 5\ns_add_u32 s37, s37, 9\ns_lshr_b32 s39, s37, 5")
    E("v_min_u32 v3, 13, v2\nv_mul_u32_u24 v4, 43, v3\nv_lshrrev_b32 v4, 8, v4\nv_mul_u32_u24 v5, 6, v4\nv_sub_u32 v5, v3, v5")
    E("v_mul_u32_u24 v6, 86, v5\nv_lshrrev_b32 v6, 8, v6\nv_mul_u32_u24 v7, 3, v6\nv_sub_u32 v7, v5, v7")
    E("v_cmp_eq_u32 vcc, 2, v4\nv_mov_b32 v8, 0\ns_nop 0\nv_cndmask_b32 v6, v6, v5, vcc\nv_cndmask_b32 v7, v7, v8, vcc")
    E("v_add_u32 v8, 1, v4\nv_mul_u32_u24 v8, 5, v8\nv_cmp_eq_u32 vcc, 15, v8\nv_mov_b32 v9, 0\ns_nop 0\nv_cndmask_b32 v8, v8, v9, vcc")
    E("v_mov_b32 v9, s38\nv_mov_b32 v20, s39\nv_cmp_eq_u32 vcc, 0, v6\ns_nop 1\nv_cndmask_b32 v9, v20, v9, vcc\nv_add_u32 v8, v8, v9")
    E(f"v_sub_u32 v9, s33, v7\nv_max_i32 v9, 0, v9\nv_lshl_add_u32 v8, v9, 4, v8\nv_lshlrev_b32 v8, 7, v8\nv_add_u32 v8, {WS_FQ}, v8")
    E("v_mov_b32 v10, 0x3f80\nv_mov_b32 v11, 0\nv_lshlrev_b32 v4, 3, v0")
    E.lds(f"ds_write_b64 v4, v[10:11] offset:{ONE0}"); E(f"v_add_u32 v5, {ONE1}, v4"); E.lds("ds_write_b64 v5, v[10:11]")
    E("v_min_u32 v6, 127, v0\nv_lshlrev_b32 v6, 3, v6"); E.lds(f"ds_write_b64 v6, v[10:11] offset:{ONE0+2048}"); E(f"v_add_u32 v6, {ONE1}, v6"); E.lds("ds_write_b64 v6, v[10:11] offset:2048")
    E("s_cmp_lt_u32 s33, 2\ns_cselect_b32 s56, 0x40000000, 0\ns_cmp_lt_u32 s33, 1\ns_cselect_b32 s57, 0x40000000, 0")
    E("s_lshl_b32 s40, s33, 10\ns_sub_u32 s40, s40, 2048\ns_mul_i32 s41, s34, %d\ns_add_u32 s40, s40, s41\ns_add_u32 s40, s40, %d"%(10*16384,QKV_SZ))
    E(f"s_lshl_b32 s41, s35, 14\ns_add_u32 s28, s40, s41\ns_mul_i32 s42, s35, {GS}\ns_add_u32 s29, s28, {4*16384}")
    E(f"s_cmp_ge_u32 s35, 2\ns_cselect_b32 s45, {QKV_SZ-10*16384}, 0\ns_add_u32 s30, s28, s45\ns_add_u32 s30, s30, {8*16384}\ns_add_u32 s31, s28, {12*16384+QKV_SZ-10*16384}")
    E("s_waitcnt vmcnt(0) lgkmcnt(0)")
    E(f"s_lshl_b32 s38, s2, 7\ns_add_u32 s38, s38, {WS_FW}")
    agg_flag(E,1,4,38,3,4)
    lds_wait(E,7,4,3,4,2)
    stamp5(E,4)
    if 'fq' in EXP:
        E("buffer_load_dword v9, v8, s[16:19], 0 offen sc1\ns_waitcnt vmcnt(0)"); stamp5(E,5)
    if 'nopollq' not in EXP: poll_leader(E,8,9,20,NON+16)
    E("v_lshlrev_b32 v3, 4, v2")
    stamp(E,5); stamp4(E,1); stamp5(E,6)
    for n in range(5):
        for p in range(3):
            oob={0:"s_add_u32 s47, s47, s56\n",1:"s_add_u32 s47, s47, s57\n",2:""}[p]
            E.vm(f"s_add_u32 m0, s42, {4*n*GS+1024*p}\ns_add_u32 s47, s{28+min(n,3)}, {1024*p+(4*16384 if n==4 else 0)}\n{oob}buffer_load_dwordx4 v3, s[20:23], s47 offen sc1 lds")
    E("v_and_b32 v5, 31, v2\nv_lshrrev_b32 v6, 5, v2\ns_lshl_b32 s40, s33, 7\ns_lshl_b32 s41, s35, 5\ns_add_u32 s40, s40, s41")
    E("v_add_u32 v7, s40, v5\nv_lshlrev_b32 v7, 3, v7\nv_lshl_add_u32 v8, v6, 15, v7")
    for e,QF in ((0,12),(1,232)):
        E(f"s_mul_i32 s41, s34, 10\ns_add_u32 s41, s41, {5*e}\ns_lshl_b32 s41, s41, 14")
        E.vm(f"buffer_load_dwordx2 v[{QF}:{QF+1}], v8, s[20:23], s41 offen sc1"); E("s_add_u32 s42, s41, 16384")
        E.vm(f"buffer_load_dwordx2 v[{QF+2}:{QF+3}], v8, s[20:23], s42 offen sc1"); E("s_add_u32 s42, s41, 65536")
        E.vm(f"buffer_load_dwordx2 v[{QF+4}:{QF+5}], v7, s[20:23], s42 offen sc1")
        E(f"v_mov_b32 v{QF+6}, 0\nv_mov_b32 v{QF+7}, 0")
    stamp4(E,2)
    E("s_waitcnt vmcnt(0) lgkmcnt(0)")
    stamp4(E,3)
    E("v_cmp_eq_u32 vcc, 0, v6\ns_nop 1")
    for QF in (12,232): E(f"v_cndmask_b32 v{QF+4}, 0, v{QF+4}, vcc\nv_cndmask_b32 v{QF+5}, 0, v{QF+5}, vcc")
    l0=lab("kv"); l1=lab("kvd")
    E(f"v_mov_b32 v9, {CNT+16}\nv_mov_b32 v10, 1\ns_mov_b64 exec, 1\nds_add_u32 v9, v10\ns_mov_b64 exec, -1\ns_mov_b32 s37, 0\n{l0}:\nds_read_b32 v10, v9\ns_waitcnt lgkmcnt(0)\n"
      f"v_cmp_ne_u32 vcc, 4, v10\ns_cbranch_vccz {l1}\ns_add_u32 s37, s37, 1\ns_cmp_lt_u32 s37, {POLL_MAX*8}\ns_cbranch_scc0 {l1}\ns_sleep 1\ns_branch {l0}\n{l1}:")
    stamp(E,6); stamp4(E,4)
    attention(E)
    return E


def attention_fast(E):
    KF=32; SB=(104,120,136); PB=(152,160); O=168; CN=184; M0=200; M8=216; Q1=232; VB_=(240,248); QF=12
    PM0=None
    NEG=fhex(-1e30)
    E(f"s_lshl_b32 s43, s35, 8\nv_lshlrev_b32 v9, 3, v5\nv_add_u32 v9, s43, v9\nv_mul_u32_u24 v20, {2*GS}, v6\nv_add_u32 v20, v20, v9\nv_add_u32 v21, {4*GS}, v9")
    kr={}
    def kreads(e,ts):
        for t in ts:
            kf=KF+8*t; o=5*GS*e
            E.lds(f"ds_read_b64 v[{kf}:{kf+1}], v20 offset:{o+256*t}"); E.lds(f"ds_read_b64 v[{kf+2}:{kf+3}], v20 offset:{o+256*t+GS}")
            kr[t]=E.lds(f"ds_read_b64 v[{kf+4}:{kf+5}], v21 offset:{o+256*t}")
    E("s_lshl_b32 s46, s33, 2\ns_add_u32 s46, s46, s35\ns_sub_i32 s46, 8, s46\ns_max_i32 s46, s46, 0")
    for t in range(9):
        if t<8: E(f"s_cmp_gt_u32 s46, {t}\ns_cselect_b32 s47, 0xff7f, 0\nv_mov_b32 v{KF+8*t+6}, s47\nv_mov_b32 v{KF+8*t+7}, 0")
        else: E(f"v_mov_b32 v{KF+8*t+6}, 0\nv_mov_b32 v{KF+8*t+7}, 0")
    E(f"v_cmp_eq_u32 vcc, 0, v6\nv_mov_b32 v7, 0x3f80\ns_nop 0\nv_cndmask_b32 v{QF+6}, 0, v7, vcc\nv_mov_b32 v{Q1+6}, v{QF+6}")
    kreads(0,range(9))
    E("v_bfe_u32 v22, v2, 4, 1\nv_and_b32 v23, 3, v2\nv_bfe_u32 v24, v2, 2, 2\nv_lshl_add_u32 v24, v6, 2, v24\nv_lshlrev_b32 v24, 3, v24\nv_add_u32 v24, s43, v24")
    E(f"v_lshl_add_u32 v25, v22, 2, v23\nv_mul_u32_u24 v26, {GS}, v25\nv_add_u32 v26, {VB}, v26\nv_cmp_lt_u32 vcc, 4, v25\nv_mov_b32 v7, {ONE0}\nv_mov_b32 v8, {ONE1}")
    E(f"v_cndmask_b32 v22, v26, v7, vcc\nv_add_u32 v26, {5*GS}, v26\nv_cndmask_b32 v23, v26, v8, vcc\nv_add_u32 v22, v22, v24\nv_add_u32 v23, v23, v24")
    E(f"v_mov_b32 v28, {NEG}\nv_mov_b32 v27, 0\nv_lshlrev_b32 v29, 2, v6\nv_sub_u32 v29, v5, v29")
    for r in range(16):
        kk=8*(r>>2)+(r&3)
        E(f"v_cmp_le_i32 vcc, {kk}, v29\ns_nop 1\nv_cndmask_b32 v{M8+r}, v28, v27, vcc\nv_cndmask_b32 v{M0+r}, v27, v28, vcc")
    E("v_bfe_u32 v24, v2, 4, 1\nv_lshlrev_b32 v24, 10, v24\nv_and_b32 v25, 15, v2\nv_lshl_add_u32 v24, v25, 4, v24")
    E("s_lshl_b32 s42, s33, 1\ns_lshr_b32 s43, s35, 1\ns_add_u32 s42, s42, s43\ns_mul_i32 s42, s42, 68\ns_add_u32 s42, s42, 48\ns_lshl_b32 s42, s42, 12\ns_and_b32 s43, s35, 1\ns_lshl_b32 s43, s43, 11\ns_add_u32 s42, s42, s43")
    E("s_mul_i32 s40, s34, 5")
    def qk(t,cinit):
        kf=KF+8*t; d=SB[t%3]
        return [f"v_mfma_f32_32x32x16_bf16 v[{d}:{d+15}], v[{kf}:{kf+3}], v[{QF}:{QF+3}], {cinit}",
                f"v_mfma_f32_32x32x16_bf16 v[{d}:{d+15}], v[{kf+4}:{kf+7}], v[{QF+4}:{QF+7}], v[{d}:{d+15}]"]
    def maxes(t,first):
        d=SB[t%3]; L=[]
        for i in range(8):
            acc=30+(i&1)
            if first and i<2: L.append(f"v_max_f32 v{acc}, v{d+2*i}, v{d+2*i+1}")
            else: L.append(f"v_max3_f32 v{acc}, v{acc}, v{d+2*i}, v{d+2*i+1}")
        return L
    for e in range(2):
        va=22+e
        stamp6(E,1) if e==0 else stamp6(E,5)
        vr_={}
        def vreads(t):
            vf=VB_[t%2]
            for m in range(2):
                E.lds(f"ds_read_b64_tr_b16 v[{vf+4*m}:{vf+4*m+1}], v{va} offset:{256*t+128*m}")
                vr_[t]=E.lds(f"ds_read_b64_tr_b16 v[{vf+4*m+2}:{vf+4*m+3}], v{va} offset:{256*t+128*m+64}")
        def cin(t): return f"v[{M0}:{M0+15}]" if t==0 else (f"v[{M8}:{M8+15}]" if t==8 else "0")
        vreads(0)
        E.wl(kr[0])
        for x in qk(0,cin(0)): E(x)
        E.wl(kr[1])
        for x in qk(1,cin(1)): E(x)
        vreads(1)
        E("s_nop 5")
        def pv(t):
            vf=VB_[t%2]; p=PB[t%2]
            c0 = "0" if t==0 else f"v[{O}:{O+15}]"
            return [f"v_mfma_f32_32x32x16_bf16 v[{O}:{O+15}], v[{vf}:{vf+3}], v[{p}:{p+3}], {c0}",
                    f"v_mfma_f32_32x32x16_bf16 v[{O}:{O+15}], v[{vf+4}:{vf+7}], v[{p+4}:{p+7}], v[{O}:{O+15}]"]
        for t in range(9):
            d=SB[t%3]; p=PB[t%2]
            nx=qk(t+2,cin(t+2)) if t+2<9 else []
            pp=pv(t-1) if t>=1 else []
            if t>=1: E.wl(vr_[t-1])
            if nx: E.wl(kr[t+2])
            mf=[]
            if pp: mf+=[pp[0]]
            if nx: mf+=[nx[0]]
            if pp: mf+=[pp[1]]
            if nx: mf+=[nx[1]]
            k=0
            for g in range(4):
                for r in range(4*g,4*g+4): E(f"v_exp_f32 v{d+r}, v{d+r}")
                if k<len(mf): E(mf[k]); k+=1
            while k<len(mf): E(mf[k]); k+=1
            if t>=1 and t+1<9: vreads(t+1)
            for r in range(8): E(f"v_cvt_pk_bf16_f32 v{p+r}, v{d+2*r}, v{d+2*r+1}")
            if e==0 and t==6: kreads(1,range(0,5))
            if e==0 and t==7: kreads(1,range(5,9))
        E.wl(vr_[8]); E("s_nop 1")
        for x in pv(8): E(x)
        stamp6(E,4) if e==0 else stamp6(E,7)
        PK=SB[0]
        E(f"s_add_u32 s41, s40, {2*e}")
        E("v_add_u32 v10, s41, v6\nv_lshrrev_b32 v11, 2, v10\nv_lshlrev_b32 v11, 12, v11\nv_and_b32 v10, 3, v10\nv_lshl_add_u32 v11, v10, 8, v11\nv_add_u32 v11, v11, v24")
        E(f"s_add_u32 s45, s40, 4\ns_lshr_b32 s44, s45, 2\ns_lshl_b32 s44, s44, 12\ns_and_b32 s45, s45, 3\ns_lshl_b32 s45, s45, 8\ns_add_u32 s44, s44, s45\ns_add_u32 s44, s44, {8*e}\ns_add_u32 s44, s44, s42")
        E(f"s_nop 1\nv_mov_b32 v30, v{O+8}\nv_mov_b32 v31, v{O+8}\ns_nop 1\nv_permlane32_swap_b32 v30, v31\ns_nop 1")
        E(f"v_mov_b32 v29, {fhex(2.0**60)}\nv_cmp_nle_f32 vcc, v31, v29\nv_mov_b32 v29, {fhex(2.0**-60)}\nv_cmp_nge_f32 s[56:57], v31, v29\ns_nop 1\ns_or_b64 vcc, vcc, s[56:57]\ns_mov_b32 s36, {e}")
        if 'forcefb' in EXP: E("s_mov_b64 vcc, -1")
        E("s_cbranch_vccnz L_att_fb")
        E("v_rcp_f32 v31, v31\ns_nop 0")
        for r in range(12): E(f"v_mul_f32 v{O+r}, v{O+r}, v31")
        for r in range(6): E(f"v_cvt_pk_bf16_f32 v{PK+r}, v{O+2*r}, v{O+2*r+1}")
        E(f"buffer_store_dwordx4 v[{PK}:{PK+3}], v11, s[24:27], s42 offen sc1")
        E(f"s_mov_b32 exec_hi, 0\nbuffer_store_dwordx2 v[{PK+4}:{PK+5}], v24, s[24:27], s44 offen sc1\ns_mov_b64 exec, -1")
        if e==0:
            for r in range(8): E(f"v_mov_b32 v{12+r}, v{Q1+r}")
    E("s_branch L_att_done")

def att_out(E,O,loop,Q1,PK):
    E(f"s_nop 7\nv_mov_b32 v30, v{O+8}\nv_mov_b32 v31, v{O+8}\ns_nop 1\nv_permlane32_swap_b32 v30, v31\ns_nop 1\nv_rcp_f32 v31, v31\ns_nop 0")
    for r in range(12): E(f"v_mul_f32 v{O+r}, v{O+r}, v31")
    for r in range(6): E(f"v_cvt_pk_bf16_f32 v{PK+r}, v{O+2*r}, v{O+2*r+1}")
    E("s_mul_i32 s40, s34, 5\ns_lshl_b32 s41, s36, 1\ns_add_u32 s41, s41, s40")
    E("v_add_u32 v10, s41, v6\nv_lshrrev_b32 v11, 2, v10\nv_lshlrev_b32 v11, 12, v11\nv_and_b32 v10, 3, v10\nv_lshl_add_u32 v11, v10, 8, v11")
    E("v_bfe_u32 v23, v2, 4, 1\nv_lshlrev_b32 v23, 10, v23\nv_and_b32 v24, 15, v2\nv_lshl_add_u32 v23, v24, 4, v23\nv_add_u32 v11, v11, v23")
    E("s_lshl_b32 s42, s33, 1\ns_lshr_b32 s43, s35, 1\ns_add_u32 s42, s42, s43\ns_mul_i32 s42, s42, 68\ns_add_u32 s42, s42, 48\ns_lshl_b32 s42, s42, 12\ns_and_b32 s43, s35, 1\ns_lshl_b32 s43, s43, 11\ns_add_u32 s42, s42, s43")
    E(f"buffer_store_dwordx4 v[{PK}:{PK+3}], v11, s[24:27], s42 offen sc1")
    E("s_add_u32 s40, s40, 4\ns_lshr_b32 s44, s40, 2\ns_lshl_b32 s44, s44, 12\ns_and_b32 s45, s40, 3\ns_lshl_b32 s45, s45, 8\ns_add_u32 s44, s44, s45\ns_lshl_b32 s45, s36, 3\ns_add_u32 s44, s44, s45\ns_add_u32 s44, s44, s42")
    E(f"s_mov_b32 exec_hi, 0\nbuffer_store_dwordx2 v[{PK+4}:{PK+5}], v23, s[24:27], s44 offen sc1\ns_mov_b64 exec, -1")
    E(f"s_cmp_eq_u32 s36, 1\ns_cbranch_scc1 L_att_done")
    for r in range(8): E(f"v_mov_b32 v{12+r}, v{Q1+r}")
    E(f"s_mov_b32 s36, 1\ns_branch {loop}")
def attention_slow(E):
    E("s_mov_b32 s36, 0")
    E.label("L_att_fb")
    E("s_waitcnt lgkmcnt(0)\nv_mov_b32 v18, 0\nv_mov_b32 v238, 0")
    E("s_lshl_b32 s46, s33, 2\ns_add_u32 s46, s46, s35\ns_sub_i32 s46, 8, s46\ns_max_i32 s46, s46, 0")
    E.label("L_att")
    E(f"s_mul_i32 s42, s36, {5*GS}\ns_lshl_b32 s43, s35, 8\ns_add_u32 s42, s42, s43")
    E(f"v_lshlrev_b32 v9, 3, v5\nv_add_u32 v9, s42, v9\nv_mul_u32_u24 v20, {2*GS}, v6\nv_add_u32 v20, v20, v9\nv_add_u32 v21, {4*GS}, v9")
    E("v_bfe_u32 v22, v2, 4, 1\nv_and_b32 v23, 3, v2\nv_bfe_u32 v24, v2, 2, 2\nv_lshl_add_u32 v24, v6, 2, v24\nv_lshlrev_b32 v24, 3, v24\nv_add_u32 v24, s43, v24")
    E(f"v_lshl_add_u32 v25, v22, 2, v23\nv_mul_u32_u24 v26, {GS}, v25\ns_mul_i32 s44, s36, {5*GS}\ns_add_u32 s44, s44, {VB}\nv_add_u32 v26, s44, v26")
    E(f"s_mov_b32 s45, {ONE1}\ns_cmp_eq_u32 s36, 0\ns_cselect_b32 s45, {ONE0}, s45\nv_mov_b32 v27, s45\nv_cmp_lt_u32 vcc, 4, v25\ns_nop 1\nv_cndmask_b32 v26, v26, v27, vcc\nv_add_u32 v22, v26, v24")
    S=32; KF=176; QF=12
    for st in range(2): E(f"v_mov_b32 v{KF+8*st+6}, 0\nv_mov_b32 v{KF+8*st+7}, 0")
    E(f"v_mov_b32 v28, {fhex(-1e30)}")
    for t in range(9):
        kf=KF+8*(t%2); d=S+16*t; skip=lab("ts"); done=lab("td")
        E(f"s_cmp_gt_u32 s46, {t}\ns_cbranch_scc1 {skip}")
        E(f"ds_read_b64 v[{kf}:{kf+1}], v20 offset:{256*t}\nds_read_b64 v[{kf+2}:{kf+3}], v20 offset:{256*t+GS}\nds_read_b64 v[{kf+4}:{kf+5}], v21 offset:{256*t}\ns_waitcnt lgkmcnt(0)")
        E(f"v_mfma_f32_32x32x16_bf16 v[{d}:{d+15}], v[{kf}:{kf+3}], v[{QF}:{QF+3}], 0\nv_mfma_f32_32x32x16_bf16 v[{d}:{d+15}], v[{kf+4}:{kf+7}], v[{QF+4}:{QF+7}], v[{d}:{d+15}]")
        E(f"s_branch {done}"); E.label(skip)
        for r in range(16): E(f"v_mov_b32 v{d+r}, v28")
        E.label(done)
    E("s_nop 15\nv_lshlrev_b32 v29, 2, v6\nv_sub_u32 v29, v5, v29")
    for r in range(16):
        kk=8*(r>>2)+(r&3)
        E(f"v_cmp_le_i32 vcc, {kk}, v29\ns_nop 1\nv_cndmask_b32 v{S+128+r}, v28, v{S+128+r}, vcc\nv_cndmask_b32 v{S+r}, v{S+r}, v28, vcc")
    E(f"v_max3_f32 v30, v{S}, v{S+1}, v{S+2}")
    r=3
    while r<144:
        if r+1<144: E(f"v_max3_f32 v30, v30, v{S+r}, v{S+r+1}"); r+=2
        else: E(f"v_max_f32 v30, v30, v{S+r}"); r+=1
    E("v_mov_b32 v31, v30\nv_mov_b32 v29, v30\ns_nop 1\nv_permlane32_swap_b32 v31, v29\ns_nop 1\nv_max_f32 v30, v31, v29")
    for t in range(9):
        d=S+16*t
        for r in range(16): E(f"v_sub_f32 v{d+r}, v{d+r}, v30")
        for r in range(16): E(f"v_exp_f32 v{d+r}, v{d+r}")
        E("s_nop 0")
        for r in range(8): E(f"v_cvt_pk_bf16_f32 v{d+r}, v{d+2*r}, v{d+2*r+1}")
    O=192; VF=208
    for r in range(16): E(f"v_mov_b32 v{O+r}, 0")
    for t in range(9):
        d=S+16*t; vf=VF+8*(t%2); skip=lab("ps")
        E(f"s_cmp_gt_u32 s46, {t}\ns_cbranch_scc1 {skip}")
        for m in range(2):
            E(f"ds_read_b64_tr_b16 v[{vf+4*m}:{vf+4*m+1}], v22 offset:{256*t+128*m}\nds_read_b64_tr_b16 v[{vf+4*m+2}:{vf+4*m+3}], v22 offset:{256*t+128*m+64}")
        E("s_waitcnt lgkmcnt(0)")
        for m in range(2): E(f"v_mfma_f32_32x32x16_bf16 v[{O}:{O+15}], v[{vf+4*m}:{vf+4*m+3}], v[{d+4*m}:{d+4*m+3}], v[{O}:{O+15}]")
        E.label(skip)
    E("s_nop 7")
    att_out(E,O,"L_att",232,224)

def attention(E):
    if 'noaprio' not in EXP: E("s_setprio 1")
    attention_fast(E)
    E.label("L_att_slow")
    attention_slow(E)
    E.label("L_att_done")
    stamp(E,7)
    E("s_waitcnt vmcnt(0)")
    E(f"s_lshl_b32 s38, s33, 4\ns_add_u32 s38, s38, s34\ns_lshl_b32 s38, s38, 7\ns_add_u32 s38, s38, {WS_FO}")
    agg_flag(E,3,4,38,3,4)
    stamp(E,8)
    stamp_flush(E)
    E("s_endpgm")

def build():
    hdr=open("parallel_sum__sliding_block__mixer_channel_mlp__prompt.s.ref").read().split("; Override")[0]
    s=hdr+f"; @launch grid=(256,1,1) block=(512,1,1) lds={LDS_TOTAL}\n"
    s+='.amdgcn_target "amdgcn-amd-amdhsa--gfx950"\n.text\n'+kernel_header(KNAME)
    s+=prologue().text()+gen_A().text()+gen_F().text()
    s+='.section .rodata,"a"\n'+kernel_desc(KNAME,sgpr=102)
    return s
if __name__=="__main__":
    out=sys.argv[1] if len(sys.argv)>1 else "parallel_sum__sliding_block__mixer_channel_mlp__prompt.s"
    if len(sys.argv)>2 and sys.argv[2]=="instr": INSTR=True
    if len(sys.argv)>3: EXP.update(sys.argv[3].split(","))
    for e in EXP:
        if e.startswith("sleep"): SLEEP=int(e[5:])
    open(out,"w").write(build())
```

```python
import math, sys, struct
from asmlib import kernel_header, kernel_desc
from em import Em

KNAME="parallel_sum__sliding_block__mixer_channel_mlp__prompt_kernel"
WS_STATS=0; WS_CSP=0x10000; WS_FQ=0x90000; WS_FH=0x98000; WS_FO=0xA0000; WS_FW=0xA8000; SMALL_SZ=0xB0000
WS_W2T=0xB0000; W2T_SZ=8*68*5*1024
WS_Q=0x360000; QKV_SZ=0x280000
WS_HO=0xB00000; HO_SZ=0x880000
WS_STAMP=0x2000000
LOG2E=1.4426950408889634; CQ=(20**-0.5)*LOG2E
GC0=-2.0*LOG2E*math.sqrt(2.0/math.pi); GC1=GC0*0.044715
def fhex(f): return hex(struct.unpack("<I",struct.pack("<f",f))[0])
P_X,P_WQKV,P_WO,P_W1,P_B1,P_W2,P_B2,P_OUT,P_DBG,P_WS=60,62,64,68,70,72,74,76,78,80
SLOT=32768; P0=131072; P1=143360; U0=69632; CSF=155648; NON=156672; CNT=156704; STX=156768; B1F=156928; STA=157312; CSP4=158336; CSFW=159872; XCH=131072; CSCR=135168
GS=3104; VB=10*GS
def _ones():
    base=VB+10*GS; o0=base+((160-(base-VB))%256); b2=o0+3072; o1=b2+((64-(b2-VB))%256); return o0,o1,o1+3072
ONE0,ONE1,ATT_END=_ones(); RED=69632; LDS_TOTAL=163840
assert ATT_END<=RED
V0=20480
def wf_region(sg): return [P0,P1,U0,U0+12288,U0+2*12288,U0+3*12288,U0+4*12288,V0,V0+12288,V0+2*12288][sg]
S_NONCE=82
INSTR=False; EXP=set(); POLL_MAX=20000
_uid=[0]
def lab(b="L"):
    _uid[0]+=1; return f"{b}_{_uid[0]}"
NST=9
def stamp2(E,idx):
    if INSTR and 'barst' in EXP: E(f"s_memtime s[{84+2*idx}:{85+2*idx}]")
def stamp3(E,idx):
    if INSTR and 'epi' in EXP: E(f"s_memrealtime s[{84+2*idx}:{85+2*idx}]")
def stamp4(E,idx):
    if INSTR and 'gel' in EXP: E(f"s_memrealtime s[{84+2*idx}:{85+2*idx}]")
def stamp5(E,idx):
    if INSTR and 'fq' in EXP: E(f"s_memrealtime s[{84+2*idx}:{85+2*idx}]")
def stamp6(E,idx):
    if INSTR and 'att' in EXP:
        l=lab("s6"); E(f"s_cmp_eq_u32 s36, {0 if idx<5 else 1}\ns_cbranch_scc0 {l}\ns_memtime s[{84+2*idx}:{85+2*idx}]\n{l}:")
def stamp8(E,idx):
    if INSTR and 'p1b' in EXP: E(f"s_memtime s[{84+2*idx}:{85+2*idx}]")
def stamp9(E,idx):
    if INSTR and 'fc2' in EXP: E(f"s_memrealtime s[{84+2*idx}:{85+2*idx}]")
def stampA(E,idx):
    if INSTR and 'pA' in EXP: E(f"s_memtime s[{84+2*idx}:{85+2*idx}]")
def stampG(E,idx):
    if INSTR and 'pG' in EXP: E(f"s_memtime s[{84+2*idx}:{85+2*idx}]")
def stamp(E,idx):
    if 'pG' in EXP and idx>0: return
    if 'pA' in EXP and idx>0: return
    if 'pB' in EXP and idx>0: return
    if 'fc2' in EXP and idx>0: return
    if 'p1b' in EXP and idx>0: return
    if 'intv' in EXP and idx>0: return
    if 'lat' in EXP and idx>0: return
    if 'att' in EXP and idx>0: return
    if 'fq' in EXP and idx>0: return
    if 'gel' in EXP and idx>0: return
    if 'epi' in EXP and idx>0: return
    if 'barst' in EXP and idx>0: return
    if INSTR: E(f"s_mem{'time' if 'clk' in EXP else 'realtime'} s[{84+2*idx}:{85+2*idx}]")
def stamp_flush(E,role=0):
    if not INSTR: return
    E("s_waitcnt lgkmcnt(0)")
    if 'dbgts' in EXP:
        l=lab("dts")
        E(f"s_cmp_eq_u32 s35, 0\ns_cbranch_scc0 {l}")
        E(f"s_mov_b32 s52, s{P_DBG}\ns_mov_b32 s53, s{P_DBG+1}\ns_mov_b32 s54, 256\ns_mov_b32 s55, 0x20000\nv_mov_b32 v251, 0\ns_mov_b64 exec, 1")
        sel = (0,2,3,4,5,6,7,8) if role==0 else (2,3,4,5,6,7,8)
        base = 1 if role==0 else 9
        for n,i in enumerate(sel):
            E(f"s_sub_u32 s56, s{84+2*i}, s{S_NONCE}\nv_mov_b32 v250, s56\nbuffer_atomic_smax v250, v251, s[52:55], 0 offen offset:{4*(base+n)}")
        E("s_mov_b64 exec, -1"); E.label(l)
        return
    E(f"s_add_u32 s52, s{P_WS}, {WS_STAMP}\ns_addc_u32 s53, s{P_WS+1}, 0\ns_mov_b32 s54, 0x20000\ns_mov_b32 s55, 0x20000")
    E("s_lshl_b32 s56, s2, 3\ns_add_u32 s56, s56, s32\ns_lshl_b32 s56, s56, 6\nv_mov_b32 v251, 0")
    for i in range(NST):
        E(f"v_mov_b32 v250, s{84+2*i}"); E(f"buffer_store_dword v250, v251, s[52:55], s56 offen offset:{4*i}")
def srd(E,d,p,size,off=0):
    if off: E(f"s_add_u32 s{d}, s{p}, {off}\ns_addc_u32 s{d+1}, s{p+1}, 0")
    else: E(f"s_mov_b32 s{d}, s{p}\ns_mov_b32 s{d+1}, s{p+1}")
    E(f"s_mov_b32 s{d+2}, {size}\ns_mov_b32 s{d+3}, 0x20000")
SLEEP=8
def poll_slow(E,vaddr,vtmp):
    l0=lab("poll"); l1=lab("polld")
    E("s_mov_b32 s37, 0"); E.label(l0)
    E(f"buffer_load_dword v{vtmp}, v{vaddr}, s[16:19], 0 offen sc1\ns_waitcnt vmcnt(0)")
    E(f"v_cmp_ne_u32 vcc, s{S_NONCE}, v{vtmp}\ns_cbranch_vccz {l1}")
    E(f"s_add_u32 s37, s37, 1\ns_cmp_lt_u32 s37, {POLL_MAX}\ns_cbranch_scc0 {l1}\ns_sleep {SLEEP}\ns_branch {l0}")
    E.label(l1)
def check_or_poll(E,vaddr,vval):
    l0=lab("cp"); l1=lab("cpd")
    E(f"v_cmp_ne_u32 vcc, s{S_NONCE}, v{vval}\ns_cbranch_vccz {l1}\ns_mov_b32 s37, 0\n{l0}:\n"
      f"buffer_load_dword v{vval}, v{vaddr}, s[16:19], 0 offen sc1\ns_waitcnt vmcnt(0)\nv_cmp_ne_u32 vcc, s{S_NONCE}, v{vval}\ns_cbranch_vccz {l1}\n"
      f"s_add_u32 s37, s37, 1\ns_cmp_lt_u32 s37, {POLL_MAX}\ns_cbranch_scc0 {l1}\ns_sleep {SLEEP}\ns_branch {l0}\n{l1}:")
def poll_leader(E,vaddr,vtmp,vt2,goaddr):
    lw=lab("pw"); ld=lab("pd"); l0=lab("pl")
    E(f"v_mov_b32 v{vt2}, {goaddr}\ns_cmp_eq_u32 s35, 0\ns_cbranch_scc0 {lw}")
    poll_slow(E,vaddr,vtmp)
    E(f"v_mov_b32 v{vtmp}, s{S_NONCE}\nds_write_b32 v{vt2}, v{vtmp}\ns_waitcnt lgkmcnt(0)\ns_branch {ld}")
    E.label(lw)
    E(f"s_mov_b32 s37, 0\n{l0}:\nds_read_b32 v{vtmp}, v{vt2}\ns_waitcnt lgkmcnt(0)\nv_cmp_ne_u32 vcc, s{S_NONCE}, v{vtmp}\ns_cbranch_vccz {ld}\n"
      f"s_add_u32 s37, s37, 1\ns_cmp_lt_u32 s37, {POLL_MAX*8}\ns_cbranch_scc0 {ld}\ns_sleep 2\ns_branch {l0}")
    E.label(ld)
def flag_store(E,soff,vt0,vt1):
    E(f"v_mov_b32 v{vt0}, s{S_NONCE}\nv_mov_b32 v{vt1}, 0")
    return E.st(f"s_mov_b64 exec, 1\nbuffer_store_dword v{vt0}, v{vt1}, s[16:19], s{soff} offen sc1\ns_mov_b64 exec, -1")
def agg_flag(E,cnt_idx,nwaves,soff,vt0,vt1):
    l=lab("ag")
    E(f"v_mov_b32 v{vt0}, {CNT+4*cnt_idx}\nv_mov_b32 v{vt1}, 1\ns_mov_b64 exec, 1\nds_add_rtn_u32 v{vt1}, v{vt0}, v{vt1}\ns_waitcnt lgkmcnt(0)\ns_mov_b64 exec, -1\n"
      f"v_readfirstlane_b32 s37, v{vt1}\ns_nop 3\ns_cmp_eq_u32 s37, {nwaves-1}\ns_cbranch_scc0 {l}\nv_mov_b32 v{vt0}, s{S_NONCE}\nv_mov_b32 v{vt1}, 0\ns_mov_b64 exec, 1\n"
      f"buffer_store_dword v{vt0}, v{vt1}, s[16:19], s{soff} offen sc1\ns_mov_b64 exec, -1\n{l}:")
def lds_arrive(E,idx,vt0,vt1):
    E(f"v_mov_b32 v{vt0}, {CNT+4*idx}\nv_mov_b32 v{vt1}, 1\ns_mov_b64 exec, 1\nds_add_u32 v{vt0}, v{vt1}\ns_mov_b64 exec, -1")
def lds_wait(E,idx,target,vt0,vt1,slp=1):
    l0=lab("lw"); l1=lab("lwd")
    E(f"v_mov_b32 v{vt0}, {CNT+4*idx}\ns_mov_b32 s37, 0\n{l0}:\nds_read_b32 v{vt1}, v{vt0}\ns_waitcnt lgkmcnt(0)\nv_cmp_gt_u32 vcc, {target}, v{vt1}\ns_cbranch_vccz {l1}\n"
      f"s_add_u32 s37, s37, 1\ns_cmp_lt_u32 s37, {POLL_MAX*32}\ns_cbranch_scc0 {l1}\n"+(f"s_sleep {slp}\n" if slp else "")+f"s_branch {l0}\n{l1}:")
def allreduce(E,v,t1,t2):
    for dpp in ("quad_perm:[1,0,3,2]","quad_perm:[2,3,0,1]","row_half_mirror","row_mirror"):
        E(f"s_nop 1\nv_add_f32_dpp v{v}, v{v}, v{v} {dpp} row_mask:0xf bank_mask:0xf")
    for sw in ("16","32"):
        E(f"v_mov_b32 v{t1}, v{v}\nv_mov_b32 v{t2}, v{v}")
        E(f"s_nop 1\nv_permlane{sw}_swap_b32 v{t1}, v{t2}\ns_nop 1\nv_add_f32 v{v}, v{t1}, v{t2}")
def gelu_ops(x,t,c0):
    return [f"v_mul_f32 v{t}, v{x}, v{x}",f"v_fma_f32 v{t}, v{t}, s51, v{c0}",f"v_mul_f32 v{t}, v{t}, v{x}",
            f"v_exp_f32 v{t}, v{t}",f"v_add_f32 v{t}, 1.0, v{t}",f"v_rcp_f32 v{t}, v{t}",f"v_mul_f32 v{x}, v{x}, v{t}"]

def prologue():
    E=Em()
    E("s_cmp_ge_u32 s2, 256\ns_cbranch_scc1 L_end")
    stamp(E,0)
    E("s_load_dwordx2 s[4:5], s[0:1], 0\ns_load_dwordx2 s[8:9], s[0:1], 8\ns_load_dwordx2 s[12:13], s[0:1], 32\ns_load_dwordx2 s[16:17], s[0:1], 80")
    E("s_load_dwordx16 s[60:75], s[0:1], 0\ns_load_dwordx4 s[76:79], s[0:1], 64\ns_load_dwordx2 s[80:81], s[0:1], 80")
    E("v_lshrrev_b32 v1, 6, v0\nv_and_b32 v2, 63, v0\nv_readfirstlane_b32 s32, v1")
    E("s_mov_b32 s6, 2621440\ns_mov_b32 s7, 0x20000\ns_mov_b32 s10, %d\ns_mov_b32 s11, 0x20000"%(640*3840))
    E("s_mov_b32 s14, %d\ns_mov_b32 s15, 0x20000\ns_mov_b32 s18, %d\ns_mov_b32 s19, 0x20000"%(640*3072,SMALL_SZ))
    E("s_and_b32 s37, s2, 7\ns_lshr_b32 s38, s2, 3")
    E("s_lshr_b32 s33, s37, 2\ns_lshl_b32 s33, s33, 3\ns_and_b32 s39, s38, 7\ns_add_u32 s33, s33, s39")
    E("s_and_b32 s34, s37, 3\ns_lshl_b32 s34, s34, 2\ns_lshr_b32 s39, s38, 3\ns_add_u32 s34, s34, s39")
    E("s_min_u32 s41, s34, 14\ns_lshl_b32 s41, s41, 8\ns_mul_i32 s42, s34, 192")
    E("s_and_b32 s35, s32, 3\ns_cmp_ge_u32 s32, 4\ns_cbranch_scc1 L_F")
    return E

def gen_F():
    U_V0=int(next((e[3:] for e in EXP if e.startswith('uv0')),'8'))
    E=Em(); E.label("L_F")
    if 'nofprio' not in EXP: E("s_setprio 2")
    E("s_mov_b32 s45, 0\ns_mov_b32 s46, 0\ns_mul_i32 s40, s33, 163840\ns_lshl_b32 s43, s35, 12\ns_mul_i32 s44, s35, 3072")
    E("v_lshrrev_b32 v3, 3, v2\ns_lshl_b32 s39, s35, 5\nv_add_u32 v3, s39, v3\nv_mul_u32_u24 v3, 1280, v3")
    E("v_and_b32 v4, 7, v2\nv_lshrrev_b32 v5, 4, v2\nv_xor_b32 v6, v4, v5\nv_lshl_add_u32 v10, v6, 4, v3")
    E(f"v_or_b32 v7, 4, v5\nv_xor_b32 v7, v4, v7\nv_lshl_add_u32 v11, v7, 4, v3\nv_add_u32 v11, {8*1280}, v11")
    E(f"v_add_u32 v12, {16*1280}, v10\nv_add_u32 v13, {16*1280}, v11")
    E("s_lshl_b32 s39, s35, 4\nv_add_u32 v3, s39, v5\nv_mul_u32_u24 v3, 3840, v3")
    E("v_and_b32 v4, 15, v2\nv_lshlrev_b32 v6, 2, v5\nv_xor_b32 v4, v4, v6\nv_lshl_add_u32 v14, v4, 4, v3")
    for q in range(1,4): E(f"v_add_u32 v{14+q}, {q*4*3840}, v14")
    E("s_waitcnt lgkmcnt(0)")
    def dma_ops(tau):
        slot=tau%4; G=[]
        for q in range(4):
            pre=f"s_add_u32 s56, s40, {tau*128}\ns_add_u32 s57, s41, {tau*64*3840}\n" if q==0 else ""
            G.append(pre+f"s_add_u32 m0, s43, {slot*SLOT+q*1024}\ns_nop 0\nbuffer_load_dwordx4 v{10+q}, s[4:7], s56 offen lds")
        for q in range(4):
            G.append(f"s_add_u32 m0, s43, {slot*SLOT+16384+q*1024}\ns_nop 0\nbuffer_load_dwordx4 v{14+q}, s[8:11], s57 offen lds")
        return G
    WFV=(34,35,40)
    def dma_wf(sg, sink):
        reg=wf_region(sg); last=None
        for t in range(3):
            pre=f"s_add_u32 s58, s42, {sg*64*3072}\n" if t==0 else ""
            last=sink.vm(pre+f"s_add_u32 m0, s44, {reg+t*1024}\ns_nop 0\nbuffer_load_dwordx4 v{WFV[t]}, s[12:15], s58 offen lds")
        return last
    D={}
    for tau in range(3):
        for g in dma_ops(tau): D[tau]=E.vm(g)
    E(f"v_lshlrev_b32 v3, 3, v2\nv_mov_b32 v4, 0\nv_mov_b32 v5, 0\nv_add_u32 v6, {CSF+512}, v3\nv_add_u32 v3, {CNT}, v3")
    E("s_mov_b64 exec, 0xff"); E.lds("ds_write_b64 v3, v[4:5]"); E("s_mov_b64 exec, -1"); ci=E.lds("ds_write_b64 v6, v[4:5]")
    stamp(E,1)
    E("s_lshl_b32 s39, s35, 4")
    for t in range(3):
        E(f"v_add_u32 v3, {64*t}, v2\nv_mul_u32_u24 v4, 171, v3\nv_lshrrev_b32 v4, 11, v4\nv_mul_u32_u24 v5, 12, v4\nv_sub_u32 v5, v3, v5")
        E(f"v_add_u32 v4, s39, v4\nv_mul_u32_u24 v4, 3072, v4\nv_lshl_add_u32 v{WFV[t]}, v5, 4, v4")
    E("v_and_b32 v3, 31, v2\ns_lshl_b32 s37, s35, 5\nv_add_u32 v3, s37, v3\nv_lshrrev_b32 v4, 5, v2\nv_bfe_u32 v5, v3, 1, 3\nv_xor_b32 v5, v5, v4\nv_lshlrev_b32 v3, 7, v3")
    for t in range(4): E(f"v_xor_b32 v6, {2*t}, v5\nv_lshl_add_u32 v{18+t}, v6, 4, v3\nv_add_u32 v{22+t}, 65536, v{18+t}")
    E("v_bfe_u32 v3, v2, 4, 1\nv_lshrrev_b32 v4, 5, v2\nv_bfe_u32 v5, v2, 2, 2\nv_and_b32 v6, 3, v2\nv_lshl_add_u32 v7, v4, 3, v5")
    E(f"v_mul_u32_u24 v41, 192, v7\nv_lshl_add_u32 v41, v3, 5, v41\nv_lshl_add_u32 v41, v6, 3, v41\nv_add_u32 v47, {P0}, v41\nv_add_u32 v46, {U0}, v41")
    E("v_lshlrev_b32 v8, 8, v7\nv_add_u32 v8, 16384, v8\nv_lshrrev_b32 v9, 1, v6\nv_lshl_add_u32 v9, v3, 1, v9\nv_lshl_add_u32 v8, v9, 4, v8\nv_and_b32 v9, 1, v6\nv_lshl_add_u32 v8, v9, 3, v8")
    E("v_xor_b32 v9, s35, v5\nv_lshl_add_u32 v64, v9, 6, v8\nv_add_u32 v65, 65536, v64")
    E("v_and_b32 v3, 15, v2\nv_bfe_u32 v4, v2, 4, 1\nv_cmp_eq_u32 vcc, v3, v4\nv_mov_b32 v5, 0x3f803f80\ns_nop 0\nv_cndmask_b32 v36, 0, v5, vcc\nv_mov_b32 v37, v36\nv_mov_b32 v38, v36\nv_mov_b32 v39, v36")
    E("v_mov_b32 v66, 0\nv_mov_b32 v67, 0\nv_mov_b32 v68, 0\nv_mov_b32 v69, 0")
    XS=96; W={}; xr={}
    PRE=Em()
    PRE("s_lshl_b32 s37, s33, 7\ns_lshl_b32 s38, s34, 3\ns_add_u32 s37, s37, s38\ns_lshl_b32 s38, s35, 1\ns_add_u32 s37, s37, s38\ns_mul_i32 s36, s37, 1280")
    PRE("v_and_b32 v3, 31, v2\nv_mul_u32_u24 v3, 40, v3\nv_lshrrev_b32 v4, 5, v2\nv_mul_u32_u24 v4, 1280, v4\nv_add_u32 v3, v3, v4")
    srd(PRE,48,P_DBG,256)
    l=lab("non")
    PRE(f"s_or_b32 s37, s2, s35\ns_cmp_eq_u32 s37, 0\ns_cbranch_scc0 {l}\ns_memrealtime s[54:55]\ns_waitcnt lgkmcnt(0)\ns_or_b32 s54, s54, 1\nv_mov_b32 v6, s54\nv_mov_b32 v7, 0\ns_mov_b64 exec, 1\n"
        f"buffer_store_dword v6, v7, s[48:51], 0 offen sc1\ns_mov_b64 exec, -1\n{l}:")
    l=lab("nl")
    PRE(f"v_mov_b32 v82, 0\nv_mov_b32 v81, 0\ns_cmp_eq_u32 s35, 0\ns_cbranch_scc0 {l}\nbuffer_load_dword v81, v82, s[48:51], 0 offen sc1\n{l}:")
    PRE.vm("buffer_load_dwordx4 v[70:73], v3, s[4:7], s36 offen"); PRE.vm("buffer_load_dwordx4 v[74:77], v3, s[4:7], s36 offen offset:16")
    PRE.vm("buffer_load_dwordx2 v[78:79], v3, s[4:7], s36 offen offset:32")
    srd(PRE,52,P_B1,3072)
    PRE("v_lshlrev_b32 v4, 2, v2\ns_mul_i32 s37, s34, 192\nv_min_u32 v4, 188, v4")
    pl1=PRE.vm("buffer_load_dword v80, v4, s[52:55], s37 offen")
    F=Em()
    F.wv(pl1)
    l0=lab("n0"); l1=lab("n1"); l2=lab("n2")
    F(f"s_cmp_eq_u32 s35, 0\ns_cbranch_scc0 {l2}\ns_mov_b32 s37, 0\n{l0}:\nv_readfirstlane_b32 s{S_NONCE}, v81\ns_nop 3\ns_cmp_lg_u32 s{S_NONCE}, 0\ns_cbranch_scc1 {l1}\n"
      f"s_add_u32 s37, s37, 1\ns_cmp_lt_u32 s37, {POLL_MAX}\ns_cbranch_scc0 {l1}\ns_sleep 1\nbuffer_load_dword v81, v82, s[48:51], 0 offen sc1\ns_waitcnt vmcnt(0)\ns_branch {l0}\n{l1}:\n"
      f"v_mov_b32 v82, {NON}\nds_write_b32 v82, v81\n{l2}:")
    F("v_lshlrev_b32 v82, 16, v80"); F("v_and_b32 v83, 0xffff0000, v80"); F("v_min_u32 v4, 47, v2"); F("v_lshlrev_b32 v4, 3, v4"); F(f"v_add_u32 v4, {B1F}, v4")
    F.lds("ds_write_b64 v4, v[82:83]")
    B=200
    for i in range(10):
        F(f"v_lshlrev_b32 v{B+2*i}, 16, v{70+i}"); F(f"v_and_b32 v{B+2*i+1}, 0xffff0000, v{70+i}")
    F(f"v_add_f32 v70, v{B}, v{B+1}"); F(f"v_add_f32 v71, v{B+2}, v{B+3}")
    for i in range(4,20,2):
        F(f"v_add_f32 v70, v70, v{B+i}"); F(f"v_add_f32 v71, v71, v{B+i+1}")
    F("v_add_f32 v70, v70, v71")
    def red32(v):
        for dpp in ("quad_perm:[1,0,3,2]","quad_perm:[2,3,0,1]","row_half_mirror","row_mirror"):
            F(f"s_nop 1\nv_add_f32_dpp v{v}, v{v}, v{v} {dpp} row_mask:0xf bank_mask:0xf")
        F(f"v_mov_b32 v78, v{v}\nv_mov_b32 v79, v{v}")
        F(f"s_nop 1\nv_permlane16_swap_b32 v78, v79\ns_nop 1\nv_add_f32 v{v}, v78, v79")
    red32(70)
    F(f"v_mul_f32 v70, {fhex(1.0/640)}, v70")
    nF1=len(F.it)
    for i in range(20): F(f"v_sub_f32 v{B+i}, v{B+i}, v70")
    F(f"v_mul_f32 v71, v{B}, v{B}"); F(f"v_mul_f32 v72, v{B+1}, v{B+1}")
    for i in range(2,20,2):
        F(f"v_fmac_f32 v71, v{B+i}, v{B+i}"); F(f"v_fmac_f32 v72, v{B+i+1}, v{B+i+1}")
    F("v_add_f32 v71, v71, v72")
    red32(71)
    F(f"v_mul_f32 v71, {fhex(1.0/640)}, v71"); F(f"v_add_f32 v72, {fhex(1e-5)}, v71")
    F("v_rsq_f32 v75, v72\ns_nop 0"); F("v_mul_f32 v73, v75, v75"); F("v_mul_f32 v73, v73, v71"); F(f"v_add_f32 v73, {fhex(1e-5)}, v73")
    F("v_rsq_f32 v73, v73\nv_mov_b32 v74, v70"); F("s_nop 0\nv_mul_f32 v76, v75, v73")
    F("v_lshrrev_b32 v78, 5, v2"); F("v_lshlrev_b32 v78, 4, v78"); F(f"s_lshl_b32 s37, s35, 5\ns_add_u32 s37, s37, {STX}"); F("v_add_u32 v78, s37, v78"); F("v_mov_b32 v77, 0")
    F.lds("ds_write_b128 v78, v[74:77]")
    F2=Em()
    F2(f"v_mov_b32 v3, {NON}"); nr=F2.lds("ds_read_b32 v83, v3")
    F2("v_and_b32 v78, 7, v2"); F2("v_lshlrev_b32 v78, 4, v78"); F2(f"v_add_u32 v79, {STX}, v78")
    sr=F2.lds("ds_read_b128 v[74:77], v79"); F2.wl(sr); F2(f"v_mov_b32 v77, v83\nv_readfirstlane_b32 s{S_NONCE}, v83")
    l=lab("sst")
    F2(f"s_cmp_eq_u32 s35, 0\ns_cbranch_scc0 {l}\ns_lshl_b32 s37, s33, 7\ns_lshl_b32 s38, s34, 3\ns_add_u32 s37, s37, s38\ns_lshl_b32 s37, s37, 4\ns_mov_b64 exec, 0xff\n"
       f"buffer_store_dwordx4 v[74:77], v78, s[16:19], s37 offen sc1\ns_mov_b64 exec, -1\n{l}:")
    allF=list(F.it)
    def part(L,a,b):
        x=Em(); x.it=L[a:b]; return x
    def cat(*xs):
        y=Em()
        for x in xs:
            if x: y.it+=x.it
        return y
    fill={1:part(allF,0,nF1), 2:part(allF,nF1,len(allF)), 3:F2}
    E.wv(D[0]); E.wl(ci); E("s_barrier"); stamp(E,2); stamp2(E,1)
    csr={}
    for tau in range(10):
        M=Em(); slot=tau%4
        if tau==0: M.extend(PRE)
        for t in range(4):
            a=(18 if slot<2 else 22)+t; u=4*tau+t
            xr[u]=M.lds(f"ds_read_b128 v[{XS+4*u}:{XS+4*u+3}], v{a} offset:{(slot&1)*SLOT}")
        wa=64 if slot<2 else 65; so=(slot&1)*SLOT
        for t in range(4):
            for jj in range(2):
                csr[t]=M.lds(f"ds_read_b64_tr_b16 v[{48+4*t+2*jj}:{49+4*t+2*jj}], v{wa} offset:{so+(16*t+4*jj)*256}")
        M.slot(10)
        tn = 3 if tau==0 else (tau+2 if (tau>=2 and tau+2<=9) else None)
        if tn is not None:
            for k,g in enumerate(dma_ops(tn)):
                D[tn]=M.vm(g); M.slot(10)
                if k==1:
                    for t in range(4):
                        M.wl(csr[t]); M(f"v_mfma_f32_16x16x32_bf16 v[66:69], v[36:39], v[{48+4*t}:{51+4*t}], v[66:69]")
        else:
            for t in range(4):
                M.wl(csr[t]); M(f"v_mfma_f32_16x16x32_bf16 v[66:69], v[36:39], v[{48+4*t}:{51+4*t}], v[66:69]")
            M.slot(300)
        if tau==6: W[0]=dma_wf(0,M)
        if tau==7: W[1]=dma_wf(1,M)
        if tau==8: W[2]=dma_wf(2,M); W[3]=dma_wf(3,M)
        if tau==9:
            for sg in range(4,7): W[sg]=dma_wf(sg,M)
        if fill.get(tau): M.merge(fill[tau])
        E.extend(M)
        if tau<9:
            E.wv(D[tau+1])
            if tau+1==9: E.wv(W[1])
            E("s_waitcnt lgkmcnt(0)")
            E("s_barrier")
            if tau<7: stamp2(E,tau+2)
    E(f"v_and_b32 v3, 15, v2\nv_lshlrev_b32 v3, 2, v3\ns_lshl_b32 s37, s35, 7\ns_add_u32 s37, s37, {CSF}\nv_add_u32 v3, s37, v3\ns_nop 4")
    E("s_mov_b64 exec, 0xffff"); E.lds("ds_write_b32 v3, v66"); cq=E.lds("ds_write_b32 v3, v67 offset:64"); E("s_mov_b64 exec, -1")
    E.wl(cq); lds_arrive(E,8,3,8)
    if 'nofprio' not in EXP: E("s_setprio 0")
    stamp(E,3)
    srd(E,24,P_WS,HO_SZ,off=WS_HO)
    E(f"s_mov_b32 s51, {fhex(GC1)}")
    E("s_lshl_b32 s47, s33, 1\ns_lshr_b32 s59, s35, 1\ns_add_u32 s47, s47, s59\ns_mul_i32 s47, s47, 68\ns_mul_i32 s59, s34, 3\ns_add_u32 s47, s47, s59\ns_lshl_b32 s47, s47, 12")
    E("s_and_b32 s59, s35, 1\ns_lshl_b32 s59, s59, 11\ns_add_u32 s47, s47, s59")
    ACC=48
    for r in [36,37,38,39]: E(f"v_mov_b32 v{ACC+r}, 0")
    for r in (4,5,6,7,42,43,44,45): E(f"v_mov_b32 v{r}, 0")
    E("s_mul_i32 s37, s35, 3072\nv_add_u32 v88, s37, v47\nv_add_u32 v89, s37, v46\nv_add_u32 v90, s37, v41")
    VS=Em()
    VS("v_lshrrev_b32 v3, 5, v2\nv_lshlrev_b32 v34, 4, v3"); VS(f"v_add_u32 v35, {B1F}, v34"); VS(f"s_mul_i32 s37, s35, 384\ns_add_u32 s37, s37, {CSFW}\nv_add_u32 v34, s37, v34"); VS(f"v_mov_b32 v40, {fhex(GC0)}")
    VS("v_bfe_u32 v8, v2, 4, 1\nv_lshlrev_b32 v91, 10, v8\nv_lshrrev_b32 v3, 5, v2\nv_lshl_add_u32 v91, v3, 8, v91\nv_and_b32 v8, 15, v2\nv_lshl_add_u32 v91, v8, 4, v91")
    VS(f"v_and_b32 v8, 31, v2\ns_lshl_b32 s37, s35, 5\nv_add_u32 v8, s37, v8\nv_lshlrev_b32 v8, 3, v8\nv_add_u32 v92, {STA}, v8")
    VS(f"v_and_b32 v3, 15, v2\nv_lshlrev_b32 v3, 2, v3\ns_mul_i32 s37, s35, 384\ns_add_u32 s37, s37, {CSP4}\nv_add_u32 v9, s37, v3")
    def wf_addr(sg):
        reg=wf_region(sg)
        return (47,reg-P0) if reg>=P0 else ((46,reg-U0) if reg>=U0 else (41,reg))
    SA=[10,18,26]
    rd={}; pend=[]
    def readsA(u):
        sg,t=divmod(u,4); base,ro=wf_addr(sg); L=[]
        for T in range(2):
            fr=SA[u%3]+4*T
            for jj in range(2): L.append(f"ds_read_b64_tr_b16 v[{fr+2*jj}:{fr+2*jj+1}], v{base} offset:{ro+(16*t+4*jj)*192+64*T}")
        return L
    E.wl(xr[39])
    stamp8(E,1)
    if INSTR and 'pA' in EXP: E("s_memtime s[100:101]")
    for u in (0,1):
        for r in readsA(u): rd[u]=E.lds(r)
    for u in range(40):
        if u==3: stamp8(E,2)
        if u==7: stamp8(E,3)
        if u==15: stamp8(E,4)
        if u==27: stamp8(E,5)
        if u==U_V0:
            stampA(E,1)
            if 'nowA' not in EXP: lds_wait(E,8,4,3,8)
            if 'nowA' not in EXP: lds_wait(E,5,4,3,8)
            stampA(E,2)
            if 'nofprio' not in EXP: E("s_setprio 2")
            tmp=Em()
            for sg2 in (7,8,9): W[sg2]=dma_wf(sg2,tmp)
            pend=list(tmp.it)
        if 'nowA' in EXP:
            if u in (4,12,24): lds_arrive(E,6,3,8)
        else:
          if u==4: E.wv(W[3]); lds_arrive(E,6,3,8)
          if u==6: lds_wait(E,6,4,3,8)
          if u==12: stampA(E,3); E.wv(W[6]); stampA(E,4); lds_arrive(E,6,3,8)
          if u==14: lds_wait(E,6,8,3,8); stampA(E,5)
          if u==24: stampA(E,6); E.wv(W[9]); stampA(E,7); lds_arrive(E,6,3,8)
        if u==26 and 'nowA' not in EXP:
            lds_wait(E,6,12,3,8)
        E.wl(rd[u])
        rl=readsA(u+2) if u+2<40 else []
        for T in range(2):
            fr=SA[u%3]+4*T; a=ACC+16*T
            c_="0" if u==0 else f"v[{a}:{a+15}]"
            E(f"v_mfma_f32_32x32x16_bf16 v[{a}:{a+15}], v[{fr}:{fr+3}], v[{XS+4*u}:{XS+4*u+3}], {c_}")
            for r in rl[2*T:2*T+2]: rd[u+2]=E.lds(r)
            if pend and (T==0 or 'pend1' not in EXP): E.it.append(pend.pop(0))
        if u==30: E.extend(VS)
        sg_,t_=divmod(u,4)
        base,ro=wf_addr(sg_); b2={47:88,46:89,41:90}[base]
        if t_>=1:
            acc={1:84,2:4,3:42}[t_]
            E.wl(c2r); E(f"v_mfma_f32_16x16x32_bf16 v[{acc}:{acc+3}], v[36:39], v[80:83], v[{acc}:{acc+3}]")
        if t_<=2:
            off=ro+{0:128,1:0,2:64}[t_]
            E.lds(f"ds_read_b64_tr_b16 v[80:81], v{b2} offset:{off}")
            c2r=E.lds(f"ds_read_b64_tr_b16 v[82:83], v{b2} offset:{off+4*192}")
    stamp8(E,6); stampG(E,1)
    E("s_nop 7")
    E("s_mov_b64 exec, 0xffff")
    E.lds("ds_write_b32 v9, v4"); E.lds("ds_write_b32 v9, v5 offset:64"); E.lds("ds_write_b32 v9, v42 offset:128"); E.lds("ds_write_b32 v9, v43 offset:192")
    E.lds("ds_write_b32 v9, v84 offset:256"); ca=E.lds("ds_write_b32 v9, v85 offset:320")
    E("s_mov_b64 exec, -1")
    E("v_mov_b32 v44, v91\nv_mov_b32 v45, v92")
    cs_done=ca
    SBk=[10,14,18,22,26]
    def readsB(u):
        sg,t=divmod(u,4); base,ro=wf_addr(sg); fr=SBk[u%5]
        return [f"ds_read_b64_tr_b16 v[{fr+2*jj}:{fr+2*jj+1}], v{base} offset:{ro+(16*t+4*jj)*192+128}" for jj in range(2)]
    hs=[None]
    def gelu_tile(G,T,cb0,tt):
        a0=ACC+16*T; rr={}
        order=(0,2,1,3)
        def rd_(i):
            a=order[i]; c=cb0+8*(i%2)
            G.lds(f"ds_read_b128 v[{c}:{c+3}], v34 offset:{128*T+32*a}")
            rr[i]=G.lds(f"ds_read_b128 v[{c+4}:{c+7}], v35 offset:{128*T+32*a}")
        rd_(0); rd_(1)
        for i in range(4):
            a=order[i]; b=a0+4*a; c=cb0+8*(i%2)
            G.wl(rr[i])
            for k in range(4): G(f"v_fma_f32 v{c+4+k}, v42, v{c+k}, v{c+4+k}")
            for k in range(4): G(f"v_fma_f32 v{b+k}, v{b+k}, v43, v{c+4+k}")
            if i+2<4: rd_(i+2)
            ops=[[f"v_mul_f32 v{tt+k}, v{b+k}, v{b+k}",f"v_fma_f32 v{tt+k}, v{tt+k}, s51, v40",f"v_mul_f32 v{tt+k}, v{tt+k}, v{b+k}",f"v_exp_f32 v{tt+k}, v{tt+k}",
                  f"v_add_f32 v{tt+k}, 1.0, v{tt+k}",f"v_rcp_f32 v{tt+k}, v{tt+k}",f"v_mul_f32 v{b+k}, v{b+k}, v{tt+k}"] for k in range(4)]
            for s_ in range(7):
                for k in range(4): G(ops[k][s_])
            o=a0+{0:0,2:2,1:4,3:6}[a]
            G(f"v_cvt_pk_bf16_f32 v{o}, v{b}, v{b+1}"); G(f"v_cvt_pk_bf16_f32 v{o+1}, v{b+2}, v{b+3}")
        G(f"s_add_u32 s46, s47, {T*4096}")
        G.vm(f"buffer_store_dwordx4 v[{a0}:{a0+3}], v44, s[24:27], s46 offen sc1")
        hs[0]=G.vm(f"buffer_store_dwordx4 v[{a0+4}:{a0+7}], v44, s[24:27], s46 offen offset:512 sc1")
    G=Em()
    sta=G.lds("ds_read_b64 v[42:43], v45")
    G(f"v_min_u32 v30, 47, v2\nv_lshlrev_b32 v30, 3, v30"); G(f"v_add_u32 v31, {CSP4}, v30")
    for w in range(4): pr=G.lds(f"ds_read_b64 v[{208+2*w}:{209+2*w}], v31 offset:{384*w}")
    G(f"s_mul_i32 s37, s35, 384\ns_add_u32 s37, s37, {CSFW}"); G("v_add_u32 v30, s37, v30")
    G.wl(pr)
    G("v_add_f32 v208, v208, v210"); G("v_add_f32 v209, v209, v211"); G("v_add_f32 v212, v212, v214"); G("v_add_f32 v213, v213, v215")
    G("v_add_f32 v208, v208, v212"); G("v_add_f32 v209, v209, v213")
    fw_=G.lds("ds_write_b64 v30, v[208:209]"); G.wl(fw_)
    gelu_tile(G,0,208,30); gelu_tile(G,1,208,30)
    rd={}
    order=list(range(28,40))+list(range(0,28))
    def readsB2(n):
        u=order[n]; sg,t=divmod(u,4); base,ro=wf_addr(sg); fr=SBk[n%5]
        return [f"ds_read_b64_tr_b16 v[{fr+2*jj}:{fr+2*jj+1}], v{base} offset:{ro+(16*t+4*jj)*192+128}" for jj in range(2)]
    for n in range(4):
        for r in readsB2(n): rd[n]=E.lds(r)
    stampG(E,2)
    E.wl(cs_done); stampG(E,3); lds_arrive(E,6,3,8); stampG(E,4)
    M=Em(); a=ACC+32
    for n in range(40):
        u=order[n]
        M.wl(rd[n]); fr=SBk[n%5]
        cin_=("0" if n==0 else f"v[{a}:{a+15}]")
        M(f"v_mfma_f32_32x32x16_bf16 v[{a}:{a+15}], v[{fr}:{fr+3}], v[{XS+4*u}:{XS+4*u+3}], {cin_}")
        if n+4<40:
            for r in readsB2(n+4): rd[n+4]=M.lds(r)
        if n==4:
            x=Em()
            if INSTR and 'pB' in EXP: x("s_memtime s[86:87]")
            stampG(x,5); lds_wait(x,6,16,3,8); stampG(x,6); lds_wait(x,9,4,3,8); stampG(x,7)
            if INSTR and 'pB' in EXP: x("s_memtime s[88:89]")
            M.extend(x)
        if INSTR and 'pB' in EXP and n in (12,20,28,36): M(f"s_memtime s[{90+2*((n-12)//8)}:{91+2*((n-12)//8)}]")
        if n==12:
            x=Em(); lds_arrive(x,7,3,8); M.extend(x)
        if n>=4: M.slot(10)
    M.merge(G)
    E.extend(M)
    stamp8(E,7); stampG(E,8)
    E("s_nop 6")
    stamp(E,4)
    G=Em(); gelu_tile(G,2,208,30); E.extend(G)
    if 'nofprio' not in EXP: E("s_setprio %d"%(2 if 'f2prio' in EXP else 0))
    stamp8(E,8)
    hs=hs[0]
    E(f"s_lshl_b32 s59, s33, 4\ns_add_u32 s59, s59, s34\ns_lshl_b32 s59, s59, 7\ns_add_u32 s59, s59, {WS_FH}")
    E("s_and_b32 s37, s2, 7\ns_lshr_b32 s38, s2, 3")
    if 'map48' in EXP:
        E("s_lshl_b32 s33, s37, 2\ns_and_b32 s39, s38, 3\ns_add_u32 s33, s33, s39\ns_lshr_b32 s34, s38, 2")
    else:
        E("s_lshr_b32 s33, s37, 2\ns_lshl_b32 s33, s33, 4\ns_bfe_u32 s39, s37, 0x10001\ns_lshl_b32 s39, s39, 3\ns_add_u32 s33, s33, s39\ns_and_b32 s39, s38, 7\ns_add_u32 s33, s33, s39")
        E("s_and_b32 s34, s37, 1\ns_lshl_b32 s34, s34, 2\ns_lshr_b32 s39, s38, 3\ns_add_u32 s34, s34, s39")
    srd(E,8,P_WS,W2T_SZ,off=WS_W2T); srd(E,12,P_B2,1280); srd(E,20,P_OUT,2621440)
    E("v_lshrrev_b32 v3, 1, v2\nv_min_u32 v3, 16, v3\ns_mul_i32 s37, s35, 12\ns_mul_i32 s38, s35, 5\ns_add_u32 s38, s38, 36")
    E("v_add_u32 v4, s37, v3\nv_add_u32 v5, s38, v3\nv_cmp_gt_u32 vcc, 12, v3\ns_nop 1\nv_cndmask_b32 v4, v5, v4, vcc")
    E("s_mul_i32 s37, s34, 5\ns_lshr_b32 s38, s37, 2\ns_add_u32 s37, s37, 4\ns_lshr_b32 s39, s37, 2")
    E("v_and_b32 v5, 1, v2\nv_mov_b32 v6, s38\nv_mov_b32 v7, s39\nv_cmp_eq_u32 vcc, 0, v5\ns_nop 1\nv_cndmask_b32 v6, v7, v6, vcc")
    E(f"v_mul_u32_u24 v4, 10, v4\nv_add_u32 v4, v4, v6\nv_mul_u32_u24 v4, 683, v4\nv_lshrrev_b32 v4, 11, v4\nv_lshlrev_b32 v4, 7, v4\nv_add_u32 v4, {WS_FW}, v4")
    fw=E.vm("buffer_load_dword v8, v4, s[16:19], 0 offen sc1")
    E("v_mov_b32 v9, v4")
    E("v_lshlrev_b32 v3, 4, v2\nv_add_u32 v4, 4096, v3")
    E("v_and_b32 v5, 15, v2\ns_lshl_b32 s39, s33, 6\ns_lshl_b32 s40, s35, 4\ns_add_u32 s39, s39, s40\nv_add_u32 v5, s39, v5\nv_mul_u32_u24 v5, 1280, v5\nv_lshrrev_b32 v6, 4, v2\nv_lshlrev_b32 v6, 3, v6")
    E("s_mul_i32 s39, s34, 160\nv_add_u32 v6, s39, v6\nv_add_u32 v5, v5, v6")
    E("s_mul_i32 s40, s33, %d\ns_mul_i32 s41, s34, %d"%(68*4096,68*5120))
    E("s_mul_i32 s42, s35, 12\ns_mul_i32 s43, s35, 5\ns_add_u32 s43, s43, 48")
    E("s_lshl_b32 s44, s42, 12\ns_add_u32 s44, s44, s40\ns_mul_i32 s45, s42, 5120\ns_add_u32 s45, s45, s41")
    E("s_lshl_b32 s46, s43, 12\ns_add_u32 s46, s46, s40\ns_mul_i32 s47, s43, 5120\ns_add_u32 s47, s47, s41")
    ACC3=10; WB=[100+20*i for i in range(5)]; HB=[200,216,232]
    XR=90; B2R=248
    LW={}; LH={}
    def loadsW(i):
        b=WB[i%5]; ws_,ii=(45,i) if i<12 else (47,i-12)
        E(f"s_add_u32 s57, s{ws_}, {ii*5120}")
        for nt in range(4): E.vm(f"buffer_load_dwordx4 v[{b+4*nt}:{b+4*nt+3}], v3, s[8:11], s57 offen offset:{1024*nt} sc1")
        LW[i]=E.vm(f"buffer_load_dwordx4 v[{b+16}:{b+19}], v4, s[8:11], s57 offen sc1")
    def loadsH(i):
        b=HB[i%3]; hs_,ii=(44,i) if i<12 else (46,i-12)
        E(f"s_add_u32 s56, s{hs_}, {ii*4096}")
        for tt in range(4): LH[i]=E.vm(f"buffer_load_dwordx4 v[{b+4*tt}:{b+4*tt+3}], v3, s[24:27], s56 offen offset:{1024*tt} sc1")
    stamp4(E,5)
    E.wv(hs); stamp4(E,6); agg_flag(E,2,4,59,7,8) if False else None
    E.wv(fw)
    agg_flag(E,2,4,59,7,207)
    stamp(E,5)
    check_or_poll(E,9,8)
    for nt in range(5): E.vm(f"buffer_load_dwordx2 v[{XR+2*nt}:{XR+2*nt+1}], v5, s[4:7], 0 offen offset:{32*nt}")
    for i in range(5): loadsW(i)
    def group_addr(base,vd):
        E(f"v_and_b32 v{vd}, 3, v2\ns_lshl_b32 s37, s35, 2\nv_add_u32 v{vd}, s37, v{vd}\ns_lshr_b32 s37, s33, 1\ns_lshl_b32 s37, s37, 4\nv_add_u32 v{vd}, s37, v{vd}\nv_lshlrev_b32 v{vd}, 7, v{vd}\nv_add_u32 v{vd}, {base}, v{vd}")
    group_addr(WS_FH,7)
    poll_slow(E,7,8)
    stamp(E,6)
    group_addr(WS_FO,7)
    if 'fidle' in EXP: poll_slow(E,7,8)
    def mf(i):
        E.wv(LH[i]); E.wv(LW[i])
        b=WB[i%5]; h=HB[i%3]
        for nt in range(5):
            for tt in range(4):
                a=ACC3+16*nt+4*tt
                c_="0" if i==0 else f"v[{a}:{a+3}]"
                E(f"v_mfma_f32_16x16x32_bf16 v[{a}:{a+3}], v[{b+4*nt}:{b+4*nt+3}], v[{h+4*tt}:{h+4*tt+3}], {c_}")
    stamp9(E,1)
    for i in range(3): loadsH(i)
    for i in range(17):
        if i==1: stamp9(E,2)
        if i==6: stamp9(E,3)
        if i==8: fo=E.vm("buffer_load_dword v9, v7, s[16:19], 0 offen sc1")
        if i==9:
            stamp9(E,4); E.wv(fo); check_or_poll(E,7,9); stamp9(E,5)
        mf(i)
        if i+3<17: loadsH(i+3)
        if i+5<17: loadsW(i+5)
        if i==12:
            for nt in range(4): E.vm(f"buffer_load_dwordx2 v[{B2R+2*nt}:{B2R+2*nt+1}], v6, s[12:15], 0 offen offset:{32*nt}")
            b2l=E.vm(f"buffer_load_dwordx2 v[8:9], v6, s[12:15], 0 offen offset:128")
    stamp(E,7); stamp9(E,6)
    E("s_nop 15")
    E(f"s_mul_i32 s39, s35, 20480\ns_add_u32 s39, s39, {RED}\nv_add_u32 v7, s39, v3")
    for nt in range(5):
        for tt in range(4):
            a=ACC3+16*nt+4*tt
            w_=E.lds(f"ds_write_b128 v7, v[{a}:{a+3}] offset:{(nt*4+tt)*1024}")
    E.wl(w_); E("s_barrier"); stamp9(E,7)
    E(f"s_lshl_b32 s39, s35, 10\ns_add_u32 s39, s39, {RED}\nv_add_u32 v7, s39, v3\nv_add_u32 v2, 40960, v7")
    R=100
    for nt in range(5):
        for w in range(4):
            base=7 if w<2 else 2
            r_=E.lds(f"ds_read_b128 v[{R+16*nt+4*w}:{R+16*nt+4*w+3}], v{base} offset:{(w%2)*20480+nt*4096}")
    E.wv(b2l); E.wl(r_)
    for nt in range(5):
        b=R+16*nt
        for i in range(4): E(f"v_add_f32 v{b+i}, v{b+i}, v{b+4+i}\nv_add_f32 v{b+8+i}, v{b+8+i}, v{b+12+i}")
        for i in range(4): E(f"v_add_f32 v{b+i}, v{b+i}, v{b+8+i}")
        b2=(B2R+2*nt) if nt<4 else 8
        for (src,t0) in ((XR+2*nt,10),(b2,14)):
            E(f"v_lshlrev_b32 v{t0}, 16, v{src}\nv_and_b32 v{t0+1}, 0xffff0000, v{src}\nv_lshlrev_b32 v{t0+2}, 16, v{src+1}\nv_and_b32 v{t0+3}, 0xffff0000, v{src+1}")
        for i in range(4): E(f"v_add_f32 v{b+i}, v{b+i}, v{14+i}")
        for i in range(4): E(f"v_add_f32 v{b+i}, v{b+i}, v{10+i}")
        E(f"v_cvt_pk_bf16_f32 v{20+2*nt}, v{b}, v{b+1}\nv_cvt_pk_bf16_f32 v{21+2*nt}, v{b+2}, v{b+3}")
        E.st(f"buffer_store_dwordx2 v[{20+2*nt}:{21+2*nt}], v5, s[20:23], 0 offen offset:{32*nt} {'sc1' if 'outsc1' in EXP else ('nt' if 'outnt' in EXP else '')}")
    stamp(E,8); stamp9(E,8)
    stamp_flush(E,1)
    E.label("L_end"); E("s_endpgm"); E.label("L_codeend")
    return E


def gen_A():
    E=Em()
    if 'nopf' not in EXP:
        E("s_getpc_b64 s[56:57]\nL_pc:\ns_sub_u32 s56, s56, L_pc-%s\ns_subb_u32 s57, s57, 0"%KNAME)
        E("v_lshlrev_b32 v3, 7, v2\ns_lshl_b32 s37, s35, 13\nv_add_u32 v3, s37, v3\nv_add_u32 v8, 0x8000, v3\nv_min_u32 v8, L_codeend-%s-4, v8"%KNAME)
        E("v_mov_b32 v5, s57\nv_add_co_u32 v4, vcc, s56, v3\ns_nop 1\nv_addc_co_u32 v5, vcc, 0, v5, vcc")
        E.vm("global_load_dword v254, v[4:5], off")
        E("v_mov_b32 v5, s57\nv_add_co_u32 v4, vcc, s56, v8\ns_nop 1\nv_addc_co_u32 v5, vcc, 0, v5, vcc")
        E.vm("global_load_dword v255, v[4:5], off")
    E("v_and_b32 v3, 31, v2\ns_lshl_b32 s37, s35, 5\nv_add_u32 v3, s37, v3\nv_lshrrev_b32 v4, 5, v2\nv_bfe_u32 v5, v3, 1, 3\nv_xor_b32 v5, v5, v4\nv_lshlrev_b32 v3, 7, v3")
    for t in range(4): E(f"v_xor_b32 v6, {2*t}, v5\nv_lshl_add_u32 v{10+t}, v6, 4, v3\nv_add_u32 v{14+t}, 65536, v{10+t}")
    E("v_bfe_u32 v3, v2, 4, 1\nv_lshrrev_b32 v4, 5, v2\nv_bfe_u32 v5, v2, 2, 2\nv_and_b32 v6, 3, v2\nv_lshl_add_u32 v7, v4, 3, v5")
    E("v_lshlrev_b32 v8, 8, v7\nv_add_u32 v8, 16384, v8\nv_lshrrev_b32 v9, 1, v6\nv_lshl_add_u32 v9, v3, 1, v9\nv_lshl_add_u32 v8, v9, 4, v8\nv_and_b32 v9, 1, v6\nv_lshl_add_u32 v8, v9, 3, v8")
    for T in range(4): E(f"v_xor_b32 v9, {T}, v5\nv_lshl_add_u32 v{18+T}, v9, 6, v8\nv_add_u32 v{22+T}, 65536, v{18+T}")
    E("v_and_b32 v70, 31, v2\nv_lshrrev_b32 v71, 5, v2\ns_and_b32 s37, s34, 3\ns_lshl_b32 s37, s37, 5\ns_lshl_b32 s38, s33, 7\ns_add_u32 s37, s37, s38\nv_add_u32 v70, s37, v70\nv_mul_u32_u24 v70, 1280, v70\nv_lshl_add_u32 v70, v71, 7, v70")
    E("v_bfe_u32 v72, v2, 1, 3\nv_lshrrev_b32 v73, 4, v2\nv_lshl_add_u32 v72, v73, 6, v72\ns_and_b32 s37, s33, 7\ns_lshl_b32 s37, s37, 3\nv_add_u32 v72, s37, v72\nv_and_b32 v73, 1, v2\nv_lshlrev_b32 v73, 7, v73")
    E("v_mul_u32_u24 v74, 3840, v72\nv_add_u32 v74, v74, v73\nv_add_u32 v74, s41, v74\nv_mul_u32_u24 v75, 3072, v72\nv_add_u32 v75, v75, v73\nv_add_u32 v75, s42, v75")
    E("s_cmp_eq_u32 s35, 1\ns_cselect_b64 vcc, -1, 0\ns_nop 1\nv_cndmask_b32 v31, v70, v74, vcc\ns_cmp_eq_u32 s35, 2\ns_cselect_b64 vcc, -1, 0\ns_nop 1\nv_cndmask_b32 v31, v31, v75, vcc")
    E(f"s_mov_b32 s44, {3*128}\ns_mov_b32 s43, 512\ns_mov_b32 s40, 0x5\n"
      f"s_cmp_eq_u32 s35, 3\ns_cselect_b32 s44, {5*128}, s44\ns_cselect_b32 s40, 0xa, s40\n"
      f"s_cmp_eq_u32 s35, 1\ns_cselect_b32 s44, {3*64*3840}, s44\ns_cselect_b32 s43, {4*64*3840}, s43\n"
      f"s_cmp_eq_u32 s35, 2\ns_cselect_b32 s44, 0, s44\ns_cselect_b32 s43, {4*64*3072}, s43\ns_cselect_b32 s40, 0xe, s40")
    if 'wfonly' in EXP: E("s_cmp_eq_u32 s35, 2\ns_cselect_b32 s40, 0xe, 0")
    E("s_waitcnt lgkmcnt(0)")
    E("s_cmp_eq_u32 s35, 1\ns_cselect_b32 s48, s8, s4\ns_cselect_b32 s49, s9, s5\ns_cselect_b32 s50, s10, s6\ns_cmp_eq_u32 s35, 2\ns_cselect_b32 s48, s12, s48\ns_cselect_b32 s49, s13, s49\ns_cselect_b32 s50, s14, s50\ns_mov_b32 s51, 0x20000")
    def pfpoint(p):
        x=Em(); l=lab("pfp")
        if 'l2pf' in EXP:
            x(f"s_bitcmp1_b32 s40, {p}\ns_cbranch_scc0 {l}\nbuffer_load_dword v253, v31, s[48:51], s44 offen\ns_add_u32 s44, s44, s43\n{l}:")
        return x
    T_=Em()
    T_("s_mul_i32 s31, s2, 3\ns_add_u32 s31, s31, s35\ns_cmp_lt_u32 s35, 3\ns_cselect_b32 s31, s31, 1000\ns_min_u32 s31, s31, 680")
    T_("s_min_u32 s28, s31, 679\ns_mul_i32 s29, s28, 6554\ns_lshr_b32 s29, s29, 16\ns_mul_i32 s30, s29, 10\ns_sub_u32 s30, s28, s30")
    T_(f"s_cmp_ge_u32 s29, 48\ns_cselect_b32 s52, s{P_WO}, s{P_W2}\ns_cselect_b32 s53, s{P_WO+1}, s{P_W2+1}\ns_mov_b32 s54, {640*1280}\ns_cselect_b32 s54, s54, {1536*1280}\ns_mov_b32 s55, 0x20000\ns_cselect_b64 s[56:57], -1, 0")
    T_("v_lshrrev_b32 v84, 3, v2"); T_("v_and_b32 v85, 7, v2"); T_("s_lshl_b32 s28, s30, 7"); T_("v_lshl_add_u32 v85, v85, 4, s28")
    T_("s_sub_u32 s38, s29, 48\ns_lshl_b32 s58, s38, 2\ns_lshl_b32 s59, s29, 5"); T_("v_lshrrev_b32 v86, 5, v2"); T_("v_and_b32 v87, 3, v84")
    for i in range(4):
        half=i>>1
        for x in (f"v_add_u32 v88, {2*(i&1)}, v86","v_add_u32 v88, s58, v88","v_mul_u32_u24 v89, 205, v88","v_lshrrev_b32 v89, 10, v89","v_mul_u32_u24 v90, 5, v89","v_sub_u32 v90, v88, v90",
                  "v_lshrrev_b32 v91, 1, v90","v_and_b32 v92, 1, v90",f"v_add_u32 v92, {2*half}, v92"): T_(x)
        T_(f"v_cmp_eq_u32 vcc, 4, v90\nv_mov_b32 v88, {half}\nv_mov_b32 v90, 4\nv_cndmask_b32 v91, v91, v88, vcc\nv_cndmask_b32 v92, v92, v90, vcc")
        for x in ("v_lshl_add_u32 v91, v89, 1, v91","v_mul_u32_u24 v91, 20, v91","v_lshl_add_u32 v91, v92, 2, v91","v_add_u32 v91, v91, v87"): T_(x)
        T_(f"v_add_u32 v88, {8*i}, v84"); T_("v_add_u32 v88, s59, v88")
        T_("v_cndmask_b32 v91, v88, v91, s[56:57]")
        T_("v_mul_u32_u24 v91, 1280, v91"); T_("v_add_u32 v91, v91, v85")
        cld=T_.vm(f"buffer_load_dwordx4 v[{236+4*i}:{239+4*i}], v91, s[52:55], 0 offen")
    C2=Em()
    C2(f"s_mul_i32 s59, s35, 5120")
    C2("v_lshrrev_b32 v84, 3, v2"); C2("v_mul_u32_u24 v84, 160, v84"); C2("v_and_b32 v85, 7, v2"); C2("v_lshl_add_u32 v84, v85, 4, v84"); C2("v_add_u32 v84, s59, v84")
    C2.wv(cld)
    for i in range(4): cw=C2.lds(f"ds_write_b128 v84, v[{236+4*i}:{239+4*i}] offset:{8*160*i}")
    C2("v_lshrrev_b32 v85, 2, v2"); C2("v_mul_u32_u24 v85, 160, v85"); C2("v_and_b32 v86, 3, v2"); C2("v_lshl_add_u32 v85, v86, 3, v85"); C2("v_add_u32 v85, s59, v85")
    srd(C2,52,P_WS,W2T_SZ,off=WS_W2T)
    C2.wl(cw)
    for i in range(4):
        C2.lds(f"ds_read_b64_tr_b16 v[{236+4*i}:{237+4*i}], v85 offset:{32*i}")
        cr=C2.lds(f"ds_read_b64_tr_b16 v[{238+4*i}:{239+4*i}], v85 offset:{32*i+16*160}")
    C2("v_lshlrev_b32 v86, 4, v2")
    C2.wl(cr)
    l=lab("cst"); txt=f"s_cmp_lt_u32 s31, 680\ns_cbranch_scc0 {l}\n"
    for i in range(4):
        txt+=(f"s_lshl_b32 s37, s30, 2\ns_add_u32 s37, s37, {i}\ns_mul_i32 s38, s37, 205\ns_lshr_b32 s38, s38, 10\ns_mul_i32 s39, s38, 5\ns_sub_u32 s39, s37, s39\n"
              "s_mul_i32 s38, s38, 68\ns_add_u32 s38, s38, s29\ns_mul_i32 s38, s38, 5\ns_add_u32 s38, s38, s39\ns_lshl_b32 s38, s38, 10\n"
              f"buffer_store_dwordx4 v[{236+4*i}:{239+4*i}], v86, s[52:55], s38 offen sc1\n")
    C2(txt+f"{l}:")
    stamp(E,1)
    ACC=96; FR=(160,180,200)
    for r in range(64): E(f"v_mov_b32 v{ACC+r}, 0")
    F3=Em()
    F3(f"v_mov_b32 v3, {NON}"); nr=F3.lds("ds_read_b32 v62, v3"); F3.wl(nr); F3(f"s_nop 0\nv_readfirstlane_b32 s{S_NONCE}, v62")
    F3("v_and_b32 v3, 31, v2"); F3("s_lshl_b32 s37, s33, 7\ns_lshl_b32 s38, s35, 5\ns_add_u32 s37, s37, s38"); F3("v_add_u32 v3, s37, v3")
    F3("v_lshlrev_b32 v91, 3, v3"); F3("v_lshlrev_b32 v90, 4, v3")
    F4=Em()
    stl=F4.vm("buffer_load_dwordx4 v[92:95], v90, s[16:19], 0 offen sc1")
    def reads(u):
        tau,t=divmod(u,4); slot=tau%4; hi=slot>=2; fr=FR[u%3]; so=(slot&1)*SLOT
        L=[f"ds_read_b128 v[{fr}:{fr+3}], v{(14 if hi else 10)+t} offset:{so}"]
        for T in range(4):
            for jj in range(2):
                d=fr+4+4*T+2*jj
                L.append(f"ds_read_b64_tr_b16 v[{d}:{d+1}], v{(22 if hi else 18)+T} offset:{so+(16*t+4*jj)*256}")
        return L
    rd={}
    E("s_barrier"); stamp(E,2)
    for u in (0,1):
        for r in reads(u): rd[u]=E.lds(r)
    def steps(u0,u1,filler,per):
        M=Em()
        for u in range(u0,u1):
            tau,t=divmod(u,4); fr=FR[u%3]
            M.wl(rd[u])
            rl=reads(u+2) if u+2<40 else []
            cuts=[0,3,5,7,9]
            for T in range(4):
                a=ACC+16*T
                if "nomfma" not in EXP: M(f"v_mfma_f32_32x32x16_bf16 v[{a}:{a+15}], v[{fr+4+4*T}:{fr+7+4*T}], v[{fr}:{fr+3}], v[{a}:{a+15}]")
                for r in rl[cuts[T]:cuts[T+1]]: rd[u+2]=M.lds(r)
                M.slot(per)
        if filler: M.merge(filler)
        E.extend(M)
    PFS=[int(c) for c in (next((e[3:] for e in EXP if e.startswith("pfs")),"0123"))]
    def cat(*xs):
        y=Em()
        for x in xs:
            if x: y.it+=x.it
        return y
    def fl(iv,base=None):
        return cat(*[pfpoint(p) for p in range(4) if PFS[p]==iv],base)
    steps(0,2,fl(0),5); E("s_barrier")
    for b in range(2,10):
        steps(4*b-6,4*b-2,fl(b-1,{6:F3,8:F4}.get(b)),3); E("s_barrier")
    steps(34,40,None,0)
    lds_arrive(E,5,3,4)
    stamp(E,3)
    srd(E,20,P_WS,3*QKV_SZ,off=WS_Q)
    E("s_cmp_eq_u32 s34, 15\ns_cselect_b32 s22, 0, s22")
    E("s_mul_i32 s45, s34, 205\ns_lshr_b32 s45, s45, 10\ns_mul_i32 s46, s45, 5\ns_sub_u32 s46, s34, s46")
    E(f"v_lshrrev_b32 v4, 5, v2\nv_lshlrev_b32 v26, 4, v4\nv_add_u32 v26, {CSF}, v26\nv_lshlrev_b32 v4, 14, v4\nv_add_u32 v91, v91, v4")
    E(f"v_and_b32 v8, 31, v2\ns_lshl_b32 s37, s35, 5\nv_add_u32 v8, s37, v8\nv_lshlrev_b32 v8, 3, v8\nv_add_u32 v8, {STA}, v8")
    E.wv(stl)
    l0=lab("sp"); l1=lab("spd")
    E(f"v_cmp_ne_u32 vcc, s{S_NONCE}, v95\ns_cbranch_vccz {l1}\ns_mov_b32 s37, 0\n{l0}:\nbuffer_load_dwordx4 v[92:95], v90, s[16:19], 0 offen sc1\ns_waitcnt vmcnt(0)\n"
      f"v_cmp_ne_u32 vcc, s{S_NONCE}, v95\ns_cbranch_vccz {l1}\ns_add_u32 s37, s37, 1\ns_cmp_lt_u32 s37, {POLL_MAX}\ns_cbranch_scc0 {l1}\ns_sleep 2\ns_branch {l0}\n{l1}:")
    E("v_mul_f32 v6, v92, v94\nv_sub_f32 v6, 0, v6\nv_mov_b32 v7, v94")
    sw=E.lds("ds_write_b64 v8, v[6:7]")
    E(f"v_mul_f32 v94, {fhex(CQ)}, v93\ns_cmp_eq_u32 s45, 0\ns_cselect_b64 vcc, -1, 0\ns_nop 1\nv_cndmask_b32 v93, v93, v94, vcc\nv_sub_f32 v92, 0, v92")
    E(f"s_mul_i32 s45, s45, {QKV_SZ}\ns_lshl_b32 s46, s46, 19\ns_add_u32 s45, s45, s46")
    E.wl(sw); lds_arrive(E,9,3,4)
    stamp3(E,2)
    lds_wait(E,8,4,3,4)
    stamp3(E,3)
    crs=[]
    for T in range(4):
        for a in range(4): cr=E.lds(f"ds_read_b128 v[{160+16*T+4*a}:{163+16*T+4*a}], v26 offset:{128*T+32*a}")
        crs.append(cr)
    for T in range(4):
        E.wl(crs[T])
        for a in range(4):
            b=ACC+16*T+4*a; c=160+16*T+4*a
            for i in range(4): E(f"v_fma_f32 v{b+i}, v92, v{c+i}, v{b+i}")
            for i in range(4): E(f"v_mul_f32 v{b+i}, v{b+i}, v93")
            o=40+2*((4*T+a)%8)
            E(f"v_cvt_pk_bf16_f32 v{o}, v{b}, v{b+1}\nv_cvt_pk_bf16_f32 v{o+1}, v{b+2}, v{b+3}")
            E(f"s_add_u32 s46, s45, {(8*T+2*a)*16384}")
            qs=E.st(f"buffer_store_dwordx2 v[{o}:{o+1}], v91, s[20:23], s46 offen sc1")
    stamp3(E,4)
    E.wv(qs)
    stamp3(E,7)
    E(f"s_lshl_b32 s38, s33, 4\ns_add_u32 s38, s38, s34\ns_lshl_b32 s38, s38, 7\ns_add_u32 s38, s38, {WS_FQ}")
    agg_flag(E,0,4,38,3,4)
    stamp3(E,8)
    stamp(E,4)
    E.extend(T_)
    lds_wait(E,5,4,3,4)
    E.extend(C2)
    E(f"s_mov_b32 s22, {3*QKV_SZ}")
    srd(E,24,P_WS,HO_SZ,off=WS_HO)
    E("s_mul_i32 s37, s34, 10\ns_lshr_b32 s38, s37, 5\ns_add_u32 s37, s37, 9\ns_lshr_b32 s39, s37, 5")
    E("v_min_u32 v3, 13, v2\nv_mul_u32_u24 v4, 43, v3\nv_lshrrev_b32 v4, 8, v4\nv_mul_u32_u24 v5, 6, v4\nv_sub_u32 v5, v3, v5")
    E("v_mul_u32_u24 v6, 86, v5\nv_lshrrev_b32 v6, 8, v6\nv_mul_u32_u24 v7, 3, v6\nv_sub_u32 v7, v5, v7")
    E("v_cmp_eq_u32 vcc, 2, v4\nv_mov_b32 v8, 0\ns_nop 0\nv_cndmask_b32 v6, v6, v5, vcc\nv_cndmask_b32 v7, v7, v8, vcc")
    E("v_add_u32 v8, 1, v4\nv_mul_u32_u24 v8, 5, v8\nv_cmp_eq_u32 vcc, 15, v8\nv_mov_b32 v9, 0\ns_nop 0\nv_cndmask_b32 v8, v8, v9, vcc")
    E("v_mov_b32 v9, s38\nv_mov_b32 v20, s39\nv_cmp_eq_u32 vcc, 0, v6\ns_nop 1\nv_cndmask_b32 v9, v20, v9, vcc\nv_add_u32 v8, v8, v9")
    E(f"v_sub_u32 v9, s33, v7\nv_max_i32 v9, 0, v9\nv_lshl_add_u32 v8, v9, 4, v8\nv_lshlrev_b32 v8, 7, v8\nv_add_u32 v8, {WS_FQ}, v8")
    E("v_mov_b32 v10, 0x3f80\nv_mov_b32 v11, 0\nv_lshlrev_b32 v4, 3, v0")
    E.lds(f"ds_write_b64 v4, v[10:11] offset:{ONE0}"); E(f"v_add_u32 v5, {ONE1}, v4"); E.lds("ds_write_b64 v5, v[10:11]")
    E("v_min_u32 v6, 127, v0\nv_lshlrev_b32 v6, 3, v6"); E.lds(f"ds_write_b64 v6, v[10:11] offset:{ONE0+2048}"); E(f"v_add_u32 v6, {ONE1}, v6"); E.lds("ds_write_b64 v6, v[10:11] offset:2048")
    E("s_cmp_lt_u32 s33, 2\ns_cselect_b32 s56, 0x40000000, 0\ns_cmp_lt_u32 s33, 1\ns_cselect_b32 s57, 0x40000000, 0")
    E("s_lshl_b32 s40, s33, 10\ns_sub_u32 s40, s40, 2048\ns_mul_i32 s41, s34, %d\ns_add_u32 s40, s40, s41\ns_add_u32 s40, s40, %d"%(10*16384,QKV_SZ))
    E(f"s_lshl_b32 s41, s35, 14\ns_add_u32 s28, s40, s41\ns_mul_i32 s42, s35, {GS}\ns_add_u32 s29, s28, {4*16384}")
    E(f"s_cmp_ge_u32 s35, 2\ns_cselect_b32 s45, {QKV_SZ-10*16384}, 0\ns_add_u32 s30, s28, s45\ns_add_u32 s30, s30, {8*16384}\ns_add_u32 s31, s28, {12*16384+QKV_SZ-10*16384}")
    E("s_waitcnt vmcnt(0) lgkmcnt(0)")
    E(f"s_lshl_b32 s38, s2, 7\ns_add_u32 s38, s38, {WS_FW}")
    agg_flag(E,1,4,38,3,4)
    lds_wait(E,7,4,3,4,2)
    stamp5(E,4)
    if 'fq' in EXP:
        E("buffer_load_dword v9, v8, s[16:19], 0 offen sc1\ns_waitcnt vmcnt(0)"); stamp5(E,5)
    if 'nopollq' not in EXP: poll_leader(E,8,9,20,NON+16)
    E("v_lshlrev_b32 v3, 4, v2")
    stamp(E,5); stamp4(E,1); stamp5(E,6)
    for n in range(5):
        for p in range(3):
            oob={0:"s_add_u32 s47, s47, s56\n",1:"s_add_u32 s47, s47, s57\n",2:""}[p]
            E.vm(f"s_add_u32 m0, s42, {4*n*GS+1024*p}\ns_add_u32 s47, s{28+min(n,3)}, {1024*p+(4*16384 if n==4 else 0)}\n{oob}buffer_load_dwordx4 v3, s[20:23], s47 offen sc1 lds")
    E("v_and_b32 v5, 31, v2\nv_lshrrev_b32 v6, 5, v2\ns_lshl_b32 s40, s33, 7\ns_lshl_b32 s41, s35, 5\ns_add_u32 s40, s40, s41")
    E("v_add_u32 v7, s40, v5\nv_lshlrev_b32 v7, 3, v7\nv_lshl_add_u32 v8, v6, 15, v7")
    for e,QF in ((0,12),(1,232)):
        E(f"s_mul_i32 s41, s34, 10\ns_add_u32 s41, s41, {5*e}\ns_lshl_b32 s41, s41, 14")
        E.vm(f"buffer_load_dwordx2 v[{QF}:{QF+1}], v8, s[20:23], s41 offen sc1"); E("s_add_u32 s42, s41, 16384")
        E.vm(f"buffer_load_dwordx2 v[{QF+2}:{QF+3}], v8, s[20:23], s42 offen sc1"); E("s_add_u32 s42, s41, 65536")
        E.vm(f"buffer_load_dwordx2 v[{QF+4}:{QF+5}], v7, s[20:23], s42 offen sc1")
        E(f"v_mov_b32 v{QF+6}, 0\nv_mov_b32 v{QF+7}, 0")
    stamp4(E,2)
    E("s_waitcnt vmcnt(0) lgkmcnt(0)")
    stamp4(E,3)
    E("v_cmp_eq_u32 vcc, 0, v6\ns_nop 1")
    for QF in (12,232): E(f"v_cndmask_b32 v{QF+4}, 0, v{QF+4}, vcc\nv_cndmask_b32 v{QF+5}, 0, v{QF+5}, vcc")
    l0=lab("kv"); l1=lab("kvd")
    E(f"v_mov_b32 v9, {CNT+16}\nv_mov_b32 v10, 1\ns_mov_b64 exec, 1\nds_add_u32 v9, v10\ns_mov_b64 exec, -1\ns_mov_b32 s37, 0\n{l0}:\nds_read_b32 v10, v9\ns_waitcnt lgkmcnt(0)\n"
      f"v_cmp_ne_u32 vcc, 4, v10\ns_cbranch_vccz {l1}\ns_add_u32 s37, s37, 1\ns_cmp_lt_u32 s37, {POLL_MAX*8}\ns_cbranch_scc0 {l1}\ns_sleep 1\ns_branch {l0}\n{l1}:")
    stamp(E,6); stamp4(E,4)
    attention(E)
    return E


def attention_fast(E):
    KF=32; SB=(104,120,136); PB=(152,160); O=168; CN=184; M0=200; M8=216; Q1=232; VB_=(240,248); QF=12
    PM0=None
    NEG=fhex(-1e30)
    E(f"s_lshl_b32 s43, s35, 8\nv_lshlrev_b32 v9, 3, v5\nv_add_u32 v9, s43, v9\nv_mul_u32_u24 v20, {2*GS}, v6\nv_add_u32 v20, v20, v9\nv_add_u32 v21, {4*GS}, v9")
    kr={}
    def kreads(e,ts):
        for t in ts:
            kf=KF+8*t; o=5*GS*e
            E.lds(f"ds_read_b64 v[{kf}:{kf+1}], v20 offset:{o+256*t}"); E.lds(f"ds_read_b64 v[{kf+2}:{kf+3}], v20 offset:{o+256*t+GS}")
            kr[t]=E.lds(f"ds_read_b64 v[{kf+4}:{kf+5}], v21 offset:{o+256*t}")
    E("s_lshl_b32 s46, s33, 2\ns_add_u32 s46, s46, s35\ns_sub_i32 s46, 8, s46\ns_max_i32 s46, s46, 0")
    for t in range(9):
        if t<8: E(f"s_cmp_gt_u32 s46, {t}\ns_cselect_b32 s47, 0xff7f, 0\nv_mov_b32 v{KF+8*t+6}, s47\nv_mov_b32 v{KF+8*t+7}, 0")
        else: E(f"v_mov_b32 v{KF+8*t+6}, 0\nv_mov_b32 v{KF+8*t+7}, 0")
    E(f"v_cmp_eq_u32 vcc, 0, v6\nv_mov_b32 v7, 0x3f80\ns_nop 0\nv_cndmask_b32 v{QF+6}, 0, v7, vcc\nv_mov_b32 v{Q1+6}, v{QF+6}")
    kreads(0,range(9))
    E("v_bfe_u32 v22, v2, 4, 1\nv_and_b32 v23, 3, v2\nv_bfe_u32 v24, v2, 2, 2\nv_lshl_add_u32 v24, v6, 2, v24\nv_lshlrev_b32 v24, 3, v24\nv_add_u32 v24, s43, v24")
    E(f"v_lshl_add_u32 v25, v22, 2, v23\nv_mul_u32_u24 v26, {GS}, v25\nv_add_u32 v26, {VB}, v26\nv_cmp_lt_u32 vcc, 4, v25\nv_mov_b32 v7, {ONE0}\nv_mov_b32 v8, {ONE1}")
    E(f"v_cndmask_b32 v22, v26, v7, vcc\nv_add_u32 v26, {5*GS}, v26\nv_cndmask_b32 v23, v26, v8, vcc\nv_add_u32 v22, v22, v24\nv_add_u32 v23, v23, v24")
    E(f"v_mov_b32 v28, {NEG}\nv_mov_b32 v27, 0\nv_lshlrev_b32 v29, 2, v6\nv_sub_u32 v29, v5, v29")
    for r in range(16):
        kk=8*(r>>2)+(r&3)
        E(f"v_cmp_le_i32 vcc, {kk}, v29\ns_nop 1\nv_cndmask_b32 v{M8+r}, v28, v27, vcc\nv_cndmask_b32 v{M0+r}, v27, v28, vcc")
    E("v_bfe_u32 v24, v2, 4, 1\nv_lshlrev_b32 v24, 10, v24\nv_and_b32 v25, 15, v2\nv_lshl_add_u32 v24, v25, 4, v24")
    E("s_lshl_b32 s42, s33, 1\ns_lshr_b32 s43, s35, 1\ns_add_u32 s42, s42, s43\ns_mul_i32 s42, s42, 68\ns_add_u32 s42, s42, 48\ns_lshl_b32 s42, s42, 12\ns_and_b32 s43, s35, 1\ns_lshl_b32 s43, s43, 11\ns_add_u32 s42, s42, s43")
    E("s_mul_i32 s40, s34, 5")
    def qk(t,cinit):
        kf=KF+8*t; d=SB[t%3]
        return [f"v_mfma_f32_32x32x16_bf16 v[{d}:{d+15}], v[{kf}:{kf+3}], v[{QF}:{QF+3}], {cinit}",
                f"v_mfma_f32_32x32x16_bf16 v[{d}:{d+15}], v[{kf+4}:{kf+7}], v[{QF+4}:{QF+7}], v[{d}:{d+15}]"]
    def maxes(t,first):
        d=SB[t%3]; L=[]
        for i in range(8):
            acc=30+(i&1)
            if first and i<2: L.append(f"v_max_f32 v{acc}, v{d+2*i}, v{d+2*i+1}")
            else: L.append(f"v_max3_f32 v{acc}, v{acc}, v{d+2*i}, v{d+2*i+1}")
        return L
    for e in range(2):
        va=22+e
        stamp6(E,1) if e==0 else stamp6(E,5)
        vr_={}
        def vreads(t):
            vf=VB_[t%2]
            for m in range(2):
                E.lds(f"ds_read_b64_tr_b16 v[{vf+4*m}:{vf+4*m+1}], v{va} offset:{256*t+128*m}")
                vr_[t]=E.lds(f"ds_read_b64_tr_b16 v[{vf+4*m+2}:{vf+4*m+3}], v{va} offset:{256*t+128*m+64}")
        def cin(t): return f"v[{M0}:{M0+15}]" if t==0 else (f"v[{M8}:{M8+15}]" if t==8 else "0")
        vreads(0)
        E.wl(kr[0])
        for x in qk(0,cin(0)): E(x)
        E.wl(kr[1])
        for x in qk(1,cin(1)): E(x)
        vreads(1)
        E("s_nop 5")
        def pv(t):
            vf=VB_[t%2]; p=PB[t%2]
            c0 = "0" if t==0 else f"v[{O}:{O+15}]"
            return [f"v_mfma_f32_32x32x16_bf16 v[{O}:{O+15}], v[{vf}:{vf+3}], v[{p}:{p+3}], {c0}",
                    f"v_mfma_f32_32x32x16_bf16 v[{O}:{O+15}], v[{vf+4}:{vf+7}], v[{p+4}:{p+7}], v[{O}:{O+15}]"]
        for t in range(9):
            d=SB[t%3]; p=PB[t%2]
            nx=qk(t+2,cin(t+2)) if t+2<9 else []
            pp=pv(t-1) if t>=1 else []
            if t>=1: E.wl(vr_[t-1])
            if nx: E.wl(kr[t+2])
            mf=[]
            if pp: mf+=[pp[0]]
            if nx: mf+=[nx[0]]
            if pp: mf+=[pp[1]]
            if nx: mf+=[nx[1]]
            k=0
            for g in range(4):
                for r in range(4*g,4*g+4): E(f"v_exp_f32 v{d+r}, v{d+r}")
                if k<len(mf): E(mf[k]); k+=1
            while k<len(mf): E(mf[k]); k+=1
            if t>=1 and t+1<9: vreads(t+1)
            for r in range(8): E(f"v_cvt_pk_bf16_f32 v{p+r}, v{d+2*r}, v{d+2*r+1}")
            if e==0 and t==6: kreads(1,range(0,5))
            if e==0 and t==7: kreads(1,range(5,9))
        E.wl(vr_[8]); E("s_nop 1")
        for x in pv(8): E(x)
        stamp6(E,4) if e==0 else stamp6(E,7)
        PK=SB[0]
        E(f"s_add_u32 s41, s40, {2*e}")
        E("v_add_u32 v10, s41, v6\nv_lshrrev_b32 v11, 2, v10\nv_lshlrev_b32 v11, 12, v11\nv_and_b32 v10, 3, v10\nv_lshl_add_u32 v11, v10, 8, v11\nv_add_u32 v11, v11, v24")
        E(f"s_add_u32 s45, s40, 4\ns_lshr_b32 s44, s45, 2\ns_lshl_b32 s44, s44, 12\ns_and_b32 s45, s45, 3\ns_lshl_b32 s45, s45, 8\ns_add_u32 s44, s44, s45\ns_add_u32 s44, s44, {8*e}\ns_add_u32 s44, s44, s42")
        E(f"s_nop 1\nv_mov_b32 v30, v{O+8}\nv_mov_b32 v31, v{O+8}\ns_nop 1\nv_permlane32_swap_b32 v30, v31\ns_nop 1")
        E(f"v_mov_b32 v29, {fhex(2.0**60)}\nv_cmp_nle_f32 vcc, v31, v29\nv_mov_b32 v29, {fhex(2.0**-60)}\nv_cmp_nge_f32 s[56:57], v31, v29\ns_nop 1\ns_or_b64 vcc, vcc, s[56:57]\ns_mov_b32 s36, {e}")
        if 'forcefb' in EXP: E("s_mov_b64 vcc, -1")
        E("s_cbranch_vccnz L_att_fb")
        E("v_rcp_f32 v31, v31\ns_nop 0")
        for r in range(12): E(f"v_mul_f32 v{O+r}, v{O+r}, v31")
        for r in range(6): E(f"v_cvt_pk_bf16_f32 v{PK+r}, v{O+2*r}, v{O+2*r+1}")
        E(f"buffer_store_dwordx4 v[{PK}:{PK+3}], v11, s[24:27], s42 offen sc1")
        E(f"s_mov_b32 exec_hi, 0\nbuffer_store_dwordx2 v[{PK+4}:{PK+5}], v24, s[24:27], s44 offen sc1\ns_mov_b64 exec, -1")
        if e==0:
            for r in range(8): E(f"v_mov_b32 v{12+r}, v{Q1+r}")
    E("s_branch L_att_done")

def att_out(E,O,loop,Q1,PK):
    E(f"s_nop 7\nv_mov_b32 v30, v{O+8}\nv_mov_b32 v31, v{O+8}\ns_nop 1\nv_permlane32_swap_b32 v30, v31\ns_nop 1\nv_rcp_f32 v31, v31\ns_nop 0")
    for r in range(12): E(f"v_mul_f32 v{O+r}, v{O+r}, v31")
    for r in range(6): E(f"v_cvt_pk_bf16_f32 v{PK+r}, v{O+2*r}, v{O+2*r+1}")
    E("s_mul_i32 s40, s34, 5\ns_lshl_b32 s41, s36, 1\ns_add_u32 s41, s41, s40")
    E("v_add_u32 v10, s41, v6\nv_lshrrev_b32 v11, 2, v10\nv_lshlrev_b32 v11, 12, v11\nv_and_b32 v10, 3, v10\nv_lshl_add_u32 v11, v10, 8, v11")
    E("v_bfe_u32 v23, v2, 4, 1\nv_lshlrev_b32 v23, 10, v23\nv_and_b32 v24, 15, v2\nv_lshl_add_u32 v23, v24, 4, v23\nv_add_u32 v11, v11, v23")
    E("s_lshl_b32 s42, s33, 1\ns_lshr_b32 s43, s35, 1\ns_add_u32 s42, s42, s43\ns_mul_i32 s42, s42, 68\ns_add_u32 s42, s42, 48\ns_lshl_b32 s42, s42, 12\ns_and_b32 s43, s35, 1\ns_lshl_b32 s43, s43, 11\ns_add_u32 s42, s42, s43")
    E(f"buffer_store_dwordx4 v[{PK}:{PK+3}], v11, s[24:27], s42 offen sc1")
    E("s_add_u32 s40, s40, 4\ns_lshr_b32 s44, s40, 2\ns_lshl_b32 s44, s44, 12\ns_and_b32 s45, s40, 3\ns_lshl_b32 s45, s45, 8\ns_add_u32 s44, s44, s45\ns_lshl_b32 s45, s36, 3\ns_add_u32 s44, s44, s45\ns_add_u32 s44, s44, s42")
    E(f"s_mov_b32 exec_hi, 0\nbuffer_store_dwordx2 v[{PK+4}:{PK+5}], v23, s[24:27], s44 offen sc1\ns_mov_b64 exec, -1")
    E(f"s_cmp_eq_u32 s36, 1\ns_cbranch_scc1 L_att_done")
    for r in range(8): E(f"v_mov_b32 v{12+r}, v{Q1+r}")
    E(f"s_mov_b32 s36, 1\ns_branch {loop}")
def attention_slow(E):
    E("s_mov_b32 s36, 0")
    E.label("L_att_fb")
    E("s_waitcnt lgkmcnt(0)\nv_mov_b32 v18, 0\nv_mov_b32 v238, 0")
    E("s_lshl_b32 s46, s33, 2\ns_add_u32 s46, s46, s35\ns_sub_i32 s46, 8, s46\ns_max_i32 s46, s46, 0")
    E.label("L_att")
    E(f"s_mul_i32 s42, s36, {5*GS}\ns_lshl_b32 s43, s35, 8\ns_add_u32 s42, s42, s43")
    E(f"v_lshlrev_b32 v9, 3, v5\nv_add_u32 v9, s42, v9\nv_mul_u32_u24 v20, {2*GS}, v6\nv_add_u32 v20, v20, v9\nv_add_u32 v21, {4*GS}, v9")
    E("v_bfe_u32 v22, v2, 4, 1\nv_and_b32 v23, 3, v2\nv_bfe_u32 v24, v2, 2, 2\nv_lshl_add_u32 v24, v6, 2, v24\nv_lshlrev_b32 v24, 3, v24\nv_add_u32 v24, s43, v24")
    E(f"v_lshl_add_u32 v25, v22, 2, v23\nv_mul_u32_u24 v26, {GS}, v25\ns_mul_i32 s44, s36, {5*GS}\ns_add_u32 s44, s44, {VB}\nv_add_u32 v26, s44, v26")
    E(f"s_mov_b32 s45, {ONE1}\ns_cmp_eq_u32 s36, 0\ns_cselect_b32 s45, {ONE0}, s45\nv_mov_b32 v27, s45\nv_cmp_lt_u32 vcc, 4, v25\ns_nop 1\nv_cndmask_b32 v26, v26, v27, vcc\nv_add_u32 v22, v26, v24")
    S=32; KF=176; QF=12
    for st in range(2): E(f"v_mov_b32 v{KF+8*st+6}, 0\nv_mov_b32 v{KF+8*st+7}, 0")
    E(f"v_mov_b32 v28, {fhex(-1e30)}")
    for t in range(9):
        kf=KF+8*(t%2); d=S+16*t; skip=lab("ts"); done=lab("td")
        E(f"s_cmp_gt_u32 s46, {t}\ns_cbranch_scc1 {skip}")
        E(f"ds_read_b64 v[{kf}:{kf+1}], v20 offset:{256*t}\nds_read_b64 v[{kf+2}:{kf+3}], v20 offset:{256*t+GS}\nds_read_b64 v[{kf+4}:{kf+5}], v21 offset:{256*t}\ns_waitcnt lgkmcnt(0)")
        E(f"v_mfma_f32_32x32x16_bf16 v[{d}:{d+15}], v[{kf}:{kf+3}], v[{QF}:{QF+3}], 0\nv_mfma_f32_32x32x16_bf16 v[{d}:{d+15}], v[{kf+4}:{kf+7}], v[{QF+4}:{QF+7}], v[{d}:{d+15}]")
        E(f"s_branch {done}"); E.label(skip)
        for r in range(16): E(f"v_mov_b32 v{d+r}, v28")
        E.label(done)
    E("s_nop 15\nv_lshlrev_b32 v29, 2, v6\nv_sub_u32 v29, v5, v29")
    for r in range(16):
        kk=8*(r>>2)+(r&3)
        E(f"v_cmp_le_i32 vcc, {kk}, v29\ns_nop 1\nv_cndmask_b32 v{S+128+r}, v28, v{S+128+r}, vcc\nv_cndmask_b32 v{S+r}, v{S+r}, v28, vcc")
    E(f"v_max3_f32 v30, v{S}, v{S+1}, v{S+2}")
    r=3
    while r<144:
        if r+1<144: E(f"v_max3_f32 v30, v30, v{S+r}, v{S+r+1}"); r+=2
        else: E(f"v_max_f32 v30, v30, v{S+r}"); r+=1
    E("v_mov_b32 v31, v30\nv_mov_b32 v29, v30\ns_nop 1\nv_permlane32_swap_b32 v31, v29\ns_nop 1\nv_max_f32 v30, v31, v29")
    for t in range(9):
        d=S+16*t
        for r in range(16): E(f"v_sub_f32 v{d+r}, v{d+r}, v30")
        for r in range(16): E(f"v_exp_f32 v{d+r}, v{d+r}")
        E("s_nop 0")
        for r in range(8): E(f"v_cvt_pk_bf16_f32 v{d+r}, v{d+2*r}, v{d+2*r+1}")
    O=192; VF=208
    for r in range(16): E(f"v_mov_b32 v{O+r}, 0")
    for t in range(9):
        d=S+16*t; vf=VF+8*(t%2); skip=lab("ps")
        E(f"s_cmp_gt_u32 s46, {t}\ns_cbranch_scc1 {skip}")
        for m in range(2):
            E(f"ds_read_b64_tr_b16 v[{vf+4*m}:{vf+4*m+1}], v22 offset:{256*t+128*m}\nds_read_b64_tr_b16 v[{vf+4*m+2}:{vf+4*m+3}], v22 offset:{256*t+128*m+64}")
        E("s_waitcnt lgkmcnt(0)")
        for m in range(2): E(f"v_mfma_f32_32x32x16_bf16 v[{O}:{O+15}], v[{vf+4*m}:{vf+4*m+3}], v[{d+4*m}:{d+4*m+3}], v[{O}:{O+15}]")
        E.label(skip)
    E("s_nop 7")
    att_out(E,O,"L_att",232,224)

def attention(E):
    if 'noaprio' not in EXP: E("s_setprio 1")
    attention_fast(E)
    E.label("L_att_slow")
    attention_slow(E)
    E.label("L_att_done")
    stamp(E,7)
    E("s_waitcnt vmcnt(0)")
    E(f"s_lshl_b32 s38, s33, 4\ns_add_u32 s38, s38, s34\ns_lshl_b32 s38, s38, 7\ns_add_u32 s38, s38, {WS_FO}")
    agg_flag(E,3,4,38,3,4)
    stamp(E,8)
    stamp_flush(E)
    E("s_endpgm")

def build():
    hdr=open("parallel_sum__sliding_block__mixer_channel_mlp__prompt.s.ref").read().split("; Override")[0]
    s=hdr+f"; @launch grid=(256,1,1) block=(512,1,1) lds={LDS_TOTAL}\n"
    s+='.amdgcn_target "amdgcn-amd-amdhsa--gfx950"\n.text\n'+kernel_header(KNAME)
    s+=prologue().text()+gen_A().text()+gen_F().text()
    s+='.section .rodata,"a"\n'+kernel_desc(KNAME,sgpr=102)
    return s
if __name__=="__main__":
    out=sys.argv[1] if len(sys.argv)>1 else "parallel_sum__sliding_block__mixer_channel_mlp__prompt.s"
    if len(sys.argv)>2 and sys.argv[2]=="instr": INSTR=True
    if len(sys.argv)>3: EXP.update(sys.argv[3].split(","))
    for e in EXP:
        if e.startswith("sleep"): SLEEP=int(e[5:])
    open(out,"w").write(build())
```

```python
import math, sys, struct
from asmlib import kernel_header, kernel_desc
from em import Em

KNAME="parallel_sum__sliding_block__mixer_channel_mlp__prompt_kernel"
WS_STATS=0; WS_CSP=0x10000; WS_FQ=0x90000; WS_FH=0x98000; WS_FO=0xA0000; WS_FW=0xA8000; SMALL_SZ=0xB0000
WS_W2T=0xB0000; W2T_SZ=8*68*5*1024
WS_Q=0x360000; QKV_SZ=0x280000
WS_HO=0xB00000; HO_SZ=0x880000
WS_STAMP=0x2000000
LOG2E=1.4426950408889634; CQ=(20**-0.5)*LOG2E
GC0=-2.0*LOG2E*math.sqrt(2.0/math.pi); GC1=GC0*0.044715
def fhex(f): return hex(struct.unpack("<I",struct.pack("<f",f))[0])
P_X,P_WQKV,P_WO,P_W1,P_B1,P_W2,P_B2,P_OUT,P_DBG,P_WS=60,62,64,68,70,72,74,76,78,80
SLOT=32768; P0=131072; P1=143360; U0=69632; CSF=155648; NON=156672; CNT=156704; STX=156768; B1F=156928; STA=157312; CSP4=158336; CSFW=159872; XCH=131072; CSCR=135168
GS=3104; VB=10*GS
def _ones():
    base=VB+10*GS; o0=base+((160-(base-VB))%256); b2=o0+3072; o1=b2+((64-(b2-VB))%256); return o0,o1,o1+3072
ONE0,ONE1,ATT_END=_ones(); RED=69632; LDS_TOTAL=163840
assert ATT_END<=RED
V0=20480
def wf_region(sg): return [P0,P1,U0,U0+12288,U0+2*12288,U0+3*12288,U0+4*12288,V0,V0+12288,V0+2*12288][sg]
S_NONCE=82
INSTR=False; EXP=set(); POLL_MAX=20000
_uid=[0]
def lab(b="L"):
    _uid[0]+=1; return f"{b}_{_uid[0]}"
NST=9
def stamp2(E,idx):
    if INSTR and 'barst' in EXP: E(f"s_memtime s[{84+2*idx}:{85+2*idx}]")
def stamp3(E,idx):
    if INSTR and 'epi' in EXP: E(f"s_memrealtime s[{84+2*idx}:{85+2*idx}]")
def stamp4(E,idx):
    if INSTR and 'gel' in EXP: E(f"s_memrealtime s[{84+2*idx}:{85+2*idx}]")
def stamp5(E,idx):
    if INSTR and 'fq' in EXP: E(f"s_memrealtime s[{84+2*idx}:{85+2*idx}]")
def stamp6(E,idx):
    if INSTR and 'att' in EXP:
        l=lab("s6"); E(f"s_cmp_eq_u32 s36, {0 if idx<5 else 1}\ns_cbranch_scc0 {l}\ns_memtime s[{84+2*idx}:{85+2*idx}]\n{l}:")
def stamp8(E,idx):
    if INSTR and 'p1b' in EXP: E(f"s_memtime s[{84+2*idx}:{85+2*idx}]")
def stamp9(E,idx):
    if INSTR and 'fc2' in EXP: E(f"s_memrealtime s[{84+2*idx}:{85+2*idx}]")
def stampA(E,idx):
    if INSTR and 'pA' in EXP: E(f"s_memtime s[{84+2*idx}:{85+2*idx}]")
def stampG(E,idx):
    if INSTR and 'pG' in EXP: E(f"s_memtime s[{84+2*idx}:{85+2*idx}]")
def stamp(E,idx):
    if 'pG' in EXP and idx>0: return
    if 'pA' in EXP and idx>0: return
    if 'pB' in EXP and idx>0: return
    if 'fc2' in EXP and idx>0: return
    if 'p1b' in EXP and idx>0: return
    if 'intv' in EXP and idx>0: return
    if 'lat' in EXP and idx>0: return
    if 'att' in EXP and idx>0: return
    if 'fq' in EXP and idx>0: return
    if 'gel' in EXP and idx>0: return
    if 'epi' in EXP and idx>0: return
    if 'barst' in EXP and idx>0: return
    if INSTR: E(f"s_mem{'time' if 'clk' in EXP else 'realtime'} s[{84+2*idx}:{85+2*idx}]")
def stamp_flush(E,role=0):
    if not INSTR: return
    E("s_waitcnt lgkmcnt(0)")
    if 'dbgts' in EXP:
        l=lab("dts")
        E(f"s_cmp_eq_u32 s35, 0\ns_cbranch_scc0 {l}")
        E(f"s_mov_b32 s52, s{P_DBG}\ns_mov_b32 s53, s{P_DBG+1}\ns_mov_b32 s54, 256\ns_mov_b32 s55, 0x20000\nv_mov_b32 v251, 0\ns_mov_b64 exec, 1")
        sel = (0,2,3,4,5,6,7,8) if role==0 else (2,3,4,5,6,7,8)
        base = 1 if role==0 else 9
        for n,i in enumerate(sel):
            E(f"s_sub_u32 s56, s{84+2*i}, s{S_NONCE}\nv_mov_b32 v250, s56\nbuffer_atomic_smax v250, v251, s[52:55], 0 offen offset:{4*(base+n)}")
        E("s_mov_b64 exec, -1"); E.label(l)
        return
    E(f"s_add_u32 s52, s{P_WS}, {WS_STAMP}\ns_addc_u32 s53, s{P_WS+1}, 0\ns_mov_b32 s54, 0x20000\ns_mov_b32 s55, 0x20000")
    E("s_lshl_b32 s56, s2, 3\ns_add_u32 s56, s56, s32\ns_lshl_b32 s56, s56, 6\nv_mov_b32 v251, 0")
    for i in range(NST):
        E(f"v_mov_b32 v250, s{84+2*i}"); E(f"buffer_store_dword v250, v251, s[52:55], s56 offen offset:{4*i}")
def srd(E,d,p,size,off=0):
    if off: E(f"s_add_u32 s{d}, s{p}, {off}\ns_addc_u32 s{d+1}, s{p+1}, 0")
    else: E(f"s_mov_b32 s{d}, s{p}\ns_mov_b32 s{d+1}, s{p+1}")
    E(f"s_mov_b32 s{d+2}, {size}\ns_mov_b32 s{d+3}, 0x20000")
SLEEP=8
def poll_slow(E,vaddr,vtmp):
    l0=lab("poll"); l1=lab("polld")
    E("s_mov_b32 s37, 0"); E.label(l0)
    E(f"buffer_load_dword v{vtmp}, v{vaddr}, s[16:19], 0 offen sc1\ns_waitcnt vmcnt(0)")
    E(f"v_cmp_ne_u32 vcc, s{S_NONCE}, v{vtmp}\ns_cbranch_vccz {l1}")
    E(f"s_add_u32 s37, s37, 1\ns_cmp_lt_u32 s37, {POLL_MAX}\ns_cbranch_scc0 {l1}\ns_sleep {SLEEP}\ns_branch {l0}")
    E.label(l1)
def check_or_poll(E,vaddr,vval):
    l0=lab("cp"); l1=lab("cpd")
    E(f"v_cmp_ne_u32 vcc, s{S_NONCE}, v{vval}\ns_cbranch_vccz {l1}\ns_mov_b32 s37, 0\n{l0}:\n"
      f"buffer_load_dword v{vval}, v{vaddr}, s[16:19], 0 offen sc1\ns_waitcnt vmcnt(0)\nv_cmp_ne_u32 vcc, s{S_NONCE}, v{vval}\ns_cbranch_vccz {l1}\n"
      f"s_add_u32 s37, s37, 1\ns_cmp_lt_u32 s37, {POLL_MAX}\ns_cbranch_scc0 {l1}\ns_sleep {SLEEP}\ns_branch {l0}\n{l1}:")
def poll_leader(E,vaddr,vtmp,vt2,goaddr):
    lw=lab("pw"); ld=lab("pd"); l0=lab("pl")
    E(f"v_mov_b32 v{vt2}, {goaddr}\ns_cmp_eq_u32 s35, 0\ns_cbranch_scc0 {lw}")
    poll_slow(E,vaddr,vtmp)
    E(f"v_mov_b32 v{vtmp}, s{S_NONCE}\nds_write_b32 v{vt2}, v{vtmp}\ns_waitcnt lgkmcnt(0)\ns_branch {ld}")
    E.label(lw)
    E(f"s_mov_b32 s37, 0\n{l0}:\nds_read_b32 v{vtmp}, v{vt2}\ns_waitcnt lgkmcnt(0)\nv_cmp_ne_u32 vcc, s{S_NONCE}, v{vtmp}\ns_cbranch_vccz {ld}\n"
      f"s_add_u32 s37, s37, 1\ns_cmp_lt_u32 s37, {POLL_MAX*8}\ns_cbranch_scc0 {ld}\ns_sleep 2\ns_branch {l0}")
    E.label(ld)
def flag_store(E,soff,vt0,vt1):
    E(f"v_mov_b32 v{vt0}, s{S_NONCE}\nv_mov_b32 v{vt1}, 0")
    return E.st(f"s_mov_b64 exec, 1\nbuffer_store_dword v{vt0}, v{vt1}, s[16:19], s{soff} offen sc1\ns_mov_b64 exec, -1")
def agg_flag(E,cnt_idx,nwaves,soff,vt0,vt1):
    l=lab("ag")
    E(f"v_mov_b32 v{vt0}, {CNT+4*cnt_idx}\nv_mov_b32 v{vt1}, 1\ns_mov_b64 exec, 1\nds_add_rtn_u32 v{vt1}, v{vt0}, v{vt1}\ns_waitcnt lgkmcnt(0)\ns_mov_b64 exec, -1\n"
      f"v_readfirstlane_b32 s37, v{vt1}\ns_nop 3\ns_cmp_eq_u32 s37, {nwaves-1}\ns_cbranch_scc0 {l}\nv_mov_b32 v{vt0}, s{S_NONCE}\nv_mov_b32 v{vt1}, 0\ns_mov_b64 exec, 1\n"
      f"buffer_store_dword v{vt0}, v{vt1}, s[16:19], s{soff} offen sc1\ns_mov_b64 exec, -1\n{l}:")
def lds_arrive(E,idx,vt0,vt1):
    E(f"v_mov_b32 v{vt0}, {CNT+4*idx}\nv_mov_b32 v{vt1}, 1\ns_mov_b64 exec, 1\nds_add_u32 v{vt0}, v{vt1}\ns_mov_b64 exec, -1")
def lds_wait(E,idx,target,vt0,vt1,slp=1):
    l0=lab("lw"); l1=lab("lwd")
    E(f"v_mov_b32 v{vt0}, {CNT+4*idx}\ns_mov_b32 s37, 0\n{l0}:\nds_read_b32 v{vt1}, v{vt0}\ns_waitcnt lgkmcnt(0)\nv_cmp_gt_u32 vcc, {target}, v{vt1}\ns_cbranch_vccz {l1}\n"
      f"s_add_u32 s37, s37, 1\ns_cmp_lt_u32 s37, {POLL_MAX*32}\ns_cbranch_scc0 {l1}\n"+(f"s_sleep {slp}\n" if slp else "")+f"s_branch {l0}\n{l1}:")
def allreduce(E,v,t1,t2):
    for dpp in ("quad_perm:[1,0,3,2]","quad_perm:[2,3,0,1]","row_half_mirror","row_mirror"):
        E(f"s_nop 1\nv_add_f32_dpp v{v}, v{v}, v{v} {dpp} row_mask:0xf bank_mask:0xf")
    for sw in ("16","32"):
        E(f"v_mov_b32 v{t1}, v{v}\nv_mov_b32 v{t2}, v{v}")
        E(f"s_nop 1\nv_permlane{sw}_swap_b32 v{t1}, v{t2}\ns_nop 1\nv_add_f32 v{v}, v{t1}, v{t2}")
def gelu_ops(x,t,c0):
    return [f"v_mul_f32 v{t}, v{x}, v{x}",f"v_fma_f32 v{t}, v{t}, s51, v{c0}",f"v_mul_f32 v{t}, v{t}, v{x}",
            f"v_exp_f32 v{t}, v{t}",f"v_add_f32 v{t}, 1.0, v{t}",f"v_rcp_f32 v{t}, v{t}",f"v_mul_f32 v{x}, v{x}, v{t}"]

def prologue():
    E=Em()
    E("s_cmp_ge_u32 s2, 256\ns_cbranch_scc1 L_end")
    stamp(E,0)
    E("s_load_dwordx2 s[4:5], s[0:1], 0\ns_load_dwordx2 s[8:9], s[0:1], 8\ns_load_dwordx2 s[12:13], s[0:1], 32\ns_load_dwordx2 s[16:17], s[0:1], 80")
    E("s_load_dwordx16 s[60:75], s[0:1], 0\ns_load_dwordx4 s[76:79], s[0:1], 64\ns_load_dwordx2 s[80:81], s[0:1], 80")
    E("v_lshrrev_b32 v1, 6, v0\nv_and_b32 v2, 63, v0\nv_readfirstlane_b32 s32, v1")
    E("s_mov_b32 s6, 2621440\ns_mov_b32 s7, 0x20000\ns_mov_b32 s10, %d\ns_mov_b32 s11, 0x20000"%(640*3840))
    E("s_mov_b32 s14, %d\ns_mov_b32 s15, 0x20000\ns_mov_b32 s18, %d\ns_mov_b32 s19, 0x20000"%(640*3072,SMALL_SZ))
    E("s_and_b32 s37, s2, 7\ns_lshr_b32 s38, s2, 3")
    E("s_lshr_b32 s33, s37, 2\ns_lshl_b32 s33, s33, 3\ns_and_b32 s39, s38, 7\ns_add_u32 s33, s33, s39")
    E("s_and_b32 s34, s37, 3\ns_lshl_b32 s34, s34, 2\ns_lshr_b32 s39, s38, 3\ns_add_u32 s34, s34, s39")
    E("s_min_u32 s41, s34, 14\ns_lshl_b32 s41, s41, 8\ns_mul_i32 s42, s34, 192")
    E("s_and_b32 s35, s32, 3\ns_cmp_ge_u32 s32, 4\ns_cbranch_scc1 L_F")
    return E

def gen_F():
    U_V0=int(next((e[3:] for e in EXP if e.startswith('uv0')),'8'))
    E=Em(); E.label("L_F")
    if 'nofprio' not in EXP: E("s_setprio 2")
    E("s_mov_b32 s45, 0\ns_mov_b32 s46, 0\ns_mul_i32 s40, s33, 163840\ns_lshl_b32 s43, s35, 12\ns_mul_i32 s44, s35, 3072")
    E("v_lshrrev_b32 v3, 3, v2\ns_lshl_b32 s39, s35, 5\nv_add_u32 v3, s39, v3\nv_mul_u32_u24 v3, 1280, v3")
    E("v_and_b32 v4, 7, v2\nv_lshrrev_b32 v5, 4, v2\nv_xor_b32 v6, v4, v5\nv_lshl_add_u32 v10, v6, 4, v3")
    E(f"v_or_b32 v7, 4, v5\nv_xor_b32 v7, v4, v7\nv_lshl_add_u32 v11, v7, 4, v3\nv_add_u32 v11, {8*1280}, v11")
    E(f"v_add_u32 v12, {16*1280}, v10\nv_add_u32 v13, {16*1280}, v11")
    E("s_lshl_b32 s39, s35, 4\nv_add_u32 v3, s39, v5\nv_mul_u32_u24 v3, 3840, v3")
    E("v_and_b32 v4, 15, v2\nv_lshlrev_b32 v6, 2, v5\nv_xor_b32 v4, v4, v6\nv_lshl_add_u32 v14, v4, 4, v3")
    for q in range(1,4): E(f"v_add_u32 v{14+q}, {q*4*3840}, v14")
    E("s_waitcnt lgkmcnt(0)")
    def dma_ops(tau):
        slot=tau%4; G=[]
        for q in range(4):
            pre=f"s_add_u32 s56, s40, {tau*128}\ns_add_u32 s57, s41, {tau*64*3840}\n" if q==0 else ""
            G.append(pre+f"s_add_u32 m0, s43, {slot*SLOT+q*1024}\ns_nop 0\nbuffer_load_dwordx4 v{10+q}, s[4:7], s56 offen lds")
        for q in range(4):
            G.append(f"s_add_u32 m0, s43, {slot*SLOT+16384+q*1024}\ns_nop 0\nbuffer_load_dwordx4 v{14+q}, s[8:11], s57 offen lds")
        return G
    WFV=(34,35,40)
    def dma_wf(sg, sink):
        reg=wf_region(sg); last=None
        for t in range(3):
            pre=f"s_add_u32 s58, s42, {sg*64*3072}\n" if t==0 else ""
            last=sink.vm(pre+f"s_add_u32 m0, s44, {reg+t*1024}\ns_nop 0\nbuffer_load_dwordx4 v{WFV[t]}, s[12:15], s58 offen lds")
        return last
    D={}
    for g in dma_ops(0): D[0]=E.vm(g)
    if 'early12' in EXP:
        for tau in (1,2):
            for g in dma_ops(tau): D[tau]=E.vm(g)
    E(f"v_lshlrev_b32 v3, 3, v2\nv_mov_b32 v4, 0\nv_mov_b32 v5, 0\nv_add_u32 v6, {CSF+512}, v3\nv_add_u32 v3, {CNT}, v3")
    E("s_mov_b64 exec, 0xff"); E.lds("ds_write_b64 v3, v[4:5]"); E("s_mov_b64 exec, -1"); ci=E.lds("ds_write_b64 v6, v[4:5]")
    stamp(E,1)
    E("s_lshl_b32 s39, s35, 4")
    for t in range(3):
        E(f"v_add_u32 v3, {64*t}, v2\nv_mul_u32_u24 v4, 171, v3\nv_lshrrev_b32 v4, 11, v4\nv_mul_u32_u24 v5, 12, v4\nv_sub_u32 v5, v3, v5")
        E(f"v_add_u32 v4, s39, v4\nv_mul_u32_u24 v4, 3072, v4\nv_lshl_add_u32 v{WFV[t]}, v5, 4, v4")
    E("v_and_b32 v3, 31, v2\ns_lshl_b32 s37, s35, 5\nv_add_u32 v3, s37, v3\nv_lshrrev_b32 v4, 5, v2\nv_bfe_u32 v5, v3, 1, 3\nv_xor_b32 v5, v5, v4\nv_lshlrev_b32 v3, 7, v3")
    for t in range(4): E(f"v_xor_b32 v6, {2*t}, v5\nv_lshl_add_u32 v{18+t}, v6, 4, v3\nv_add_u32 v{22+t}, 65536, v{18+t}")
    E("v_bfe_u32 v3, v2, 4, 1\nv_lshrrev_b32 v4, 5, v2\nv_bfe_u32 v5, v2, 2, 2\nv_and_b32 v6, 3, v2\nv_lshl_add_u32 v7, v4, 3, v5")
    E(f"v_mul_u32_u24 v41, 192, v7\nv_lshl_add_u32 v41, v3, 5, v41\nv_lshl_add_u32 v41, v6, 3, v41\nv_add_u32 v47, {P0}, v41\nv_add_u32 v46, {U0}, v41")
    E("v_lshlrev_b32 v8, 8, v7\nv_add_u32 v8, 16384, v8\nv_lshrrev_b32 v9, 1, v6\nv_lshl_add_u32 v9, v3, 1, v9\nv_lshl_add_u32 v8, v9, 4, v8\nv_and_b32 v9, 1, v6\nv_lshl_add_u32 v8, v9, 3, v8")
    E("v_xor_b32 v9, s35, v5\nv_lshl_add_u32 v64, v9, 6, v8\nv_add_u32 v65, 65536, v64")
    E("v_and_b32 v3, 15, v2\nv_bfe_u32 v4, v2, 4, 1\nv_cmp_eq_u32 vcc, v3, v4\nv_mov_b32 v5, 0x3f803f80\ns_nop 0\nv_cndmask_b32 v36, 0, v5, vcc\nv_mov_b32 v37, v36\nv_mov_b32 v38, v36\nv_mov_b32 v39, v36")
    E("v_mov_b32 v66, 0\nv_mov_b32 v67, 0\nv_mov_b32 v68, 0\nv_mov_b32 v69, 0")
    if 'early12' not in EXP:
        for tau in (1,2):
            for g in dma_ops(tau): D[tau]=E.vm(g)
    XS=96; W={}; xr={}
    PRE=Em()
    PRE("s_lshl_b32 s37, s33, 7\ns_lshl_b32 s38, s34, 3\ns_add_u32 s37, s37, s38\ns_lshl_b32 s38, s35, 1\ns_add_u32 s37, s37, s38\ns_mul_i32 s36, s37, 1280")
    PRE("v_and_b32 v3, 31, v2\nv_mul_u32_u24 v3, 40, v3\nv_lshrrev_b32 v4, 5, v2\nv_mul_u32_u24 v4, 1280, v4\nv_add_u32 v3, v3, v4")
    srd(PRE,48,P_DBG,256)
    l=lab("non")
    PRE(f"s_or_b32 s37, s2, s35\ns_cmp_eq_u32 s37, 0\ns_cbranch_scc0 {l}\ns_memrealtime s[54:55]\ns_waitcnt lgkmcnt(0)\ns_or_b32 s54, s54, 1\nv_mov_b32 v6, s54\nv_mov_b32 v7, 0\ns_mov_b64 exec, 1\n"
        f"buffer_store_dword v6, v7, s[48:51], 0 offen sc1\ns_mov_b64 exec, -1\n{l}:")
    l=lab("nl")
    PRE(f"v_mov_b32 v82, 0\nv_mov_b32 v81, 0\ns_cmp_eq_u32 s35, 0\ns_cbranch_scc0 {l}\nbuffer_load_dword v81, v82, s[48:51], 0 offen sc1\n{l}:")
    PRE.vm("buffer_load_dwordx4 v[70:73], v3, s[4:7], s36 offen"); PRE.vm("buffer_load_dwordx4 v[74:77], v3, s[4:7], s36 offen offset:16")
    PRE.vm("buffer_load_dwordx2 v[78:79], v3, s[4:7], s36 offen offset:32")
    srd(PRE,52,P_B1,3072)
    PRE("v_lshlrev_b32 v4, 2, v2\ns_mul_i32 s37, s34, 192\nv_min_u32 v4, 188, v4")
    pl1=PRE.vm("buffer_load_dword v80, v4, s[52:55], s37 offen")
    F=Em()
    F.wv(pl1)
    l0=lab("n0"); l1=lab("n1"); l2=lab("n2")
    F(f"s_cmp_eq_u32 s35, 0\ns_cbranch_scc0 {l2}\ns_mov_b32 s37, 0\n{l0}:\nv_readfirstlane_b32 s{S_NONCE}, v81\ns_nop 3\ns_cmp_lg_u32 s{S_NONCE}, 0\ns_cbranch_scc1 {l1}\n"
      f"s_add_u32 s37, s37, 1\ns_cmp_lt_u32 s37, {POLL_MAX}\ns_cbranch_scc0 {l1}\ns_sleep 1\nbuffer_load_dword v81, v82, s[48:51], 0 offen sc1\ns_waitcnt vmcnt(0)\ns_branch {l0}\n{l1}:\n"
      f"v_mov_b32 v82, {NON}\nds_write_b32 v82, v81\n{l2}:")
    F("v_lshlrev_b32 v82, 16, v80"); F("v_and_b32 v83, 0xffff0000, v80"); F("v_min_u32 v4, 47, v2"); F("v_lshlrev_b32 v4, 3, v4"); F(f"v_add_u32 v4, {B1F}, v4")
    F.lds("ds_write_b64 v4, v[82:83]")
    B=200
    for i in range(10):
        F(f"v_lshlrev_b32 v{B+2*i}, 16, v{70+i}"); F(f"v_and_b32 v{B+2*i+1}, 0xffff0000, v{70+i}")
    F(f"v_add_f32 v70, v{B}, v{B+1}"); F(f"v_add_f32 v71, v{B+2}, v{B+3}")
    for i in range(4,20,2):
        F(f"v_add_f32 v70, v70, v{B+i}"); F(f"v_add_f32 v71, v71, v{B+i+1}")
    F("v_add_f32 v70, v70, v71")
    def red32(v):
        for dpp in ("quad_perm:[1,0,3,2]","quad_perm:[2,3,0,1]","row_half_mirror","row_mirror"):
            F(f"s_nop 1\nv_add_f32_dpp v{v}, v{v}, v{v} {dpp} row_mask:0xf bank_mask:0xf")
        F(f"v_mov_b32 v78, v{v}\nv_mov_b32 v79, v{v}")
        F(f"s_nop 1\nv_permlane16_swap_b32 v78, v79\ns_nop 1\nv_add_f32 v{v}, v78, v79")
    red32(70)
    F(f"v_mul_f32 v70, {fhex(1.0/640)}, v70")
    nF1=len(F.it)
    for i in range(20): F(f"v_sub_f32 v{B+i}, v{B+i}, v70")
    F(f"v_mul_f32 v71, v{B}, v{B}"); F(f"v_mul_f32 v72, v{B+1}, v{B+1}")
    for i in range(2,20,2):
        F(f"v_fmac_f32 v71, v{B+i}, v{B+i}"); F(f"v_fmac_f32 v72, v{B+i+1}, v{B+i+1}")
    F("v_add_f32 v71, v71, v72")
    red32(71)
    F(f"v_mul_f32 v71, {fhex(1.0/640)}, v71"); F(f"v_add_f32 v72, {fhex(1e-5)}, v71")
    F("v_rsq_f32 v75, v72\ns_nop 0"); F("v_mul_f32 v73, v75, v75"); F("v_mul_f32 v73, v73, v71"); F(f"v_add_f32 v73, {fhex(1e-5)}, v73")
    F("v_rsq_f32 v73, v73\nv_mov_b32 v74, v70"); F("s_nop 0\nv_mul_f32 v76, v75, v73")
    F("v_lshrrev_b32 v78, 5, v2"); F("v_lshlrev_b32 v78, 4, v78"); F(f"s_lshl_b32 s37, s35, 5\ns_add_u32 s37, s37, {STX}"); F("v_add_u32 v78, s37, v78"); F("v_mov_b32 v77, 0")
    F.lds("ds_write_b128 v78, v[74:77]")
    F2=Em()
    F2(f"v_mov_b32 v3, {NON}"); nr=F2.lds("ds_read_b32 v83, v3")
    F2("v_and_b32 v78, 7, v2"); F2("v_lshlrev_b32 v78, 4, v78"); F2(f"v_add_u32 v79, {STX}, v78")
    sr=F2.lds("ds_read_b128 v[74:77], v79"); F2.wl(sr); F2(f"v_mov_b32 v77, v83\nv_readfirstlane_b32 s{S_NONCE}, v83")
    l=lab("sst")
    F2(f"s_cmp_eq_u32 s35, 0\ns_cbranch_scc0 {l}\ns_lshl_b32 s37, s33, 7\ns_lshl_b32 s38, s34, 3\ns_add_u32 s37, s37, s38\ns_lshl_b32 s37, s37, 4\ns_mov_b64 exec, 0xff\n"
       f"buffer_store_dwordx4 v[74:77], v78, s[16:19], s37 offen sc1\ns_mov_b64 exec, -1\n{l}:")
    allF=list(F.it)
    def part(L,a,b):
        x=Em(); x.it=L[a:b]; return x
    def cat(*xs):
        y=Em()
        for x in xs:
            if x: y.it+=x.it
        return y
    fill={1:part(allF,0,nF1), 2:part(allF,nF1,len(allF)), 3:F2}
    E.wv(D[0]); E.wl(ci); E("s_barrier"); stamp(E,2); stamp2(E,1)
    csr={}
    for tau in range(10):
        M=Em(); slot=tau%4
        if tau==0: M.extend(PRE)
        for t in range(4):
            a=(18 if slot<2 else 22)+t; u=4*tau+t
            xr[u]=M.lds(f"ds_read_b128 v[{XS+4*u}:{XS+4*u+3}], v{a} offset:{(slot&1)*SLOT}")
        wa=64 if slot<2 else 65; so=(slot&1)*SLOT
        for t in range(4):
            for jj in range(2):
                csr[t]=M.lds(f"ds_read_b64_tr_b16 v[{48+4*t+2*jj}:{49+4*t+2*jj}], v{wa} offset:{so+(16*t+4*jj)*256}")
        M.slot(10)
        tn = 3 if tau==0 else (tau+2 if (tau>=2 and tau+2<=9) else None)
        if tn is not None:
            for k,g in enumerate(dma_ops(tn)):
                D[tn]=M.vm(g); M.slot(10)
                if k==1:
                    for t in range(4):
                        M.wl(csr[t]); M(f"v_mfma_f32_16x16x32_bf16 v[66:69], v[36:39], v[{48+4*t}:{51+4*t}], v[66:69]")
        else:
            for t in range(4):
                M.wl(csr[t]); M(f"v_mfma_f32_16x16x32_bf16 v[66:69], v[36:39], v[{48+4*t}:{51+4*t}], v[66:69]")
            M.slot(300)
        if tau==6: W[0]=dma_wf(0,M)
        if tau==7: W[1]=dma_wf(1,M)
        if tau==8: W[2]=dma_wf(2,M); W[3]=dma_wf(3,M)
        if tau==9:
            for sg in range(4,7): W[sg]=dma_wf(sg,M)
        if fill.get(tau): M.merge(fill[tau])
        E.extend(M)
        if tau<9:
            E.wv(D[tau+1])
            if tau+1==9: E.wv(W[1])
            E("s_waitcnt lgkmcnt(0)")
            E("s_barrier")
            if tau<7: stamp2(E,tau+2)
    E(f"v_and_b32 v3, 15, v2\nv_lshlrev_b32 v3, 2, v3\ns_lshl_b32 s37, s35, 7\ns_add_u32 s37, s37, {CSF}\nv_add_u32 v3, s37, v3\ns_nop 4")
    E("s_mov_b64 exec, 0xffff"); E.lds("ds_write_b32 v3, v66"); cq=E.lds("ds_write_b32 v3, v67 offset:64"); E("s_mov_b64 exec, -1")
    E.wl(cq); lds_arrive(E,8,3,8)
    if 'nofprio' not in EXP: E("s_setprio 0")
    stamp(E,3)
    srd(E,24,P_WS,HO_SZ,off=WS_HO)
    E(f"s_mov_b32 s51, {fhex(GC1)}")
    E("s_lshl_b32 s47, s33, 1\ns_lshr_b32 s59, s35, 1\ns_add_u32 s47, s47, s59\ns_mul_i32 s47, s47, 68\ns_mul_i32 s59, s34, 3\ns_add_u32 s47, s47, s59\ns_lshl_b32 s47, s47, 12")
    E("s_and_b32 s59, s35, 1\ns_lshl_b32 s59, s59, 11\ns_add_u32 s47, s47, s59")
    ACC=48
    for r in [36,37,38,39]: E(f"v_mov_b32 v{ACC+r}, 0")
    for r in (4,5,6,7,42,43,44,45): E(f"v_mov_b32 v{r}, 0")
    E("s_mul_i32 s37, s35, 3072\nv_add_u32 v88, s37, v47\nv_add_u32 v89, s37, v46\nv_add_u32 v90, s37, v41")
    VS=Em()
    VS("v_lshrrev_b32 v3, 5, v2\nv_lshlrev_b32 v34, 4, v3"); VS(f"v_add_u32 v35, {B1F}, v34"); VS(f"s_mul_i32 s37, s35, 384\ns_add_u32 s37, s37, {CSFW}\nv_add_u32 v34, s37, v34"); VS(f"v_mov_b32 v40, {fhex(GC0)}")
    VS("v_bfe_u32 v8, v2, 4, 1\nv_lshlrev_b32 v91, 10, v8\nv_lshrrev_b32 v3, 5, v2\nv_lshl_add_u32 v91, v3, 8, v91\nv_and_b32 v8, 15, v2\nv_lshl_add_u32 v91, v8, 4, v91")
    VS(f"v_and_b32 v8, 31, v2\ns_lshl_b32 s37, s35, 5\nv_add_u32 v8, s37, v8\nv_lshlrev_b32 v8, 3, v8\nv_add_u32 v92, {STA}, v8")
    VS(f"v_and_b32 v3, 15, v2\nv_lshlrev_b32 v3, 2, v3\ns_mul_i32 s37, s35, 384\ns_add_u32 s37, s37, {CSP4}\nv_add_u32 v9, s37, v3")
    def wf_addr(sg):
        reg=wf_region(sg)
        return (47,reg-P0) if reg>=P0 else ((46,reg-U0) if reg>=U0 else (41,reg))
    SA=[10,18,26]
    rd={}; pend=[]
    def readsA(u):
        sg,t=divmod(u,4); base,ro=wf_addr(sg); L=[]
        for T in range(2):
            fr=SA[u%3]+4*T
            for jj in range(2): L.append(f"ds_read_b64_tr_b16 v[{fr+2*jj}:{fr+2*jj+1}], v{base} offset:{ro+(16*t+4*jj)*192+64*T}")
        return L
    E.wl(xr[39])
    stamp8(E,1)
    if INSTR and 'pA' in EXP: E("s_memtime s[100:101]")
    for u in (0,1):
        for r in readsA(u): rd[u]=E.lds(r)
    for u in range(40):
        if u==3: stamp8(E,2)
        if u==7: stamp8(E,3)
        if u==15: stamp8(E,4)
        if u==27: stamp8(E,5)
        if u==U_V0:
            stampA(E,1)
            if 'nowA' not in EXP: lds_wait(E,8,4,3,8)
            if 'nowA' not in EXP: lds_wait(E,5,4,3,8)
            stampA(E,2)
            if 'nofprio' not in EXP: E("s_setprio 2")
            tmp=Em()
            for sg2 in (7,8,9): W[sg2]=dma_wf(sg2,tmp)
            pend=list(tmp.it)
        if 'nowA' in EXP:
            if u in (4,12,24): lds_arrive(E,6,3,8)
        else:
          if u==4: E.wv(W[3]); lds_arrive(E,6,3,8)
          if u==6: lds_wait(E,6,4,3,8)
          if u==12: stampA(E,3); E.wv(W[6]); stampA(E,4); lds_arrive(E,6,3,8)
          if u==14: lds_wait(E,6,8,3,8); stampA(E,5)
          if u==24: stampA(E,6); E.wv(W[9]); stampA(E,7); lds_arrive(E,6,3,8)
        if u==26 and 'nowA' not in EXP:
            lds_wait(E,6,12,3,8)
        E.wl(rd[u])
        rl=readsA(u+2) if u+2<40 else []
        for T in range(2):
            fr=SA[u%3]+4*T; a=ACC+16*T
            c_="0" if u==0 else f"v[{a}:{a+15}]"
            E(f"v_mfma_f32_32x32x16_bf16 v[{a}:{a+15}], v[{fr}:{fr+3}], v[{XS+4*u}:{XS+4*u+3}], {c_}")
            for r in rl[2*T:2*T+2]: rd[u+2]=E.lds(r)
            if pend and (T==0 or 'pend1' not in EXP): E.it.append(pend.pop(0))
        if u==30: E.extend(VS)
        sg_,t_=divmod(u,4)
        base,ro=wf_addr(sg_); b2={47:88,46:89,41:90}[base]
        if t_>=1:
            acc={1:84,2:4,3:42}[t_]
            E.wl(c2r); E(f"v_mfma_f32_16x16x32_bf16 v[{acc}:{acc+3}], v[36:39], v[80:83], v[{acc}:{acc+3}]")
        if t_<=2:
            off=ro+{0:128,1:0,2:64}[t_]
            E.lds(f"ds_read_b64_tr_b16 v[80:81], v{b2} offset:{off}")
            c2r=E.lds(f"ds_read_b64_tr_b16 v[82:83], v{b2} offset:{off+4*192}")
    stamp8(E,6); stampG(E,1)
    E("s_nop 7")
    E("s_mov_b64 exec, 0xffff")
    E.lds("ds_write_b32 v9, v4"); E.lds("ds_write_b32 v9, v5 offset:64"); E.lds("ds_write_b32 v9, v42 offset:128"); E.lds("ds_write_b32 v9, v43 offset:192")
    E.lds("ds_write_b32 v9, v84 offset:256"); ca=E.lds("ds_write_b32 v9, v85 offset:320")
    E("s_mov_b64 exec, -1")
    E("v_mov_b32 v44, v91\nv_mov_b32 v45, v92")
    cs_done=ca
    SBk=[10,14,18,22,26]
    def readsB(u):
        sg,t=divmod(u,4); base,ro=wf_addr(sg); fr=SBk[u%5]
        return [f"ds_read_b64_tr_b16 v[{fr+2*jj}:{fr+2*jj+1}], v{base} offset:{ro+(16*t+4*jj)*192+128}" for jj in range(2)]
    hs=[None]
    def gelu_tile(G,T,cb0,tt):
        a0=ACC+16*T; rr={}
        order=(0,2,1,3)
        def rd_(i):
            a=order[i]; c=cb0+8*(i%2)
            G.lds(f"ds_read_b128 v[{c}:{c+3}], v34 offset:{128*T+32*a}")
            rr[i]=G.lds(f"ds_read_b128 v[{c+4}:{c+7}], v35 offset:{128*T+32*a}")
        rd_(0); rd_(1)
        for i in range(4):
            a=order[i]; b=a0+4*a; c=cb0+8*(i%2)
            G.wl(rr[i])
            for k in range(4): G(f"v_fma_f32 v{c+4+k}, v42, v{c+k}, v{c+4+k}")
            for k in range(4): G(f"v_fma_f32 v{b+k}, v{b+k}, v43, v{c+4+k}")
            if i+2<4: rd_(i+2)
            ops=[[f"v_mul_f32 v{tt+k}, v{b+k}, v{b+k}",f"v_fma_f32 v{tt+k}, v{tt+k}, s51, v40",f"v_mul_f32 v{tt+k}, v{tt+k}, v{b+k}",f"v_exp_f32 v{tt+k}, v{tt+k}",
                  f"v_add_f32 v{tt+k}, 1.0, v{tt+k}",f"v_rcp_f32 v{tt+k}, v{tt+k}",f"v_mul_f32 v{b+k}, v{b+k}, v{tt+k}"] for k in range(4)]
            for s_ in range(7):
                for k in range(4): G(ops[k][s_])
            o=a0+{0:0,2:2,1:4,3:6}[a]
            G(f"v_cvt_pk_bf16_f32 v{o}, v{b}, v{b+1}"); G(f"v_cvt_pk_bf16_f32 v{o+1}, v{b+2}, v{b+3}")
        G(f"s_add_u32 s46, s47, {T*4096}")
        G.vm(f"buffer_store_dwordx4 v[{a0}:{a0+3}], v44, s[24:27], s46 offen sc1")
        hs[0]=G.vm(f"buffer_store_dwordx4 v[{a0+4}:{a0+7}], v44, s[24:27], s46 offen offset:512 sc1")
    G=Em()
    sta=G.lds("ds_read_b64 v[42:43], v45")
    G(f"v_min_u32 v30, 47, v2\nv_lshlrev_b32 v30, 3, v30"); G(f"v_add_u32 v31, {CSP4}, v30")
    for w in range(4): pr=G.lds(f"ds_read_b64 v[{208+2*w}:{209+2*w}], v31 offset:{384*w}")
    G(f"s_mul_i32 s37, s35, 384\ns_add_u32 s37, s37, {CSFW}"); G("v_add_u32 v30, s37, v30")
    G.wl(pr)
    G("v_add_f32 v208, v208, v210"); G("v_add_f32 v209, v209, v211"); G("v_add_f32 v212, v212, v214"); G("v_add_f32 v213, v213, v215")
    G("v_add_f32 v208, v208, v212"); G("v_add_f32 v209, v209, v213")
    fw_=G.lds("ds_write_b64 v30, v[208:209]"); G.wl(fw_)
    gelu_tile(G,0,208,30); gelu_tile(G,1,208,30)
    rd={}
    order=list(range(28,40))+list(range(0,28))
    def readsB2(n):
        u=order[n]; sg,t=divmod(u,4); base,ro=wf_addr(sg); fr=SBk[n%5]
        return [f"ds_read_b64_tr_b16 v[{fr+2*jj}:{fr+2*jj+1}], v{base} offset:{ro+(16*t+4*jj)*192+128}" for jj in range(2)]
    for n in range(4):
        for r in readsB2(n): rd[n]=E.lds(r)
    stampG(E,2)
    E.wl(cs_done); stampG(E,3); lds_arrive(E,6,3,8); stampG(E,4)
    M=Em(); a=ACC+32
    for n in range(40):
        u=order[n]
        M.wl(rd[n]); fr=SBk[n%5]
        cin_=("0" if n==0 else f"v[{a}:{a+15}]")
        M(f"v_mfma_f32_32x32x16_bf16 v[{a}:{a+15}], v[{fr}:{fr+3}], v[{XS+4*u}:{XS+4*u+3}], {cin_}")
        if n+4<40:
            for r in readsB2(n+4): rd[n+4]=M.lds(r)
        if n==4:
            x=Em()
            if INSTR and 'pB' in EXP: x("s_memtime s[86:87]")
            stampG(x,5); lds_wait(x,6,16,3,8); stampG(x,6); lds_wait(x,9,4,3,8); stampG(x,7)
            if INSTR and 'pB' in EXP: x("s_memtime s[88:89]")
            M.extend(x)
        if INSTR and 'pB' in EXP and n in (12,20,28,36): M(f"s_memtime s[{90+2*((n-12)//8)}:{91+2*((n-12)//8)}]")
        if n==12:
            x=Em(); lds_arrive(x,7,3,8); M.extend(x)
        if n>=4: M.slot(10)
    M.merge(G)
    E.extend(M)
    stamp8(E,7); stampG(E,8)
    E("s_nop 6")
    stamp(E,4)
    G=Em(); gelu_tile(G,2,208,30); E.extend(G)
    if 'nofprio' not in EXP: E("s_setprio %d"%(2 if 'f2prio' in EXP else 0))
    stamp8(E,8)
    hs=hs[0]
    E(f"s_lshl_b32 s59, s33, 4\ns_add_u32 s59, s59, s34\ns_lshl_b32 s59, s59, 7\ns_add_u32 s59, s59, {WS_FH}")
    E("s_and_b32 s37, s2, 7\ns_lshr_b32 s38, s2, 3")
    if 'map48' in EXP:
        E("s_lshl_b32 s33, s37, 2\ns_and_b32 s39, s38, 3\ns_add_u32 s33, s33, s39\ns_lshr_b32 s34, s38, 2")
    else:
        E("s_lshr_b32 s33, s37, 2\ns_lshl_b32 s33, s33, 4\ns_bfe_u32 s39, s37, 0x10001\ns_lshl_b32 s39, s39, 3\ns_add_u32 s33, s33, s39\ns_and_b32 s39, s38, 7\ns_add_u32 s33, s33, s39")
        E("s_and_b32 s34, s37, 1\ns_lshl_b32 s34, s34, 2\ns_lshr_b32 s39, s38, 3\ns_add_u32 s34, s34, s39")
    srd(E,8,P_WS,W2T_SZ,off=WS_W2T); srd(E,12,P_B2,1280); srd(E,20,P_OUT,2621440)
    E("v_lshrrev_b32 v3, 1, v2\nv_min_u32 v3, 16, v3\ns_mul_i32 s37, s35, 12\ns_mul_i32 s38, s35, 5\ns_add_u32 s38, s38, 36")
    E("v_add_u32 v4, s37, v3\nv_add_u32 v5, s38, v3\nv_cmp_gt_u32 vcc, 12, v3\ns_nop 1\nv_cndmask_b32 v4, v5, v4, vcc")
    E("s_mul_i32 s37, s34, 5\ns_lshr_b32 s38, s37, 2\ns_add_u32 s37, s37, 4\ns_lshr_b32 s39, s37, 2")
    E("v_and_b32 v5, 1, v2\nv_mov_b32 v6, s38\nv_mov_b32 v7, s39\nv_cmp_eq_u32 vcc, 0, v5\ns_nop 1\nv_cndmask_b32 v6, v7, v6, vcc")
    E(f"v_mul_u32_u24 v4, 10, v4\nv_add_u32 v4, v4, v6\nv_mul_u32_u24 v4, 683, v4\nv_lshrrev_b32 v4, 11, v4\nv_lshlrev_b32 v4, 7, v4\nv_add_u32 v4, {WS_FW}, v4")
    fw=E.vm("buffer_load_dword v8, v4, s[16:19], 0 offen sc1")
    E("v_mov_b32 v9, v4")
    E("v_lshlrev_b32 v3, 4, v2\nv_add_u32 v4, 4096, v3")
    E("v_and_b32 v5, 15, v2\ns_lshl_b32 s39, s33, 6\ns_lshl_b32 s40, s35, 4\ns_add_u32 s39, s39, s40\nv_add_u32 v5, s39, v5\nv_mul_u32_u24 v5, 1280, v5\nv_lshrrev_b32 v6, 4, v2\nv_lshlrev_b32 v6, 3, v6")
    E("s_mul_i32 s39, s34, 160\nv_add_u32 v6, s39, v6\nv_add_u32 v5, v5, v6")
    E("s_mul_i32 s40, s33, %d\ns_mul_i32 s41, s34, %d"%(68*4096,68*5120))
    E("s_mul_i32 s42, s35, 12\ns_mul_i32 s43, s35, 5\ns_add_u32 s43, s43, 48")
    E("s_lshl_b32 s44, s42, 12\ns_add_u32 s44, s44, s40\ns_mul_i32 s45, s42, 5120\ns_add_u32 s45, s45, s41")
    E("s_lshl_b32 s46, s43, 12\ns_add_u32 s46, s46, s40\ns_mul_i32 s47, s43, 5120\ns_add_u32 s47, s47, s41")
    ACC3=10; WB=[100+20*i for i in range(5)]; HB=[200,216,232]
    XR=90; B2R=248
    LW={}; LH={}
    def loadsW(i):
        b=WB[i%5]; ws_,ii=(45,i) if i<12 else (47,i-12)
        E(f"s_add_u32 s57, s{ws_}, {ii*5120}")
        for nt in range(4): E.vm(f"buffer_load_dwordx4 v[{b+4*nt}:{b+4*nt+3}], v3, s[8:11], s57 offen offset:{1024*nt} sc1")
        LW[i]=E.vm(f"buffer_load_dwordx4 v[{b+16}:{b+19}], v4, s[8:11], s57 offen sc1")
    def loadsH(i):
        b=HB[i%3]; hs_,ii=(44,i) if i<12 else (46,i-12)
        E(f"s_add_u32 s56, s{hs_}, {ii*4096}")
        for tt in range(4): LH[i]=E.vm(f"buffer_load_dwordx4 v[{b+4*tt}:{b+4*tt+3}], v3, s[24:27], s56 offen offset:{1024*tt} sc1")
    stamp4(E,5)
    E.wv(hs); stamp4(E,6); agg_flag(E,2,4,59,7,8) if False else None
    E.wv(fw)
    agg_flag(E,2,4,59,7,207)
    stamp(E,5)
    check_or_poll(E,9,8)
    for nt in range(5): E.vm(f"buffer_load_dwordx2 v[{XR+2*nt}:{XR+2*nt+1}], v5, s[4:7], 0 offen offset:{32*nt}")
    for i in range(5): loadsW(i)
    def group_addr(base,vd):
        E(f"v_and_b32 v{vd}, 3, v2\ns_lshl_b32 s37, s35, 2\nv_add_u32 v{vd}, s37, v{vd}\ns_lshr_b32 s37, s33, 1\ns_lshl_b32 s37, s37, 4\nv_add_u32 v{vd}, s37, v{vd}\nv_lshlrev_b32 v{vd}, 7, v{vd}\nv_add_u32 v{vd}, {base}, v{vd}")
    group_addr(WS_FH,7)
    poll_slow(E,7,8)
    stamp(E,6)
    group_addr(WS_FO,7)
    if 'fidle' in EXP: poll_slow(E,7,8)
    def mf(i):
        E.wv(LH[i]); E.wv(LW[i])
        b=WB[i%5]; h=HB[i%3]
        for nt in range(5):
            for tt in range(4):
                a=ACC3+16*nt+4*tt
                c_="0" if i==0 else f"v[{a}:{a+3}]"
                E(f"v_mfma_f32_16x16x32_bf16 v[{a}:{a+3}], v[{b+4*nt}:{b+4*nt+3}], v[{h+4*tt}:{h+4*tt+3}], {c_}")
    stamp9(E,1)
    for i in range(3): loadsH(i)
    for i in range(17):
        if i==1: stamp9(E,2)
        if i==6: stamp9(E,3)
        if i==8: fo=E.vm("buffer_load_dword v9, v7, s[16:19], 0 offen sc1")
        if i==9:
            stamp9(E,4); E.wv(fo); check_or_poll(E,7,9); stamp9(E,5)
        mf(i)
        if i+3<17: loadsH(i+3)
        if i+5<17: loadsW(i+5)
        if i==12:
            for nt in range(4): E.vm(f"buffer_load_dwordx2 v[{B2R+2*nt}:{B2R+2*nt+1}], v6, s[12:15], 0 offen offset:{32*nt}")
            b2l=E.vm(f"buffer_load_dwordx2 v[8:9], v6, s[12:15], 0 offen offset:128")
    stamp(E,7); stamp9(E,6)
    E("s_nop 15")
    E(f"s_mul_i32 s39, s35, 20480\ns_add_u32 s39, s39, {RED}\nv_add_u32 v7, s39, v3")
    for nt in range(5):
        for tt in range(4):
            a=ACC3+16*nt+4*tt
            w_=E.lds(f"ds_write_b128 v7, v[{a}:{a+3}] offset:{(nt*4+tt)*1024}")
    E.wl(w_); E("s_barrier"); stamp9(E,7)
    E(f"s_lshl_b32 s39, s35, 10\ns_add_u32 s39, s39, {RED}\nv_add_u32 v7, s39, v3\nv_add_u32 v2, 40960, v7")
    R=100
    for nt in range(5):
        for w in range(4):
            base=7 if w<2 else 2
            r_=E.lds(f"ds_read_b128 v[{R+16*nt+4*w}:{R+16*nt+4*w+3}], v{base} offset:{(w%2)*20480+nt*4096}")
    E.wv(b2l); E.wl(r_)
    for nt in range(5):
        b=R+16*nt
        for i in range(4): E(f"v_add_f32 v{b+i}, v{b+i}, v{b+4+i}\nv_add_f32 v{b+8+i}, v{b+8+i}, v{b+12+i}")
        for i in range(4): E(f"v_add_f32 v{b+i}, v{b+i}, v{b+8+i}")
        b2=(B2R+2*nt) if nt<4 else 8
        for (src,t0) in ((XR+2*nt,10),(b2,14)):
            E(f"v_lshlrev_b32 v{t0}, 16, v{src}\nv_and_b32 v{t0+1}, 0xffff0000, v{src}\nv_lshlrev_b32 v{t0+2}, 16, v{src+1}\nv_and_b32 v{t0+3}, 0xffff0000, v{src+1}")
        for i in range(4): E(f"v_add_f32 v{b+i}, v{b+i}, v{14+i}")
        for i in range(4): E(f"v_add_f32 v{b+i}, v{b+i}, v{10+i}")
        E(f"v_cvt_pk_bf16_f32 v{20+2*nt}, v{b}, v{b+1}\nv_cvt_pk_bf16_f32 v{21+2*nt}, v{b+2}, v{b+3}")
        E.st(f"buffer_store_dwordx2 v[{20+2*nt}:{21+2*nt}], v5, s[20:23], 0 offen offset:{32*nt} {'sc1' if 'outsc1' in EXP else ('nt' if 'outnt' in EXP else '')}")
    stamp(E,8); stamp9(E,8)
    stamp_flush(E,1)
    E.label("L_end"); E("s_endpgm"); E.label("L_codeend")
    return E


def gen_A():
    E=Em()
    if 'nopf' not in EXP:
        E("s_getpc_b64 s[56:57]\nL_pc:\ns_sub_u32 s56, s56, L_pc-%s\ns_subb_u32 s57, s57, 0"%KNAME)
        E("v_lshlrev_b32 v3, 7, v2\ns_lshl_b32 s37, s35, 13\nv_add_u32 v3, s37, v3\nv_add_u32 v8, 0x8000, v3\nv_min_u32 v8, L_codeend-%s-4, v8"%KNAME)
        E("v_mov_b32 v5, s57\nv_add_co_u32 v4, vcc, s56, v3\ns_nop 1\nv_addc_co_u32 v5, vcc, 0, v5, vcc")
        E.vm("global_load_dword v254, v[4:5], off")
        E("v_mov_b32 v5, s57\nv_add_co_u32 v4, vcc, s56, v8\ns_nop 1\nv_addc_co_u32 v5, vcc, 0, v5, vcc")
        E.vm("global_load_dword v255, v[4:5], off")
    E("v_and_b32 v3, 31, v2\ns_lshl_b32 s37, s35, 5\nv_add_u32 v3, s37, v3\nv_lshrrev_b32 v4, 5, v2\nv_bfe_u32 v5, v3, 1, 3\nv_xor_b32 v5, v5, v4\nv_lshlrev_b32 v3, 7, v3")
    for t in range(4): E(f"v_xor_b32 v6, {2*t}, v5\nv_lshl_add_u32 v{10+t}, v6, 4, v3\nv_add_u32 v{14+t}, 65536, v{10+t}")
    E("v_bfe_u32 v3, v2, 4, 1\nv_lshrrev_b32 v4, 5, v2\nv_bfe_u32 v5, v2, 2, 2\nv_and_b32 v6, 3, v2\nv_lshl_add_u32 v7, v4, 3, v5")
    E("v_lshlrev_b32 v8, 8, v7\nv_add_u32 v8, 16384, v8\nv_lshrrev_b32 v9, 1, v6\nv_lshl_add_u32 v9, v3, 1, v9\nv_lshl_add_u32 v8, v9, 4, v8\nv_and_b32 v9, 1, v6\nv_lshl_add_u32 v8, v9, 3, v8")
    for T in range(4): E(f"v_xor_b32 v9, {T}, v5\nv_lshl_add_u32 v{18+T}, v9, 6, v8\nv_add_u32 v{22+T}, 65536, v{18+T}")
    E("v_and_b32 v70, 31, v2\nv_lshrrev_b32 v71, 5, v2\ns_and_b32 s37, s34, 3\ns_lshl_b32 s37, s37, 5\ns_lshl_b32 s38, s33, 7\ns_add_u32 s37, s37, s38\nv_add_u32 v70, s37, v70\nv_mul_u32_u24 v70, 1280, v70\nv_lshl_add_u32 v70, v71, 7, v70")
    E("v_bfe_u32 v72, v2, 1, 3\nv_lshrrev_b32 v73, 4, v2\nv_lshl_add_u32 v72, v73, 6, v72\ns_and_b32 s37, s33, 7\ns_lshl_b32 s37, s37, 3\nv_add_u32 v72, s37, v72\nv_and_b32 v73, 1, v2\nv_lshlrev_b32 v73, 7, v73")
    E("v_mul_u32_u24 v74, 3840, v72\nv_add_u32 v74, v74, v73\nv_add_u32 v74, s41, v74\nv_mul_u32_u24 v75, 3072, v72\nv_add_u32 v75, v75, v73\nv_add_u32 v75, s42, v75")
    E("s_cmp_eq_u32 s35, 1\ns_cselect_b64 vcc, -1, 0\ns_nop 1\nv_cndmask_b32 v31, v70, v74, vcc\ns_cmp_eq_u32 s35, 2\ns_cselect_b64 vcc, -1, 0\ns_nop 1\nv_cndmask_b32 v31, v31, v75, vcc")
    E(f"s_mov_b32 s44, {3*128}\ns_mov_b32 s43, 512\ns_mov_b32 s40, 0x5\n"
      f"s_cmp_eq_u32 s35, 3\ns_cselect_b32 s44, {5*128}, s44\ns_cselect_b32 s40, 0xa, s40\n"
      f"s_cmp_eq_u32 s35, 1\ns_cselect_b32 s44, {3*64*3840}, s44\ns_cselect_b32 s43, {4*64*3840}, s43\n"
      f"s_cmp_eq_u32 s35, 2\ns_cselect_b32 s44, 0, s44\ns_cselect_b32 s43, {4*64*3072}, s43\ns_cselect_b32 s40, 0xe, s40")
    if 'wfonly' in EXP: E("s_cmp_eq_u32 s35, 2\ns_cselect_b32 s40, 0xe, 0")
    E("s_waitcnt lgkmcnt(0)")
    E("s_cmp_eq_u32 s35, 1\ns_cselect_b32 s48, s8, s4\ns_cselect_b32 s49, s9, s5\ns_cselect_b32 s50, s10, s6\ns_cmp_eq_u32 s35, 2\ns_cselect_b32 s48, s12, s48\ns_cselect_b32 s49, s13, s49\ns_cselect_b32 s50, s14, s50\ns_mov_b32 s51, 0x20000")
    def pfpoint(p):
        x=Em(); l=lab("pfp")
        if 'l2pf' in EXP:
            x(f"s_bitcmp1_b32 s40, {p}\ns_cbranch_scc0 {l}\nbuffer_load_dword v253, v31, s[48:51], s44 offen\ns_add_u32 s44, s44, s43\n{l}:")
        return x
    T_=Em()
    T_("s_mul_i32 s31, s2, 3\ns_add_u32 s31, s31, s35\ns_cmp_lt_u32 s35, 3\ns_cselect_b32 s31, s31, 1000\ns_min_u32 s31, s31, 680")
    T_("s_min_u32 s28, s31, 679\ns_mul_i32 s29, s28, 6554\ns_lshr_b32 s29, s29, 16\ns_mul_i32 s30, s29, 10\ns_sub_u32 s30, s28, s30")
    T_(f"s_cmp_ge_u32 s29, 48\ns_cselect_b32 s52, s{P_WO}, s{P_W2}\ns_cselect_b32 s53, s{P_WO+1}, s{P_W2+1}\ns_mov_b32 s54, {640*1280}\ns_cselect_b32 s54, s54, {1536*1280}\ns_mov_b32 s55, 0x20000\ns_cselect_b64 s[56:57], -1, 0")
    T_("v_lshrrev_b32 v84, 3, v2"); T_("v_and_b32 v85, 7, v2"); T_("s_lshl_b32 s28, s30, 7"); T_("v_lshl_add_u32 v85, v85, 4, s28")
    T_("s_sub_u32 s38, s29, 48\ns_lshl_b32 s58, s38, 2\ns_lshl_b32 s59, s29, 5"); T_("v_lshrrev_b32 v86, 5, v2"); T_("v_and_b32 v87, 3, v84")
    for i in range(4):
        half=i>>1
        for x in (f"v_add_u32 v88, {2*(i&1)}, v86","v_add_u32 v88, s58, v88","v_mul_u32_u24 v89, 205, v88","v_lshrrev_b32 v89, 10, v89","v_mul_u32_u24 v90, 5, v89","v_sub_u32 v90, v88, v90",
                  "v_lshrrev_b32 v91, 1, v90","v_and_b32 v92, 1, v90",f"v_add_u32 v92, {2*half}, v92"): T_(x)
        T_(f"v_cmp_eq_u32 vcc, 4, v90\nv_mov_b32 v88, {half}\nv_mov_b32 v90, 4\nv_cndmask_b32 v91, v91, v88, vcc\nv_cndmask_b32 v92, v92, v90, vcc")
        for x in ("v_lshl_add_u32 v91, v89, 1, v91","v_mul_u32_u24 v91, 20, v91","v_lshl_add_u32 v91, v92, 2, v91","v_add_u32 v91, v91, v87"): T_(x)
        T_(f"v_add_u32 v88, {8*i}, v84"); T_("v_add_u32 v88, s59, v88")
        T_("v_cndmask_b32 v91, v88, v91, s[56:57]")
        T_("v_mul_u32_u24 v91, 1280, v91"); T_("v_add_u32 v91, v91, v85")
        cld=T_.vm(f"buffer_load_dwordx4 v[{236+4*i}:{239+4*i}], v91, s[52:55], 0 offen")
    C2=Em()
    C2(f"s_mul_i32 s59, s35, 5120")
    C2("v_lshrrev_b32 v84, 3, v2"); C2("v_mul_u32_u24 v84, 160, v84"); C2("v_and_b32 v85, 7, v2"); C2("v_lshl_add_u32 v84, v85, 4, v84"); C2("v_add_u32 v84, s59, v84")
    C2.wv(cld)
    for i in range(4): cw=C2.lds(f"ds_write_b128 v84, v[{236+4*i}:{239+4*i}] offset:{8*160*i}")
    C2("v_lshrrev_b32 v85, 2, v2"); C2("v_mul_u32_u24 v85, 160, v85"); C2("v_and_b32 v86, 3, v2"); C2("v_lshl_add_u32 v85, v86, 3, v85"); C2("v_add_u32 v85, s59, v85")
    srd(C2,52,P_WS,W2T_SZ,off=WS_W2T)
    C2.wl(cw)
    for i in range(4):
        C2.lds(f"ds_read_b64_tr_b16 v[{236+4*i}:{237+4*i}], v85 offset:{32*i}")
        cr=C2.lds(f"ds_read_b64_tr_b16 v[{238+4*i}:{239+4*i}], v85 offset:{32*i+16*160}")
    C2("v_lshlrev_b32 v86, 4, v2")
    C2.wl(cr)
    l=lab("cst"); txt=f"s_cmp_lt_u32 s31, 680\ns_cbranch_scc0 {l}\n"
    for i in range(4):
        txt+=(f"s_lshl_b32 s37, s30, 2\ns_add_u32 s37, s37, {i}\ns_mul_i32 s38, s37, 205\ns_lshr_b32 s38, s38, 10\ns_mul_i32 s39, s38, 5\ns_sub_u32 s39, s37, s39\n"
              "s_mul_i32 s38, s38, 68\ns_add_u32 s38, s38, s29\ns_mul_i32 s38, s38, 5\ns_add_u32 s38, s38, s39\ns_lshl_b32 s38, s38, 10\n"
              f"buffer_store_dwordx4 v[{236+4*i}:{239+4*i}], v86, s[52:55], s38 offen sc1\n")
    C2(txt+f"{l}:")
    stamp(E,1)
    ACC=96; FR=(160,180,200)
    for r in range(64): E(f"v_mov_b32 v{ACC+r}, 0")
    F3=Em()
    F3(f"v_mov_b32 v3, {NON}"); nr=F3.lds("ds_read_b32 v62, v3"); F3.wl(nr); F3(f"s_nop 0\nv_readfirstlane_b32 s{S_NONCE}, v62")
    F3("v_and_b32 v3, 31, v2"); F3("s_lshl_b32 s37, s33, 7\ns_lshl_b32 s38, s35, 5\ns_add_u32 s37, s37, s38"); F3("v_add_u32 v3, s37, v3")
    F3("v_lshlrev_b32 v91, 3, v3"); F3("v_lshlrev_b32 v90, 4, v3")
    F4=Em()
    stl=F4.vm("buffer_load_dwordx4 v[92:95], v90, s[16:19], 0 offen sc1")
    def reads(u):
        tau,t=divmod(u,4); slot=tau%4; hi=slot>=2; fr=FR[u%3]; so=(slot&1)*SLOT
        L=[f"ds_read_b128 v[{fr}:{fr+3}], v{(14 if hi else 10)+t} offset:{so}"]
        for T in range(4):
            for jj in range(2):
                d=fr+4+4*T+2*jj
                L.append(f"ds_read_b64_tr_b16 v[{d}:{d+1}], v{(22 if hi else 18)+T} offset:{so+(16*t+4*jj)*256}")
        return L
    rd={}
    E("s_barrier"); stamp(E,2)
    for u in (0,1):
        for r in reads(u): rd[u]=E.lds(r)
    def steps(u0,u1,filler,per):
        M=Em()
        for u in range(u0,u1):
            tau,t=divmod(u,4); fr=FR[u%3]
            M.wl(rd[u])
            rl=reads(u+2) if u+2<40 else []
            cuts=[0,3,5,7,9]
            for T in range(4):
                a=ACC+16*T
                if "nomfma" not in EXP: M(f"v_mfma_f32_32x32x16_bf16 v[{a}:{a+15}], v[{fr+4+4*T}:{fr+7+4*T}], v[{fr}:{fr+3}], v[{a}:{a+15}]")
                for r in rl[cuts[T]:cuts[T+1]]: rd[u+2]=M.lds(r)
                M.slot(per)
        if filler: M.merge(filler)
        E.extend(M)
    PFS=[int(c) for c in (next((e[3:] for e in EXP if e.startswith("pfs")),"0123"))]
    def cat(*xs):
        y=Em()
        for x in xs:
            if x: y.it+=x.it
        return y
    def fl(iv,base=None):
        return cat(*[pfpoint(p) for p in range(4) if PFS[p]==iv],base)
    steps(0,2,fl(0),5); E("s_barrier")
    for b in range(2,10):
        steps(4*b-6,4*b-2,fl(b-1,{6:F3,8:F4}.get(b)),3); E("s_barrier")
    steps(34,40,None,0)
    lds_arrive(E,5,3,4)
    stamp(E,3)
    srd(E,20,P_WS,3*QKV_SZ,off=WS_Q)
    E("s_cmp_eq_u32 s34, 15\ns_cselect_b32 s22, 0, s22")
    E("s_mul_i32 s45, s34, 205\ns_lshr_b32 s45, s45, 10\ns_mul_i32 s46, s45, 5\ns_sub_u32 s46, s34, s46")
    E(f"v_lshrrev_b32 v4, 5, v2\nv_lshlrev_b32 v26, 4, v4\nv_add_u32 v26, {CSF}, v26\nv_lshlrev_b32 v4, 14, v4\nv_add_u32 v91, v91, v4")
    E(f"v_and_b32 v8, 31, v2\ns_lshl_b32 s37, s35, 5\nv_add_u32 v8, s37, v8\nv_lshlrev_b32 v8, 3, v8\nv_add_u32 v8, {STA}, v8")
    E.wv(stl)
    l0=lab("sp"); l1=lab("spd")
    E(f"v_cmp_ne_u32 vcc, s{S_NONCE}, v95\ns_cbranch_vccz {l1}\ns_mov_b32 s37, 0\n{l0}:\nbuffer_load_dwordx4 v[92:95], v90, s[16:19], 0 offen sc1\ns_waitcnt vmcnt(0)\n"
      f"v_cmp_ne_u32 vcc, s{S_NONCE}, v95\ns_cbranch_vccz {l1}\ns_add_u32 s37, s37, 1\ns_cmp_lt_u32 s37, {POLL_MAX}\ns_cbranch_scc0 {l1}\ns_sleep 2\ns_branch {l0}\n{l1}:")
    E("v_mul_f32 v6, v92, v94\nv_sub_f32 v6, 0, v6\nv_mov_b32 v7, v94")
    sw=E.lds("ds_write_b64 v8, v[6:7]")
    E(f"v_mul_f32 v94, {fhex(CQ)}, v93\ns_cmp_eq_u32 s45, 0\ns_cselect_b64 vcc, -1, 0\ns_nop 1\nv_cndmask_b32 v93, v93, v94, vcc\nv_sub_f32 v92, 0, v92")
    E(f"s_mul_i32 s45, s45, {QKV_SZ}\ns_lshl_b32 s46, s46, 19\ns_add_u32 s45, s45, s46")
    E.wl(sw); lds_arrive(E,9,3,4)
    stamp3(E,2)
    lds_wait(E,8,4,3,4)
    stamp3(E,3)
    crs=[]
    for T in range(4):
        for a in range(4): cr=E.lds(f"ds_read_b128 v[{160+16*T+4*a}:{163+16*T+4*a}], v26 offset:{128*T+32*a}")
        crs.append(cr)
    for T in range(4):
        E.wl(crs[T])
        for a in range(4):
            b=ACC+16*T+4*a; c=160+16*T+4*a
            for i in range(4): E(f"v_fma_f32 v{b+i}, v92, v{c+i}, v{b+i}")
            for i in range(4): E(f"v_mul_f32 v{b+i}, v{b+i}, v93")
            o=40+2*((4*T+a)%8)
            E(f"v_cvt_pk_bf16_f32 v{o}, v{b}, v{b+1}\nv_cvt_pk_bf16_f32 v{o+1}, v{b+2}, v{b+3}")
            E(f"s_add_u32 s46, s45, {(8*T+2*a)*16384}")
            qs=E.st(f"buffer_store_dwordx2 v[{o}:{o+1}], v91, s[20:23], s46 offen sc1")
    stamp3(E,4)
    E.wv(qs)
    stamp3(E,7)
    E(f"s_lshl_b32 s38, s33, 4\ns_add_u32 s38, s38, s34\ns_lshl_b32 s38, s38, 7\ns_add_u32 s38, s38, {WS_FQ}")
    agg_flag(E,0,4,38,3,4)
    stamp3(E,8)
    stamp(E,4)
    E.extend(T_)
    lds_wait(E,5,4,3,4)
    E.extend(C2)
    E(f"s_mov_b32 s22, {3*QKV_SZ}")
    srd(E,24,P_WS,HO_SZ,off=WS_HO)
    E("s_mul_i32 s37, s34, 10\ns_lshr_b32 s38, s37, 5\ns_add_u32 s37, s37, 9\ns_lshr_b32 s39, s37, 5")
    E("v_min_u32 v3, 13, v2\nv_mul_u32_u24 v4, 43, v3\nv_lshrrev_b32 v4, 8, v4\nv_mul_u32_u24 v5, 6, v4\nv_sub_u32 v5, v3, v5")
    E("v_mul_u32_u24 v6, 86, v5\nv_lshrrev_b32 v6, 8, v6\nv_mul_u32_u24 v7, 3, v6\nv_sub_u32 v7, v5, v7")
    E("v_cmp_eq_u32 vcc, 2, v4\nv_mov_b32 v8, 0\ns_nop 0\nv_cndmask_b32 v6, v6, v5, vcc\nv_cndmask_b32 v7, v7, v8, vcc")
    E("v_add_u32 v8, 1, v4\nv_mul_u32_u24 v8, 5, v8\nv_cmp_eq_u32 vcc, 15, v8\nv_mov_b32 v9, 0\ns_nop 0\nv_cndmask_b32 v8, v8, v9, vcc")
    E("v_mov_b32 v9, s38\nv_mov_b32 v20, s39\nv_cmp_eq_u32 vcc, 0, v6\ns_nop 1\nv_cndmask_b32 v9, v20, v9, vcc\nv_add_u32 v8, v8, v9")
    E(f"v_sub_u32 v9, s33, v7\nv_max_i32 v9, 0, v9\nv_lshl_add_u32 v8, v9, 4, v8\nv_lshlrev_b32 v8, 7, v8\nv_add_u32 v8, {WS_FQ}, v8")
    E("v_mov_b32 v10, 0x3f80\nv_mov_b32 v11, 0\nv_lshlrev_b32 v4, 3, v0")
    E.lds(f"ds_write_b64 v4, v[10:11] offset:{ONE0}"); E(f"v_add_u32 v5, {ONE1}, v4"); E.lds("ds_write_b64 v5, v[10:11]")
    E("v_min_u32 v6, 127, v0\nv_lshlrev_b32 v6, 3, v6"); E.lds(f"ds_write_b64 v6, v[10:11] offset:{ONE0+2048}"); E(f"v_add_u32 v6, {ONE1}, v6"); E.lds("ds_write_b64 v6, v[10:11] offset:2048")
    E("s_cmp_lt_u32 s33, 2\ns_cselect_b32 s56, 0x40000000, 0\ns_cmp_lt_u32 s33, 1\ns_cselect_b32 s57, 0x40000000, 0")
    E("s_lshl_b32 s40, s33, 10\ns_sub_u32 s40, s40, 2048\ns_mul_i32 s41, s34, %d\ns_add_u32 s40, s40, s41\ns_add_u32 s40, s40, %d"%(10*16384,QKV_SZ))
    E(f"s_lshl_b32 s41, s35, 14\ns_add_u32 s28, s40, s41\ns_mul_i32 s42, s35, {GS}\ns_add_u32 s29, s28, {4*16384}")
    E(f"s_cmp_ge_u32 s35, 2\ns_cselect_b32 s45, {QKV_SZ-10*16384}, 0\ns_add_u32 s30, s28, s45\ns_add_u32 s30, s30, {8*16384}\ns_add_u32 s31, s28, {12*16384+QKV_SZ-10*16384}")
    E("s_waitcnt vmcnt(0) lgkmcnt(0)")
    E(f"s_lshl_b32 s38, s2, 7\ns_add_u32 s38, s38, {WS_FW}")
    agg_flag(E,1,4,38,3,4)
    lds_wait(E,7,4,3,4,2)
    stamp5(E,4)
    if 'fq' in EXP:
        E("buffer_load_dword v9, v8, s[16:19], 0 offen sc1\ns_waitcnt vmcnt(0)"); stamp5(E,5)
    if 'nopollq' not in EXP: poll_leader(E,8,9,20,NON+16)
    E("v_lshlrev_b32 v3, 4, v2")
    stamp(E,5); stamp4(E,1); stamp5(E,6)
    for n in range(5):
        for p in range(3):
            oob={0:"s_add_u32 s47, s47, s56\n",1:"s_add_u32 s47, s47, s57\n",2:""}[p]
            E.vm(f"s_add_u32 m0, s42, {4*n*GS+1024*p}\ns_add_u32 s47, s{28+min(n,3)}, {1024*p+(4*16384 if n==4 else 0)}\n{oob}buffer_load_dwordx4 v3, s[20:23], s47 offen sc1 lds")
    E("v_and_b32 v5, 31, v2\nv_lshrrev_b32 v6, 5, v2\ns_lshl_b32 s40, s33, 7\ns_lshl_b32 s41, s35, 5\ns_add_u32 s40, s40, s41")
    E("v_add_u32 v7, s40, v5\nv_lshlrev_b32 v7, 3, v7\nv_lshl_add_u32 v8, v6, 15, v7")
    for e,QF in ((0,12),(1,232)):
        E(f"s_mul_i32 s41, s34, 10\ns_add_u32 s41, s41, {5*e}\ns_lshl_b32 s41, s41, 14")
        E.vm(f"buffer_load_dwordx2 v[{QF}:{QF+1}], v8, s[20:23], s41 offen sc1"); E("s_add_u32 s42, s41, 16384")
        E.vm(f"buffer_load_dwordx2 v[{QF+2}:{QF+3}], v8, s[20:23], s42 offen sc1"); E("s_add_u32 s42, s41, 65536")
        E.vm(f"buffer_load_dwordx2 v[{QF+4}:{QF+5}], v7, s[20:23], s42 offen sc1")
        E(f"v_mov_b32 v{QF+6}, 0\nv_mov_b32 v{QF+7}, 0")
    stamp4(E,2)
    E("s_waitcnt vmcnt(0) lgkmcnt(0)")
    stamp4(E,3)
    E("v_cmp_eq_u32 vcc, 0, v6\ns_nop 1")
    for QF in (12,232): E(f"v_cndmask_b32 v{QF+4}, 0, v{QF+4}, vcc\nv_cndmask_b32 v{QF+5}, 0, v{QF+5}, vcc")
    l0=lab("kv"); l1=lab("kvd")
    E(f"v_mov_b32 v9, {CNT+16}\nv_mov_b32 v10, 1\ns_mov_b64 exec, 1\nds_add_u32 v9, v10\ns_mov_b64 exec, -1\ns_mov_b32 s37, 0\n{l0}:\nds_read_b32 v10, v9\ns_waitcnt lgkmcnt(0)\n"
      f"v_cmp_ne_u32 vcc, 4, v10\ns_cbranch_vccz {l1}\ns_add_u32 s37, s37, 1\ns_cmp_lt_u32 s37, {POLL_MAX*8}\ns_cbranch_scc0 {l1}\ns_sleep 1\ns_branch {l0}\n{l1}:")
    stamp(E,6); stamp4(E,4)
    attention(E)
    return E


def attention_fast(E):
    KF=32; SB=(104,120,136); PB=(152,160); O=168; CN=184; M0=200; M8=216; Q1=232; VB_=(240,248); QF=12
    PM0=None
    NEG=fhex(-1e30)
    E(f"s_lshl_b32 s43, s35, 8\nv_lshlrev_b32 v9, 3, v5\nv_add_u32 v9, s43, v9\nv_mul_u32_u24 v20, {2*GS}, v6\nv_add_u32 v20, v20, v9\nv_add_u32 v21, {4*GS}, v9")
    kr={}
    def kreads(e,ts):
        for t in ts:
            kf=KF+8*t; o=5*GS*e
            E.lds(f"ds_read_b64 v[{kf}:{kf+1}], v20 offset:{o+256*t}"); E.lds(f"ds_read_b64 v[{kf+2}:{kf+3}], v20 offset:{o+256*t+GS}")
            kr[t]=E.lds(f"ds_read_b64 v[{kf+4}:{kf+5}], v21 offset:{o+256*t}")
    E("s_lshl_b32 s46, s33, 2\ns_add_u32 s46, s46, s35\ns_sub_i32 s46, 8, s46\ns_max_i32 s46, s46, 0")
    for t in range(9):
        if t<8: E(f"s_cmp_gt_u32 s46, {t}\ns_cselect_b32 s47, 0xff7f, 0\nv_mov_b32 v{KF+8*t+6}, s47\nv_mov_b32 v{KF+8*t+7}, 0")
        else: E(f"v_mov_b32 v{KF+8*t+6}, 0\nv_mov_b32 v{KF+8*t+7}, 0")
    E(f"v_cmp_eq_u32 vcc, 0, v6\nv_mov_b32 v7, 0x3f80\ns_nop 0\nv_cndmask_b32 v{QF+6}, 0, v7, vcc\nv_mov_b32 v{Q1+6}, v{QF+6}")
    kreads(0,range(9))
    E("v_bfe_u32 v22, v2, 4, 1\nv_and_b32 v23, 3, v2\nv_bfe_u32 v24, v2, 2, 2\nv_lshl_add_u32 v24, v6, 2, v24\nv_lshlrev_b32 v24, 3, v24\nv_add_u32 v24, s43, v24")
    E(f"v_lshl_add_u32 v25, v22, 2, v23\nv_mul_u32_u24 v26, {GS}, v25\nv_add_u32 v26, {VB}, v26\nv_cmp_lt_u32 vcc, 4, v25\nv_mov_b32 v7, {ONE0}\nv_mov_b32 v8, {ONE1}")
    E(f"v_cndmask_b32 v22, v26, v7, vcc\nv_add_u32 v26, {5*GS}, v26\nv_cndmask_b32 v23, v26, v8, vcc\nv_add_u32 v22, v22, v24\nv_add_u32 v23, v23, v24")
    E(f"v_mov_b32 v28, {NEG}\nv_mov_b32 v27, 0\nv_lshlrev_b32 v29, 2, v6\nv_sub_u32 v29, v5, v29")
    for r in range(16):
        kk=8*(r>>2)+(r&3)
        E(f"v_cmp_le_i32 vcc, {kk}, v29\ns_nop 1\nv_cndmask_b32 v{M8+r}, v28, v27, vcc\nv_cndmask_b32 v{M0+r}, v27, v28, vcc")
    E("v_bfe_u32 v24, v2, 4, 1\nv_lshlrev_b32 v24, 10, v24\nv_and_b32 v25, 15, v2\nv_lshl_add_u32 v24, v25, 4, v24")
    E("s_lshl_b32 s42, s33, 1\ns_lshr_b32 s43, s35, 1\ns_add_u32 s42, s42, s43\ns_mul_i32 s42, s42, 68\ns_add_u32 s42, s42, 48\ns_lshl_b32 s42, s42, 12\ns_and_b32 s43, s35, 1\ns_lshl_b32 s43, s43, 11\ns_add_u32 s42, s42, s43")
    E("s_mul_i32 s40, s34, 5")
    def qk(t,cinit):
        kf=KF+8*t; d=SB[t%3]
        return [f"v_mfma_f32_32x32x16_bf16 v[{d}:{d+15}], v[{kf}:{kf+3}], v[{QF}:{QF+3}], {cinit}",
                f"v_mfma_f32_32x32x16_bf16 v[{d}:{d+15}], v[{kf+4}:{kf+7}], v[{QF+4}:{QF+7}], v[{d}:{d+15}]"]
    def maxes(t,first):
        d=SB[t%3]; L=[]
        for i in range(8):
            acc=30+(i&1)
            if first and i<2: L.append(f"v_max_f32 v{acc}, v{d+2*i}, v{d+2*i+1}")
            else: L.append(f"v_max3_f32 v{acc}, v{acc}, v{d+2*i}, v{d+2*i+1}")
        return L
    for e in range(2):
        va=22+e
        stamp6(E,1) if e==0 else stamp6(E,5)
        vr_={}
        def vreads(t):
            vf=VB_[t%2]
            for m in range(2):
                E.lds(f"ds_read_b64_tr_b16 v[{vf+4*m}:{vf+4*m+1}], v{va} offset:{256*t+128*m}")
                vr_[t]=E.lds(f"ds_read_b64_tr_b16 v[{vf+4*m+2}:{vf+4*m+3}], v{va} offset:{256*t+128*m+64}")
        def cin(t): return f"v[{M0}:{M0+15}]" if t==0 else (f"v[{M8}:{M8+15}]" if t==8 else "0")
        vreads(0)
        E.wl(kr[0])
        for x in qk(0,cin(0)): E(x)
        E.wl(kr[1])
        for x in qk(1,cin(1)): E(x)
        vreads(1)
        E("s_nop 5")
        def pv(t):
            vf=VB_[t%2]; p=PB[t%2]
            c0 = "0" if t==0 else f"v[{O}:{O+15}]"
            return [f"v_mfma_f32_32x32x16_bf16 v[{O}:{O+15}], v[{vf}:{vf+3}], v[{p}:{p+3}], {c0}",
                    f"v_mfma_f32_32x32x16_bf16 v[{O}:{O+15}], v[{vf+4}:{vf+7}], v[{p+4}:{p+7}], v[{O}:{O+15}]"]
        for t in range(9):
            d=SB[t%3]; p=PB[t%2]
            nx=qk(t+2,cin(t+2)) if t+2<9 else []
            pp=pv(t-1) if t>=1 else []
            if t>=1: E.wl(vr_[t-1])
            if nx: E.wl(kr[t+2])
            mf=[]
            if pp: mf+=[pp[0]]
            if nx: mf+=[nx[0]]
            if pp: mf+=[pp[1]]
            if nx: mf+=[nx[1]]
            k=0
            for g in range(4):
                for r in range(4*g,4*g+4): E(f"v_exp_f32 v{d+r}, v{d+r}")
                if k<len(mf): E(mf[k]); k+=1
            while k<len(mf): E(mf[k]); k+=1
            if t>=1 and t+1<9: vreads(t+1)
            for r in range(8): E(f"v_cvt_pk_bf16_f32 v{p+r}, v{d+2*r}, v{d+2*r+1}")
            if e==0 and t==6: kreads(1,range(0,5))
            if e==0 and t==7: kreads(1,range(5,9))
        E.wl(vr_[8]); E("s_nop 1")
        for x in pv(8): E(x)
        stamp6(E,4) if e==0 else stamp6(E,7)
        PK=SB[0]
        E(f"s_add_u32 s41, s40, {2*e}")
        E("v_add_u32 v10, s41, v6\nv_lshrrev_b32 v11, 2, v10\nv_lshlrev_b32 v11, 12, v11\nv_and_b32 v10, 3, v10\nv_lshl_add_u32 v11, v10, 8, v11\nv_add_u32 v11, v11, v24")
        E(f"s_add_u32 s45, s40, 4\ns_lshr_b32 s44, s45, 2\ns_lshl_b32 s44, s44, 12\ns_and_b32 s45, s45, 3\ns_lshl_b32 s45, s45, 8\ns_add_u32 s44, s44, s45\ns_add_u32 s44, s44, {8*e}\ns_add_u32 s44, s44, s42")
        E(f"s_nop 1\nv_mov_b32 v30, v{O+8}\nv_mov_b32 v31, v{O+8}\ns_nop 1\nv_permlane32_swap_b32 v30, v31\ns_nop 1")
        E(f"v_mov_b32 v29, {fhex(2.0**60)}\nv_cmp_nle_f32 vcc, v31, v29\nv_mov_b32 v29, {fhex(2.0**-60)}\nv_cmp_nge_f32 s[56:57], v31, v29\ns_nop 1\ns_or_b64 vcc, vcc, s[56:57]\ns_mov_b32 s36, {e}")
        if 'forcefb' in EXP: E("s_mov_b64 vcc, -1")
        E("s_cbranch_vccnz L_att_fb")
        E("v_rcp_f32 v31, v31\ns_nop 0")
        for r in range(12): E(f"v_mul_f32 v{O+r}, v{O+r}, v31")
        for r in range(6): E(f"v_cvt_pk_bf16_f32 v{PK+r}, v{O+2*r}, v{O+2*r+1}")
        E(f"buffer_store_dwordx4 v[{PK}:{PK+3}], v11, s[24:27], s42 offen sc1")
        E(f"s_mov_b32 exec_hi, 0\nbuffer_store_dwordx2 v[{PK+4}:{PK+5}], v24, s[24:27], s44 offen sc1\ns_mov_b64 exec, -1")
        if e==0:
            for r in range(8): E(f"v_mov_b32 v{12+r}, v{Q1+r}")
    E("s_branch L_att_done")

def att_out(E,O,loop,Q1,PK):
    E(f"s_nop 7\nv_mov_b32 v30, v{O+8}\nv_mov_b32 v31, v{O+8}\ns_nop 1\nv_permlane32_swap_b32 v30, v31\ns_nop 1\nv_rcp_f32 v31, v31\ns_nop 0")
    for r in range(12): E(f"v_mul_f32 v{O+r}, v{O+r}, v31")
    for r in range(6): E(f"v_cvt_pk_bf16_f32 v{PK+r}, v{O+2*r}, v{O+2*r+1}")
    E("s_mul_i32 s40, s34, 5\ns_lshl_b32 s41, s36, 1\ns_add_u32 s41, s41, s40")
    E("v_add_u32 v10, s41, v6\nv_lshrrev_b32 v11, 2, v10\nv_lshlrev_b32 v11, 12, v11\nv_and_b32 v10, 3, v10\nv_lshl_add_u32 v11, v10, 8, v11")
    E("v_bfe_u32 v23, v2, 4, 1\nv_lshlrev_b32 v23, 10, v23\nv_and_b32 v24, 15, v2\nv_lshl_add_u32 v23, v24, 4, v23\nv_add_u32 v11, v11, v23")
    E("s_lshl_b32 s42, s33, 1\ns_lshr_b32 s43, s35, 1\ns_add_u32 s42, s42, s43\ns_mul_i32 s42, s42, 68\ns_add_u32 s42, s42, 48\ns_lshl_b32 s42, s42, 12\ns_and_b32 s43, s35, 1\ns_lshl_b32 s43, s43, 11\ns_add_u32 s42, s42, s43")
    E(f"buffer_store_dwordx4 v[{PK}:{PK+3}], v11, s[24:27], s42 offen sc1")
    E("s_add_u32 s40, s40, 4\ns_lshr_b32 s44, s40, 2\ns_lshl_b32 s44, s44, 12\ns_and_b32 s45, s40, 3\ns_lshl_b32 s45, s45, 8\ns_add_u32 s44, s44, s45\ns_lshl_b32 s45, s36, 3\ns_add_u32 s44, s44, s45\ns_add_u32 s44, s44, s42")
    E(f"s_mov_b32 exec_hi, 0\nbuffer_store_dwordx2 v[{PK+4}:{PK+5}], v23, s[24:27], s44 offen sc1\ns_mov_b64 exec, -1")
    E(f"s_cmp_eq_u32 s36, 1\ns_cbranch_scc1 L_att_done")
    for r in range(8): E(f"v_mov_b32 v{12+r}, v{Q1+r}")
    E(f"s_mov_b32 s36, 1\ns_branch {loop}")
def attention_slow(E):
    E("s_mov_b32 s36, 0")
    E.label("L_att_fb")
    E("s_waitcnt lgkmcnt(0)\nv_mov_b32 v18, 0\nv_mov_b32 v238, 0")
    E("s_lshl_b32 s46, s33, 2\ns_add_u32 s46, s46, s35\ns_sub_i32 s46, 8, s46\ns_max_i32 s46, s46, 0")
    E.label("L_att")
    E(f"s_mul_i32 s42, s36, {5*GS}\ns_lshl_b32 s43, s35, 8\ns_add_u32 s42, s42, s43")
    E(f"v_lshlrev_b32 v9, 3, v5\nv_add_u32 v9, s42, v9\nv_mul_u32_u24 v20, {2*GS}, v6\nv_add_u32 v20, v20, v9\nv_add_u32 v21, {4*GS}, v9")
    E("v_bfe_u32 v22, v2, 4, 1\nv_and_b32 v23, 3, v2\nv_bfe_u32 v24, v2, 2, 2\nv_lshl_add_u32 v24, v6, 2, v24\nv_lshlrev_b32 v24, 3, v24\nv_add_u32 v24, s43, v24")
    E(f"v_lshl_add_u32 v25, v22, 2, v23\nv_mul_u32_u24 v26, {GS}, v25\ns_mul_i32 s44, s36, {5*GS}\ns_add_u32 s44, s44, {VB}\nv_add_u32 v26, s44, v26")
    E(f"s_mov_b32 s45, {ONE1}\ns_cmp_eq_u32 s36, 0\ns_cselect_b32 s45, {ONE0}, s45\nv_mov_b32 v27, s45\nv_cmp_lt_u32 vcc, 4, v25\ns_nop 1\nv_cndmask_b32 v26, v26, v27, vcc\nv_add_u32 v22, v26, v24")
    S=32; KF=176; QF=12
    for st in range(2): E(f"v_mov_b32 v{KF+8*st+6}, 0\nv_mov_b32 v{KF+8*st+7}, 0")
    E(f"v_mov_b32 v28, {fhex(-1e30)}")
    for t in range(9):
        kf=KF+8*(t%2); d=S+16*t; skip=lab("ts"); done=lab("td")
        E(f"s_cmp_gt_u32 s46, {t}\ns_cbranch_scc1 {skip}")
        E(f"ds_read_b64 v[{kf}:{kf+1}], v20 offset:{256*t}\nds_read_b64 v[{kf+2}:{kf+3}], v20 offset:{256*t+GS}\nds_read_b64 v[{kf+4}:{kf+5}], v21 offset:{256*t}\ns_waitcnt lgkmcnt(0)")
        E(f"v_mfma_f32_32x32x16_bf16 v[{d}:{d+15}], v[{kf}:{kf+3}], v[{QF}:{QF+3}], 0\nv_mfma_f32_32x32x16_bf16 v[{d}:{d+15}], v[{kf+4}:{kf+7}], v[{QF+4}:{QF+7}], v[{d}:{d+15}]")
        E(f"s_branch {done}"); E.label(skip)
        for r in range(16): E(f"v_mov_b32 v{d+r}, v28")
        E.label(done)
    E("s_nop 15\nv_lshlrev_b32 v29, 2, v6\nv_sub_u32 v29, v5, v29")
    for r in range(16):
        kk=8*(r>>2)+(r&3)
        E(f"v_cmp_le_i32 vcc, {kk}, v29\ns_nop 1\nv_cndmask_b32 v{S+128+r}, v28, v{S+128+r}, vcc\nv_cndmask_b32 v{S+r}, v{S+r}, v28, vcc")
    E(f"v_max3_f32 v30, v{S}, v{S+1}, v{S+2}")
    r=3
    while r<144:
        if r+1<144: E(f"v_max3_f32 v30, v30, v{S+r}, v{S+r+1}"); r+=2
        else: E(f"v_max_f32 v30, v30, v{S+r}"); r+=1
    E("v_mov_b32 v31, v30\nv_mov_b32 v29, v30\ns_nop 1\nv_permlane32_swap_b32 v31, v29\ns_nop 1\nv_max_f32 v30, v31, v29")
    for t in range(9):
        d=S+16*t
        for r in range(16): E(f"v_sub_f32 v{d+r}, v{d+r}, v30")
        for r in range(16): E(f"v_exp_f32 v{d+r}, v{d+r}")
        E("s_nop 0")
        for r in range(8): E(f"v_cvt_pk_bf16_f32 v{d+r}, v{d+2*r}, v{d+2*r+1}")
    O=192; VF=208
    for r in range(16): E(f"v_mov_b32 v{O+r}, 0")
    for t in range(9):
        d=S+16*t; vf=VF+8*(t%2); skip=lab("ps")
        E(f"s_cmp_gt_u32 s46, {t}\ns_cbranch_scc1 {skip}")
        for m in range(2):
            E(f"ds_read_b64_tr_b16 v[{vf+4*m}:{vf+4*m+1}], v22 offset:{256*t+128*m}\nds_read_b64_tr_b16 v[{vf+4*m+2}:{vf+4*m+3}], v22 offset:{256*t+128*m+64}")
        E("s_waitcnt lgkmcnt(0)")
        for m in range(2): E(f"v_mfma_f32_32x32x16_bf16 v[{O}:{O+15}], v[{vf+4*m}:{vf+4*m+3}], v[{d+4*m}:{d+4*m+3}], v[{O}:{O+15}]")
        E.label(skip)
    E("s_nop 7")
    att_out(E,O,"L_att",232,224)

def attention(E):
    if 'noaprio' not in EXP: E("s_setprio 1")
    attention_fast(E)
    E.label("L_att_slow")
    attention_slow(E)
    E.label("L_att_done")
    stamp(E,7)
    E("s_waitcnt vmcnt(0)")
    E(f"s_lshl_b32 s38, s33, 4\ns_add_u32 s38, s38, s34\ns_lshl_b32 s38, s38, 7\ns_add_u32 s38, s38, {WS_FO}")
    agg_flag(E,3,4,38,3,4)
    stamp(E,8)
    stamp_flush(E)
    E("s_endpgm")

def build():
    hdr=open("parallel_sum__sliding_block__mixer_channel_mlp__prompt.s.ref").read().split("; Override")[0]
    s=hdr+f"; @launch grid=(256,1,1) block=(512,1,1) lds={LDS_TOTAL}\n"
    s+='.amdgcn_target "amdgcn-amd-amdhsa--gfx950"\n.text\n'+kernel_header(KNAME)
    s+=prologue().text()+gen_A().text()+gen_F().text()
    s+='.section .rodata,"a"\n'+kernel_desc(KNAME,sgpr=102)
    return s
if __name__=="__main__":
    out=sys.argv[1] if len(sys.argv)>1 else "parallel_sum__sliding_block__mixer_channel_mlp__prompt.s"
    if len(sys.argv)>2 and sys.argv[2]=="instr": INSTR=True
    if len(sys.argv)>3: EXP.update(sys.argv[3].split(","))
    for e in EXP:
        if e.startswith("sleep"): SLEEP=int(e[5:])
    open(out,"w").write(build())
```

```python
import math, sys, struct
from asmlib import kernel_header, kernel_desc
from em import Em

KNAME="parallel_sum__sliding_block__mixer_channel_mlp__prompt_kernel"
WS_STATS=0; WS_CSP=0x10000; WS_FQ=0x90000; WS_FH=0x98000; WS_FO=0xA0000; WS_FW=0xA8000; SMALL_SZ=0xB0000
WS_W2T=0xB0000; W2T_SZ=8*68*5*1024
WS_Q=0x360000; QKV_SZ=0x280000
WS_HO=0xB00000; HO_SZ=0x880000
WS_STAMP=0x2000000
LOG2E=1.4426950408889634; CQ=(20**-0.5)*LOG2E
GC0=-2.0*LOG2E*math.sqrt(2.0/math.pi); GC1=GC0*0.044715
def fhex(f): return hex(struct.unpack("<I",struct.pack("<f",f))[0])
P_X,P_WQKV,P_WO,P_W1,P_B1,P_W2,P_B2,P_OUT,P_DBG,P_WS=60,62,64,68,70,72,74,76,78,80
SLOT=32768; P0=131072; P1=143360; U0=69632; CSF=155648; NON=156672; CNT=156704; STX=156768; B1F=156928; STA=157312; CSP4=158336; CSFW=159872; XCH=131072; CSCR=135168
GS=3104; VB=10*GS
def _ones():
    base=VB+10*GS; o0=base+((160-(base-VB))%256); b2=o0+3072; o1=b2+((64-(b2-VB))%256); return o0,o1,o1+3072
ONE0,ONE1,ATT_END=_ones(); RED=69632; LDS_TOTAL=163840
assert ATT_END<=RED
V0=20480
def wf_region(sg): return [P0,P1,U0,U0+12288,U0+2*12288,U0+3*12288,U0+4*12288,V0,V0+12288,V0+2*12288][sg]
S_NONCE=82
INSTR=False; EXP=set(); POLL_MAX=20000
_uid=[0]
def lab(b="L"):
    _uid[0]+=1; return f"{b}_{_uid[0]}"
NST=9
def stamp2(E,idx):
    if INSTR and 'barst' in EXP: E(f"s_memtime s[{84+2*idx}:{85+2*idx}]")
def stamp3(E,idx):
    if INSTR and 'epi' in EXP: E(f"s_memrealtime s[{84+2*idx}:{85+2*idx}]")
def stamp4(E,idx):
    if INSTR and 'gel' in EXP: E(f"s_memrealtime s[{84+2*idx}:{85+2*idx}]")
def stamp5(E,idx):
    if INSTR and 'fq' in EXP: E(f"s_memrealtime s[{84+2*idx}:{85+2*idx}]")
def stamp6(E,idx):
    if INSTR and 'att' in EXP:
        l=lab("s6"); E(f"s_cmp_eq_u32 s36, {0 if idx<5 else 1}\ns_cbranch_scc0 {l}\ns_memtime s[{84+2*idx}:{85+2*idx}]\n{l}:")
def stamp8(E,idx):
    if INSTR and 'p1b' in EXP: E(f"s_memtime s[{84+2*idx}:{85+2*idx}]")
def stamp9(E,idx):
    if INSTR and 'fc2' in EXP: E(f"s_memrealtime s[{84+2*idx}:{85+2*idx}]")
def stampA(E,idx):
    if INSTR and 'pA' in EXP: E(f"s_memtime s[{84+2*idx}:{85+2*idx}]")
def stampG(E,idx):
    if INSTR and 'pG' in EXP: E(f"s_memtime s[{84+2*idx}:{85+2*idx}]")
def stamp(E,idx):
    if 'pG' in EXP and idx>0: return
    if 'pA' in EXP and idx>0: return
    if 'pB' in EXP and idx>0: return
    if 'fc2' in EXP and idx>0: return
    if 'p1b' in EXP and idx>0: return
    if 'intv' in EXP and idx>0: return
    if 'lat' in EXP and idx>0: return
    if 'att' in EXP and idx>0: return
    if 'fq' in EXP and idx>0: return
    if 'gel' in EXP and idx>0: return
    if 'epi' in EXP and idx>0: return
    if 'barst' in EXP and idx>0: return
    if INSTR: E(f"s_mem{'time' if 'clk' in EXP else 'realtime'} s[{84+2*idx}:{85+2*idx}]")
def stamp_flush(E,role=0):
    if not INSTR: return
    E("s_waitcnt lgkmcnt(0)")
    if 'dbgts' in EXP:
        l=lab("dts")
        E(f"s_cmp_eq_u32 s35, 0\ns_cbranch_scc0 {l}")
        E(f"s_mov_b32 s52, s{P_DBG}\ns_mov_b32 s53, s{P_DBG+1}\ns_mov_b32 s54, 256\ns_mov_b32 s55, 0x20000\nv_mov_b32 v251, 0\ns_mov_b64 exec, 1")
        sel = (0,2,3,4,5,6,7,8) if role==0 else (2,3,4,5,6,7,8)
        base = 1 if role==0 else 9
        for n,i in enumerate(sel):
            E(f"s_sub_u32 s56, s{84+2*i}, s{S_NONCE}\nv_mov_b32 v250, s56\nbuffer_atomic_smax v250, v251, s[52:55], 0 offen offset:{4*(base+n)}")
        E("s_mov_b64 exec, -1"); E.label(l)
        return
    E(f"s_add_u32 s52, s{P_WS}, {WS_STAMP}\ns_addc_u32 s53, s{P_WS+1}, 0\ns_mov_b32 s54, 0x20000\ns_mov_b32 s55, 0x20000")
    E("s_lshl_b32 s56, s2, 3\ns_add_u32 s56, s56, s32\ns_lshl_b32 s56, s56, 6\nv_mov_b32 v251, 0")
    for i in range(NST):
        E(f"v_mov_b32 v250, s{84+2*i}"); E(f"buffer_store_dword v250, v251, s[52:55], s56 offen offset:{4*i}")
def srd(E,d,p,size,off=0):
    if off: E(f"s_add_u32 s{d}, s{p}, {off}\ns_addc_u32 s{d+1}, s{p+1}, 0")
    else: E(f"s_mov_b32 s{d}, s{p}\ns_mov_b32 s{d+1}, s{p+1}")
    E(f"s_mov_b32 s{d+2}, {size}\ns_mov_b32 s{d+3}, 0x20000")
SLEEP=8
def poll_slow(E,vaddr,vtmp):
    l0=lab("poll"); l1=lab("polld")
    E("s_mov_b32 s37, 0"); E.label(l0)
    E(f"buffer_load_dword v{vtmp}, v{vaddr}, s[16:19], 0 offen sc1\ns_waitcnt vmcnt(0)")
    E(f"v_cmp_ne_u32 vcc, s{S_NONCE}, v{vtmp}\ns_cbranch_vccz {l1}")
    E(f"s_add_u32 s37, s37, 1\ns_cmp_lt_u32 s37, {POLL_MAX}\ns_cbranch_scc0 {l1}\ns_sleep {SLEEP}\ns_branch {l0}")
    E.label(l1)
def check_or_poll(E,vaddr,vval):
    l0=lab("cp"); l1=lab("cpd")
    E(f"v_cmp_ne_u32 vcc, s{S_NONCE}, v{vval}\ns_cbranch_vccz {l1}\ns_mov_b32 s37, 0\n{l0}:\n"
      f"buffer_load_dword v{vval}, v{vaddr}, s[16:19], 0 offen sc1\ns_waitcnt vmcnt(0)\nv_cmp_ne_u32 vcc, s{S_NONCE}, v{vval}\ns_cbranch_vccz {l1}\n"
      f"s_add_u32 s37, s37, 1\ns_cmp_lt_u32 s37, {POLL_MAX}\ns_cbranch_scc0 {l1}\ns_sleep {SLEEP}\ns_branch {l0}\n{l1}:")
def poll_leader(E,vaddr,vtmp,vt2,goaddr):
    lw=lab("pw"); ld=lab("pd"); l0=lab("pl")
    E(f"v_mov_b32 v{vt2}, {goaddr}\ns_cmp_eq_u32 s35, 0\ns_cbranch_scc0 {lw}")
    poll_slow(E,vaddr,vtmp)
    E(f"v_mov_b32 v{vtmp}, s{S_NONCE}\nds_write_b32 v{vt2}, v{vtmp}\ns_waitcnt lgkmcnt(0)\ns_branch {ld}")
    E.label(lw)
    E(f"s_mov_b32 s37, 0\n{l0}:\nds_read_b32 v{vtmp}, v{vt2}\ns_waitcnt lgkmcnt(0)\nv_cmp_ne_u32 vcc, s{S_NONCE}, v{vtmp}\ns_cbranch_vccz {ld}\n"
      f"s_add_u32 s37, s37, 1\ns_cmp_lt_u32 s37, {POLL_MAX*8}\ns_cbranch_scc0 {ld}\ns_sleep 2\ns_branch {l0}")
    E.label(ld)
def flag_store(E,soff,vt0,vt1):
    E(f"v_mov_b32 v{vt0}, s{S_NONCE}\nv_mov_b32 v{vt1}, 0")
    return E.st(f"s_mov_b64 exec, 1\nbuffer_store_dword v{vt0}, v{vt1}, s[16:19], s{soff} offen sc1\ns_mov_b64 exec, -1")
def agg_flag(E,cnt_idx,nwaves,soff,vt0,vt1):
    l=lab("ag")
    E(f"v_mov_b32 v{vt0}, {CNT+4*cnt_idx}\nv_mov_b32 v{vt1}, 1\ns_mov_b64 exec, 1\nds_add_rtn_u32 v{vt1}, v{vt0}, v{vt1}\ns_waitcnt lgkmcnt(0)\ns_mov_b64 exec, -1\n"
      f"v_readfirstlane_b32 s37, v{vt1}\ns_nop 3\ns_cmp_eq_u32 s37, {nwaves-1}\ns_cbranch_scc0 {l}\nv_mov_b32 v{vt0}, s{S_NONCE}\nv_mov_b32 v{vt1}, 0\ns_mov_b64 exec, 1\n"
      f"buffer_store_dword v{vt0}, v{vt1}, s[16:19], s{soff} offen sc1\ns_mov_b64 exec, -1\n{l}:")
def lds_arrive(E,idx,vt0,vt1):
    E(f"v_mov_b32 v{vt0}, {CNT+4*idx}\nv_mov_b32 v{vt1}, 1\ns_mov_b64 exec, 1\nds_add_u32 v{vt0}, v{vt1}\ns_mov_b64 exec, -1")
def lds_wait(E,idx,target,vt0,vt1,slp=1):
    l0=lab("lw"); l1=lab("lwd")
    E(f"v_mov_b32 v{vt0}, {CNT+4*idx}\ns_mov_b32 s37, 0\n{l0}:\nds_read_b32 v{vt1}, v{vt0}\ns_waitcnt lgkmcnt(0)\nv_cmp_gt_u32 vcc, {target}, v{vt1}\ns_cbranch_vccz {l1}\n"
      f"s_add_u32 s37, s37, 1\ns_cmp_lt_u32 s37, {POLL_MAX*32}\ns_cbranch_scc0 {l1}\n"+(f"s_sleep {slp}\n" if slp else "")+f"s_branch {l0}\n{l1}:")
def allreduce(E,v,t1,t2):
    for dpp in ("quad_perm:[1,0,3,2]","quad_perm:[2,3,0,1]","row_half_mirror","row_mirror"):
        E(f"s_nop 1\nv_add_f32_dpp v{v}, v{v}, v{v} {dpp} row_mask:0xf bank_mask:0xf")
    for sw in ("16","32"):
        E(f"v_mov_b32 v{t1}, v{v}\nv_mov_b32 v{t2}, v{v}")
        E(f"s_nop 1\nv_permlane{sw}_swap_b32 v{t1}, v{t2}\ns_nop 1\nv_add_f32 v{v}, v{t1}, v{t2}")
def gelu_ops(x,t,c0):
    return [f"v_mul_f32 v{t}, v{x}, v{x}",f"v_fma_f32 v{t}, v{t}, s51, v{c0}",f"v_mul_f32 v{t}, v{t}, v{x}",
            f"v_exp_f32 v{t}, v{t}",f"v_add_f32 v{t}, 1.0, v{t}",f"v_rcp_f32 v{t}, v{t}",f"v_mul_f32 v{x}, v{x}, v{t}"]

def prologue():
    E=Em()
    E("s_cmp_ge_u32 s2, 256\ns_cbranch_scc1 L_end")
    stamp(E,0)
    E("s_load_dwordx2 s[4:5], s[0:1], 0\ns_load_dwordx2 s[8:9], s[0:1], 8\ns_load_dwordx2 s[12:13], s[0:1], 32\ns_load_dwordx2 s[16:17], s[0:1], 80")
    E("s_load_dwordx16 s[60:75], s[0:1], 0\ns_load_dwordx4 s[76:79], s[0:1], 64\ns_load_dwordx2 s[80:81], s[0:1], 80")
    E("v_lshrrev_b32 v1, 6, v0\nv_and_b32 v2, 63, v0\nv_readfirstlane_b32 s32, v1")
    E("s_mov_b32 s6, 2621440\ns_mov_b32 s7, 0x20000\ns_mov_b32 s10, %d\ns_mov_b32 s11, 0x20000"%(640*3840))
    E("s_mov_b32 s14, %d\ns_mov_b32 s15, 0x20000\ns_mov_b32 s18, %d\ns_mov_b32 s19, 0x20000"%(640*3072,SMALL_SZ))
    E("s_and_b32 s37, s2, 7\ns_lshr_b32 s38, s2, 3")
    E("s_lshr_b32 s33, s37, 2\ns_lshl_b32 s33, s33, 3\ns_and_b32 s39, s38, 7\ns_add_u32 s33, s33, s39")
    E("s_and_b32 s34, s37, 3\ns_lshl_b32 s34, s34, 2\ns_lshr_b32 s39, s38, 3\ns_add_u32 s34, s34, s39")
    E("s_min_u32 s41, s34, 14\ns_lshl_b32 s41, s41, 8\ns_mul_i32 s42, s34, 192")
    E("s_and_b32 s35, s32, 3\ns_cmp_ge_u32 s32, 4\ns_cbranch_scc1 L_F")
    return E

def gen_F():
    U_V0=int(next((e[3:] for e in EXP if e.startswith('uv0')),'8'))
    E=Em(); E.label("L_F")
    if 'nofprio' not in EXP: E("s_setprio 2")
    E("s_mov_b32 s45, 0\ns_mov_b32 s46, 0\ns_mul_i32 s40, s33, 163840\ns_lshl_b32 s43, s35, 12\ns_mul_i32 s44, s35, 3072")
    E("v_lshrrev_b32 v3, 3, v2\ns_lshl_b32 s39, s35, 5\nv_add_u32 v3, s39, v3\nv_mul_u32_u24 v3, 1280, v3")
    E("v_and_b32 v4, 7, v2\nv_lshrrev_b32 v5, 4, v2\nv_xor_b32 v6, v4, v5\nv_lshl_add_u32 v10, v6, 4, v3")
    E(f"v_or_b32 v7, 4, v5\nv_xor_b32 v7, v4, v7\nv_lshl_add_u32 v11, v7, 4, v3\nv_add_u32 v11, {8*1280}, v11")
    E(f"v_add_u32 v12, {16*1280}, v10\nv_add_u32 v13, {16*1280}, v11")
    E("s_lshl_b32 s39, s35, 4\nv_add_u32 v3, s39, v5\nv_mul_u32_u24 v3, 3840, v3")
    E("v_and_b32 v4, 15, v2\nv_lshlrev_b32 v6, 2, v5\nv_xor_b32 v4, v4, v6\nv_lshl_add_u32 v14, v4, 4, v3")
    for q in range(1,4): E(f"v_add_u32 v{14+q}, {q*4*3840}, v14")
    E("s_waitcnt lgkmcnt(0)")
    def dma_ops(tau):
        slot=tau%4; G=[]
        for q in range(4):
            pre=f"s_add_u32 s56, s40, {tau*128}\ns_add_u32 s57, s41, {tau*64*3840}\n" if q==0 else ""
            G.append(pre+f"s_add_u32 m0, s43, {slot*SLOT+q*1024}\ns_nop 0\nbuffer_load_dwordx4 v{10+q}, s[4:7], s56 offen lds")
        for q in range(4):
            G.append(f"s_add_u32 m0, s43, {slot*SLOT+16384+q*1024}\ns_nop 0\nbuffer_load_dwordx4 v{14+q}, s[8:11], s57 offen lds")
        return G
    WFV=(34,35,40)
    def dma_wf(sg, sink):
        reg=wf_region(sg); last=None
        for t in range(3):
            pre=f"s_add_u32 s58, s42, {sg*64*3072}\n" if t==0 else ""
            last=sink.vm(pre+f"s_add_u32 m0, s44, {reg+t*1024}\ns_nop 0\nbuffer_load_dwordx4 v{WFV[t]}, s[12:15], s58 offen lds")
        return last
    D={}
    for g in dma_ops(0): D[0]=E.vm(g)
    if 'early12' in EXP:
        for tau in (1,2):
            for g in dma_ops(tau): D[tau]=E.vm(g)
    E(f"v_lshlrev_b32 v3, 3, v2\nv_mov_b32 v4, 0\nv_mov_b32 v5, 0\nv_add_u32 v6, {CSF+512}, v3\nv_add_u32 v3, {CNT}, v3")
    E("s_mov_b64 exec, 0xff"); E.lds("ds_write_b64 v3, v[4:5]"); E("s_mov_b64 exec, -1"); ci=E.lds("ds_write_b64 v6, v[4:5]")
    stamp(E,1)
    E("s_lshl_b32 s39, s35, 4")
    for t in range(3):
        E(f"v_add_u32 v3, {64*t}, v2\nv_mul_u32_u24 v4, 171, v3\nv_lshrrev_b32 v4, 11, v4\nv_mul_u32_u24 v5, 12, v4\nv_sub_u32 v5, v3, v5")
        E(f"v_add_u32 v4, s39, v4\nv_mul_u32_u24 v4, 3072, v4\nv_lshl_add_u32 v{WFV[t]}, v5, 4, v4")
    E("v_and_b32 v3, 31, v2\ns_lshl_b32 s37, s35, 5\nv_add_u32 v3, s37, v3\nv_lshrrev_b32 v4, 5, v2\nv_bfe_u32 v5, v3, 1, 3\nv_xor_b32 v5, v5, v4\nv_lshlrev_b32 v3, 7, v3")
    for t in range(4): E(f"v_xor_b32 v6, {2*t}, v5\nv_lshl_add_u32 v{18+t}, v6, 4, v3\nv_add_u32 v{22+t}, 65536, v{18+t}")
    E("v_bfe_u32 v3, v2, 4, 1\nv_lshrrev_b32 v4, 5, v2\nv_bfe_u32 v5, v2, 2, 2\nv_and_b32 v6, 3, v2\nv_lshl_add_u32 v7, v4, 3, v5")
    E(f"v_mul_u32_u24 v41, 192, v7\nv_lshl_add_u32 v41, v3, 5, v41\nv_lshl_add_u32 v41, v6, 3, v41\nv_add_u32 v47, {P0}, v41\nv_add_u32 v46, {U0}, v41")
    E("v_lshlrev_b32 v8, 8, v7\nv_add_u32 v8, 16384, v8\nv_lshrrev_b32 v9, 1, v6\nv_lshl_add_u32 v9, v3, 1, v9\nv_lshl_add_u32 v8, v9, 4, v8\nv_and_b32 v9, 1, v6\nv_lshl_add_u32 v8, v9, 3, v8")
    E("v_xor_b32 v9, s35, v5\nv_lshl_add_u32 v64, v9, 6, v8\nv_add_u32 v65, 65536, v64")
    E("v_and_b32 v3, 15, v2\nv_bfe_u32 v4, v2, 4, 1\nv_cmp_eq_u32 vcc, v3, v4\nv_mov_b32 v5, 0x3f803f80\ns_nop 0\nv_cndmask_b32 v36, 0, v5, vcc\nv_mov_b32 v37, v36\nv_mov_b32 v38, v36\nv_mov_b32 v39, v36")
    E("v_mov_b32 v66, 0\nv_mov_b32 v67, 0\nv_mov_b32 v68, 0\nv_mov_b32 v69, 0")
    if 'early12' not in EXP:
        for tau in (1,2):
            for g in dma_ops(tau): D[tau]=E.vm(g)
    XS=96; W={}; xr={}
    PRE=Em()
    PRE("s_lshl_b32 s37, s33, 7\ns_lshl_b32 s38, s34, 3\ns_add_u32 s37, s37, s38\ns_lshl_b32 s38, s35, 1\ns_add_u32 s37, s37, s38\ns_mul_i32 s36, s37, 1280")
    PRE("v_and_b32 v3, 31, v2\nv_mul_u32_u24 v3, 40, v3\nv_lshrrev_b32 v4, 5, v2\nv_mul_u32_u24 v4, 1280, v4\nv_add_u32 v3, v3, v4")
    srd(PRE,48,P_DBG,256)
    l=lab("non")
    PRE(f"s_or_b32 s37, s2, s35\ns_cmp_eq_u32 s37, 0\ns_cbranch_scc0 {l}\ns_memrealtime s[54:55]\ns_waitcnt lgkmcnt(0)\ns_or_b32 s54, s54, 1\nv_mov_b32 v6, s54\nv_mov_b32 v7, 0\ns_mov_b64 exec, 1\n"
        f"buffer_store_dword v6, v7, s[48:51], 0 offen sc1\ns_mov_b64 exec, -1\n{l}:")
    l=lab("nl")
    PRE(f"v_mov_b32 v82, 0\nv_mov_b32 v81, 0\ns_cmp_eq_u32 s35, 0\ns_cbranch_scc0 {l}\nbuffer_load_dword v81, v82, s[48:51], 0 offen sc1\n{l}:")
    PRE.vm("buffer_load_dwordx4 v[70:73], v3, s[4:7], s36 offen"); PRE.vm("buffer_load_dwordx4 v[74:77], v3, s[4:7], s36 offen offset:16")
    PRE.vm("buffer_load_dwordx2 v[78:79], v3, s[4:7], s36 offen offset:32")
    srd(PRE,52,P_B1,3072)
    PRE("v_lshlrev_b32 v4, 2, v2\ns_mul_i32 s37, s34, 192\nv_min_u32 v4, 188, v4")
    pl1=PRE.vm("buffer_load_dword v80, v4, s[52:55], s37 offen")
    F=Em()
    F.wv(pl1)
    l0=lab("n0"); l1=lab("n1"); l2=lab("n2")
    F(f"s_cmp_eq_u32 s35, 0\ns_cbranch_scc0 {l2}\ns_mov_b32 s37, 0\n{l0}:\nv_readfirstlane_b32 s{S_NONCE}, v81\ns_nop 3\ns_cmp_lg_u32 s{S_NONCE}, 0\ns_cbranch_scc1 {l1}\n"
      f"s_add_u32 s37, s37, 1\ns_cmp_lt_u32 s37, {POLL_MAX}\ns_cbranch_scc0 {l1}\ns_sleep 1\nbuffer_load_dword v81, v82, s[48:51], 0 offen sc1\ns_waitcnt vmcnt(0)\ns_branch {l0}\n{l1}:\n"
      f"v_mov_b32 v82, {NON}\nds_write_b32 v82, v81\n{l2}:")
    F("v_lshlrev_b32 v82, 16, v80"); F("v_and_b32 v83, 0xffff0000, v80"); F("v_min_u32 v4, 47, v2"); F("v_lshlrev_b32 v4, 3, v4"); F(f"v_add_u32 v4, {B1F}, v4")
    F.lds("ds_write_b64 v4, v[82:83]")
    B=200
    for i in range(10):
        F(f"v_lshlrev_b32 v{B+2*i}, 16, v{70+i}"); F(f"v_and_b32 v{B+2*i+1}, 0xffff0000, v{70+i}")
    F(f"v_add_f32 v70, v{B}, v{B+1}"); F(f"v_add_f32 v71, v{B+2}, v{B+3}")
    for i in range(4,20,2):
        F(f"v_add_f32 v70, v70, v{B+i}"); F(f"v_add_f32 v71, v71, v{B+i+1}")
    F("v_add_f32 v70, v70, v71")
    def red32(v):
        for dpp in ("quad_perm:[1,0,3,2]","quad_perm:[2,3,0,1]","row_half_mirror","row_mirror"):
            F(f"s_nop 1\nv_add_f32_dpp v{v}, v{v}, v{v} {dpp} row_mask:0xf bank_mask:0xf")
        F(f"v_mov_b32 v78, v{v}\nv_mov_b32 v79, v{v}")
        F(f"s_nop 1\nv_permlane16_swap_b32 v78, v79\ns_nop 1\nv_add_f32 v{v}, v78, v79")
    red32(70)
    F(f"v_mul_f32 v70, {fhex(1.0/640)}, v70")
    nF1=len(F.it)
    for i in range(20): F(f"v_sub_f32 v{B+i}, v{B+i}, v70")
    F(f"v_mul_f32 v71, v{B}, v{B}"); F(f"v_mul_f32 v72, v{B+1}, v{B+1}")
    for i in range(2,20,2):
        F(f"v_fmac_f32 v71, v{B+i}, v{B+i}"); F(f"v_fmac_f32 v72, v{B+i+1}, v{B+i+1}")
    F("v_add_f32 v71, v71, v72")
    red32(71)
    F(f"v_mul_f32 v71, {fhex(1.0/640)}, v71"); F(f"v_add_f32 v72, {fhex(1e-5)}, v71")
    F("v_rsq_f32 v75, v72\ns_nop 0"); F("v_mul_f32 v73, v75, v75"); F("v_mul_f32 v73, v73, v71"); F(f"v_add_f32 v73, {fhex(1e-5)}, v73")
    F("v_rsq_f32 v73, v73\nv_mov_b32 v74, v70"); F("s_nop 0\nv_mul_f32 v76, v75, v73")
    F("v_lshrrev_b32 v78, 5, v2"); F("v_lshlrev_b32 v78, 4, v78"); F(f"s_lshl_b32 s37, s35, 5\ns_add_u32 s37, s37, {STX}"); F("v_add_u32 v78, s37, v78"); F("v_mov_b32 v77, 0")
    F.lds("ds_write_b128 v78, v[74:77]")
    F2=Em()
    F2(f"v_mov_b32 v3, {NON}"); nr=F2.lds("ds_read_b32 v83, v3")
    F2("v_and_b32 v78, 7, v2"); F2("v_lshlrev_b32 v78, 4, v78"); F2(f"v_add_u32 v79, {STX}, v78")
    sr=F2.lds("ds_read_b128 v[74:77], v79"); F2.wl(sr); F2(f"v_mov_b32 v77, v83\nv_readfirstlane_b32 s{S_NONCE}, v83")
    l=lab("sst")
    F2(f"s_cmp_eq_u32 s35, 0\ns_cbranch_scc0 {l}\ns_lshl_b32 s37, s33, 7\ns_lshl_b32 s38, s34, 3\ns_add_u32 s37, s37, s38\ns_lshl_b32 s37, s37, 4\ns_mov_b64 exec, 0xff\n"
       f"buffer_store_dwordx4 v[74:77], v78, s[16:19], s37 offen sc1\ns_mov_b64 exec, -1\n{l}:")
    allF=list(F.it)
    def part(L,a,b):
        x=Em(); x.it=L[a:b]; return x
    def cat(*xs):
        y=Em()
        for x in xs:
            if x: y.it+=x.it
        return y
    fill={1:part(allF,0,nF1), 2:part(allF,nF1,len(allF)), 3:F2}
    E.wv(D[0]); E.wl(ci); E("s_barrier"); stamp(E,2); stamp2(E,1)
    csr={}
    for tau in range(10):
        M=Em(); slot=tau%4
        if tau==0: M.extend(PRE)
        for t in range(4):
            a=(18 if slot<2 else 22)+t; u=4*tau+t
            xr[u]=M.lds(f"ds_read_b128 v[{XS+4*u}:{XS+4*u+3}], v{a} offset:{(slot&1)*SLOT}")
        wa=64 if slot<2 else 65; so=(slot&1)*SLOT
        for t in range(4):
            for jj in range(2):
                csr[t]=M.lds(f"ds_read_b64_tr_b16 v[{48+4*t+2*jj}:{49+4*t+2*jj}], v{wa} offset:{so+(16*t+4*jj)*256}")
        M.slot(10)
        tn = 3 if tau==0 else (tau+2 if (tau>=2 and tau+2<=9) else None)
        if tn is not None:
            for k,g in enumerate(dma_ops(tn)):
                D[tn]=M.vm(g); M.slot(10)
                if k==1:
                    for t in range(4):
                        M.wl(csr[t]); M(f"v_mfma_f32_16x16x32_bf16 v[66:69], v[36:39], v[{48+4*t}:{51+4*t}], v[66:69]")
        else:
            for t in range(4):
                M.wl(csr[t]); M(f"v_mfma_f32_16x16x32_bf16 v[66:69], v[36:39], v[{48+4*t}:{51+4*t}], v[66:69]")
            M.slot(300)
        if tau==6: W[0]=dma_wf(0,M)
        if tau==7: W[1]=dma_wf(1,M)
        if tau==8: W[2]=dma_wf(2,M); W[3]=dma_wf(3,M)
        if tau==9:
            for sg in range(4,7): W[sg]=dma_wf(sg,M)
        if fill.get(tau): M.merge(fill[tau])
        E.extend(M)
        if tau<9:
            E.wv(D[tau+1])
            if tau+1==9: E.wv(W[1])
            E("s_waitcnt lgkmcnt(0)")
            E("s_barrier")
            if tau<7: stamp2(E,tau+2)
    E(f"v_and_b32 v3, 15, v2\nv_lshlrev_b32 v3, 2, v3\ns_lshl_b32 s37, s35, 7\ns_add_u32 s37, s37, {CSF}\nv_add_u32 v3, s37, v3\ns_nop 4")
    E("s_mov_b64 exec, 0xffff"); E.lds("ds_write_b32 v3, v66"); cq=E.lds("ds_write_b32 v3, v67 offset:64"); E("s_mov_b64 exec, -1")
    E.wl(cq); lds_arrive(E,8,3,8)
    if 'nofprio' not in EXP: E("s_setprio 0")
    stamp(E,3)
    srd(E,24,P_WS,HO_SZ,off=WS_HO)
    E(f"s_mov_b32 s51, {fhex(GC1)}")
    E("s_lshl_b32 s47, s33, 1\ns_lshr_b32 s59, s35, 1\ns_add_u32 s47, s47, s59\ns_mul_i32 s47, s47, 68\ns_mul_i32 s59, s34, 3\ns_add_u32 s47, s47, s59\ns_lshl_b32 s47, s47, 12")
    E("s_and_b32 s59, s35, 1\ns_lshl_b32 s59, s59, 11\ns_add_u32 s47, s47, s59")
    ACC=48
    for r in [36,37,38,39]: E(f"v_mov_b32 v{ACC+r}, 0")
    for r in (4,5,6,7,42,43,44,45): E(f"v_mov_b32 v{r}, 0")
    E("s_mul_i32 s37, s35, 3072\nv_add_u32 v88, s37, v47\nv_add_u32 v89, s37, v46\nv_add_u32 v90, s37, v41")
    VS=Em()
    VS("v_lshrrev_b32 v3, 5, v2\nv_lshlrev_b32 v34, 4, v3"); VS(f"v_add_u32 v35, {B1F}, v34"); VS(f"s_mul_i32 s37, s35, 384\ns_add_u32 s37, s37, {CSFW}\nv_add_u32 v34, s37, v34"); VS(f"v_mov_b32 v40, {fhex(GC0)}")
    VS("v_bfe_u32 v8, v2, 4, 1\nv_lshlrev_b32 v91, 10, v8\nv_lshrrev_b32 v3, 5, v2\nv_lshl_add_u32 v91, v3, 8, v91\nv_and_b32 v8, 15, v2\nv_lshl_add_u32 v91, v8, 4, v91")
    VS(f"v_and_b32 v8, 31, v2\ns_lshl_b32 s37, s35, 5\nv_add_u32 v8, s37, v8\nv_lshlrev_b32 v8, 3, v8\nv_add_u32 v92, {STA}, v8")
    VS(f"v_and_b32 v3, 15, v2\nv_lshlrev_b32 v3, 2, v3\ns_mul_i32 s37, s35, 384\ns_add_u32 s37, s37, {CSP4}\nv_add_u32 v9, s37, v3")
    def wf_addr(sg):
        reg=wf_region(sg)
        return (47,reg-P0) if reg>=P0 else ((46,reg-U0) if reg>=U0 else (41,reg))
    SA=[10,18,26]
    rd={}; pend=[]
    def readsA(u):
        sg,t=divmod(u,4); base,ro=wf_addr(sg); L=[]
        for T in range(2):
            fr=SA[u%3]+4*T
            for jj in range(2): L.append(f"ds_read_b64_tr_b16 v[{fr+2*jj}:{fr+2*jj+1}], v{base} offset:{ro+(16*t+4*jj)*192+64*T}")
        return L
    E.wl(xr[39])
    stamp8(E,1)
    if INSTR and 'pA' in EXP: E("s_memtime s[100:101]")
    for u in (0,1):
        for r in readsA(u): rd[u]=E.lds(r)
    for u in range(40):
        if u==3: stamp8(E,2)
        if u==7: stamp8(E,3)
        if u==15: stamp8(E,4)
        if u==27: stamp8(E,5)
        if u==U_V0:
            stampA(E,1)
            if 'nowA' not in EXP: lds_wait(E,8,4,3,8)
            if 'nowA' not in EXP: lds_wait(E,5,4,3,8)
            stampA(E,2)
            if 'nofprio' not in EXP: E("s_setprio 2")
            tmp=Em()
            for sg2 in (7,8,9): W[sg2]=dma_wf(sg2,tmp)
            pend=list(tmp.it)
        if 'nowA' in EXP:
            if u in (4,12,24): lds_arrive(E,6,3,8)
        else:
          if u==4: E.wv(W[3]); lds_arrive(E,6,3,8)
          if u==6: lds_wait(E,6,4,3,8)
          if u==12: stampA(E,3); E.wv(W[6]); stampA(E,4); lds_arrive(E,6,3,8)
          if u==14: lds_wait(E,6,8,3,8); stampA(E,5)
          if u==24: stampA(E,6); E.wv(W[9]); stampA(E,7); lds_arrive(E,6,3,8)
        if u==26 and 'nowA' not in EXP:
            lds_wait(E,6,12,3,8)
        E.wl(rd[u])
        rl=readsA(u+2) if u+2<40 else []
        for T in range(2):
            fr=SA[u%3]+4*T; a=ACC+16*T
            c_="0" if u==0 else f"v[{a}:{a+15}]"
            E(f"v_mfma_f32_32x32x16_bf16 v[{a}:{a+15}], v[{fr}:{fr+3}], v[{XS+4*u}:{XS+4*u+3}], {c_}")
            for r in rl[2*T:2*T+2]: rd[u+2]=E.lds(r)
            if pend and (T==0 or 'pend1' not in EXP): E.it.append(pend.pop(0))
        if u==30: E.extend(VS)
        sg_,t_=divmod(u,4)
        base,ro=wf_addr(sg_); b2={47:88,46:89,41:90}[base]
        if t_>=1:
            acc={1:84,2:4,3:42}[t_]
            E.wl(c2r); E(f"v_mfma_f32_16x16x32_bf16 v[{acc}:{acc+3}], v[36:39], v[80:83], v[{acc}:{acc+3}]")
        if t_<=2:
            off=ro+{0:128,1:0,2:64}[t_]
            E.lds(f"ds_read_b64_tr_b16 v[80:81], v{b2} offset:{off}")
            c2r=E.lds(f"ds_read_b64_tr_b16 v[82:83], v{b2} offset:{off+4*192}")
    stamp8(E,6); stampG(E,1)
    E("s_nop 7")
    E("s_mov_b64 exec, 0xffff")
    E.lds("ds_write_b32 v9, v4"); E.lds("ds_write_b32 v9, v5 offset:64"); E.lds("ds_write_b32 v9, v42 offset:128"); E.lds("ds_write_b32 v9, v43 offset:192")
    E.lds("ds_write_b32 v9, v84 offset:256"); ca=E.lds("ds_write_b32 v9, v85 offset:320")
    E("s_mov_b64 exec, -1")
    E("v_mov_b32 v44, v91\nv_mov_b32 v45, v92")
    cs_done=ca
    SBk=[10,14,18,22,26]
    def readsB(u):
        sg,t=divmod(u,4); base,ro=wf_addr(sg); fr=SBk[u%5]
        return [f"ds_read_b64_tr_b16 v[{fr+2*jj}:{fr+2*jj+1}], v{base} offset:{ro+(16*t+4*jj)*192+128}" for jj in range(2)]
    hs=[None]
    def gelu_tile(G,T,cb0,tt):
        a0=ACC+16*T; rr={}
        order=(0,2,1,3)
        def rd_(i):
            a=order[i]; c=cb0+8*(i%2)
            G.lds(f"ds_read_b128 v[{c}:{c+3}], v34 offset:{128*T+32*a}")
            rr[i]=G.lds(f"ds_read_b128 v[{c+4}:{c+7}], v35 offset:{128*T+32*a}")
        rd_(0); rd_(1)
        for i in range(4):
            a=order[i]; b=a0+4*a; c=cb0+8*(i%2)
            G.wl(rr[i])
            for k in range(4): G(f"v_fma_f32 v{c+4+k}, v42, v{c+k}, v{c+4+k}")
            for k in range(4): G(f"v_fma_f32 v{b+k}, v{b+k}, v43, v{c+4+k}")
            if i+2<4: rd_(i+2)
            ops=[[f"v_mul_f32 v{tt+k}, v{b+k}, v{b+k}",f"v_fma_f32 v{tt+k}, v{tt+k}, s51, v40",f"v_mul_f32 v{tt+k}, v{tt+k}, v{b+k}",f"v_exp_f32 v{tt+k}, v{tt+k}",
                  f"v_add_f32 v{tt+k}, 1.0, v{tt+k}",f"v_rcp_f32 v{tt+k}, v{tt+k}",f"v_mul_f32 v{b+k}, v{b+k}, v{tt+k}"] for k in range(4)]
            for s_ in range(7):
                for k in range(4): G(ops[k][s_])
            o=a0+{0:0,2:2,1:4,3:6}[a]
            G(f"v_cvt_pk_bf16_f32 v{o}, v{b}, v{b+1}"); G(f"v_cvt_pk_bf16_f32 v{o+1}, v{b+2}, v{b+3}")
        G(f"s_add_u32 s46, s47, {T*4096}")
        G.vm(f"buffer_store_dwordx4 v[{a0}:{a0+3}], v44, s[24:27], s46 offen sc1")
        hs[0]=G.vm(f"buffer_store_dwordx4 v[{a0+4}:{a0+7}], v44, s[24:27], s46 offen offset:512 sc1")
    G=Em()
    sta=G.lds("ds_read_b64 v[42:43], v45")
    G(f"v_min_u32 v30, 47, v2\nv_lshlrev_b32 v30, 3, v30"); G(f"v_add_u32 v31, {CSP4}, v30")
    for w in range(4): pr=G.lds(f"ds_read_b64 v[{208+2*w}:{209+2*w}], v31 offset:{384*w}")
    G(f"s_mul_i32 s37, s35, 384\ns_add_u32 s37, s37, {CSFW}"); G("v_add_u32 v30, s37, v30")
    G.wl(pr)
    G("v_add_f32 v208, v208, v210"); G("v_add_f32 v209, v209, v211"); G("v_add_f32 v212, v212, v214"); G("v_add_f32 v213, v213, v215")
    G("v_add_f32 v208, v208, v212"); G("v_add_f32 v209, v209, v213")
    fw_=G.lds("ds_write_b64 v30, v[208:209]"); G.wl(fw_)
    gelu_tile(G,0,208,30); gelu_tile(G,1,208,30)
    rd={}
    order=list(range(28,40))+list(range(0,28))
    def readsB2(n):
        u=order[n]; sg,t=divmod(u,4); base,ro=wf_addr(sg); fr=SBk[n%5]
        return [f"ds_read_b64_tr_b16 v[{fr+2*jj}:{fr+2*jj+1}], v{base} offset:{ro+(16*t+4*jj)*192+128}" for jj in range(2)]
    for n in range(4):
        for r in readsB2(n): rd[n]=E.lds(r)
    stampG(E,2)
    E.wl(cs_done); stampG(E,3); lds_arrive(E,6,3,8); stampG(E,4)
    M=Em(); a=ACC+32
    for n in range(40):
        u=order[n]
        M.wl(rd[n]); fr=SBk[n%5]
        cin_=("0" if n==0 else f"v[{a}:{a+15}]")
        M(f"v_mfma_f32_32x32x16_bf16 v[{a}:{a+15}], v[{fr}:{fr+3}], v[{XS+4*u}:{XS+4*u+3}], {cin_}")
        if n+4<40:
            for r in readsB2(n+4): rd[n+4]=M.lds(r)
        if n==4:
            x=Em()
            if INSTR and 'pB' in EXP: x("s_memtime s[86:87]")
            stampG(x,5); lds_wait(x,6,16,3,8); stampG(x,6); lds_wait(x,9,4,3,8); stampG(x,7)
            if INSTR and 'pB' in EXP: x("s_memtime s[88:89]")
            M.extend(x)
        if INSTR and 'pB' in EXP and n in (12,20,28,36): M(f"s_memtime s[{90+2*((n-12)//8)}:{91+2*((n-12)//8)}]")
        if n==12:
            x=Em(); lds_arrive(x,7,3,8); M.extend(x)
        if n>=4: M.slot(10)
    M.merge(G)
    E.extend(M)
    stamp8(E,7); stampG(E,8)
    E("s_nop 6")
    stamp(E,4)
    G=Em(); gelu_tile(G,2,208,30); E.extend(G)
    if 'nofprio' not in EXP: E("s_setprio %d"%(2 if 'f2prio' in EXP else 0))
    stamp8(E,8)
    hs=hs[0]
    E(f"s_lshl_b32 s59, s33, 4\ns_add_u32 s59, s59, s34\ns_lshl_b32 s59, s59, 7\ns_add_u32 s59, s59, {WS_FH}")
    E("s_and_b32 s37, s2, 7\ns_lshr_b32 s38, s2, 3")
    if 'map48' in EXP:
        E("s_lshl_b32 s33, s37, 2\ns_and_b32 s39, s38, 3\ns_add_u32 s33, s33, s39\ns_lshr_b32 s34, s38, 2")
    else:
        E("s_lshr_b32 s33, s37, 2\ns_lshl_b32 s33, s33, 4\ns_bfe_u32 s39, s37, 0x10001\ns_lshl_b32 s39, s39, 3\ns_add_u32 s33, s33, s39\ns_and_b32 s39, s38, 7\ns_add_u32 s33, s33, s39")
        E("s_and_b32 s34, s37, 1\ns_lshl_b32 s34, s34, 2\ns_lshr_b32 s39, s38, 3\ns_add_u32 s34, s34, s39")
    srd(E,8,P_WS,W2T_SZ,off=WS_W2T); srd(E,12,P_B2,1280); srd(E,20,P_OUT,2621440)
    E("v_lshrrev_b32 v3, 1, v2\nv_min_u32 v3, 16, v3\ns_mul_i32 s37, s35, 12\ns_mul_i32 s38, s35, 5\ns_add_u32 s38, s38, 36")
    E("v_add_u32 v4, s37, v3\nv_add_u32 v5, s38, v3\nv_cmp_gt_u32 vcc, 12, v3\ns_nop 1\nv_cndmask_b32 v4, v5, v4, vcc")
    E("s_mul_i32 s37, s34, 5\ns_lshr_b32 s38, s37, 2\ns_add_u32 s37, s37, 4\ns_lshr_b32 s39, s37, 2")
    E("v_and_b32 v5, 1, v2\nv_mov_b32 v6, s38\nv_mov_b32 v7, s39\nv_cmp_eq_u32 vcc, 0, v5\ns_nop 1\nv_cndmask_b32 v6, v7, v6, vcc")
    E(f"v_mul_u32_u24 v4, 10, v4\nv_add_u32 v4, v4, v6\nv_mul_u32_u24 v4, 683, v4\nv_lshrrev_b32 v4, 11, v4\nv_lshlrev_b32 v4, 7, v4\nv_add_u32 v4, {WS_FW}, v4")
    fw=E.vm("buffer_load_dword v8, v4, s[16:19], 0 offen sc1")
    E("v_mov_b32 v9, v4")
    E("v_lshlrev_b32 v3, 4, v2\nv_add_u32 v4, 4096, v3")
    E("v_and_b32 v5, 15, v2\ns_lshl_b32 s39, s33, 6\ns_lshl_b32 s40, s35, 4\ns_add_u32 s39, s39, s40\nv_add_u32 v5, s39, v5\nv_mul_u32_u24 v5, 1280, v5\nv_lshrrev_b32 v6, 4, v2\nv_lshlrev_b32 v6, 3, v6")
    E("s_mul_i32 s39, s34, 160\nv_add_u32 v6, s39, v6\nv_add_u32 v5, v5, v6")
    E("s_mul_i32 s40, s33, %d\ns_mul_i32 s41, s34, %d"%(68*4096,68*5120))
    E("s_mul_i32 s42, s35, 12\ns_mul_i32 s43, s35, 5\ns_add_u32 s43, s43, 48")
    E("s_lshl_b32 s44, s42, 12\ns_add_u32 s44, s44, s40\ns_mul_i32 s45, s42, 5120\ns_add_u32 s45, s45, s41")
    E("s_lshl_b32 s46, s43, 12\ns_add_u32 s46, s46, s40\ns_mul_i32 s47, s43, 5120\ns_add_u32 s47, s47, s41")
    ACC3=10; WB=[100+20*i for i in range(5)]; HB=[200,216,232]
    XR=90; B2R=248
    LW={}; LH={}
    def loadsW(i):
        b=WB[i%5]; ws_,ii=(45,i) if i<12 else (47,i-12)
        E(f"s_add_u32 s57, s{ws_}, {ii*5120}")
        for nt in range(4): E.vm(f"buffer_load_dwordx4 v[{b+4*nt}:{b+4*nt+3}], v3, s[8:11], s57 offen offset:{1024*nt} sc1")
        LW[i]=E.vm(f"buffer_load_dwordx4 v[{b+16}:{b+19}], v4, s[8:11], s57 offen sc1")
    def loadsH(i):
        b=HB[i%3]; hs_,ii=(44,i) if i<12 else (46,i-12)
        E(f"s_add_u32 s56, s{hs_}, {ii*4096}")
        for tt in range(4): LH[i]=E.vm(f"buffer_load_dwordx4 v[{b+4*tt}:{b+4*tt+3}], v3, s[24:27], s56 offen offset:{1024*tt} sc1")
    stamp4(E,5)
    E.wv(hs); stamp4(E,6); agg_flag(E,2,4,59,7,8) if False else None
    E.wv(fw)
    agg_flag(E,2,4,59,7,207)
    stamp(E,5)
    check_or_poll(E,9,8)
    for nt in range(5): E.vm(f"buffer_load_dwordx2 v[{XR+2*nt}:{XR+2*nt+1}], v5, s[4:7], 0 offen offset:{32*nt}")
    for i in range(5): loadsW(i)
    def group_addr(base,vd):
        E(f"v_and_b32 v{vd}, 3, v2\ns_lshl_b32 s37, s35, 2\nv_add_u32 v{vd}, s37, v{vd}\ns_lshr_b32 s37, s33, 1\ns_lshl_b32 s37, s37, 4\nv_add_u32 v{vd}, s37, v{vd}\nv_lshlrev_b32 v{vd}, 7, v{vd}\nv_add_u32 v{vd}, {base}, v{vd}")
    group_addr(WS_FH,7)
    poll_slow(E,7,8)
    stamp(E,6)
    group_addr(WS_FO,7)
    if 'fidle' in EXP: poll_slow(E,7,8)
    def mf(i):
        E.wv(LH[i]); E.wv(LW[i])
        b=WB[i%5]; h=HB[i%3]
        for nt in range(5):
            for tt in range(4):
                a=ACC3+16*nt+4*tt
                c_="0" if i==0 else f"v[{a}:{a+3}]"
                E(f"v_mfma_f32_16x16x32_bf16 v[{a}:{a+3}], v[{b+4*nt}:{b+4*nt+3}], v[{h+4*tt}:{h+4*tt+3}], {c_}")
    stamp9(E,1)
    for i in range(3): loadsH(i)
    for i in range(17):
        if i==1: stamp9(E,2)
        if i==6: stamp9(E,3)
        if i==8: fo=E.vm("buffer_load_dword v9, v7, s[16:19], 0 offen sc1")
        if i==9:
            stamp9(E,4); E.wv(fo); check_or_poll(E,7,9); stamp9(E,5)
        mf(i)
        if i+3<17: loadsH(i+3)
        if i+5<17: loadsW(i+5)
        if i==12:
            for nt in range(4): E.vm(f"buffer_load_dwordx2 v[{B2R+2*nt}:{B2R+2*nt+1}], v6, s[12:15], 0 offen offset:{32*nt}")
            b2l=E.vm(f"buffer_load_dwordx2 v[8:9], v6, s[12:15], 0 offen offset:128")
    stamp(E,7); stamp9(E,6)
    E("s_nop 15")
    E(f"s_mul_i32 s39, s35, 20480\ns_add_u32 s39, s39, {RED}\nv_add_u32 v7, s39, v3")
    for nt in range(5):
        for tt in range(4):
            a=ACC3+16*nt+4*tt
            w_=E.lds(f"ds_write_b128 v7, v[{a}:{a+3}] offset:{(nt*4+tt)*1024}")
    E.wl(w_); E("s_barrier"); stamp9(E,7)
    E(f"s_lshl_b32 s39, s35, 10\ns_add_u32 s39, s39, {RED}\nv_add_u32 v7, s39, v3\nv_add_u32 v2, 40960, v7")
    R=100
    for nt in range(5):
        for w in range(4):
            base=7 if w<2 else 2
            r_=E.lds(f"ds_read_b128 v[{R+16*nt+4*w}:{R+16*nt+4*w+3}], v{base} offset:{(w%2)*20480+nt*4096}")
    E.wv(b2l); E.wl(r_)
    for nt in range(5):
        b=R+16*nt
        for i in range(4): E(f"v_add_f32 v{b+i}, v{b+i}, v{b+4+i}\nv_add_f32 v{b+8+i}, v{b+8+i}, v{b+12+i}")
        for i in range(4): E(f"v_add_f32 v{b+i}, v{b+i}, v{b+8+i}")
        b2=(B2R+2*nt) if nt<4 else 8
        for (src,t0) in ((XR+2*nt,10),(b2,14)):
            E(f"v_lshlrev_b32 v{t0}, 16, v{src}\nv_and_b32 v{t0+1}, 0xffff0000, v{src}\nv_lshlrev_b32 v{t0+2}, 16, v{src+1}\nv_and_b32 v{t0+3}, 0xffff0000, v{src+1}")
        for i in range(4): E(f"v_add_f32 v{b+i}, v{b+i}, v{14+i}")
        for i in range(4): E(f"v_add_f32 v{b+i}, v{b+i}, v{10+i}")
        E(f"v_cvt_pk_bf16_f32 v{20+2*nt}, v{b}, v{b+1}\nv_cvt_pk_bf16_f32 v{21+2*nt}, v{b+2}, v{b+3}")
        E.st(f"buffer_store_dwordx2 v[{20+2*nt}:{21+2*nt}], v5, s[20:23], 0 offen offset:{32*nt} {'sc1' if 'outsc1' in EXP else ('nt' if 'outnt' in EXP else '')}")
    stamp(E,8); stamp9(E,8)
    stamp_flush(E,1)
    E.label("L_end"); E("s_endpgm"); E.label("L_codeend")
    return E


def gen_A():
    E=Em()
    if 'nopf' not in EXP:
        E("s_getpc_b64 s[56:57]\nL_pc:\ns_sub_u32 s56, s56, L_pc-%s\ns_subb_u32 s57, s57, 0"%KNAME)
        E("v_lshlrev_b32 v3, 7, v2\ns_lshl_b32 s37, s35, 13\nv_add_u32 v3, s37, v3\nv_add_u32 v8, 0x8000, v3\nv_min_u32 v8, L_codeend-%s-4, v8"%KNAME)
        E("v_mov_b32 v5, s57\nv_add_co_u32 v4, vcc, s56, v3\ns_nop 1\nv_addc_co_u32 v5, vcc, 0, v5, vcc")
        E.vm("global_load_dword v254, v[4:5], off")
        E("v_mov_b32 v5, s57\nv_add_co_u32 v4, vcc, s56, v8\ns_nop 1\nv_addc_co_u32 v5, vcc, 0, v5, vcc")
        E.vm("global_load_dword v255, v[4:5], off")
    E("v_and_b32 v3, 31, v2\ns_lshl_b32 s37, s35, 5\nv_add_u32 v3, s37, v3\nv_lshrrev_b32 v4, 5, v2\nv_bfe_u32 v5, v3, 1, 3\nv_xor_b32 v5, v5, v4\nv_lshlrev_b32 v3, 7, v3")
    for t in range(4): E(f"v_xor_b32 v6, {2*t}, v5\nv_lshl_add_u32 v{10+t}, v6, 4, v3\nv_add_u32 v{14+t}, 65536, v{10+t}")
    E("v_bfe_u32 v3, v2, 4, 1\nv_lshrrev_b32 v4, 5, v2\nv_bfe_u32 v5, v2, 2, 2\nv_and_b32 v6, 3, v2\nv_lshl_add_u32 v7, v4, 3, v5")
    E("v_lshlrev_b32 v8, 8, v7\nv_add_u32 v8, 16384, v8\nv_lshrrev_b32 v9, 1, v6\nv_lshl_add_u32 v9, v3, 1, v9\nv_lshl_add_u32 v8, v9, 4, v8\nv_and_b32 v9, 1, v6\nv_lshl_add_u32 v8, v9, 3, v8")
    for T in range(4): E(f"v_xor_b32 v9, {T}, v5\nv_lshl_add_u32 v{18+T}, v9, 6, v8\nv_add_u32 v{22+T}, 65536, v{18+T}")
    E("v_and_b32 v70, 31, v2\nv_lshrrev_b32 v71, 5, v2\ns_and_b32 s37, s34, 3\ns_lshl_b32 s37, s37, 5\ns_lshl_b32 s38, s33, 7\ns_add_u32 s37, s37, s38\nv_add_u32 v70, s37, v70\nv_mul_u32_u24 v70, 1280, v70\nv_lshl_add_u32 v70, v71, 7, v70")
    E("v_bfe_u32 v72, v2, 1, 3\nv_lshrrev_b32 v73, 4, v2\nv_lshl_add_u32 v72, v73, 6, v72\ns_and_b32 s37, s33, 7\ns_lshl_b32 s37, s37, 3\nv_add_u32 v72, s37, v72\nv_and_b32 v73, 1, v2\nv_lshlrev_b32 v73, 7, v73")
    E("v_mul_u32_u24 v74, 3840, v72\nv_add_u32 v74, v74, v73\nv_add_u32 v74, s41, v74\nv_mul_u32_u24 v75, 3072, v72\nv_add_u32 v75, v75, v73\nv_add_u32 v75, s42, v75")
    E("s_cmp_eq_u32 s35, 1\ns_cselect_b64 vcc, -1, 0\ns_nop 1\nv_cndmask_b32 v31, v70, v74, vcc\ns_cmp_eq_u32 s35, 2\ns_cselect_b64 vcc, -1, 0\ns_nop 1\nv_cndmask_b32 v31, v31, v75, vcc")
    E(f"s_mov_b32 s44, {3*128}\ns_mov_b32 s43, 512\ns_mov_b32 s40, 0x5\n"
      f"s_cmp_eq_u32 s35, 3\ns_cselect_b32 s44, {5*128}, s44\ns_cselect_b32 s40, 0xa, s40\n"
      f"s_cmp_eq_u32 s35, 1\ns_cselect_b32 s44, {3*64*3840}, s44\ns_cselect_b32 s43, {4*64*3840}, s43\n"
      f"s_cmp_eq_u32 s35, 2\ns_cselect_b32 s44, 0, s44\ns_cselect_b32 s43, {4*64*3072}, s43\ns_cselect_b32 s40, 0xe, s40")
    if 'wfonly' in EXP: E("s_cmp_eq_u32 s35, 2\ns_cselect_b32 s40, 0xe, 0")
    E("s_waitcnt lgkmcnt(0)")
    E("s_cmp_eq_u32 s35, 1\ns_cselect_b32 s48, s8, s4\ns_cselect_b32 s49, s9, s5\ns_cselect_b32 s50, s10, s6\ns_cmp_eq_u32 s35, 2\ns_cselect_b32 s48, s12, s48\ns_cselect_b32 s49, s13, s49\ns_cselect_b32 s50, s14, s50\ns_mov_b32 s51, 0x20000")
    def pfpoint(p):
        x=Em(); l=lab("pfp")
        if 'l2pf' in EXP:
            x(f"s_bitcmp1_b32 s40, {p}\ns_cbranch_scc0 {l}\nbuffer_load_dword v253, v31, s[48:51], s44 offen\ns_add_u32 s44, s44, s43\n{l}:")
        return x
    if 'tlb' in EXP:
        l=lab("tlb")
        txt=(f"s_cmp_lt_u32 s2, {8 if 'tlball' not in EXP else 256}\ns_cbranch_scc0 {l}\n"
             f"s_mov_b32 s52, s{P_WS}\ns_mov_b32 s53, s{P_WS+1}\ns_mov_b32 s54, {0x1400000}\ns_mov_b32 s55, 0x20000\n"
             "v_lshlrev_b32 v66, 16, v2\ns_lshl_b32 s37, s35, 22\nbuffer_load_dword v252, v66, s[52:55], s37 offen\n"
             "s_cmp_eq_u32 s35, 0\ns_cbranch_scc0 "+l+"b\ns_mov_b32 s37, 0x1000000\nbuffer_load_dword v252, v66, s[52:55], s37 offen\n"+l+"b:\n"
             f"s_cmp_eq_u32 s35, 1\ns_cbranch_scc0 {l}c\ns_mov_b32 s52, s{P_OUT}\ns_mov_b32 s53, s{P_OUT+1}\ns_mov_b32 s54, 2621440\nbuffer_load_dword v252, v66, s[52:55], 0 offen\n{l}c:\n"
             f"s_cmp_eq_u32 s35, 2\ns_cbranch_scc0 {l}d\ns_mov_b32 s52, s{P_W2}\ns_mov_b32 s53, s{P_W2+1}\ns_mov_b32 s54, {1536*1280}\nbuffer_load_dword v252, v66, s[52:55], 0 offen\n{l}d:\n"
             f"s_cmp_eq_u32 s35, 3\ns_cbranch_scc0 {l}e\ns_mov_b32 s52, s{P_WO}\ns_mov_b32 s53, s{P_WO+1}\ns_mov_b32 s54, {640*1280}\nbuffer_load_dword v252, v66, s[52:55], 0 offen\n{l}e:\n"
             f"{l}:")
        E(txt)
    T_=Em()
    T_("s_mul_i32 s31, s2, 3\ns_add_u32 s31, s31, s35\ns_cmp_lt_u32 s35, 3\ns_cselect_b32 s31, s31, 1000\ns_min_u32 s31, s31, 680")
    T_("s_min_u32 s28, s31, 679\ns_mul_i32 s29, s28, 6554\ns_lshr_b32 s29, s29, 16\ns_mul_i32 s30, s29, 10\ns_sub_u32 s30, s28, s30")
    T_(f"s_cmp_ge_u32 s29, 48\ns_cselect_b32 s52, s{P_WO}, s{P_W2}\ns_cselect_b32 s53, s{P_WO+1}, s{P_W2+1}\ns_mov_b32 s54, {640*1280}\ns_cselect_b32 s54, s54, {1536*1280}\ns_mov_b32 s55, 0x20000\ns_cselect_b64 s[56:57], -1, 0")
    T_("v_lshrrev_b32 v84, 3, v2"); T_("v_and_b32 v85, 7, v2"); T_("s_lshl_b32 s28, s30, 7"); T_("v_lshl_add_u32 v85, v85, 4, s28")
    T_("s_sub_u32 s38, s29, 48\ns_lshl_b32 s58, s38, 2\ns_lshl_b32 s59, s29, 5"); T_("v_lshrrev_b32 v86, 5, v2"); T_("v_and_b32 v87, 3, v84")
    for i in range(4):
        half=i>>1
        for x in (f"v_add_u32 v88, {2*(i&1)}, v86","v_add_u32 v88, s58, v88","v_mul_u32_u24 v89, 205, v88","v_lshrrev_b32 v89, 10, v89","v_mul_u32_u24 v90, 5, v89","v_sub_u32 v90, v88, v90",
                  "v_lshrrev_b32 v91, 1, v90","v_and_b32 v92, 1, v90",f"v_add_u32 v92, {2*half}, v92"): T_(x)
        T_(f"v_cmp_eq_u32 vcc, 4, v90\nv_mov_b32 v88, {half}\nv_mov_b32 v90, 4\nv_cndmask_b32 v91, v91, v88, vcc\nv_cndmask_b32 v92, v92, v90, vcc")
        for x in ("v_lshl_add_u32 v91, v89, 1, v91","v_mul_u32_u24 v91, 20, v91","v_lshl_add_u32 v91, v92, 2, v91","v_add_u32 v91, v91, v87"): T_(x)
        T_(f"v_add_u32 v88, {8*i}, v84"); T_("v_add_u32 v88, s59, v88")
        T_("v_cndmask_b32 v91, v88, v91, s[56:57]")
        T_("v_mul_u32_u24 v91, 1280, v91"); T_("v_add_u32 v91, v91, v85")
        cld=T_.vm(f"buffer_load_dwordx4 v[{236+4*i}:{239+4*i}], v91, s[52:55], 0 offen")
    C2=Em()
    C2(f"s_mul_i32 s59, s35, 5120")
    C2("v_lshrrev_b32 v84, 3, v2"); C2("v_mul_u32_u24 v84, 160, v84"); C2("v_and_b32 v85, 7, v2"); C2("v_lshl_add_u32 v84, v85, 4, v84"); C2("v_add_u32 v84, s59, v84")
    C2.wv(cld)
    for i in range(4): cw=C2.lds(f"ds_write_b128 v84, v[{236+4*i}:{239+4*i}] offset:{8*160*i}")
    C2("v_lshrrev_b32 v85, 2, v2"); C2("v_mul_u32_u24 v85, 160, v85"); C2("v_and_b32 v86, 3, v2"); C2("v_lshl_add_u32 v85, v86, 3, v85"); C2("v_add_u32 v85, s59, v85")
    srd(C2,52,P_WS,W2T_SZ,off=WS_W2T)
    C2.wl(cw)
    for i in range(4):
        C2.lds(f"ds_read_b64_tr_b16 v[{236+4*i}:{237+4*i}], v85 offset:{32*i}")
        cr=C2.lds(f"ds_read_b64_tr_b16 v[{238+4*i}:{239+4*i}], v85 offset:{32*i+16*160}")
    C2("v_lshlrev_b32 v86, 4, v2")
    C2.wl(cr)
    l=lab("cst"); txt=f"s_cmp_lt_u32 s31, 680\ns_cbranch_scc0 {l}\n"
    for i in range(4):
        txt+=(f"s_lshl_b32 s37, s30, 2\ns_add_u32 s37, s37, {i}\ns_mul_i32 s38, s37, 205\ns_lshr_b32 s38, s38, 10\ns_mul_i32 s39, s38, 5\ns_sub_u32 s39, s37, s39\n"
              "s_mul_i32 s38, s38, 68\ns_add_u32 s38, s38, s29\ns_mul_i32 s38, s38, 5\ns_add_u32 s38, s38, s39\ns_lshl_b32 s38, s38, 10\n"
              f"buffer_store_dwordx4 v[{236+4*i}:{239+4*i}], v86, s[52:55], s38 offen sc1\n")
    C2(txt+f"{l}:")
    stamp(E,1)
    ACC=96; FR=(160,180,200)
    for r in range(64): E(f"v_mov_b32 v{ACC+r}, 0")
    F3=Em()
    F3(f"v_mov_b32 v3, {NON}"); nr=F3.lds("ds_read_b32 v62, v3"); F3.wl(nr); F3(f"s_nop 0\nv_readfirstlane_b32 s{S_NONCE}, v62")
    F3("v_and_b32 v3, 31, v2"); F3("s_lshl_b32 s37, s33, 7\ns_lshl_b32 s38, s35, 5\ns_add_u32 s37, s37, s38"); F3("v_add_u32 v3, s37, v3")
    F3("v_lshlrev_b32 v91, 3, v3"); F3("v_lshlrev_b32 v90, 4, v3")
    F4=Em()
    stl=F4.vm("buffer_load_dwordx4 v[92:95], v90, s[16:19], 0 offen sc1")
    def reads(u):
        tau,t=divmod(u,4); slot=tau%4; hi=slot>=2; fr=FR[u%3]; so=(slot&1)*SLOT
        L=[f"ds_read_b128 v[{fr}:{fr+3}], v{(14 if hi else 10)+t} offset:{so}"]
        for T in range(4):
            for jj in range(2):
                d=fr+4+4*T+2*jj
                L.append(f"ds_read_b64_tr_b16 v[{d}:{d+1}], v{(22 if hi else 18)+T} offset:{so+(16*t+4*jj)*256}")
        return L
    rd={}
    E("s_barrier"); stamp(E,2)
    for u in (0,1):
        for r in reads(u): rd[u]=E.lds(r)
    def steps(u0,u1,filler,per):
        M=Em()
        for u in range(u0,u1):
            tau,t=divmod(u,4); fr=FR[u%3]
            M.wl(rd[u])
            rl=reads(u+2) if u+2<40 else []
            cuts=[0,3,5,7,9]
            for T in range(4):
                a=ACC+16*T
                if "nomfma" not in EXP: M(f"v_mfma_f32_32x32x16_bf16 v[{a}:{a+15}], v[{fr+4+4*T}:{fr+7+4*T}], v[{fr}:{fr+3}], v[{a}:{a+15}]")
                for r in rl[cuts[T]:cuts[T+1]]: rd[u+2]=M.lds(r)
                M.slot(per)
        if filler: M.merge(filler)
        E.extend(M)
    PFS=[int(c) for c in (next((e[3:] for e in EXP if e.startswith("pfs")),"0123"))]
    def cat(*xs):
        y=Em()
        for x in xs:
            if x: y.it+=x.it
        return y
    def fl(iv,base=None):
        return cat(*[pfpoint(p) for p in range(4) if PFS[p]==iv],base)
    steps(0,2,fl(0),5); E("s_barrier")
    for b in range(2,10):
        steps(4*b-6,4*b-2,fl(b-1,{6:F3,8:F4}.get(b)),3); E("s_barrier")
    steps(34,40,None,0)
    lds_arrive(E,5,3,4)
    stamp(E,3)
    srd(E,20,P_WS,3*QKV_SZ,off=WS_Q)
    E("s_cmp_eq_u32 s34, 15\ns_cselect_b32 s22, 0, s22")
    E("s_mul_i32 s45, s34, 205\ns_lshr_b32 s45, s45, 10\ns_mul_i32 s46, s45, 5\ns_sub_u32 s46, s34, s46")
    E(f"v_lshrrev_b32 v4, 5, v2\nv_lshlrev_b32 v26, 4, v4\nv_add_u32 v26, {CSF}, v26\nv_lshlrev_b32 v4, 14, v4\nv_add_u32 v91, v91, v4")
    E(f"v_and_b32 v8, 31, v2\ns_lshl_b32 s37, s35, 5\nv_add_u32 v8, s37, v8\nv_lshlrev_b32 v8, 3, v8\nv_add_u32 v8, {STA}, v8")
    E.wv(stl)
    l0=lab("sp"); l1=lab("spd")
    E(f"v_cmp_ne_u32 vcc, s{S_NONCE}, v95\ns_cbranch_vccz {l1}\ns_mov_b32 s37, 0\n{l0}:\nbuffer_load_dwordx4 v[92:95], v90, s[16:19], 0 offen sc1\ns_waitcnt vmcnt(0)\n"
      f"v_cmp_ne_u32 vcc, s{S_NONCE}, v95\ns_cbranch_vccz {l1}\ns_add_u32 s37, s37, 1\ns_cmp_lt_u32 s37, {POLL_MAX}\ns_cbranch_scc0 {l1}\ns_sleep 2\ns_branch {l0}\n{l1}:")
    E("v_mul_f32 v6, v92, v94\nv_sub_f32 v6, 0, v6\nv_mov_b32 v7, v94")
    sw=E.lds("ds_write_b64 v8, v[6:7]")
    E(f"v_mul_f32 v94, {fhex(CQ)}, v93\ns_cmp_eq_u32 s45, 0\ns_cselect_b64 vcc, -1, 0\ns_nop 1\nv_cndmask_b32 v93, v93, v94, vcc\nv_sub_f32 v92, 0, v92")
    E(f"s_mul_i32 s45, s45, {QKV_SZ}\ns_lshl_b32 s46, s46, 19\ns_add_u32 s45, s45, s46")
    E.wl(sw); lds_arrive(E,9,3,4)
    stamp3(E,2)
    lds_wait(E,8,4,3,4)
    stamp3(E,3)
    crs=[]
    for T in range(4):
        for a in range(4): cr=E.lds(f"ds_read_b128 v[{160+16*T+4*a}:{163+16*T+4*a}], v26 offset:{128*T+32*a}")
        crs.append(cr)
    for T in range(4):
        E.wl(crs[T])
        for a in range(4):
            b=ACC+16*T+4*a; c=160+16*T+4*a
            for i in range(4): E(f"v_fma_f32 v{b+i}, v92, v{c+i}, v{b+i}")
            for i in range(4): E(f"v_mul_f32 v{b+i}, v{b+i}, v93")
            o=40+2*((4*T+a)%8)
            E(f"v_cvt_pk_bf16_f32 v{o}, v{b}, v{b+1}\nv_cvt_pk_bf16_f32 v{o+1}, v{b+2}, v{b+3}")
            E(f"s_add_u32 s46, s45, {(8*T+2*a)*16384}")
            qs=E.st(f"buffer_store_dwordx2 v[{o}:{o+1}], v91, s[20:23], s46 offen sc1")
    stamp3(E,4)
    E.wv(qs)
    stamp3(E,7)
    E(f"s_lshl_b32 s38, s33, 4\ns_add_u32 s38, s38, s34\ns_lshl_b32 s38, s38, 7\ns_add_u32 s38, s38, {WS_FQ}")
    agg_flag(E,0,4,38,3,4)
    stamp3(E,8)
    stamp(E,4)
    E.extend(T_)
    lds_wait(E,5,4,3,4)
    E.extend(C2)
    E(f"s_mov_b32 s22, {3*QKV_SZ}")
    srd(E,24,P_WS,HO_SZ,off=WS_HO)
    E("s_mul_i32 s37, s34, 10\ns_lshr_b32 s38, s37, 5\ns_add_u32 s37, s37, 9\ns_lshr_b32 s39, s37, 5")
    E("v_min_u32 v3, 13, v2\nv_mul_u32_u24 v4, 43, v3\nv_lshrrev_b32 v4, 8, v4\nv_mul_u32_u24 v5, 6, v4\nv_sub_u32 v5, v3, v5")
    E("v_mul_u32_u24 v6, 86, v5\nv_lshrrev_b32 v6, 8, v6\nv_mul_u32_u24 v7, 3, v6\nv_sub_u32 v7, v5, v7")
    E("v_cmp_eq_u32 vcc, 2, v4\nv_mov_b32 v8, 0\ns_nop 0\nv_cndmask_b32 v6, v6, v5, vcc\nv_cndmask_b32 v7, v7, v8, vcc")
    E("v_add_u32 v8, 1, v4\nv_mul_u32_u24 v8, 5, v8\nv_cmp_eq_u32 vcc, 15, v8\nv_mov_b32 v9, 0\ns_nop 0\nv_cndmask_b32 v8, v8, v9, vcc")
    E("v_mov_b32 v9, s38\nv_mov_b32 v20, s39\nv_cmp_eq_u32 vcc, 0, v6\ns_nop 1\nv_cndmask_b32 v9, v20, v9, vcc\nv_add_u32 v8, v8, v9")
    E(f"v_sub_u32 v9, s33, v7\nv_max_i32 v9, 0, v9\nv_lshl_add_u32 v8, v9, 4, v8\nv_lshlrev_b32 v8, 7, v8\nv_add_u32 v8, {WS_FQ}, v8")
    E("v_mov_b32 v10, 0x3f80\nv_mov_b32 v11, 0\nv_lshlrev_b32 v4, 3, v0")
    E.lds(f"ds_write_b64 v4, v[10:11] offset:{ONE0}"); E(f"v_add_u32 v5, {ONE1}, v4"); E.lds("ds_write_b64 v5, v[10:11]")
    E("v_min_u32 v6, 127, v0\nv_lshlrev_b32 v6, 3, v6"); E.lds(f"ds_write_b64 v6, v[10:11] offset:{ONE0+2048}"); E(f"v_add_u32 v6, {ONE1}, v6"); E.lds("ds_write_b64 v6, v[10:11] offset:2048")
    E("s_cmp_lt_u32 s33, 2\ns_cselect_b32 s56, 0x40000000, 0\ns_cmp_lt_u32 s33, 1\ns_cselect_b32 s57, 0x40000000, 0")
    E("s_lshl_b32 s40, s33, 10\ns_sub_u32 s40, s40, 2048\ns_mul_i32 s41, s34, %d\ns_add_u32 s40, s40, s41\ns_add_u32 s40, s40, %d"%(10*16384,QKV_SZ))
    E(f"s_lshl_b32 s41, s35, 14\ns_add_u32 s28, s40, s41\ns_mul_i32 s42, s35, {GS}\ns_add_u32 s29, s28, {4*16384}")
    E(f"s_cmp_ge_u32 s35, 2\ns_cselect_b32 s45, {QKV_SZ-10*16384}, 0\ns_add_u32 s30, s28, s45\ns_add_u32 s30, s30, {8*16384}\ns_add_u32 s31, s28, {12*16384+QKV_SZ-10*16384}")
    E("s_waitcnt vmcnt(0) lgkmcnt(0)")
    E(f"s_lshl_b32 s38, s2, 7\ns_add_u32 s38, s38, {WS_FW}")
    agg_flag(E,1,4,38,3,4)
    lds_wait(E,7,4,3,4,2)
    stamp5(E,4)
    if 'fq' in EXP:
        E("buffer_load_dword v9, v8, s[16:19], 0 offen sc1\ns_waitcnt vmcnt(0)"); stamp5(E,5)
    if 'nopollq' not in EXP: poll_leader(E,8,9,20,NON+16)
    E("v_lshlrev_b32 v3, 4, v2")
    stamp(E,5); stamp4(E,1); stamp5(E,6)
    for n in range(5):
        for p in range(3):
            oob={0:"s_add_u32 s47, s47, s56\n",1:"s_add_u32 s47, s47, s57\n",2:""}[p]
            E.vm(f"s_add_u32 m0, s42, {4*n*GS+1024*p}\ns_add_u32 s47, s{28+min(n,3)}, {1024*p+(4*16384 if n==4 else 0)}\n{oob}buffer_load_dwordx4 v3, s[20:23], s47 offen sc1 lds")
    E("v_and_b32 v5, 31, v2\nv_lshrrev_b32 v6, 5, v2\ns_lshl_b32 s40, s33, 7\ns_lshl_b32 s41, s35, 5\ns_add_u32 s40, s40, s41")
    E("v_add_u32 v7, s40, v5\nv_lshlrev_b32 v7, 3, v7\nv_lshl_add_u32 v8, v6, 15, v7")
    for e,QF in ((0,12),(1,232)):
        E(f"s_mul_i32 s41, s34, 10\ns_add_u32 s41, s41, {5*e}\ns_lshl_b32 s41, s41, 14")
        E.vm(f"buffer_load_dwordx2 v[{QF}:{QF+1}], v8, s[20:23], s41 offen sc1"); E("s_add_u32 s42, s41, 16384")
        E.vm(f"buffer_load_dwordx2 v[{QF+2}:{QF+3}], v8, s[20:23], s42 offen sc1"); E("s_add_u32 s42, s41, 65536")
        E.vm(f"buffer_load_dwordx2 v[{QF+4}:{QF+5}], v7, s[20:23], s42 offen sc1")
        E(f"v_mov_b32 v{QF+6}, 0\nv_mov_b32 v{QF+7}, 0")
    stamp4(E,2)
    E("s_waitcnt vmcnt(0) lgkmcnt(0)")
    stamp4(E,3)
    E("v_cmp_eq_u32 vcc, 0, v6\ns_nop 1")
    for QF in (12,232): E(f"v_cndmask_b32 v{QF+4}, 0, v{QF+4}, vcc\nv_cndmask_b32 v{QF+5}, 0, v{QF+5}, vcc")
    l0=lab("kv"); l1=lab("kvd")
    E(f"v_mov_b32 v9, {CNT+16}\nv_mov_b32 v10, 1\ns_mov_b64 exec, 1\nds_add_u32 v9, v10\ns_mov_b64 exec, -1\ns_mov_b32 s37, 0\n{l0}:\nds_read_b32 v10, v9\ns_waitcnt lgkmcnt(0)\n"
      f"v_cmp_ne_u32 vcc, 4, v10\ns_cbranch_vccz {l1}\ns_add_u32 s37, s37, 1\ns_cmp_lt_u32 s37, {POLL_MAX*8}\ns_cbranch_scc0 {l1}\ns_sleep 1\ns_branch {l0}\n{l1}:")
    stamp(E,6); stamp4(E,4)
    attention(E)
    return E


def attention_fast(E):
    KF=32; SB=(104,120,136); PB=(152,160); O=168; CN=184; M0=200; M8=216; Q1=232; VB_=(240,248); QF=12
    PM0=None
    NEG=fhex(-1e30)
    E(f"s_lshl_b32 s43, s35, 8\nv_lshlrev_b32 v9, 3, v5\nv_add_u32 v9, s43, v9\nv_mul_u32_u24 v20, {2*GS}, v6\nv_add_u32 v20, v20, v9\nv_add_u32 v21, {4*GS}, v9")
    kr={}
    def kreads(e,ts):
        for t in ts:
            kf=KF+8*t; o=5*GS*e
            E.lds(f"ds_read_b64 v[{kf}:{kf+1}], v20 offset:{o+256*t}"); E.lds(f"ds_read_b64 v[{kf+2}:{kf+3}], v20 offset:{o+256*t+GS}")
            kr[t]=E.lds(f"ds_read_b64 v[{kf+4}:{kf+5}], v21 offset:{o+256*t}")
    E("s_lshl_b32 s46, s33, 2\ns_add_u32 s46, s46, s35\ns_sub_i32 s46, 8, s46\ns_max_i32 s46, s46, 0")
    for t in range(9):
        if t<8: E(f"s_cmp_gt_u32 s46, {t}\ns_cselect_b32 s47, 0xff7f, 0\nv_mov_b32 v{KF+8*t+6}, s47\nv_mov_b32 v{KF+8*t+7}, 0")
        else: E(f"v_mov_b32 v{KF+8*t+6}, 0\nv_mov_b32 v{KF+8*t+7}, 0")
    E(f"v_cmp_eq_u32 vcc, 0, v6\nv_mov_b32 v7, 0x3f80\ns_nop 0\nv_cndmask_b32 v{QF+6}, 0, v7, vcc\nv_mov_b32 v{Q1+6}, v{QF+6}")
    kreads(0,range(9))
    E("v_bfe_u32 v22, v2, 4, 1\nv_and_b32 v23, 3, v2\nv_bfe_u32 v24, v2, 2, 2\nv_lshl_add_u32 v24, v6, 2, v24\nv_lshlrev_b32 v24, 3, v24\nv_add_u32 v24, s43, v24")
    E(f"v_lshl_add_u32 v25, v22, 2, v23\nv_mul_u32_u24 v26, {GS}, v25\nv_add_u32 v26, {VB}, v26\nv_cmp_lt_u32 vcc, 4, v25\nv_mov_b32 v7, {ONE0}\nv_mov_b32 v8, {ONE1}")
    E(f"v_cndmask_b32 v22, v26, v7, vcc\nv_add_u32 v26, {5*GS}, v26\nv_cndmask_b32 v23, v26, v8, vcc\nv_add_u32 v22, v22, v24\nv_add_u32 v23, v23, v24")
    E(f"v_mov_b32 v28, {NEG}\nv_mov_b32 v27, 0\nv_lshlrev_b32 v29, 2, v6\nv_sub_u32 v29, v5, v29")
    for r in range(16):
        kk=8*(r>>2)+(r&3)
        E(f"v_cmp_le_i32 vcc, {kk}, v29\ns_nop 1\nv_cndmask_b32 v{M8+r}, v28, v27, vcc\nv_cndmask_b32 v{M0+r}, v27, v28, vcc")
    E("v_bfe_u32 v24, v2, 4, 1\nv_lshlrev_b32 v24, 10, v24\nv_and_b32 v25, 15, v2\nv_lshl_add_u32 v24, v25, 4, v24")
    E("s_lshl_b32 s42, s33, 1\ns_lshr_b32 s43, s35, 1\ns_add_u32 s42, s42, s43\ns_mul_i32 s42, s42, 68\ns_add_u32 s42, s42, 48\ns_lshl_b32 s42, s42, 12\ns_and_b32 s43, s35, 1\ns_lshl_b32 s43, s43, 11\ns_add_u32 s42, s42, s43")
    E("s_mul_i32 s40, s34, 5")
    def qk(t,cinit):
        kf=KF+8*t; d=SB[t%3]
        return [f"v_mfma_f32_32x32x16_bf16 v[{d}:{d+15}], v[{kf}:{kf+3}], v[{QF}:{QF+3}], {cinit}",
                f"v_mfma_f32_32x32x16_bf16 v[{d}:{d+15}], v[{kf+4}:{kf+7}], v[{QF+4}:{QF+7}], v[{d}:{d+15}]"]
    def maxes(t,first):
        d=SB[t%3]; L=[]
        for i in range(8):
            acc=30+(i&1)
            if first and i<2: L.append(f"v_max_f32 v{acc}, v{d+2*i}, v{d+2*i+1}")
            else: L.append(f"v_max3_f32 v{acc}, v{acc}, v{d+2*i}, v{d+2*i+1}")
        return L
    for e in range(2):
        va=22+e
        stamp6(E,1) if e==0 else stamp6(E,5)
        vr_={}
        def vreads(t):
            vf=VB_[t%2]
            for m in range(2):
                E.lds(f"ds_read_b64_tr_b16 v[{vf+4*m}:{vf+4*m+1}], v{va} offset:{256*t+128*m}")
                vr_[t]=E.lds(f"ds_read_b64_tr_b16 v[{vf+4*m+2}:{vf+4*m+3}], v{va} offset:{256*t+128*m+64}")
        def cin(t): return f"v[{M0}:{M0+15}]" if t==0 else (f"v[{M8}:{M8+15}]" if t==8 else "0")
        vreads(0)
        E.wl(kr[0])
        for x in qk(0,cin(0)): E(x)
        E.wl(kr[1])
        for x in qk(1,cin(1)): E(x)
        vreads(1)
        E("s_nop 5")
        def pv(t):
            vf=VB_[t%2]; p=PB[t%2]
            c0 = "0" if t==0 else f"v[{O}:{O+15}]"
            return [f"v_mfma_f32_32x32x16_bf16 v[{O}:{O+15}], v[{vf}:{vf+3}], v[{p}:{p+3}], {c0}",
                    f"v_mfma_f32_32x32x16_bf16 v[{O}:{O+15}], v[{vf+4}:{vf+7}], v[{p+4}:{p+7}], v[{O}:{O+15}]"]
        for t in range(9):
            d=SB[t%3]; p=PB[t%2]
            nx=qk(t+2,cin(t+2)) if t+2<9 else []
            pp=pv(t-1) if t>=1 else []
            if t>=1: E.wl(vr_[t-1])
            if nx: E.wl(kr[t+2])
            mf=[]
            if pp: mf+=[pp[0]]
            if nx: mf+=[nx[0]]
            if pp: mf+=[pp[1]]
            if nx: mf+=[nx[1]]
            k=0
            for g in range(4):
                for r in range(4*g,4*g+4): E(f"v_exp_f32 v{d+r}, v{d+r}")
                if k<len(mf): E(mf[k]); k+=1
            while k<len(mf): E(mf[k]); k+=1
            if t>=1 and t+1<9: vreads(t+1)
            for r in range(8): E(f"v_cvt_pk_bf16_f32 v{p+r}, v{d+2*r}, v{d+2*r+1}")
            if e==0 and t==6: kreads(1,range(0,5))
            if e==0 and t==7: kreads(1,range(5,9))
        E.wl(vr_[8]); E("s_nop 1")
        for x in pv(8): E(x)
        stamp6(E,4) if e==0 else stamp6(E,7)
        PK=SB[0]
        E(f"s_add_u32 s41, s40, {2*e}")
        E("v_add_u32 v10, s41, v6\nv_lshrrev_b32 v11, 2, v10\nv_lshlrev_b32 v11, 12, v11\nv_and_b32 v10, 3, v10\nv_lshl_add_u32 v11, v10, 8, v11\nv_add_u32 v11, v11, v24")
        E(f"s_add_u32 s45, s40, 4\ns_lshr_b32 s44, s45, 2\ns_lshl_b32 s44, s44, 12\ns_and_b32 s45, s45, 3\ns_lshl_b32 s45, s45, 8\ns_add_u32 s44, s44, s45\ns_add_u32 s44, s44, {8*e}\ns_add_u32 s44, s44, s42")
        E(f"s_nop 1\nv_mov_b32 v30, v{O+8}\nv_mov_b32 v31, v{O+8}\ns_nop 1\nv_permlane32_swap_b32 v30, v31\ns_nop 1")
        E(f"v_mov_b32 v29, {fhex(2.0**60)}\nv_cmp_nle_f32 vcc, v31, v29\nv_mov_b32 v29, {fhex(2.0**-60)}\nv_cmp_nge_f32 s[56:57], v31, v29\ns_nop 1\ns_or_b64 vcc, vcc, s[56:57]\ns_mov_b32 s36, {e}")
        if 'forcefb' in EXP: E("s_mov_b64 vcc, -1")
        E("s_cbranch_vccnz L_att_fb")
        E("v_rcp_f32 v31, v31\ns_nop 0")
        for r in range(12): E(f"v_mul_f32 v{O+r}, v{O+r}, v31")
        for r in range(6): E(f"v_cvt_pk_bf16_f32 v{PK+r}, v{O+2*r}, v{O+2*r+1}")
        E(f"buffer_store_dwordx4 v[{PK}:{PK+3}], v11, s[24:27], s42 offen sc1")
        E(f"s_mov_b32 exec_hi, 0\nbuffer_store_dwordx2 v[{PK+4}:{PK+5}], v24, s[24:27], s44 offen sc1\ns_mov_b64 exec, -1")
        if e==0:
            for r in range(8): E(f"v_mov_b32 v{12+r}, v{Q1+r}")
    E("s_branch L_att_done")

def att_out(E,O,loop,Q1,PK):
    E(f"s_nop 7\nv_mov_b32 v30, v{O+8}\nv_mov_b32 v31, v{O+8}\ns_nop 1\nv_permlane32_swap_b32 v30, v31\ns_nop 1\nv_rcp_f32 v31, v31\ns_nop 0")
    for r in range(12): E(f"v_mul_f32 v{O+r}, v{O+r}, v31")
    for r in range(6): E(f"v_cvt_pk_bf16_f32 v{PK+r}, v{O+2*r}, v{O+2*r+1}")
    E("s_mul_i32 s40, s34, 5\ns_lshl_b32 s41, s36, 1\ns_add_u32 s41, s41, s40")
    E("v_add_u32 v10, s41, v6\nv_lshrrev_b32 v11, 2, v10\nv_lshlrev_b32 v11, 12, v11\nv_and_b32 v10, 3, v10\nv_lshl_add_u32 v11, v10, 8, v11")
    E("v_bfe_u32 v23, v2, 4, 1\nv_lshlrev_b32 v23, 10, v23\nv_and_b32 v24, 15, v2\nv_lshl_add_u32 v23, v24, 4, v23\nv_add_u32 v11, v11, v23")
    E("s_lshl_b32 s42, s33, 1\ns_lshr_b32 s43, s35, 1\ns_add_u32 s42, s42, s43\ns_mul_i32 s42, s42, 68\ns_add_u32 s42, s42, 48\ns_lshl_b32 s42, s42, 12\ns_and_b32 s43, s35, 1\ns_lshl_b32 s43, s43, 11\ns_add_u32 s42, s42, s43")
    E(f"buffer_store_dwordx4 v[{PK}:{PK+3}], v11, s[24:27], s42 offen sc1")
    E("s_add_u32 s40, s40, 4\ns_lshr_b32 s44, s40, 2\ns_lshl_b32 s44, s44, 12\ns_and_b32 s45, s40, 3\ns_lshl_b32 s45, s45, 8\ns_add_u32 s44, s44, s45\ns_lshl_b32 s45, s36, 3\ns_add_u32 s44, s44, s45\ns_add_u32 s44, s44, s42")
    E(f"s_mov_b32 exec_hi, 0\nbuffer_store_dwordx2 v[{PK+4}:{PK+5}], v23, s[24:27], s44 offen sc1\ns_mov_b64 exec, -1")
    E(f"s_cmp_eq_u32 s36, 1\ns_cbranch_scc1 L_att_done")
    for r in range(8): E(f"v_mov_b32 v{12+r}, v{Q1+r}")
    E(f"s_mov_b32 s36, 1\ns_branch {loop}")
def attention_slow(E):
    E("s_mov_b32 s36, 0")
    E.label("L_att_fb")
    E("s_waitcnt lgkmcnt(0)\nv_mov_b32 v18, 0\nv_mov_b32 v238, 0")
    E("s_lshl_b32 s46, s33, 2\ns_add_u32 s46, s46, s35\ns_sub_i32 s46, 8, s46\ns_max_i32 s46, s46, 0")
    E.label("L_att")
    E(f"s_mul_i32 s42, s36, {5*GS}\ns_lshl_b32 s43, s35, 8\ns_add_u32 s42, s42, s43")
    E(f"v_lshlrev_b32 v9, 3, v5\nv_add_u32 v9, s42, v9\nv_mul_u32_u24 v20, {2*GS}, v6\nv_add_u32 v20, v20, v9\nv_add_u32 v21, {4*GS}, v9")
    E("v_bfe_u32 v22, v2, 4, 1\nv_and_b32 v23, 3, v2\nv_bfe_u32 v24, v2, 2, 2\nv_lshl_add_u32 v24, v6, 2, v24\nv_lshlrev_b32 v24, 3, v24\nv_add_u32 v24, s43, v24")
    E(f"v_lshl_add_u32 v25, v22, 2, v23\nv_mul_u32_u24 v26, {GS}, v25\ns_mul_i32 s44, s36, {5*GS}\ns_add_u32 s44, s44, {VB}\nv_add_u32 v26, s44, v26")
    E(f"s_mov_b32 s45, {ONE1}\ns_cmp_eq_u32 s36, 0\ns_cselect_b32 s45, {ONE0}, s45\nv_mov_b32 v27, s45\nv_cmp_lt_u32 vcc, 4, v25\ns_nop 1\nv_cndmask_b32 v26, v26, v27, vcc\nv_add_u32 v22, v26, v24")
    S=32; KF=176; QF=12
    for st in range(2): E(f"v_mov_b32 v{KF+8*st+6}, 0\nv_mov_b32 v{KF+8*st+7}, 0")
    E(f"v_mov_b32 v28, {fhex(-1e30)}")
    for t in range(9):
        kf=KF+8*(t%2); d=S+16*t; skip=lab("ts"); done=lab("td")
        E(f"s_cmp_gt_u32 s46, {t}\ns_cbranch_scc1 {skip}")
        E(f"ds_read_b64 v[{kf}:{kf+1}], v20 offset:{256*t}\nds_read_b64 v[{kf+2}:{kf+3}], v20 offset:{256*t+GS}\nds_read_b64 v[{kf+4}:{kf+5}], v21 offset:{256*t}\ns_waitcnt lgkmcnt(0)")
        E(f"v_mfma_f32_32x32x16_bf16 v[{d}:{d+15}], v[{kf}:{kf+3}], v[{QF}:{QF+3}], 0\nv_mfma_f32_32x32x16_bf16 v[{d}:{d+15}], v[{kf+4}:{kf+7}], v[{QF+4}:{QF+7}], v[{d}:{d+15}]")
        E(f"s_branch {done}"); E.label(skip)
        for r in range(16): E(f"v_mov_b32 v{d+r}, v28")
        E.label(done)
    E("s_nop 15\nv_lshlrev_b32 v29, 2, v6\nv_sub_u32 v29, v5, v29")
    for r in range(16):
        kk=8*(r>>2)+(r&3)
        E(f"v_cmp_le_i32 vcc, {kk}, v29\ns_nop 1\nv_cndmask_b32 v{S+128+r}, v28, v{S+128+r}, vcc\nv_cndmask_b32 v{S+r}, v{S+r}, v28, vcc")
    E(f"v_max3_f32 v30, v{S}, v{S+1}, v{S+2}")
    r=3
    while r<144:
        if r+1<144: E(f"v_max3_f32 v30, v30, v{S+r}, v{S+r+1}"); r+=2
        else: E(f"v_max_f32 v30, v30, v{S+r}"); r+=1
    E("v_mov_b32 v31, v30\nv_mov_b32 v29, v30\ns_nop 1\nv_permlane32_swap_b32 v31, v29\ns_nop 1\nv_max_f32 v30, v31, v29")
    for t in range(9):
        d=S+16*t
        for r in range(16): E(f"v_sub_f32 v{d+r}, v{d+r}, v30")
        for r in range(16): E(f"v_exp_f32 v{d+r}, v{d+r}")
        E("s_nop 0")
        for r in range(8): E(f"v_cvt_pk_bf16_f32 v{d+r}, v{d+2*r}, v{d+2*r+1}")
    O=192; VF=208
    for r in range(16): E(f"v_mov_b32 v{O+r}, 0")
    for t in range(9):
        d=S+16*t; vf=VF+8*(t%2); skip=lab("ps")
        E(f"s_cmp_gt_u32 s46, {t}\ns_cbranch_scc1 {skip}")
        for m in range(2):
            E(f"ds_read_b64_tr_b16 v[{vf+4*m}:{vf+4*m+1}], v22 offset:{256*t+128*m}\nds_read_b64_tr_b16 v[{vf+4*m+2}:{vf+4*m+3}], v22 offset:{256*t+128*m+64}")
        E("s_waitcnt lgkmcnt(0)")
        for m in range(2): E(f"v_mfma_f32_32x32x16_bf16 v[{O}:{O+15}], v[{vf+4*m}:{vf+4*m+3}], v[{d+4*m}:{d+4*m+3}], v[{O}:{O+15}]")
        E.label(skip)
    E("s_nop 7")
    att_out(E,O,"L_att",232,224)

def attention(E):
    if 'noaprio' not in EXP: E("s_setprio 1")
    attention_fast(E)
    E.label("L_att_slow")
    attention_slow(E)
    E.label("L_att_done")
    stamp(E,7)
    E("s_waitcnt vmcnt(0)")
    E(f"s_lshl_b32 s38, s33, 4\ns_add_u32 s38, s38, s34\ns_lshl_b32 s38, s38, 7\ns_add_u32 s38, s38, {WS_FO}")
    agg_flag(E,3,4,38,3,4)
    stamp(E,8)
    stamp_flush(E)
    E("s_endpgm")

def build():
    hdr=open("parallel_sum__sliding_block__mixer_channel_mlp__prompt.s.ref").read().split("; Override")[0]
    s=hdr+f"; @launch grid=(256,1,1) block=(512,1,1) lds={LDS_TOTAL}\n"
    s+='.amdgcn_target "amdgcn-amd-amdhsa--gfx950"\n.text\n'+kernel_header(KNAME)
    s+=prologue().text()+gen_A().text()+gen_F().text()
    s+='.section .rodata,"a"\n'+kernel_desc(KNAME,sgpr=102)
    return s
if __name__=="__main__":
    out=sys.argv[1] if len(sys.argv)>1 else "parallel_sum__sliding_block__mixer_channel_mlp__prompt.s"
    if len(sys.argv)>2 and sys.argv[2]=="instr": INSTR=True
    if len(sys.argv)>3: EXP.update(sys.argv[3].split(","))
    for e in EXP:
        if e.startswith("sleep"): SLEEP=int(e[5:])
    open(out,"w").write(build())
```

```python
import math, sys, struct
from asmlib import kernel_header, kernel_desc
from em import Em

KNAME="parallel_sum__sliding_block__mixer_channel_mlp__prompt_kernel"
WS_STATS=0; WS_CSP=0x10000; WS_FQ=0x90000; WS_FH=0x98000; WS_FO=0xA0000; WS_FW=0xA8000; SMALL_SZ=0xB0000
WS_W2T=0xB0000; W2T_SZ=8*68*5*1024
WS_Q=0x360000; QKV_SZ=0x280000
WS_HO=0xB00000; HO_SZ=0x880000
WS_STAMP=0x2000000
LOG2E=1.4426950408889634; CQ=(20**-0.5)*LOG2E
GC0=-2.0*LOG2E*math.sqrt(2.0/math.pi); GC1=GC0*0.044715
def fhex(f): return hex(struct.unpack("<I",struct.pack("<f",f))[0])
P_X,P_WQKV,P_WO,P_W1,P_B1,P_W2,P_B2,P_OUT,P_DBG,P_WS=60,62,64,68,70,72,74,76,78,80
SLOT=32768; P0=131072; P1=143360; U0=69632; CSF=155648; NON=156672; CNT=156704; STX=156768; B1F=156928; STA=157312; CSP4=158336; CSFW=159872; XCH=131072; CSCR=135168
GS=3104; VB=10*GS
def _ones():
    base=VB+10*GS; o0=base+((160-(base-VB))%256); b2=o0+3072; o1=b2+((64-(b2-VB))%256); return o0,o1,o1+3072
ONE0,ONE1,ATT_END=_ones(); RED=69632; LDS_TOTAL=163840
assert ATT_END<=RED
V0=20480
def wf_region(sg): return [P0,P1,U0,U0+12288,U0+2*12288,U0+3*12288,U0+4*12288,V0,V0+12288,V0+2*12288][sg]
S_NONCE=82
INSTR=False; EXP=set(); POLL_MAX=20000
_uid=[0]
def lab(b="L"):
    _uid[0]+=1; return f"{b}_{_uid[0]}"
NST=9
def stamp2(E,idx):
    if INSTR and 'barst' in EXP: E(f"s_memtime s[{84+2*idx}:{85+2*idx}]")
def stamp3(E,idx):
    if INSTR and 'epi' in EXP: E(f"s_memrealtime s[{84+2*idx}:{85+2*idx}]")
def stamp4(E,idx):
    if INSTR and 'gel' in EXP: E(f"s_memrealtime s[{84+2*idx}:{85+2*idx}]")
def stamp5(E,idx):
    if INSTR and 'fq' in EXP: E(f"s_memrealtime s[{84+2*idx}:{85+2*idx}]")
def stamp6(E,idx):
    if INSTR and 'att' in EXP:
        l=lab("s6"); E(f"s_cmp_eq_u32 s36, {0 if idx<5 else 1}\ns_cbranch_scc0 {l}\ns_memtime s[{84+2*idx}:{85+2*idx}]\n{l}:")
def stamp8(E,idx):
    if INSTR and 'p1b' in EXP: E(f"s_memtime s[{84+2*idx}:{85+2*idx}]")
def stamp9(E,idx):
    if INSTR and 'fc2' in EXP: E(f"s_memrealtime s[{84+2*idx}:{85+2*idx}]")
def stampA(E,idx):
    if INSTR and 'pA' in EXP: E(f"s_memtime s[{84+2*idx}:{85+2*idx}]")
def stampG(E,idx):
    if INSTR and 'pG' in EXP: E(f"s_memtime s[{84+2*idx}:{85+2*idx}]")
def stamp(E,idx):
    if 'pG' in EXP and idx>0: return
    if 'pA' in EXP and idx>0: return
    if 'pB' in EXP and idx>0: return
    if 'fc2' in EXP and idx>0: return
    if 'p1b' in EXP and idx>0: return
    if 'intv' in EXP and idx>0: return
    if 'lat' in EXP and idx>0: return
    if 'att' in EXP and idx>0: return
    if 'fq' in EXP and idx>0: return
    if 'gel' in EXP and idx>0: return
    if 'epi' in EXP and idx>0: return
    if 'barst' in EXP and idx>0: return
    if INSTR: E(f"s_mem{'time' if 'clk' in EXP else 'realtime'} s[{84+2*idx}:{85+2*idx}]")
def stamp_flush(E,role=0):
    if not INSTR: return
    E("s_waitcnt lgkmcnt(0)")
    if 'dbgts' in EXP:
        l=lab("dts")
        E(f"s_cmp_eq_u32 s35, 0\ns_cbranch_scc0 {l}")
        E(f"s_mov_b32 s52, s{P_DBG}\ns_mov_b32 s53, s{P_DBG+1}\ns_mov_b32 s54, 256\ns_mov_b32 s55, 0x20000\nv_mov_b32 v251, 0\ns_mov_b64 exec, 1")
        sel = (0,2,3,4,5,6,7,8) if role==0 else (2,3,4,5,6,7,8)
        base = 1 if role==0 else 9
        for n,i in enumerate(sel):
            E(f"s_sub_u32 s56, s{84+2*i}, s{S_NONCE}\nv_mov_b32 v250, s56\nbuffer_atomic_smax v250, v251, s[52:55], 0 offen offset:{4*(base+n)}")
        E("s_mov_b64 exec, -1"); E.label(l)
        return
    E(f"s_add_u32 s52, s{P_WS}, {WS_STAMP}\ns_addc_u32 s53, s{P_WS+1}, 0\ns_mov_b32 s54, 0x20000\ns_mov_b32 s55, 0x20000")
    E("s_lshl_b32 s56, s2, 3\ns_add_u32 s56, s56, s32\ns_lshl_b32 s56, s56, 6\nv_mov_b32 v251, 0")
    for i in range(NST):
        E(f"v_mov_b32 v250, s{84+2*i}"); E(f"buffer_store_dword v250, v251, s[52:55], s56 offen offset:{4*i}")
def srd(E,d,p,size,off=0):
    if off: E(f"s_add_u32 s{d}, s{p}, {off}\ns_addc_u32 s{d+1}, s{p+1}, 0")
    else: E(f"s_mov_b32 s{d}, s{p}\ns_mov_b32 s{d+1}, s{p+1}")
    E(f"s_mov_b32 s{d+2}, {size}\ns_mov_b32 s{d+3}, 0x20000")
SLEEP=8
def poll_slow(E,vaddr,vtmp):
    l0=lab("poll"); l1=lab("polld")
    E("s_mov_b32 s37, 0"); E.label(l0)
    E(f"buffer_load_dword v{vtmp}, v{vaddr}, s[16:19], 0 offen sc1\ns_waitcnt vmcnt(0)")
    E(f"v_cmp_ne_u32 vcc, s{S_NONCE}, v{vtmp}\ns_cbranch_vccz {l1}")
    E(f"s_add_u32 s37, s37, 1\ns_cmp_lt_u32 s37, {POLL_MAX}\ns_cbranch_scc0 {l1}\ns_sleep {SLEEP}\ns_branch {l0}")
    E.label(l1)
def check_or_poll(E,vaddr,vval):
    l0=lab("cp"); l1=lab("cpd")
    E(f"v_cmp_ne_u32 vcc, s{S_NONCE}, v{vval}\ns_cbranch_vccz {l1}\ns_mov_b32 s37, 0\n{l0}:\n"
      f"buffer_load_dword v{vval}, v{vaddr}, s[16:19], 0 offen sc1\ns_waitcnt vmcnt(0)\nv_cmp_ne_u32 vcc, s{S_NONCE}, v{vval}\ns_cbranch_vccz {l1}\n"
      f"s_add_u32 s37, s37, 1\ns_cmp_lt_u32 s37, {POLL_MAX}\ns_cbranch_scc0 {l1}\ns_sleep {SLEEP}\ns_branch {l0}\n{l1}:")
def poll_leader(E,vaddr,vtmp,vt2,goaddr):
    lw=lab("pw"); ld=lab("pd"); l0=lab("pl")
    E(f"v_mov_b32 v{vt2}, {goaddr}\ns_cmp_eq_u32 s35, 0\ns_cbranch_scc0 {lw}")
    poll_slow(E,vaddr,vtmp)
    E(f"v_mov_b32 v{vtmp}, s{S_NONCE}\nds_write_b32 v{vt2}, v{vtmp}\ns_waitcnt lgkmcnt(0)\ns_branch {ld}")
    E.label(lw)
    E(f"s_mov_b32 s37, 0\n{l0}:\nds_read_b32 v{vtmp}, v{vt2}\ns_waitcnt lgkmcnt(0)\nv_cmp_ne_u32 vcc, s{S_NONCE}, v{vtmp}\ns_cbranch_vccz {ld}\n"
      f"s_add_u32 s37, s37, 1\ns_cmp_lt_u32 s37, {POLL_MAX*8}\ns_cbranch_scc0 {ld}\ns_sleep 2\ns_branch {l0}")
    E.label(ld)
def flag_store(E,soff,vt0,vt1):
    E(f"v_mov_b32 v{vt0}, s{S_NONCE}\nv_mov_b32 v{vt1}, 0")
    return E.st(f"s_mov_b64 exec, 1\nbuffer_store_dword v{vt0}, v{vt1}, s[16:19], s{soff} offen sc1\ns_mov_b64 exec, -1")
def agg_flag(E,cnt_idx,nwaves,soff,vt0,vt1):
    l=lab("ag")
    E(f"v_mov_b32 v{vt0}, {CNT+4*cnt_idx}\nv_mov_b32 v{vt1}, 1\ns_mov_b64 exec, 1\nds_add_rtn_u32 v{vt1}, v{vt0}, v{vt1}\ns_waitcnt lgkmcnt(0)\ns_mov_b64 exec, -1\n"
      f"v_readfirstlane_b32 s37, v{vt1}\ns_nop 3\ns_cmp_eq_u32 s37, {nwaves-1}\ns_cbranch_scc0 {l}\nv_mov_b32 v{vt0}, s{S_NONCE}\nv_mov_b32 v{vt1}, 0\ns_mov_b64 exec, 1\n"
      f"buffer_store_dword v{vt0}, v{vt1}, s[16:19], s{soff} offen sc1\ns_mov_b64 exec, -1\n{l}:")
def lds_arrive(E,idx,vt0,vt1):
    E(f"v_mov_b32 v{vt0}, {CNT+4*idx}\nv_mov_b32 v{vt1}, 1\ns_mov_b64 exec, 1\nds_add_u32 v{vt0}, v{vt1}\ns_mov_b64 exec, -1")
def lds_wait(E,idx,target,vt0,vt1,slp=1):
    l0=lab("lw"); l1=lab("lwd")
    E(f"v_mov_b32 v{vt0}, {CNT+4*idx}\ns_mov_b32 s37, 0\n{l0}:\nds_read_b32 v{vt1}, v{vt0}\ns_waitcnt lgkmcnt(0)\nv_cmp_gt_u32 vcc, {target}, v{vt1}\ns_cbranch_vccz {l1}\n"
      f"s_add_u32 s37, s37, 1\ns_cmp_lt_u32 s37, {POLL_MAX*32}\ns_cbranch_scc0 {l1}\n"+(f"s_sleep {slp}\n" if slp else "")+f"s_branch {l0}\n{l1}:")
def allreduce(E,v,t1,t2):
    for dpp in ("quad_perm:[1,0,3,2]","quad_perm:[2,3,0,1]","row_half_mirror","row_mirror"):
        E(f"s_nop 1\nv_add_f32_dpp v{v}, v{v}, v{v} {dpp} row_mask:0xf bank_mask:0xf")
    for sw in ("16","32"):
        E(f"v_mov_b32 v{t1}, v{v}\nv_mov_b32 v{t2}, v{v}")
        E(f"s_nop 1\nv_permlane{sw}_swap_b32 v{t1}, v{t2}\ns_nop 1\nv_add_f32 v{v}, v{t1}, v{t2}")
def gelu_ops(x,t,c0):
    return [f"v_mul_f32 v{t}, v{x}, v{x}",f"v_fma_f32 v{t}, v{t}, s51, v{c0}",f"v_mul_f32 v{t}, v{t}, v{x}",
            f"v_exp_f32 v{t}, v{t}",f"v_add_f32 v{t}, 1.0, v{t}",f"v_rcp_f32 v{t}, v{t}",f"v_mul_f32 v{x}, v{x}, v{t}"]

def prologue():
    E=Em()
    E("s_cmp_ge_u32 s2, 256\ns_cbranch_scc1 L_end")
    stamp(E,0)
    E("s_load_dwordx2 s[4:5], s[0:1], 0\ns_load_dwordx2 s[8:9], s[0:1], 8\ns_load_dwordx2 s[12:13], s[0:1], 32\ns_load_dwordx2 s[16:17], s[0:1], 80")
    E("s_load_dwordx16 s[60:75], s[0:1], 0\ns_load_dwordx4 s[76:79], s[0:1], 64\ns_load_dwordx2 s[80:81], s[0:1], 80")
    E("v_lshrrev_b32 v1, 6, v0\nv_and_b32 v2, 63, v0\nv_readfirstlane_b32 s32, v1")
    E("s_mov_b32 s6, 2621440\ns_mov_b32 s7, 0x20000\ns_mov_b32 s10, %d\ns_mov_b32 s11, 0x20000"%(640*3840))
    E("s_mov_b32 s14, %d\ns_mov_b32 s15, 0x20000\ns_mov_b32 s18, %d\ns_mov_b32 s19, 0x20000"%(640*3072,SMALL_SZ))
    E("s_and_b32 s37, s2, 7\ns_lshr_b32 s38, s2, 3")
    E("s_lshr_b32 s33, s37, 2\ns_lshl_b32 s33, s33, 3\ns_and_b32 s39, s38, 7\ns_add_u32 s33, s33, s39")
    E("s_and_b32 s34, s37, 3\ns_lshl_b32 s34, s34, 2\ns_lshr_b32 s39, s38, 3\ns_add_u32 s34, s34, s39")
    E("s_min_u32 s41, s34, 14\ns_lshl_b32 s41, s41, 8\ns_mul_i32 s42, s34, 192")
    E("s_and_b32 s35, s32, 3\ns_cmp_ge_u32 s32, 4\ns_cbranch_scc1 L_F")
    return E

def gen_F():
    U_V0=int(next((e[3:] for e in EXP if e.startswith('uv0')),'8'))
    E=Em(); E.label("L_F")
    if 'nofprio' not in EXP: E("s_setprio 2")
    E("s_mov_b32 s45, 0\ns_mov_b32 s46, 0\ns_mul_i32 s40, s33, 163840\ns_lshl_b32 s43, s35, 12\ns_mul_i32 s44, s35, 3072")
    E("v_lshrrev_b32 v3, 3, v2\ns_lshl_b32 s39, s35, 5\nv_add_u32 v3, s39, v3\nv_mul_u32_u24 v3, 1280, v3")
    E("v_and_b32 v4, 7, v2\nv_lshrrev_b32 v5, 4, v2\nv_xor_b32 v6, v4, v5\nv_lshl_add_u32 v10, v6, 4, v3")
    E(f"v_or_b32 v7, 4, v5\nv_xor_b32 v7, v4, v7\nv_lshl_add_u32 v11, v7, 4, v3\nv_add_u32 v11, {8*1280}, v11")
    E(f"v_add_u32 v12, {16*1280}, v10\nv_add_u32 v13, {16*1280}, v11")
    E("s_lshl_b32 s39, s35, 4\nv_add_u32 v3, s39, v5\nv_mul_u32_u24 v3, 3840, v3")
    E("v_and_b32 v4, 15, v2\nv_lshlrev_b32 v6, 2, v5\nv_xor_b32 v4, v4, v6\nv_lshl_add_u32 v14, v4, 4, v3")
    for q in range(1,4): E(f"v_add_u32 v{14+q}, {q*4*3840}, v14")
    E("s_waitcnt lgkmcnt(0)")
    def dma_ops(tau):
        slot=tau%4; G=[]
        for q in range(4):
            pre=f"s_add_u32 s56, s40, {tau*128}\ns_add_u32 s57, s41, {tau*64*3840}\n" if q==0 else ""
            G.append(pre+f"s_add_u32 m0, s43, {slot*SLOT+q*1024}\ns_nop 0\nbuffer_load_dwordx4 v{10+q}, s[4:7], s56 offen lds")
        for q in range(4):
            G.append(f"s_add_u32 m0, s43, {slot*SLOT+16384+q*1024}\ns_nop 0\nbuffer_load_dwordx4 v{14+q}, s[8:11], s57 offen lds")
        return G
    WFV=(34,35,40)
    def dma_wf(sg, sink):
        reg=wf_region(sg); last=None
        for t in range(3):
            pre=f"s_add_u32 s58, s42, {sg*64*3072}\n" if t==0 else ""
            last=sink.vm(pre+f"s_add_u32 m0, s44, {reg+t*1024}\ns_nop 0\nbuffer_load_dwordx4 v{WFV[t]}, s[12:15], s58 offen lds")
        return last
    D={}
    for g in dma_ops(0): D[0]=E.vm(g)
    if 'early12' in EXP:
        for tau in (1,2):
            for g in dma_ops(tau): D[tau]=E.vm(g)
    E(f"v_lshlrev_b32 v3, 3, v2\nv_mov_b32 v4, 0\nv_mov_b32 v5, 0\nv_add_u32 v6, {CSF+512}, v3\nv_add_u32 v3, {CNT}, v3")
    E("s_mov_b64 exec, 0xff"); E.lds("ds_write_b64 v3, v[4:5]"); E("s_mov_b64 exec, -1"); ci=E.lds("ds_write_b64 v6, v[4:5]")
    stamp(E,1)
    E("s_lshl_b32 s39, s35, 4")
    for t in range(3):
        E(f"v_add_u32 v3, {64*t}, v2\nv_mul_u32_u24 v4, 171, v3\nv_lshrrev_b32 v4, 11, v4\nv_mul_u32_u24 v5, 12, v4\nv_sub_u32 v5, v3, v5")
        E(f"v_add_u32 v4, s39, v4\nv_mul_u32_u24 v4, 3072, v4\nv_lshl_add_u32 v{WFV[t]}, v5, 4, v4")
    E("v_and_b32 v3, 31, v2\ns_lshl_b32 s37, s35, 5\nv_add_u32 v3, s37, v3\nv_lshrrev_b32 v4, 5, v2\nv_bfe_u32 v5, v3, 1, 3\nv_xor_b32 v5, v5, v4\nv_lshlrev_b32 v3, 7, v3")
    for t in range(4): E(f"v_xor_b32 v6, {2*t}, v5\nv_lshl_add_u32 v{18+t}, v6, 4, v3\nv_add_u32 v{22+t}, 65536, v{18+t}")
    E("v_bfe_u32 v3, v2, 4, 1\nv_lshrrev_b32 v4, 5, v2\nv_bfe_u32 v5, v2, 2, 2\nv_and_b32 v6, 3, v2\nv_lshl_add_u32 v7, v4, 3, v5")
    E(f"v_mul_u32_u24 v41, 192, v7\nv_lshl_add_u32 v41, v3, 5, v41\nv_lshl_add_u32 v41, v6, 3, v41\nv_add_u32 v47, {P0}, v41\nv_add_u32 v46, {U0}, v41")
    E("v_lshlrev_b32 v8, 8, v7\nv_add_u32 v8, 16384, v8\nv_lshrrev_b32 v9, 1, v6\nv_lshl_add_u32 v9, v3, 1, v9\nv_lshl_add_u32 v8, v9, 4, v8\nv_and_b32 v9, 1, v6\nv_lshl_add_u32 v8, v9, 3, v8")
    E("v_xor_b32 v9, s35, v5\nv_lshl_add_u32 v64, v9, 6, v8\nv_add_u32 v65, 65536, v64")
    E("v_and_b32 v3, 15, v2\nv_bfe_u32 v4, v2, 4, 1\nv_cmp_eq_u32 vcc, v3, v4\nv_mov_b32 v5, 0x3f803f80\ns_nop 0\nv_cndmask_b32 v36, 0, v5, vcc\nv_mov_b32 v37, v36\nv_mov_b32 v38, v36\nv_mov_b32 v39, v36")
    E("v_mov_b32 v66, 0\nv_mov_b32 v67, 0\nv_mov_b32 v68, 0\nv_mov_b32 v69, 0")
    if 'early12' not in EXP:
        for tau in (1,2):
            for g in dma_ops(tau): D[tau]=E.vm(g)
    XS=96; W={}; xr={}
    PRE=Em()
    PRE("s_lshl_b32 s37, s33, 7\ns_lshl_b32 s38, s34, 3\ns_add_u32 s37, s37, s38\ns_lshl_b32 s38, s35, 1\ns_add_u32 s37, s37, s38\ns_mul_i32 s36, s37, 1280")
    PRE("v_and_b32 v3, 31, v2\nv_mul_u32_u24 v3, 40, v3\nv_lshrrev_b32 v4, 5, v2\nv_mul_u32_u24 v4, 1280, v4\nv_add_u32 v3, v3, v4")
    srd(PRE,48,P_DBG,256)
    l=lab("non")
    PRE(f"s_or_b32 s37, s2, s35\ns_cmp_eq_u32 s37, 0\ns_cbranch_scc0 {l}\ns_memrealtime s[54:55]\ns_waitcnt lgkmcnt(0)\ns_or_b32 s54, s54, 1\nv_mov_b32 v6, s54\nv_mov_b32 v7, 0\ns_mov_b64 exec, 1\n"
        f"buffer_store_dword v6, v7, s[48:51], 0 offen sc1\ns_mov_b64 exec, -1\n{l}:")
    l=lab("nl")
    PRE(f"v_mov_b32 v82, 0\nv_mov_b32 v81, 0\ns_cmp_eq_u32 s35, 0\ns_cbranch_scc0 {l}\nbuffer_load_dword v81, v82, s[48:51], 0 offen sc1\n{l}:")
    PRE.vm("buffer_load_dwordx4 v[70:73], v3, s[4:7], s36 offen"); PRE.vm("buffer_load_dwordx4 v[74:77], v3, s[4:7], s36 offen offset:16")
    PRE.vm("buffer_load_dwordx2 v[78:79], v3, s[4:7], s36 offen offset:32")
    srd(PRE,52,P_B1,3072)
    PRE("v_lshlrev_b32 v4, 2, v2\ns_mul_i32 s37, s34, 192\nv_min_u32 v4, 188, v4")
    pl1=PRE.vm("buffer_load_dword v80, v4, s[52:55], s37 offen")
    F=Em()
    F.wv(pl1)
    l0=lab("n0"); l1=lab("n1"); l2=lab("n2")
    F(f"s_cmp_eq_u32 s35, 0\ns_cbranch_scc0 {l2}\ns_mov_b32 s37, 0\n{l0}:\nv_readfirstlane_b32 s{S_NONCE}, v81\ns_nop 3\ns_cmp_lg_u32 s{S_NONCE}, 0\ns_cbranch_scc1 {l1}\n"
      f"s_add_u32 s37, s37, 1\ns_cmp_lt_u32 s37, {POLL_MAX}\ns_cbranch_scc0 {l1}\ns_sleep 1\nbuffer_load_dword v81, v82, s[48:51], 0 offen sc1\ns_waitcnt vmcnt(0)\ns_branch {l0}\n{l1}:\n"
      f"v_mov_b32 v82, {NON}\nds_write_b32 v82, v81\n{l2}:")
    F("v_lshlrev_b32 v82, 16, v80"); F("v_and_b32 v83, 0xffff0000, v80"); F("v_min_u32 v4, 47, v2"); F("v_lshlrev_b32 v4, 3, v4"); F(f"v_add_u32 v4, {B1F}, v4")
    F.lds("ds_write_b64 v4, v[82:83]")
    B=200
    for i in range(10):
        F(f"v_lshlrev_b32 v{B+2*i}, 16, v{70+i}"); F(f"v_and_b32 v{B+2*i+1}, 0xffff0000, v{70+i}")
    F(f"v_add_f32 v70, v{B}, v{B+1}"); F(f"v_add_f32 v71, v{B+2}, v{B+3}")
    for i in range(4,20,2):
        F(f"v_add_f32 v70, v70, v{B+i}"); F(f"v_add_f32 v71, v71, v{B+i+1}")
    F("v_add_f32 v70, v70, v71")
    def red32(v):
        for dpp in ("quad_perm:[1,0,3,2]","quad_perm:[2,3,0,1]","row_half_mirror","row_mirror"):
            F(f"s_nop 1\nv_add_f32_dpp v{v}, v{v}, v{v} {dpp} row_mask:0xf bank_mask:0xf")
        F(f"v_mov_b32 v78, v{v}\nv_mov_b32 v79, v{v}")
        F(f"s_nop 1\nv_permlane16_swap_b32 v78, v79\ns_nop 1\nv_add_f32 v{v}, v78, v79")
    red32(70)
    F(f"v_mul_f32 v70, {fhex(1.0/640)}, v70")
    nF1=len(F.it)
    for i in range(20): F(f"v_sub_f32 v{B+i}, v{B+i}, v70")
    F(f"v_mul_f32 v71, v{B}, v{B}"); F(f"v_mul_f32 v72, v{B+1}, v{B+1}")
    for i in range(2,20,2):
        F(f"v_fmac_f32 v71, v{B+i}, v{B+i}"); F(f"v_fmac_f32 v72, v{B+i+1}, v{B+i+1}")
    F("v_add_f32 v71, v71, v72")
    red32(71)
    F(f"v_mul_f32 v71, {fhex(1.0/640)}, v71"); F(f"v_add_f32 v72, {fhex(1e-5)}, v71")
    F("v_rsq_f32 v75, v72\ns_nop 0"); F("v_mul_f32 v73, v75, v75"); F("v_mul_f32 v73, v73, v71"); F(f"v_add_f32 v73, {fhex(1e-5)}, v73")
    F("v_rsq_f32 v73, v73\nv_mov_b32 v74, v70"); F("s_nop 0\nv_mul_f32 v76, v75, v73")
    F("v_lshrrev_b32 v78, 5, v2"); F("v_lshlrev_b32 v78, 4, v78"); F(f"s_lshl_b32 s37, s35, 5\ns_add_u32 s37, s37, {STX}"); F("v_add_u32 v78, s37, v78"); F("v_mov_b32 v77, 0")
    F.lds("ds_write_b128 v78, v[74:77]")
    F2=Em()
    F2(f"v_mov_b32 v3, {NON}"); nr=F2.lds("ds_read_b32 v83, v3")
    F2("v_and_b32 v78, 7, v2"); F2("v_lshlrev_b32 v78, 4, v78"); F2(f"v_add_u32 v79, {STX}, v78")
    sr=F2.lds("ds_read_b128 v[74:77], v79"); F2.wl(sr); F2(f"v_mov_b32 v77, v83\nv_readfirstlane_b32 s{S_NONCE}, v83")
    l=lab("sst")
    F2(f"s_cmp_eq_u32 s35, 0\ns_cbranch_scc0 {l}\ns_lshl_b32 s37, s33, 7\ns_lshl_b32 s38, s34, 3\ns_add_u32 s37, s37, s38\ns_lshl_b32 s37, s37, 4\ns_mov_b64 exec, 0xff\n"
       f"buffer_store_dwordx4 v[74:77], v78, s[16:19], s37 offen sc1\ns_mov_b64 exec, -1\n{l}:")
    allF=list(F.it)
    def part(L,a,b):
        x=Em(); x.it=L[a:b]; return x
    def cat(*xs):
        y=Em()
        for x in xs:
            if x: y.it+=x.it
        return y
    fill={1:part(allF,0,nF1), 2:part(allF,nF1,len(allF)), 3:F2}
    E.wv(D[0]); E.wl(ci); E("s_barrier"); stamp(E,2); stamp2(E,1)
    csr={}
    for tau in range(10):
        M=Em(); slot=tau%4
        if tau==0: M.extend(PRE)
        for t in range(4):
            a=(18 if slot<2 else 22)+t; u=4*tau+t
            xr[u]=M.lds(f"ds_read_b128 v[{XS+4*u}:{XS+4*u+3}], v{a} offset:{(slot&1)*SLOT}")
        wa=64 if slot<2 else 65; so=(slot&1)*SLOT
        for t in range(4):
            for jj in range(2):
                csr[t]=M.lds(f"ds_read_b64_tr_b16 v[{48+4*t+2*jj}:{49+4*t+2*jj}], v{wa} offset:{so+(16*t+4*jj)*256}")
        M.slot(10)
        tn = 3 if tau==0 else (tau+2 if (tau>=2 and tau+2<=9) else None)
        if tn is not None:
            for k,g in enumerate(dma_ops(tn)):
                D[tn]=M.vm(g); M.slot(10)
                if k==1:
                    for t in range(4):
                        M.wl(csr[t]); M(f"v_mfma_f32_16x16x32_bf16 v[66:69], v[36:39], v[{48+4*t}:{51+4*t}], v[66:69]")
        else:
            for t in range(4):
                M.wl(csr[t]); M(f"v_mfma_f32_16x16x32_bf16 v[66:69], v[36:39], v[{48+4*t}:{51+4*t}], v[66:69]")
            M.slot(300)
        if tau==6: W[0]=dma_wf(0,M)
        if tau==7: W[1]=dma_wf(1,M)
        if tau==8: W[2]=dma_wf(2,M); W[3]=dma_wf(3,M)
        if tau==9:
            for sg in range(4,7): W[sg]=dma_wf(sg,M)
        if fill.get(tau): M.merge(fill[tau])
        E.extend(M)
        if tau<9:
            E.wv(D[tau+1])
            if tau+1==9: E.wv(W[1])
            E("s_waitcnt lgkmcnt(0)")
            E("s_barrier")
            if tau<7: stamp2(E,tau+2)
    E(f"v_and_b32 v3, 15, v2\nv_lshlrev_b32 v3, 2, v3\ns_lshl_b32 s37, s35, 7\ns_add_u32 s37, s37, {CSF}\nv_add_u32 v3, s37, v3\ns_nop 4")
    E("s_mov_b64 exec, 0xffff"); E.lds("ds_write_b32 v3, v66"); cq=E.lds("ds_write_b32 v3, v67 offset:64"); E("s_mov_b64 exec, -1")
    E.wl(cq); lds_arrive(E,8,3,8)
    if 'nofprio' not in EXP: E("s_setprio 0")
    stamp(E,3)
    srd(E,24,P_WS,HO_SZ,off=WS_HO)
    E(f"s_mov_b32 s51, {fhex(GC1)}")
    E("s_lshl_b32 s47, s33, 1\ns_lshr_b32 s59, s35, 1\ns_add_u32 s47, s47, s59\ns_mul_i32 s47, s47, 68\ns_mul_i32 s59, s34, 3\ns_add_u32 s47, s47, s59\ns_lshl_b32 s47, s47, 12")
    E("s_and_b32 s59, s35, 1\ns_lshl_b32 s59, s59, 11\ns_add_u32 s47, s47, s59")
    ACC=48
    for r in [36,37,38,39]: E(f"v_mov_b32 v{ACC+r}, 0")
    for r in (4,5,6,7,42,43,44,45): E(f"v_mov_b32 v{r}, 0")
    E("s_mul_i32 s37, s35, 3072\nv_add_u32 v88, s37, v47\nv_add_u32 v89, s37, v46\nv_add_u32 v90, s37, v41")
    VS=Em()
    VS("v_lshrrev_b32 v3, 5, v2\nv_lshlrev_b32 v34, 4, v3"); VS(f"v_add_u32 v35, {B1F}, v34"); VS(f"s_mul_i32 s37, s35, 384\ns_add_u32 s37, s37, {CSFW}\nv_add_u32 v34, s37, v34"); VS(f"v_mov_b32 v40, {fhex(GC0)}")
    VS("v_bfe_u32 v8, v2, 4, 1\nv_lshlrev_b32 v91, 10, v8\nv_lshrrev_b32 v3, 5, v2\nv_lshl_add_u32 v91, v3, 8, v91\nv_and_b32 v8, 15, v2\nv_lshl_add_u32 v91, v8, 4, v91")
    VS(f"v_and_b32 v8, 31, v2\ns_lshl_b32 s37, s35, 5\nv_add_u32 v8, s37, v8\nv_lshlrev_b32 v8, 3, v8\nv_add_u32 v92, {STA}, v8")
    VS(f"v_and_b32 v3, 15, v2\nv_lshlrev_b32 v3, 2, v3\ns_mul_i32 s37, s35, 384\ns_add_u32 s37, s37, {CSP4}\nv_add_u32 v9, s37, v3")
    def wf_addr(sg):
        reg=wf_region(sg)
        return (47,reg-P0) if reg>=P0 else ((46,reg-U0) if reg>=U0 else (41,reg))
    SA=[10,18,26]
    rd={}; pend=[]
    def readsA(u):
        sg,t=divmod(u,4); base,ro=wf_addr(sg); L=[]
        for T in range(2):
            fr=SA[u%3]+4*T
            for jj in range(2): L.append(f"ds_read_b64_tr_b16 v[{fr+2*jj}:{fr+2*jj+1}], v{base} offset:{ro+(16*t+4*jj)*192+64*T}")
        return L
    E.wl(xr[39])
    stamp8(E,1)
    if INSTR and 'pA' in EXP: E("s_memtime s[100:101]")
    for u in (0,1):
        for r in readsA(u): rd[u]=E.lds(r)
    for u in range(40):
        if u==3: stamp8(E,2)
        if u==7: stamp8(E,3)
        if u==15: stamp8(E,4)
        if u==27: stamp8(E,5)
        if u==U_V0:
            stampA(E,1)
            if 'nowA' not in EXP: lds_wait(E,8,4,3,8)
            if 'nowA' not in EXP: lds_wait(E,5,4,3,8)
            stampA(E,2)
            if 'nofprio' not in EXP: E("s_setprio 2")
            tmp=Em()
            for sg2 in (7,8,9): W[sg2]=dma_wf(sg2,tmp)
            pend=list(tmp.it)
        if 'nowA' in EXP:
            if u in (4,12,24): lds_arrive(E,6,3,8)
        else:
          if u==4: E.wv(W[3]); lds_arrive(E,6,3,8)
          if u==6: lds_wait(E,6,4,3,8)
          if u==12: stampA(E,3); E.wv(W[6]); stampA(E,4); lds_arrive(E,6,3,8)
          if u==14: lds_wait(E,6,8,3,8); stampA(E,5)
          if u==24: stampA(E,6); E.wv(W[9]); stampA(E,7); lds_arrive(E,6,3,8)
        if u==26 and 'nowA' not in EXP:
            lds_wait(E,6,12,3,8)
        E.wl(rd[u])
        rl=readsA(u+2) if u+2<40 else []
        for T in range(2):
            fr=SA[u%3]+4*T; a=ACC+16*T
            c_="0" if u==0 else f"v[{a}:{a+15}]"
            E(f"v_mfma_f32_32x32x16_bf16 v[{a}:{a+15}], v[{fr}:{fr+3}], v[{XS+4*u}:{XS+4*u+3}], {c_}")
            for r in rl[2*T:2*T+2]: rd[u+2]=E.lds(r)
            if pend and (T==0 or 'pend1' not in EXP): E.it.append(pend.pop(0))
        if u==30: E.extend(VS)
        sg_,t_=divmod(u,4)
        base,ro=wf_addr(sg_); b2={47:88,46:89,41:90}[base]
        if t_>=1:
            acc={1:84,2:4,3:42}[t_]
            E.wl(c2r); E(f"v_mfma_f32_16x16x32_bf16 v[{acc}:{acc+3}], v[36:39], v[80:83], v[{acc}:{acc+3}]")
        if t_<=2:
            off=ro+{0:128,1:0,2:64}[t_]
            E.lds(f"ds_read_b64_tr_b16 v[80:81], v{b2} offset:{off}")
            c2r=E.lds(f"ds_read_b64_tr_b16 v[82:83], v{b2} offset:{off+4*192}")
    stamp8(E,6); stampG(E,1)
    E("s_nop 7")
    E("s_mov_b64 exec, 0xffff")
    E.lds("ds_write_b32 v9, v4"); E.lds("ds_write_b32 v9, v5 offset:64"); E.lds("ds_write_b32 v9, v42 offset:128"); E.lds("ds_write_b32 v9, v43 offset:192")
    E.lds("ds_write_b32 v9, v84 offset:256"); ca=E.lds("ds_write_b32 v9, v85 offset:320")
    E("s_mov_b64 exec, -1")
    E("v_mov_b32 v44, v91\nv_mov_b32 v45, v92")
    cs_done=ca
    SBk=[10,14,18,22,26]
    def readsB(u):
        sg,t=divmod(u,4); base,ro=wf_addr(sg); fr=SBk[u%5]
        return [f"ds_read_b64_tr_b16 v[{fr+2*jj}:{fr+2*jj+1}], v{base} offset:{ro+(16*t+4*jj)*192+128}" for jj in range(2)]
    hs=[None]
    def gelu_tile(G,T,cb0,tt):
        a0=ACC+16*T; rr={}
        order=(0,2,1,3)
        def rd_(i):
            a=order[i]; c=cb0+8*(i%2)
            G.lds(f"ds_read_b128 v[{c}:{c+3}], v34 offset:{128*T+32*a}")
            rr[i]=G.lds(f"ds_read_b128 v[{c+4}:{c+7}], v35 offset:{128*T+32*a}")
        rd_(0); rd_(1)
        for i in range(4):
            a=order[i]; b=a0+4*a; c=cb0+8*(i%2)
            G.wl(rr[i])
            for k in range(4): G(f"v_fma_f32 v{c+4+k}, v42, v{c+k}, v{c+4+k}")
            for k in range(4): G(f"v_fma_f32 v{b+k}, v{b+k}, v43, v{c+4+k}")
            if i+2<4: rd_(i+2)
            ops=[[f"v_mul_f32 v{tt+k}, v{b+k}, v{b+k}",f"v_fma_f32 v{tt+k}, v{tt+k}, s51, v40",f"v_mul_f32 v{tt+k}, v{tt+k}, v{b+k}",f"v_exp_f32 v{tt+k}, v{tt+k}",
                  f"v_add_f32 v{tt+k}, 1.0, v{tt+k}",f"v_rcp_f32 v{tt+k}, v{tt+k}",f"v_mul_f32 v{b+k}, v{b+k}, v{tt+k}"] for k in range(4)]
            for s_ in range(7):
                for k in range(4): G(ops[k][s_])
            o=a0+{0:0,2:2,1:4,3:6}[a]
            G(f"v_cvt_pk_bf16_f32 v{o}, v{b}, v{b+1}"); G(f"v_cvt_pk_bf16_f32 v{o+1}, v{b+2}, v{b+3}")
        G(f"s_add_u32 s46, s47, {T*4096}")
        G.vm(f"buffer_store_dwordx4 v[{a0}:{a0+3}], v44, s[24:27], s46 offen sc1")
        hs[0]=G.vm(f"buffer_store_dwordx4 v[{a0+4}:{a0+7}], v44, s[24:27], s46 offen offset:512 sc1")
    G=Em()
    sta=G.lds("ds_read_b64 v[42:43], v45")
    G(f"v_min_u32 v30, 47, v2\nv_lshlrev_b32 v30, 3, v30"); G(f"v_add_u32 v31, {CSP4}, v30")
    for w in range(4): pr=G.lds(f"ds_read_b64 v[{208+2*w}:{209+2*w}], v31 offset:{384*w}")
    G(f"s_mul_i32 s37, s35, 384\ns_add_u32 s37, s37, {CSFW}"); G("v_add_u32 v30, s37, v30")
    G.wl(pr)
    G("v_add_f32 v208, v208, v210"); G("v_add_f32 v209, v209, v211"); G("v_add_f32 v212, v212, v214"); G("v_add_f32 v213, v213, v215")
    G("v_add_f32 v208, v208, v212"); G("v_add_f32 v209, v209, v213")
    fw_=G.lds("ds_write_b64 v30, v[208:209]"); G.wl(fw_)
    gelu_tile(G,0,208,30); gelu_tile(G,1,208,30)
    rd={}
    order=list(range(28,40))+list(range(0,28))
    def readsB2(n):
        u=order[n]; sg,t=divmod(u,4); base,ro=wf_addr(sg); fr=SBk[n%5]
        return [f"ds_read_b64_tr_b16 v[{fr+2*jj}:{fr+2*jj+1}], v{base} offset:{ro+(16*t+4*jj)*192+128}" for jj in range(2)]
    for n in range(4):
        for r in readsB2(n): rd[n]=E.lds(r)
    stampG(E,2)
    E.wl(cs_done); stampG(E,3); lds_arrive(E,6,3,8); stampG(E,4)
    M=Em(); a=ACC+32
    for n in range(40):
        u=order[n]
        M.wl(rd[n]); fr=SBk[n%5]
        cin_=("0" if n==0 else f"v[{a}:{a+15}]")
        M(f"v_mfma_f32_32x32x16_bf16 v[{a}:{a+15}], v[{fr}:{fr+3}], v[{XS+4*u}:{XS+4*u+3}], {cin_}")
        if n+4<40:
            for r in readsB2(n+4): rd[n+4]=M.lds(r)
        if n==4:
            x=Em()
            if INSTR and 'pB' in EXP: x("s_memtime s[86:87]")
            stampG(x,5); lds_wait(x,6,16,3,8); stampG(x,6); lds_wait(x,9,4,3,8); stampG(x,7)
            if INSTR and 'pB' in EXP: x("s_memtime s[88:89]")
            M.extend(x)
        if INSTR and 'pB' in EXP and n in (12,20,28,36): M(f"s_memtime s[{90+2*((n-12)//8)}:{91+2*((n-12)//8)}]")
        if n==12:
            x=Em(); lds_arrive(x,7,3,8); M.extend(x)
        if n>=4: M.slot(10)
    M.merge(G)
    E.extend(M)
    stamp8(E,7); stampG(E,8)
    E("s_nop 6")
    stamp(E,4)
    G=Em(); gelu_tile(G,2,208,30); E.extend(G)
    if 'nofprio' not in EXP: E("s_setprio %d"%(2 if 'f2prio' in EXP else 0))
    stamp8(E,8)
    hs=hs[0]
    E(f"s_lshl_b32 s59, s33, 4\ns_add_u32 s59, s59, s34\ns_lshl_b32 s59, s59, 7\ns_add_u32 s59, s59, {WS_FH}")
    E("s_and_b32 s37, s2, 7\ns_lshr_b32 s38, s2, 3")
    if 'map48' in EXP:
        E("s_lshl_b32 s33, s37, 2\ns_and_b32 s39, s38, 3\ns_add_u32 s33, s33, s39\ns_lshr_b32 s34, s38, 2")
    else:
        E("s_lshr_b32 s33, s37, 2\ns_lshl_b32 s33, s33, 4\ns_bfe_u32 s39, s37, 0x10001\ns_lshl_b32 s39, s39, 3\ns_add_u32 s33, s33, s39\ns_and_b32 s39, s38, 7\ns_add_u32 s33, s33, s39")
        E("s_and_b32 s34, s37, 1\ns_lshl_b32 s34, s34, 2\ns_lshr_b32 s39, s38, 3\ns_add_u32 s34, s34, s39")
    srd(E,8,P_WS,W2T_SZ,off=WS_W2T); srd(E,12,P_B2,1280); srd(E,20,P_OUT,2621440)
    E("v_lshrrev_b32 v3, 1, v2\nv_min_u32 v3, 16, v3\ns_mul_i32 s37, s35, 12\ns_mul_i32 s38, s35, 5\ns_add_u32 s38, s38, 36")
    E("v_add_u32 v4, s37, v3\nv_add_u32 v5, s38, v3\nv_cmp_gt_u32 vcc, 12, v3\ns_nop 1\nv_cndmask_b32 v4, v5, v4, vcc")
    E("s_mul_i32 s37, s34, 5\ns_lshr_b32 s38, s37, 2\ns_add_u32 s37, s37, 4\ns_lshr_b32 s39, s37, 2")
    E("v_and_b32 v5, 1, v2\nv_mov_b32 v6, s38\nv_mov_b32 v7, s39\nv_cmp_eq_u32 vcc, 0, v5\ns_nop 1\nv_cndmask_b32 v6, v7, v6, vcc")
    E(f"v_mul_u32_u24 v4, 10, v4\nv_add_u32 v4, v4, v6\nv_mul_u32_u24 v4, 683, v4\nv_lshrrev_b32 v4, 11, v4\nv_lshlrev_b32 v4, 7, v4\nv_add_u32 v4, {WS_FW}, v4")
    fw=E.vm("buffer_load_dword v8, v4, s[16:19], 0 offen sc1")
    E("v_mov_b32 v9, v4")
    E("v_lshlrev_b32 v3, 4, v2\nv_add_u32 v4, 4096, v3")
    E("v_and_b32 v5, 15, v2\ns_lshl_b32 s39, s33, 6\ns_lshl_b32 s40, s35, 4\ns_add_u32 s39, s39, s40\nv_add_u32 v5, s39, v5\nv_mul_u32_u24 v5, 1280, v5\nv_lshrrev_b32 v6, 4, v2\nv_lshlrev_b32 v6, 3, v6")
    E("s_mul_i32 s39, s34, 160\nv_add_u32 v6, s39, v6\nv_add_u32 v5, v5, v6")
    E("s_mul_i32 s40, s33, %d\ns_mul_i32 s41, s34, %d"%(68*4096,68*5120))
    E("s_mul_i32 s42, s35, 12\ns_mul_i32 s43, s35, 5\ns_add_u32 s43, s43, 48")
    E("s_lshl_b32 s44, s42, 12\ns_add_u32 s44, s44, s40\ns_mul_i32 s45, s42, 5120\ns_add_u32 s45, s45, s41")
    E("s_lshl_b32 s46, s43, 12\ns_add_u32 s46, s46, s40\ns_mul_i32 s47, s43, 5120\ns_add_u32 s47, s47, s41")
    ACC3=10; WB=[100+20*i for i in range(5)]; HB=[200,216,232]
    XR=90; B2R=248
    LW={}; LH={}
    def loadsW(i):
        b=WB[i%5]; ws_,ii=(45,i) if i<12 else (47,i-12)
        E(f"s_add_u32 s57, s{ws_}, {ii*5120}")
        for nt in range(4): E.vm(f"buffer_load_dwordx4 v[{b+4*nt}:{b+4*nt+3}], v3, s[8:11], s57 offen offset:{1024*nt} sc1")
        LW[i]=E.vm(f"buffer_load_dwordx4 v[{b+16}:{b+19}], v4, s[8:11], s57 offen sc1")
    def loadsH(i):
        b=HB[i%3]; hs_,ii=(44,i) if i<12 else (46,i-12)
        E(f"s_add_u32 s56, s{hs_}, {ii*4096}")
        for tt in range(4): LH[i]=E.vm(f"buffer_load_dwordx4 v[{b+4*tt}:{b+4*tt+3}], v3, s[24:27], s56 offen offset:{1024*tt} sc1")
    stamp4(E,5)
    E.wv(hs); stamp4(E,6); agg_flag(E,2,4,59,7,8) if False else None
    E.wv(fw)
    agg_flag(E,2,4,59,7,207)
    stamp(E,5)
    check_or_poll(E,9,8)
    for nt in range(5): E.vm(f"buffer_load_dwordx2 v[{XR+2*nt}:{XR+2*nt+1}], v5, s[4:7], 0 offen offset:{32*nt}")
    for i in range(5): loadsW(i)
    def group_addr(base,vd):
        E(f"v_and_b32 v{vd}, 3, v2\ns_lshl_b32 s37, s35, 2\nv_add_u32 v{vd}, s37, v{vd}\ns_lshr_b32 s37, s33, 1\ns_lshl_b32 s37, s37, 4\nv_add_u32 v{vd}, s37, v{vd}\nv_lshlrev_b32 v{vd}, 7, v{vd}\nv_add_u32 v{vd}, {base}, v{vd}")
    group_addr(WS_FH,7)
    poll_slow(E,7,8)
    stamp(E,6)
    group_addr(WS_FO,7)
    if 'fidle' in EXP: poll_slow(E,7,8)
    def mf(i):
        E.wv(LH[i]); E.wv(LW[i])
        b=WB[i%5]; h=HB[i%3]
        for nt in range(5):
            for tt in range(4):
                a=ACC3+16*nt+4*tt
                c_="0" if i==0 else f"v[{a}:{a+3}]"
                E(f"v_mfma_f32_16x16x32_bf16 v[{a}:{a+3}], v[{b+4*nt}:{b+4*nt+3}], v[{h+4*tt}:{h+4*tt+3}], {c_}")
    stamp9(E,1)
    for i in range(3): loadsH(i)
    for i in range(17):
        if i==1: stamp9(E,2)
        if i==6: stamp9(E,3)
        if i==8: fo=E.vm("buffer_load_dword v9, v7, s[16:19], 0 offen sc1")
        if i==9:
            stamp9(E,4); E.wv(fo); check_or_poll(E,7,9); stamp9(E,5)
        mf(i)
        if i+3<17: loadsH(i+3)
        if i+5<17: loadsW(i+5)
        if i==12:
            for nt in range(4): E.vm(f"buffer_load_dwordx2 v[{B2R+2*nt}:{B2R+2*nt+1}], v6, s[12:15], 0 offen offset:{32*nt}")
            b2l=E.vm(f"buffer_load_dwordx2 v[8:9], v6, s[12:15], 0 offen offset:128")
    stamp(E,7); stamp9(E,6)
    E("s_nop 15")
    E(f"s_mul_i32 s39, s35, 20480\ns_add_u32 s39, s39, {RED}\nv_add_u32 v7, s39, v3")
    for nt in range(5):
        for tt in range(4):
            a=ACC3+16*nt+4*tt
            w_=E.lds(f"ds_write_b128 v7, v[{a}:{a+3}] offset:{(nt*4+tt)*1024}")
    E.wl(w_); E("s_barrier"); stamp9(E,7)
    E(f"s_lshl_b32 s39, s35, 10\ns_add_u32 s39, s39, {RED}\nv_add_u32 v7, s39, v3\nv_add_u32 v2, 40960, v7")
    R=100
    for nt in range(5):
        for w in range(4):
            base=7 if w<2 else 2
            r_=E.lds(f"ds_read_b128 v[{R+16*nt+4*w}:{R+16*nt+4*w+3}], v{base} offset:{(w%2)*20480+nt*4096}")
    E.wv(b2l); E.wl(r_)
    for nt in range(5):
        b=R+16*nt
        for i in range(4): E(f"v_add_f32 v{b+i}, v{b+i}, v{b+4+i}\nv_add_f32 v{b+8+i}, v{b+8+i}, v{b+12+i}")
        for i in range(4): E(f"v_add_f32 v{b+i}, v{b+i}, v{b+8+i}")
        b2=(B2R+2*nt) if nt<4 else 8
        for (src,t0) in ((XR+2*nt,10),(b2,14)):
            E(f"v_lshlrev_b32 v{t0}, 16, v{src}\nv_and_b32 v{t0+1}, 0xffff0000, v{src}\nv_lshlrev_b32 v{t0+2}, 16, v{src+1}\nv_and_b32 v{t0+3}, 0xffff0000, v{src+1}")
        for i in range(4): E(f"v_add_f32 v{b+i}, v{b+i}, v{14+i}")
        for i in range(4): E(f"v_add_f32 v{b+i}, v{b+i}, v{10+i}")
        E(f"v_cvt_pk_bf16_f32 v{20+2*nt}, v{b}, v{b+1}\nv_cvt_pk_bf16_f32 v{21+2*nt}, v{b+2}, v{b+3}")
        E.st(f"buffer_store_dwordx2 v[{20+2*nt}:{21+2*nt}], v5, s[20:23], 0 offen offset:{32*nt} {'sc1' if 'outsc1' in EXP else ('nt' if 'outnt' in EXP else '')}")
    stamp(E,8); stamp9(E,8)
    stamp_flush(E,1)
    E.label("L_end"); E("s_endpgm"); E.label("L_codeend")
    return E


def gen_A():
    E=Em()
    if 'nopf' not in EXP:
        E("s_getpc_b64 s[56:57]\nL_pc:\ns_sub_u32 s56, s56, L_pc-%s\ns_subb_u32 s57, s57, 0"%KNAME)
        E("v_lshlrev_b32 v3, 7, v2\ns_lshl_b32 s37, s35, 13\nv_add_u32 v3, s37, v3\nv_add_u32 v8, 0x8000, v3\nv_min_u32 v8, L_codeend-%s-4, v8"%KNAME)
        E("v_mov_b32 v5, s57\nv_add_co_u32 v4, vcc, s56, v3\ns_nop 1\nv_addc_co_u32 v5, vcc, 0, v5, vcc")
        E.vm("global_load_dword v254, v[4:5], off")
        E("v_mov_b32 v5, s57\nv_add_co_u32 v4, vcc, s56, v8\ns_nop 1\nv_addc_co_u32 v5, vcc, 0, v5, vcc")
        E.vm("global_load_dword v255, v[4:5], off")
    E("v_and_b32 v3, 31, v2\ns_lshl_b32 s37, s35, 5\nv_add_u32 v3, s37, v3\nv_lshrrev_b32 v4, 5, v2\nv_bfe_u32 v5, v3, 1, 3\nv_xor_b32 v5, v5, v4\nv_lshlrev_b32 v3, 7, v3")
    for t in range(4): E(f"v_xor_b32 v6, {2*t}, v5\nv_lshl_add_u32 v{10+t}, v6, 4, v3\nv_add_u32 v{14+t}, 65536, v{10+t}")
    E("v_bfe_u32 v3, v2, 4, 1\nv_lshrrev_b32 v4, 5, v2\nv_bfe_u32 v5, v2, 2, 2\nv_and_b32 v6, 3, v2\nv_lshl_add_u32 v7, v4, 3, v5")
    E("v_lshlrev_b32 v8, 8, v7\nv_add_u32 v8, 16384, v8\nv_lshrrev_b32 v9, 1, v6\nv_lshl_add_u32 v9, v3, 1, v9\nv_lshl_add_u32 v8, v9, 4, v8\nv_and_b32 v9, 1, v6\nv_lshl_add_u32 v8, v9, 3, v8")
    for T in range(4): E(f"v_xor_b32 v9, {T}, v5\nv_lshl_add_u32 v{18+T}, v9, 6, v8\nv_add_u32 v{22+T}, 65536, v{18+T}")
    E("v_and_b32 v70, 31, v2\nv_lshrrev_b32 v71, 5, v2\ns_and_b32 s37, s34, 3\ns_lshl_b32 s37, s37, 5\ns_lshl_b32 s38, s33, 7\ns_add_u32 s37, s37, s38\nv_add_u32 v70, s37, v70\nv_mul_u32_u24 v70, 1280, v70\nv_lshl_add_u32 v70, v71, 7, v70")
    E("v_bfe_u32 v72, v2, 1, 3\nv_lshrrev_b32 v73, 4, v2\nv_lshl_add_u32 v72, v73, 6, v72\ns_and_b32 s37, s33, 7\ns_lshl_b32 s37, s37, 3\nv_add_u32 v72, s37, v72\nv_and_b32 v73, 1, v2\nv_lshlrev_b32 v73, 7, v73")
    E("v_mul_u32_u24 v74, 3840, v72\nv_add_u32 v74, v74, v73\nv_add_u32 v74, s41, v74\nv_mul_u32_u24 v75, 3072, v72\nv_add_u32 v75, v75, v73\nv_add_u32 v75, s42, v75")
    E("s_cmp_eq_u32 s35, 1\ns_cselect_b64 vcc, -1, 0\ns_nop 1\nv_cndmask_b32 v31, v70, v74, vcc\ns_cmp_eq_u32 s35, 2\ns_cselect_b64 vcc, -1, 0\ns_nop 1\nv_cndmask_b32 v31, v31, v75, vcc")
    E(f"s_mov_b32 s44, {3*128}\ns_mov_b32 s43, 512\ns_mov_b32 s40, 0x5\n"
      f"s_cmp_eq_u32 s35, 3\ns_cselect_b32 s44, {5*128}, s44\ns_cselect_b32 s40, 0xa, s40\n"
      f"s_cmp_eq_u32 s35, 1\ns_cselect_b32 s44, {3*64*3840}, s44\ns_cselect_b32 s43, {4*64*3840}, s43\n"
      f"s_cmp_eq_u32 s35, 2\ns_cselect_b32 s44, 0, s44\ns_cselect_b32 s43, {4*64*3072}, s43\ns_cselect_b32 s40, 0xe, s40")
    if 'wfonly' in EXP: E("s_cmp_eq_u32 s35, 2\ns_cselect_b32 s40, 0xe, 0")
    E("s_waitcnt lgkmcnt(0)")
    E("s_cmp_eq_u32 s35, 1\ns_cselect_b32 s48, s8, s4\ns_cselect_b32 s49, s9, s5\ns_cselect_b32 s50, s10, s6\ns_cmp_eq_u32 s35, 2\ns_cselect_b32 s48, s12, s48\ns_cselect_b32 s49, s13, s49\ns_cselect_b32 s50, s14, s50\ns_mov_b32 s51, 0x20000")
    def pfpoint(p):
        x=Em(); l=lab("pfp")
        if 'l2pf' in EXP:
            x(f"s_bitcmp1_b32 s40, {p}\ns_cbranch_scc0 {l}\nbuffer_load_dword v253, v31, s[48:51], s44 offen\ns_add_u32 s44, s44, s43\n{l}:")
        return x
    T_=Em()
    T_("s_mul_i32 s31, s2, 3\ns_add_u32 s31, s31, s35\ns_cmp_lt_u32 s35, 3\ns_cselect_b32 s31, s31, 1000\ns_min_u32 s31, s31, 680")
    T_("s_min_u32 s28, s31, 679\ns_mul_i32 s29, s28, 6554\ns_lshr_b32 s29, s29, 16\ns_mul_i32 s30, s29, 10\ns_sub_u32 s30, s28, s30")
    T_(f"s_cmp_ge_u32 s29, 48\ns_cselect_b32 s52, s{P_WO}, s{P_W2}\ns_cselect_b32 s53, s{P_WO+1}, s{P_W2+1}\ns_mov_b32 s54, {640*1280}\ns_cselect_b32 s54, s54, {1536*1280}\ns_mov_b32 s55, 0x20000\ns_cselect_b64 s[56:57], -1, 0")
    T_("v_lshrrev_b32 v84, 3, v2"); T_("v_and_b32 v85, 7, v2"); T_("s_lshl_b32 s28, s30, 7"); T_("v_lshl_add_u32 v85, v85, 4, s28")
    T_("s_sub_u32 s38, s29, 48\ns_lshl_b32 s58, s38, 2\ns_lshl_b32 s59, s29, 5"); T_("v_lshrrev_b32 v86, 5, v2"); T_("v_and_b32 v87, 3, v84")
    for i in range(4):
        half=i>>1
        for x in (f"v_add_u32 v88, {2*(i&1)}, v86","v_add_u32 v88, s58, v88","v_mul_u32_u24 v89, 205, v88","v_lshrrev_b32 v89, 10, v89","v_mul_u32_u24 v90, 5, v89","v_sub_u32 v90, v88, v90",
                  "v_lshrrev_b32 v91, 1, v90","v_and_b32 v92, 1, v90",f"v_add_u32 v92, {2*half}, v92"): T_(x)
        T_(f"v_cmp_eq_u32 vcc, 4, v90\nv_mov_b32 v88, {half}\nv_mov_b32 v90, 4\nv_cndmask_b32 v91, v91, v88, vcc\nv_cndmask_b32 v92, v92, v90, vcc")
        for x in ("v_lshl_add_u32 v91, v89, 1, v91","v_mul_u32_u24 v91, 20, v91","v_lshl_add_u32 v91, v92, 2, v91","v_add_u32 v91, v91, v87"): T_(x)
        T_(f"v_add_u32 v88, {8*i}, v84"); T_("v_add_u32 v88, s59, v88")
        T_("v_cndmask_b32 v91, v88, v91, s[56:57]")
        T_("v_mul_u32_u24 v91, 1280, v91"); T_("v_add_u32 v91, v91, v85")
        cld=T_.vm(f"buffer_load_dwordx4 v[{236+4*i}:{239+4*i}], v91, s[52:55], 0 offen")
    C2=Em()
    C2(f"s_mul_i32 s59, s35, 5120")
    C2("v_lshrrev_b32 v84, 3, v2"); C2("v_mul_u32_u24 v84, 160, v84"); C2("v_and_b32 v85, 7, v2"); C2("v_lshl_add_u32 v84, v85, 4, v84"); C2("v_add_u32 v84, s59, v84")
    C2.wv(cld)
    for i in range(4): cw=C2.lds(f"ds_write_b128 v84, v[{236+4*i}:{239+4*i}] offset:{8*160*i}")
    C2("v_lshrrev_b32 v85, 2, v2"); C2("v_mul_u32_u24 v85, 160, v85"); C2("v_and_b32 v86, 3, v2"); C2("v_lshl_add_u32 v85, v86, 3, v85"); C2("v_add_u32 v85, s59, v85")
    srd(C2,52,P_WS,W2T_SZ,off=WS_W2T)
    C2.wl(cw)
    for i in range(4):
        C2.lds(f"ds_read_b64_tr_b16 v[{236+4*i}:{237+4*i}], v85 offset:{32*i}")
        cr=C2.lds(f"ds_read_b64_tr_b16 v[{238+4*i}:{239+4*i}], v85 offset:{32*i+16*160}")
    C2("v_lshlrev_b32 v86, 4, v2")
    C2.wl(cr)
    l=lab("cst"); txt=f"s_cmp_lt_u32 s31, 680\ns_cbranch_scc0 {l}\n"
    for i in range(4):
        txt+=(f"s_lshl_b32 s37, s30, 2\ns_add_u32 s37, s37, {i}\ns_mul_i32 s38, s37, 205\ns_lshr_b32 s38, s38, 10\ns_mul_i32 s39, s38, 5\ns_sub_u32 s39, s37, s39\n"
              "s_mul_i32 s38, s38, 68\ns_add_u32 s38, s38, s29\ns_mul_i32 s38, s38, 5\ns_add_u32 s38, s38, s39\ns_lshl_b32 s38, s38, 10\n"
              f"buffer_store_dwordx4 v[{236+4*i}:{239+4*i}], v86, s[52:55], s38 offen sc1\n")
    C2(txt+f"{l}:")
    stamp(E,1)
    ACC=96; FR=(160,180,200)
    for r in range(64): E(f"v_mov_b32 v{ACC+r}, 0")
    F3=Em()
    F3(f"v_mov_b32 v3, {NON}"); nr=F3.lds("ds_read_b32 v62, v3"); F3.wl(nr); F3(f"s_nop 0\nv_readfirstlane_b32 s{S_NONCE}, v62")
    F3("v_and_b32 v3, 31, v2"); F3("s_lshl_b32 s37, s33, 7\ns_lshl_b32 s38, s35, 5\ns_add_u32 s37, s37, s38"); F3("v_add_u32 v3, s37, v3")
    F3("v_lshlrev_b32 v91, 3, v3"); F3("v_lshlrev_b32 v90, 4, v3")
    F4=Em()
    stl=F4.vm("buffer_load_dwordx4 v[92:95], v90, s[16:19], 0 offen sc1")
    def reads(u):
        tau,t=divmod(u,4); slot=tau%4; hi=slot>=2; fr=FR[u%3]; so=(slot&1)*SLOT
        L=[f"ds_read_b128 v[{fr}:{fr+3}], v{(14 if hi else 10)+t} offset:{so}"]
        for T in range(4):
            for jj in range(2):
                d=fr+4+4*T+2*jj
                L.append(f"ds_read_b64_tr_b16 v[{d}:{d+1}], v{(22 if hi else 18)+T} offset:{so+(16*t+4*jj)*256}")
        return L
    rd={}
    E("s_barrier"); stamp(E,2)
    for u in (0,1):
        for r in reads(u): rd[u]=E.lds(r)
    def steps(u0,u1,filler,per):
        M=Em()
        for u in range(u0,u1):
            tau,t=divmod(u,4); fr=FR[u%3]
            M.wl(rd[u])
            rl=reads(u+2) if u+2<40 else []
            cuts=[0,3,5,7,9]
            for T in range(4):
                a=ACC+16*T
                if "nomfma" not in EXP: M(f"v_mfma_f32_32x32x16_bf16 v[{a}:{a+15}], v[{fr+4+4*T}:{fr+7+4*T}], v[{fr}:{fr+3}], v[{a}:{a+15}]")
                for r in rl[cuts[T]:cuts[T+1]]: rd[u+2]=M.lds(r)
                M.slot(per)
        if filler: M.merge(filler)
        E.extend(M)
    PFS=[int(c) for c in (next((e[3:] for e in EXP if e.startswith("pfs")),"0123"))]
    def cat(*xs):
        y=Em()
        for x in xs:
            if x: y.it+=x.it
        return y
    def fl(iv,base=None):
        return cat(*[pfpoint(p) for p in range(4) if PFS[p]==iv],base)
    steps(0,2,fl(0),5); E("s_barrier")
    for b in range(2,10):
        steps(4*b-6,4*b-2,fl(b-1,{6:F3,8:F4}.get(b)),3); E("s_barrier")
    steps(34,40,None,0)
    lds_arrive(E,5,3,4)
    stamp(E,3)
    srd(E,20,P_WS,3*QKV_SZ,off=WS_Q)
    E("s_cmp_eq_u32 s34, 15\ns_cselect_b32 s22, 0, s22")
    E("s_mul_i32 s45, s34, 205\ns_lshr_b32 s45, s45, 10\ns_mul_i32 s46, s45, 5\ns_sub_u32 s46, s34, s46")
    E(f"v_lshrrev_b32 v4, 5, v2\nv_lshlrev_b32 v26, 4, v4\nv_add_u32 v26, {CSF}, v26\nv_lshlrev_b32 v4, 14, v4\nv_add_u32 v91, v91, v4")
    E(f"v_and_b32 v8, 31, v2\ns_lshl_b32 s37, s35, 5\nv_add_u32 v8, s37, v8\nv_lshlrev_b32 v8, 3, v8\nv_add_u32 v8, {STA}, v8")
    E.wv(stl)
    l0=lab("sp"); l1=lab("spd")
    E(f"v_cmp_ne_u32 vcc, s{S_NONCE}, v95\ns_cbranch_vccz {l1}\ns_mov_b32 s37, 0\n{l0}:\nbuffer_load_dwordx4 v[92:95], v90, s[16:19], 0 offen sc1\ns_waitcnt vmcnt(0)\n"
      f"v_cmp_ne_u32 vcc, s{S_NONCE}, v95\ns_cbranch_vccz {l1}\ns_add_u32 s37, s37, 1\ns_cmp_lt_u32 s37, {POLL_MAX}\ns_cbranch_scc0 {l1}\ns_sleep 2\ns_branch {l0}\n{l1}:")
    E("v_mul_f32 v6, v92, v94\nv_sub_f32 v6, 0, v6\nv_mov_b32 v7, v94")
    sw=E.lds("ds_write_b64 v8, v[6:7]")
    E(f"v_mul_f32 v94, {fhex(CQ)}, v93\ns_cmp_eq_u32 s45, 0\ns_cselect_b64 vcc, -1, 0\ns_nop 1\nv_cndmask_b32 v93, v93, v94, vcc\nv_sub_f32 v92, 0, v92")
    E(f"s_mul_i32 s45, s45, {QKV_SZ}\ns_lshl_b32 s46, s46, 19\ns_add_u32 s45, s45, s46")
    E.wl(sw); lds_arrive(E,9,3,4)
    stamp3(E,2)
    lds_wait(E,8,4,3,4)
    stamp3(E,3)
    crs=[]
    for T in range(4):
        for a in range(4): cr=E.lds(f"ds_read_b128 v[{160+16*T+4*a}:{163+16*T+4*a}], v26 offset:{128*T+32*a}")
        crs.append(cr)
    for T in range(4):
        E.wl(crs[T])
        for a in range(4):
            b=ACC+16*T+4*a; c=160+16*T+4*a
            for i in range(4): E(f"v_fma_f32 v{b+i}, v92, v{c+i}, v{b+i}")
            for i in range(4): E(f"v_mul_f32 v{b+i}, v{b+i}, v93")
            o=40+2*((4*T+a)%8)
            E(f"v_cvt_pk_bf16_f32 v{o}, v{b}, v{b+1}\nv_cvt_pk_bf16_f32 v{o+1}, v{b+2}, v{b+3}")
            E(f"s_add_u32 s46, s45, {(8*T+2*a)*16384}")
            qs=E.st(f"buffer_store_dwordx2 v[{o}:{o+1}], v91, s[20:23], s46 offen sc1")
    stamp3(E,4)
    E.wv(qs)
    stamp3(E,7)
    E(f"s_lshl_b32 s38, s33, 4\ns_add_u32 s38, s38, s34\ns_lshl_b32 s38, s38, 7\ns_add_u32 s38, s38, {WS_FQ}")
    agg_flag(E,0,4,38,3,4)
    stamp3(E,8)
    stamp(E,4)
    E.extend(T_)
    lds_wait(E,5,4,3,4)
    E.extend(C2)
    E(f"s_mov_b32 s22, {3*QKV_SZ}")
    srd(E,24,P_WS,HO_SZ,off=WS_HO)
    E("s_mul_i32 s37, s34, 10\ns_lshr_b32 s38, s37, 5\ns_add_u32 s37, s37, 9\ns_lshr_b32 s39, s37, 5")
    E("v_min_u32 v3, 13, v2\nv_mul_u32_u24 v4, 43, v3\nv_lshrrev_b32 v4, 8, v4\nv_mul_u32_u24 v5, 6, v4\nv_sub_u32 v5, v3, v5")
    E("v_mul_u32_u24 v6, 86, v5\nv_lshrrev_b32 v6, 8, v6\nv_mul_u32_u24 v7, 3, v6\nv_sub_u32 v7, v5, v7")
    E("v_cmp_eq_u32 vcc, 2, v4\nv_mov_b32 v8, 0\ns_nop 0\nv_cndmask_b32 v6, v6, v5, vcc\nv_cndmask_b32 v7, v7, v8, vcc")
    E("v_add_u32 v8, 1, v4\nv_mul_u32_u24 v8, 5, v8\nv_cmp_eq_u32 vcc, 15, v8\nv_mov_b32 v9, 0\ns_nop 0\nv_cndmask_b32 v8, v8, v9, vcc")
    E("v_mov_b32 v9, s38\nv_mov_b32 v20, s39\nv_cmp_eq_u32 vcc, 0, v6\ns_nop 1\nv_cndmask_b32 v9, v20, v9, vcc\nv_add_u32 v8, v8, v9")
    E(f"v_sub_u32 v9, s33, v7\nv_max_i32 v9, 0, v9\nv_lshl_add_u32 v8, v9, 4, v8\nv_lshlrev_b32 v8, 7, v8\nv_add_u32 v8, {WS_FQ}, v8")
    E("v_mov_b32 v10, 0x3f80\nv_mov_b32 v11, 0\nv_lshlrev_b32 v4, 3, v0")
    E.lds(f"ds_write_b64 v4, v[10:11] offset:{ONE0}"); E(f"v_add_u32 v5, {ONE1}, v4"); E.lds("ds_write_b64 v5, v[10:11]")
    E("v_min_u32 v6, 127, v0\nv_lshlrev_b32 v6, 3, v6"); E.lds(f"ds_write_b64 v6, v[10:11] offset:{ONE0+2048}"); E(f"v_add_u32 v6, {ONE1}, v6"); E.lds("ds_write_b64 v6, v[10:11] offset:2048")
    E("s_cmp_lt_u32 s33, 2\ns_cselect_b32 s56, 0x40000000, 0\ns_cmp_lt_u32 s33, 1\ns_cselect_b32 s57, 0x40000000, 0")
    E("s_lshl_b32 s40, s33, 10\ns_sub_u32 s40, s40, 2048\ns_mul_i32 s41, s34, %d\ns_add_u32 s40, s40, s41\ns_add_u32 s40, s40, %d"%(10*16384,QKV_SZ))
    E(f"s_lshl_b32 s41, s35, 14\ns_add_u32 s28, s40, s41\ns_mul_i32 s42, s35, {GS}\ns_add_u32 s29, s28, {4*16384}")
    E(f"s_cmp_ge_u32 s35, 2\ns_cselect_b32 s45, {QKV_SZ-10*16384}, 0\ns_add_u32 s30, s28, s45\ns_add_u32 s30, s30, {8*16384}\ns_add_u32 s31, s28, {12*16384+QKV_SZ-10*16384}")
    E("s_waitcnt vmcnt(0) lgkmcnt(0)")
    E(f"s_lshl_b32 s38, s2, 7\ns_add_u32 s38, s38, {WS_FW}")
    agg_flag(E,1,4,38,3,4)
    lds_wait(E,7,4,3,4,2)
    stamp5(E,4)
    if 'fq' in EXP:
        E("buffer_load_dword v9, v8, s[16:19], 0 offen sc1\ns_waitcnt vmcnt(0)"); stamp5(E,5)
    if 'nopollq' not in EXP: poll_leader(E,8,9,20,NON+16)
    E("v_lshlrev_b32 v3, 4, v2")
    stamp(E,5); stamp4(E,1); stamp5(E,6)
    for n in range(5):
        for p in range(3):
            oob={0:"s_add_u32 s47, s47, s56\n",1:"s_add_u32 s47, s47, s57\n",2:""}[p]
            E.vm(f"s_add_u32 m0, s42, {4*n*GS+1024*p}\ns_add_u32 s47, s{28+min(n,3)}, {1024*p+(4*16384 if n==4 else 0)}\n{oob}buffer_load_dwordx4 v3, s[20:23], s47 offen sc1 lds")
    E("v_and_b32 v5, 31, v2\nv_lshrrev_b32 v6, 5, v2\ns_lshl_b32 s40, s33, 7\ns_lshl_b32 s41, s35, 5\ns_add_u32 s40, s40, s41")
    E("v_add_u32 v7, s40, v5\nv_lshlrev_b32 v7, 3, v7\nv_lshl_add_u32 v8, v6, 15, v7")
    for e,QF in ((0,12),(1,232)):
        E(f"s_mul_i32 s41, s34, 10\ns_add_u32 s41, s41, {5*e}\ns_lshl_b32 s41, s41, 14")
        E.vm(f"buffer_load_dwordx2 v[{QF}:{QF+1}], v8, s[20:23], s41 offen sc1"); E("s_add_u32 s42, s41, 16384")
        E.vm(f"buffer_load_dwordx2 v[{QF+2}:{QF+3}], v8, s[20:23], s42 offen sc1"); E("s_add_u32 s42, s41, 65536")
        E.vm(f"buffer_load_dwordx2 v[{QF+4}:{QF+5}], v7, s[20:23], s42 offen sc1")
        E(f"v_mov_b32 v{QF+6}, 0\nv_mov_b32 v{QF+7}, 0")
    stamp4(E,2)
    E("s_waitcnt vmcnt(0) lgkmcnt(0)")
    stamp4(E,3)
    E("v_cmp_eq_u32 vcc, 0, v6\ns_nop 1")
    for QF in (12,232): E(f"v_cndmask_b32 v{QF+4}, 0, v{QF+4}, vcc\nv_cndmask_b32 v{QF+5}, 0, v{QF+5}, vcc")
    l0=lab("kv"); l1=lab("kvd")
    E(f"v_mov_b32 v9, {CNT+16}\nv_mov_b32 v10, 1\ns_mov_b64 exec, 1\nds_add_u32 v9, v10\ns_mov_b64 exec, -1\ns_mov_b32 s37, 0\n{l0}:\nds_read_b32 v10, v9\ns_waitcnt lgkmcnt(0)\n"
      f"v_cmp_ne_u32 vcc, 4, v10\ns_cbranch_vccz {l1}\ns_add_u32 s37, s37, 1\ns_cmp_lt_u32 s37, {POLL_MAX*8}\ns_cbranch_scc0 {l1}\ns_sleep 1\ns_branch {l0}\n{l1}:")
    stamp(E,6); stamp4(E,4)
    attention(E)
    return E


def attention_fast(E):
    KF=32; SB=(104,120,136); PB=(152,160); O=168; CN=184; M0=200; M8=216; Q1=232; VB_=(240,248); QF=12
    PM0=None
    NEG=fhex(-1e30)
    E(f"s_lshl_b32 s43, s35, 8\nv_lshlrev_b32 v9, 3, v5\nv_add_u32 v9, s43, v9\nv_mul_u32_u24 v20, {2*GS}, v6\nv_add_u32 v20, v20, v9\nv_add_u32 v21, {4*GS}, v9")
    kr={}
    def kreads(e,ts):
        for t in ts:
            kf=KF+8*t; o=5*GS*e
            E.lds(f"ds_read_b64 v[{kf}:{kf+1}], v20 offset:{o+256*t}"); E.lds(f"ds_read_b64 v[{kf+2}:{kf+3}], v20 offset:{o+256*t+GS}")
            kr[t]=E.lds(f"ds_read_b64 v[{kf+4}:{kf+5}], v21 offset:{o+256*t}")
    E("s_lshl_b32 s46, s33, 2\ns_add_u32 s46, s46, s35\ns_sub_i32 s46, 8, s46\ns_max_i32 s46, s46, 0")
    for t in range(9):
        if t<8: E(f"s_cmp_gt_u32 s46, {t}\ns_cselect_b32 s47, 0xff7f, 0\nv_mov_b32 v{KF+8*t+6}, s47\nv_mov_b32 v{KF+8*t+7}, 0")
        else: E(f"v_mov_b32 v{KF+8*t+6}, 0\nv_mov_b32 v{KF+8*t+7}, 0")
    E(f"v_cmp_eq_u32 vcc, 0, v6\nv_mov_b32 v7, 0x3f80\ns_nop 0\nv_cndmask_b32 v{QF+6}, 0, v7, vcc\nv_mov_b32 v{Q1+6}, v{QF+6}")
    kreads(0,range(9))
    E("v_bfe_u32 v22, v2, 4, 1\nv_and_b32 v23, 3, v2\nv_bfe_u32 v24, v2, 2, 2\nv_lshl_add_u32 v24, v6, 2, v24\nv_lshlrev_b32 v24, 3, v24\nv_add_u32 v24, s43, v24")
    E(f"v_lshl_add_u32 v25, v22, 2, v23\nv_mul_u32_u24 v26, {GS}, v25\nv_add_u32 v26, {VB}, v26\nv_cmp_lt_u32 vcc, 4, v25\nv_mov_b32 v7, {ONE0}\nv_mov_b32 v8, {ONE1}")
    E(f"v_cndmask_b32 v22, v26, v7, vcc\nv_add_u32 v26, {5*GS}, v26\nv_cndmask_b32 v23, v26, v8, vcc\nv_add_u32 v22, v22, v24\nv_add_u32 v23, v23, v24")
    E(f"v_mov_b32 v28, {NEG}\nv_mov_b32 v27, 0\nv_lshlrev_b32 v29, 2, v6\nv_sub_u32 v29, v5, v29")
    for r in range(16):
        kk=8*(r>>2)+(r&3)
        E(f"v_cmp_le_i32 vcc, {kk}, v29\ns_nop 1\nv_cndmask_b32 v{M8+r}, v28, v27, vcc\nv_cndmask_b32 v{M0+r}, v27, v28, vcc")
    E("v_bfe_u32 v24, v2, 4, 1\nv_lshlrev_b32 v24, 10, v24\nv_and_b32 v25, 15, v2\nv_lshl_add_u32 v24, v25, 4, v24")
    E("s_lshl_b32 s42, s33, 1\ns_lshr_b32 s43, s35, 1\ns_add_u32 s42, s42, s43\ns_mul_i32 s42, s42, 68\ns_add_u32 s42, s42, 48\ns_lshl_b32 s42, s42, 12\ns_and_b32 s43, s35, 1\ns_lshl_b32 s43, s43, 11\ns_add_u32 s42, s42, s43")
    E("s_mul_i32 s40, s34, 5")
    def qk(t,cinit):
        kf=KF+8*t; d=SB[t%3]
        return [f"v_mfma_f32_32x32x16_bf16 v[{d}:{d+15}], v[{kf}:{kf+3}], v[{QF}:{QF+3}], {cinit}",
                f"v_mfma_f32_32x32x16_bf16 v[{d}:{d+15}], v[{kf+4}:{kf+7}], v[{QF+4}:{QF+7}], v[{d}:{d+15}]"]
    def maxes(t,first):
        d=SB[t%3]; L=[]
        for i in range(8):
            acc=30+(i&1)
            if first and i<2: L.append(f"v_max_f32 v{acc}, v{d+2*i}, v{d+2*i+1}")
            else: L.append(f"v_max3_f32 v{acc}, v{acc}, v{d+2*i}, v{d+2*i+1}")
        return L
    for e in range(2):
        va=22+e
        stamp6(E,1) if e==0 else stamp6(E,5)
        vr_={}
        def vreads(t):
            vf=VB_[t%2]
            for m in range(2):
                E.lds(f"ds_read_b64_tr_b16 v[{vf+4*m}:{vf+4*m+1}], v{va} offset:{256*t+128*m}")
                vr_[t]=E.lds(f"ds_read_b64_tr_b16 v[{vf+4*m+2}:{vf+4*m+3}], v{va} offset:{256*t+128*m+64}")
        def cin(t): return f"v[{M0}:{M0+15}]" if t==0 else (f"v[{M8}:{M8+15}]" if t==8 else "0")
        vreads(0)
        E.wl(kr[0])
        for x in qk(0,cin(0)): E(x)
        E.wl(kr[1])
        for x in qk(1,cin(1)): E(x)
        vreads(1)
        E("s_nop 5")
        def pv(t):
            vf=VB_[t%2]; p=PB[t%2]
            c0 = "0" if t==0 else f"v[{O}:{O+15}]"
            return [f"v_mfma_f32_32x32x16_bf16 v[{O}:{O+15}], v[{vf}:{vf+3}], v[{p}:{p+3}], {c0}",
                    f"v_mfma_f32_32x32x16_bf16 v[{O}:{O+15}], v[{vf+4}:{vf+7}], v[{p+4}:{p+7}], v[{O}:{O+15}]"]
        for t in range(9):
            d=SB[t%3]; p=PB[t%2]
            nx=qk(t+2,cin(t+2)) if t+2<9 else []
            pp=pv(t-1) if t>=1 else []
            if t>=1: E.wl(vr_[t-1])
            if nx: E.wl(kr[t+2])
            mf=[]
            if pp: mf+=[pp[0]]
            if nx: mf+=[nx[0]]
            if pp: mf+=[pp[1]]
            if nx: mf+=[nx[1]]
            k=0
            for g in range(4):
                for r in range(4*g,4*g+4): E(f"v_exp_f32 v{d+r}, v{d+r}")
                if k<len(mf): E(mf[k]); k+=1
            while k<len(mf): E(mf[k]); k+=1
            if t>=1 and t+1<9: vreads(t+1)
            for r in range(8): E(f"v_cvt_pk_bf16_f32 v{p+r}, v{d+2*r}, v{d+2*r+1}")
            if e==0 and t==6: kreads(1,range(0,5))
            if e==0 and t==7: kreads(1,range(5,9))
        E.wl(vr_[8]); E("s_nop 1")
        for x in pv(8): E(x)
        stamp6(E,4) if e==0 else stamp6(E,7)
        PK=SB[0]
        E(f"s_add_u32 s41, s40, {2*e}")
        E("v_add_u32 v10, s41, v6\nv_lshrrev_b32 v11, 2, v10\nv_lshlrev_b32 v11, 12, v11\nv_and_b32 v10, 3, v10\nv_lshl_add_u32 v11, v10, 8, v11\nv_add_u32 v11, v11, v24")
        E(f"s_add_u32 s45, s40, 4\ns_lshr_b32 s44, s45, 2\ns_lshl_b32 s44, s44, 12\ns_and_b32 s45, s45, 3\ns_lshl_b32 s45, s45, 8\ns_add_u32 s44, s44, s45\ns_add_u32 s44, s44, {8*e}\ns_add_u32 s44, s44, s42")
        E(f"s_nop 1\nv_mov_b32 v30, v{O+8}\nv_mov_b32 v31, v{O+8}\ns_nop 1\nv_permlane32_swap_b32 v30, v31\ns_nop 1")
        E(f"v_mov_b32 v29, {fhex(2.0**60)}\nv_cmp_nle_f32 vcc, v31, v29\nv_mov_b32 v29, {fhex(2.0**-60)}\nv_cmp_nge_f32 s[56:57], v31, v29\ns_nop 1\ns_or_b64 vcc, vcc, s[56:57]\ns_mov_b32 s36, {e}")
        if 'forcefb' in EXP: E("s_mov_b64 vcc, -1")
        E("s_cbranch_vccnz L_att_fb")
        E("v_rcp_f32 v31, v31\ns_nop 0")
        for r in range(12): E(f"v_mul_f32 v{O+r}, v{O+r}, v31")
        for r in range(6): E(f"v_cvt_pk_bf16_f32 v{PK+r}, v{O+2*r}, v{O+2*r+1}")
        E(f"buffer_store_dwordx4 v[{PK}:{PK+3}], v11, s[24:27], s42 offen sc1")
        E(f"s_mov_b32 exec_hi, 0\nbuffer_store_dwordx2 v[{PK+4}:{PK+5}], v24, s[24:27], s44 offen sc1\ns_mov_b64 exec, -1")
        if e==0:
            for r in range(8): E(f"v_mov_b32 v{12+r}, v{Q1+r}")
    E("s_branch L_att_done")

def att_out(E,O,loop,Q1,PK):
    E(f"s_nop 7\nv_mov_b32 v30, v{O+8}\nv_mov_b32 v31, v{O+8}\ns_nop 1\nv_permlane32_swap_b32 v30, v31\ns_nop 1\nv_rcp_f32 v31, v31\ns_nop 0")
    for r in range(12): E(f"v_mul_f32 v{O+r}, v{O+r}, v31")
    for r in range(6): E(f"v_cvt_pk_bf16_f32 v{PK+r}, v{O+2*r}, v{O+2*r+1}")
    E("s_mul_i32 s40, s34, 5\ns_lshl_b32 s41, s36, 1\ns_add_u32 s41, s41, s40")
    E("v_add_u32 v10, s41, v6\nv_lshrrev_b32 v11, 2, v10\nv_lshlrev_b32 v11, 12, v11\nv_and_b32 v10, 3, v10\nv_lshl_add_u32 v11, v10, 8, v11")
    E("v_bfe_u32 v23, v2, 4, 1\nv_lshlrev_b32 v23, 10, v23\nv_and_b32 v24, 15, v2\nv_lshl_add_u32 v23, v24, 4, v23\nv_add_u32 v11, v11, v23")
    E("s_lshl_b32 s42, s33, 1\ns_lshr_b32 s43, s35, 1\ns_add_u32 s42, s42, s43\ns_mul_i32 s42, s42, 68\ns_add_u32 s42, s42, 48\ns_lshl_b32 s42, s42, 12\ns_and_b32 s43, s35, 1\ns_lshl_b32 s43, s43, 11\ns_add_u32 s42, s42, s43")
    E(f"buffer_store_dwordx4 v[{PK}:{PK+3}], v11, s[24:27], s42 offen sc1")
    E("s_add_u32 s40, s40, 4\ns_lshr_b32 s44, s40, 2\ns_lshl_b32 s44, s44, 12\ns_and_b32 s45, s40, 3\ns_lshl_b32 s45, s45, 8\ns_add_u32 s44, s44, s45\ns_lshl_b32 s45, s36, 3\ns_add_u32 s44, s44, s45\ns_add_u32 s44, s44, s42")
    E(f"s_mov_b32 exec_hi, 0\nbuffer_store_dwordx2 v[{PK+4}:{PK+5}], v23, s[24:27], s44 offen sc1\ns_mov_b64 exec, -1")
    E(f"s_cmp_eq_u32 s36, 1\ns_cbranch_scc1 L_att_done")
    for r in range(8): E(f"v_mov_b32 v{12+r}, v{Q1+r}")
    E(f"s_mov_b32 s36, 1\ns_branch {loop}")
def attention_slow(E):
    E("s_mov_b32 s36, 0")
    E.label("L_att_fb")
    E("s_waitcnt lgkmcnt(0)\nv_mov_b32 v18, 0\nv_mov_b32 v238, 0")
    E("s_lshl_b32 s46, s33, 2\ns_add_u32 s46, s46, s35\ns_sub_i32 s46, 8, s46\ns_max_i32 s46, s46, 0")
    E.label("L_att")
    E(f"s_mul_i32 s42, s36, {5*GS}\ns_lshl_b32 s43, s35, 8\ns_add_u32 s42, s42, s43")
    E(f"v_lshlrev_b32 v9, 3, v5\nv_add_u32 v9, s42, v9\nv_mul_u32_u24 v20, {2*GS}, v6\nv_add_u32 v20, v20, v9\nv_add_u32 v21, {4*GS}, v9")
    E("v_bfe_u32 v22, v2, 4, 1\nv_and_b32 v23, 3, v2\nv_bfe_u32 v24, v2, 2, 2\nv_lshl_add_u32 v24, v6, 2, v24\nv_lshlrev_b32 v24, 3, v24\nv_add_u32 v24, s43, v24")
    E(f"v_lshl_add_u32 v25, v22, 2, v23\nv_mul_u32_u24 v26, {GS}, v25\ns_mul_i32 s44, s36, {5*GS}\ns_add_u32 s44, s44, {VB}\nv_add_u32 v26, s44, v26")
    E(f"s_mov_b32 s45, {ONE1}\ns_cmp_eq_u32 s36, 0\ns_cselect_b32 s45, {ONE0}, s45\nv_mov_b32 v27, s45\nv_cmp_lt_u32 vcc, 4, v25\ns_nop 1\nv_cndmask_b32 v26, v26, v27, vcc\nv_add_u32 v22, v26, v24")
    S=32; KF=176; QF=12
    for st in range(2): E(f"v_mov_b32 v{KF+8*st+6}, 0\nv_mov_b32 v{KF+8*st+7}, 0")
    E(f"v_mov_b32 v28, {fhex(-1e30)}")
    for t in range(9):
        kf=KF+8*(t%2); d=S+16*t; skip=lab("ts"); done=lab("td")
        E(f"s_cmp_gt_u32 s46, {t}\ns_cbranch_scc1 {skip}")
        E(f"ds_read_b64 v[{kf}:{kf+1}], v20 offset:{256*t}\nds_read_b64 v[{kf+2}:{kf+3}], v20 offset:{256*t+GS}\nds_read_b64 v[{kf+4}:{kf+5}], v21 offset:{256*t}\ns_waitcnt lgkmcnt(0)")
        E(f"v_mfma_f32_32x32x16_bf16 v[{d}:{d+15}], v[{kf}:{kf+3}], v[{QF}:{QF+3}], 0\nv_mfma_f32_32x32x16_bf16 v[{d}:{d+15}], v[{kf+4}:{kf+7}], v[{QF+4}:{QF+7}], v[{d}:{d+15}]")
        E(f"s_branch {done}"); E.label(skip)
        for r in range(16): E(f"v_mov_b32 v{d+r}, v28")
        E.label(done)
    E("s_nop 15\nv_lshlrev_b32 v29, 2, v6\nv_sub_u32 v29, v5, v29")
    for r in range(16):
        kk=8*(r>>2)+(r&3)
        E(f"v_cmp_le_i32 vcc, {kk}, v29\ns_nop 1\nv_cndmask_b32 v{S+128+r}, v28, v{S+128+r}, vcc\nv_cndmask_b32 v{S+r}, v{S+r}, v28, vcc")
    E(f"v_max3_f32 v30, v{S}, v{S+1}, v{S+2}")
    r=3
    while r<144:
        if r+1<144: E(f"v_max3_f32 v30, v30, v{S+r}, v{S+r+1}"); r+=2
        else: E(f"v_max_f32 v30, v30, v{S+r}"); r+=1
    E("v_mov_b32 v31, v30\nv_mov_b32 v29, v30\ns_nop 1\nv_permlane32_swap_b32 v31, v29\ns_nop 1\nv_max_f32 v30, v31, v29")
    for t in range(9):
        d=S+16*t
        for r in range(16): E(f"v_sub_f32 v{d+r}, v{d+r}, v30")
        for r in range(16): E(f"v_exp_f32 v{d+r}, v{d+r}")
        E("s_nop 0")
        for r in range(8): E(f"v_cvt_pk_bf16_f32 v{d+r}, v{d+2*r}, v{d+2*r+1}")
    O=192; VF=208
    for r in range(16): E(f"v_mov_b32 v{O+r}, 0")
    for t in range(9):
        d=S+16*t; vf=VF+8*(t%2); skip=lab("ps")
        E(f"s_cmp_gt_u32 s46, {t}\ns_cbranch_scc1 {skip}")
        for m in range(2):
            E(f"ds_read_b64_tr_b16 v[{vf+4*m}:{vf+4*m+1}], v22 offset:{256*t+128*m}\nds_read_b64_tr_b16 v[{vf+4*m+2}:{vf+4*m+3}], v22 offset:{256*t+128*m+64}")
        E("s_waitcnt lgkmcnt(0)")
        for m in range(2): E(f"v_mfma_f32_32x32x16_bf16 v[{O}:{O+15}], v[{vf+4*m}:{vf+4*m+3}], v[{d+4*m}:{d+4*m+3}], v[{O}:{O+15}]")
        E.label(skip)
    E("s_nop 7")
    att_out(E,O,"L_att",232,224)

def attention(E):
    if 'noaprio' not in EXP: E("s_setprio 1")
    attention_fast(E)
    E.label("L_att_slow")
    attention_slow(E)
    E.label("L_att_done")
    stamp(E,7)
    E("s_waitcnt vmcnt(0)")
    E(f"s_lshl_b32 s38, s33, 4\ns_add_u32 s38, s38, s34\ns_lshl_b32 s38, s38, 7\ns_add_u32 s38, s38, {WS_FO}")
    agg_flag(E,3,4,38,3,4)
    stamp(E,8)
    stamp_flush(E)
    E("s_endpgm")

DESC='; ---------------------------------------------------------------------------------------------------------------\n;   out = x + attn(LN(x)) @ wo + gelu(LN(LN(x)) @ w1 + b1) @ w2 + b2          (sliding window 256, 32 heads x 20)\n; LayerNorm is folded into the GEMM epilogues:  LN(x) @ W = r * (x @ W - mean * colsum(W)); LN(LN(x)) = LN(x) * r2.\n; Waves 0-3 ("A"): QKV GEMM tile (128 tokens x 128 columns) -> q/k/v hand-off -> attention of (128 queries x 2 heads).\n; ---------------------------------------------------------------------------------------------------------------\n'
def build():
    hdr=open("parallel_sum__sliding_block__mixer_channel_mlp__prompt.s.ref").read().split("; Override")[0]
    s=hdr+f"; @launch grid=(256,1,1) block=(512,1,1) lds={LDS_TOTAL}\n"
    s+='.amdgcn_target "amdgcn-amd-amdhsa--gfx950"\n.text\n'+DESC+kernel_header(KNAME)
    s+=prologue().text()+gen_A().text()+gen_F().text()
    s+='.section .rodata,"a"\n'+kernel_desc(KNAME,sgpr=102)
    return s
if __name__=="__main__":
    out=sys.argv[1] if len(sys.argv)>1 else "parallel_sum__sliding_block__mixer_channel_mlp__prompt.s"
    if len(sys.argv)>2 and sys.argv[2]=="instr": INSTR=True
    if len(sys.argv)>3: EXP.update(sys.argv[3].split(","))
    for e in EXP:
        if e.startswith("sleep"): SLEEP=int(e[5:])
    open(out,"w").write(build())
```
